```python
import torch

def _softmax(x, axis=-1):
    return torch.softmax(x, dim=axis)

def _gelu(x):
    return torch.nn.functional.gelu(x, approximate='tanh')

def _silu(x):
    return torch.nn.functional.silu(x)

def _sigmoid(x):
    return torch.sigmoid(x)

def _layernorm(x, axis=-1, eps=1e-05):
    m = x.mean(dim=axis, keepdim=True)
    v = x.var(dim=axis, keepdim=True, unbiased=False)
    return (x - m) / torch.sqrt(v + eps)

def _scatter_add(tgt, idx, src, axis=0):
    return tgt.clone().index_add_(axis, idx, src)

def _segment_sum(src, seg, n):
    out = torch.zeros((n,) + src.shape[1:], dtype=src.dtype)
    return out.index_add_(0, seg, src)

def _pad(x, pw):
    flat = tuple((v for pair in reversed(pw) for v in pair))
    return torch.nn.functional.pad(x, flat)
kernel_name = 'adaLN_cond__sliding_block_cached__geglu_ffn__decode'

def setup_inputs():

    _w = lambda a: (lambda t: t.to(torch.bfloat16) if t.is_floating_point() else t)(torch.as_tensor(a))

    def _A_setup():
        B, Sq, D = (1, 1, 576)
        Hq, Hkv, Sk, Dh = (32, 16, 65536, 128)
        assert Hq % Hkv == 0, (Hq, Hkv)
        return {'x': _w((lambda *s: torch.randn(*s, dtype=torch.bfloat16) * 0.05)(B, Sq, D)), 'k_cache': _w((lambda *s: torch.randn(*s, dtype=torch.bfloat16) * 3.2)(B, Hkv, Sk, Dh)), 'v_cache': _w((lambda *s: torch.randn(*s, dtype=torch.bfloat16) * 0.4)(B, Hkv, Sk, Dh)), 'wq': _w((lambda *s: torch.randn(*s, dtype=torch.bfloat16) * 3.2)(D, Hq * Dh) * D ** (-0.5)), 'wo': _w((lambda *s: torch.randn(*s, dtype=torch.bfloat16) * 0.4)(Hq * Dh, D) * (Hq * Dh) ** (-0.5))}
    _A_in = _A_setup()

    def _B_setup():
        B, S, D, F = (1, 1, 576, 4608)
        return {'x': _w((lambda *s: torch.randn(*s, dtype=torch.bfloat16) * 0.05)(B, S, D)), 'w_gate': _w((lambda *s: torch.randn(*s, dtype=torch.bfloat16) * 0.05)(D, F)), 'w_up': _w((lambda *s: torch.randn(*s, dtype=torch.bfloat16) * 0.05)(D, F)), 'w_down': _w((lambda *s: torch.randn(*s, dtype=torch.bfloat16) * 0.05)(F, D))}
    _B_in = _B_setup()
    return {'A_x': _A_in['x'], 'A_k_cache': _A_in['k_cache'], 'A_v_cache': _A_in['v_cache'], 'A_wq': _A_in['wq'], 'A_wo': _A_in['wo'], 'B_x': _B_in['x'], 'B_w_gate': _B_in['w_gate'], 'B_w_up': _B_in['w_up'], 'B_w_down': _B_in['w_down'], 'c': _w((lambda *s: torch.randn(*s, dtype=torch.bfloat16) * 0.1)(1, 576) * 8.0), 'w_mod': _w((lambda *s: torch.randn(*s, dtype=torch.bfloat16) * 0.1)(576, 6 * 576) * 576 ** (-0.5) * 8.0)}

def reference(A_x, A_k_cache, A_v_cache, A_wq, A_wo, B_x, B_w_gate, B_w_up, B_w_down, c, w_mod):

    def _A_ref(x, k_cache, v_cache, wq, wo):
        B, Sq, D = x.shape
        Hq, Dh = (32, 128)
        Hkv, Sk = (k_cache.shape[1], k_cache.shape[2])
        W = min(4096, max(256, Sk // 4))
        rep = Hq // Hkv
        q = (lambda x, *d: x.permute(*d))((x @ wq).reshape(B, Sq, Hq, Dh), 0, 2, 1, 3)
        k = (lambda x, n, axis: torch.repeat_interleave(x, n, dim=axis))(k_cache[:, :, Sk - W:, :], rep, axis=1)
        v = (lambda x, n, axis: torch.repeat_interleave(x, n, dim=axis))(v_cache[:, :, Sk - W:, :], rep, axis=1)
        scores = torch.einsum('bhqd,bhkd->bhqk', q, k) * Dh ** (-0.5)
        p = _softmax(scores, axis=-1)
        o = torch.einsum('bhqk,bhkd->bhqd', p, v)
        return (lambda x, *d: x.permute(*d))(o, 0, 2, 1, 3).reshape(B, Sq, Hq * Dh) @ wo

    def _B_ref(x, w_gate, w_up, w_down):
        return _gelu(x @ w_gate) * (x @ w_up) @ w_down
    x = A_x
    mod = (_silu(c) @ w_mod).reshape(c.shape[0], 6, 1, -1)
    sa, ca, ga, sb, cb, gb = (mod[:, 0].clone(), mod[:, 1].clone(), mod[:, 2].clone(), mod[:, 3].clone(), mod[:, 4].clone(), mod[:, 5].clone())
    h = _layernorm(x, axis=-1) * (1 + ca) + sa
    x = x + ga * _A_ref(h, A_k_cache, A_v_cache, A_wq, A_wo)
    h = _layernorm(x, axis=-1) * (1 + cb) + sb
    x = x + gb * _B_ref(h, B_w_gate, B_w_up, B_w_down)
    return x
```

```python
NAME = 'adaLN_cond__sliding_block_cached__geglu_ffn__decode'
KN = NAME + '_kernel'

HEADER_COMMENT = """; Kernarg layout for this problem (112 bytes, ptrs only, base s[0:1]):
"""

class Asm:
    def __init__(self):
        self.lines = []
        self._lbl = 0
    def __call__(self, s):
        for l in s.strip('\n').split('\n'):
            self.lines.append('    ' + l.strip() if not l.strip().endswith(':') else l.strip())
    def label(self, stem='L'):
        self._lbl += 1
        return f'{stem}_{self._lbl}'
    def text(self):
        return '\n'.join(self.lines) + '\n'

def wrap(body, grid, block, lds, vgpr, sgpr=102, accum=None, kn=KN):
    if accum is None:
        accum = (vgpr + 3) // 4 * 4
    return (HEADER_COMMENT +
f"""; @launch grid=({grid},1,1) block=({block},1,1) lds={lds}
.amdgcn_target "amdgcn-amd-amdhsa--gfx950"
.text
.globl {kn}
.p2align 8
.type {kn},@function
{kn}:
{body}
.section .rodata,"a"
.p2align 6
.amdhsa_kernel {kn}
  .amdhsa_next_free_vgpr {vgpr}
  .amdhsa_next_free_sgpr {sgpr}
  .amdhsa_accum_offset {accum}
  .amdhsa_group_segment_fixed_size 0
  .amdhsa_kernarg_size 112
  .amdhsa_user_sgpr_count 2
  .amdhsa_user_sgpr_kernarg_segment_ptr 1
  .amdhsa_system_sgpr_workgroup_id_x 1
.end_amdhsa_kernel
""")
```

```python
import re

def _regs(tok):
    tok = tok.strip()
    neg = tok.lstrip('-')
    if neg.startswith('abs(') or neg.startswith('|'):
        neg = neg.replace('abs(', '').replace(')', '').replace('|', '')
    m = re.fullmatch(r'([vsa])\[(\d+):(\d+)\]', neg)
    if m: return {(m.group(1), i) for i in range(int(m.group(2)), int(m.group(3)) + 1)}
    m = re.fullmatch(r'([vsa])(\d+)', neg)
    if m: return {(m.group(1), int(m.group(2)))}
    if neg == 'vcc': return {('s', 106), ('s', 107)}
    if neg == 'vcc_lo': return {('s', 106)}
    if neg == 'vcc_hi': return {('s', 107)}
    if neg == 'exec': return {('s', 126), ('s', 127)}
    if neg == 'exec_lo': return {('s', 126)}
    if neg == 'exec_hi': return {('s', 127)}
    if neg == 'm0': return {('s', 124)}
    return set()

TRANS = ('v_exp_f32', 'v_log_f32', 'v_rcp_f32', 'v_rsq_f32', 'v_sqrt_f32', 'v_sin_f32', 'v_cos_f32')

class Ins:
    __slots__ = ('text', 'op', 'ops', 'mods', 'kind', 'wr', 'rd', 'label')
    def __init__(self, text):
        self.text = text
        self.label = text.endswith(':')
        self.op = ''; self.ops = []; self.kind = 'other'; self.wr = set(); self.rd = set(); self.mods = ''
        if self.label or not text or text.startswith(';') or text.startswith('.'):
            self.kind = 'meta'; return
        body = text.split(';')[0].strip()
        parts = body.split(None, 1)
        self.op = parts[0]
        rest = parts[1] if len(parts) > 1 else ''
        ops, cur, depth = [], '', 0
        for ch in rest:
            if ch in '[(': depth += 1
            if ch in '])': depth -= 1
            if ch == ',' and depth == 0: ops.append(cur.strip()); cur = ''
            else: cur += ch
        if cur.strip(): ops.append(cur.strip())
        if ops:
            l = ops[-1].split(None, 1)
            ops[-1] = l[0]
            self.mods = l[1] if len(l) > 1 else ''
        self.ops = ops
        op = self.op
        R = [_regs(o) for o in ops]
        if op.startswith('v_mfma'):
            self.kind = 'mfma'; self.wr = R[0]; self.rd = R[1] | R[2] | R[3]
        elif op.startswith('v_cmp'):
            self.kind = 'valu'; self.wr = R[0]; self.rd = set().union(*R[1:])
            if op.startswith('v_cmpx'): self.wr |= _regs('exec')
        elif op in ('v_readfirstlane_b32', 'v_readlane_b32'):
            self.kind = 'valu'; self.wr = R[0]; self.rd = set().union(*R[1:])
        elif op == 'v_writelane_b32':
            self.kind = 'valu'; self.wr = R[0]; self.rd = set().union(*R)
        elif op.startswith('v_permlane') and 'swap' in op:
            self.kind = 'valu'; self.wr = R[0] | R[1]; self.rd = R[0] | R[1]
        elif op.startswith('v_'):
            self.kind = 'valu'; self.wr = set(R[0]) if R else set()
            self.rd = set().union(*R[1:]) if len(R) > 1 else set()
            if op.startswith(('v_add_co', 'v_sub_co', 'v_addc_co', 'v_subb_co', 'v_subrev_co')):
                self.wr |= R[1]
            if op.startswith(('v_fmac', 'v_mac', 'v_dot2c', 'v_pk_fmac')): self.rd |= R[0]
            if op.startswith('v_cndmask') and len(ops) == 3: self.rd |= _regs('vcc')
            if 'dpp' in op or 'row_' in self.mods or 'quad_perm' in self.mods or 'wave_' in self.mods:
                self.rd |= R[0]
        elif op.startswith(('buffer_load', 'global_load')):
            self.kind = 'vmem'
            if ' lds' in ' ' + self.mods: self.rd = set().union(*R)
            else: self.wr = R[0]; self.rd = set().union(*R[1:])
        elif op.startswith(('buffer_store', 'global_store', 'buffer_atomic', 'global_atomic')):
            self.kind = 'vmem'; self.rd = set().union(*R)
            if 'atomic' in op and 'sc0' in self.mods: self.wr = R[0]
        elif op.startswith('ds_'):
            self.kind = 'ds'
            if op.startswith(('ds_read', 'ds_bpermute', 'ds_permute', 'ds_swizzle')) or '_rtn' in op:
                self.wr = R[0]; self.rd = set().union(*R[1:])
            else: self.rd = set().union(*R)
        elif op.startswith('s_'):
            self.kind = 'salu'
            if op.startswith(('s_cmp', 's_cbranch', 's_branch', 's_waitcnt', 's_nop', 's_barrier', 's_endpgm', 's_sleep', 's_setprio', 's_bitcmp')):
                self.rd = set().union(*R) if R else set()
            elif op.startswith(('s_load', 's_memrealtime', 's_memtime')):
                self.kind = 'smem'; self.wr = R[0]; self.rd = set().union(*R[1:]) if len(R) > 1 else set()
            else:
                self.wr = set(R[0]) if R else set(); self.rd = set().union(*R[1:]) if len(R) > 1 else set()
                if 'saveexec' in op: self.wr |= _regs('exec')
    def is_dpp(self):
        return self.kind == 'valu' and ('dpp' in self.op or 'row_' in self.mods or 'quad_perm' in self.mods or 'wave_' in self.mods or 'row_newbcast' in self.mods)
    def states(self):
        if self.kind == 'meta': return 0
        if self.op == 's_nop': return int(self.ops[0], 0) + 1
        return 1

def vonly(s): return {r for r in s if r[0] in 'va'}
def sonly(s): return {r for r in s if r[0] == 's'}

def need(p, c):
    n = 0
    if p.kind == 'valu':
        pv = vonly(p.wr); ps = sonly(p.wr)
        if c.kind == 'mfma' and pv & c.rd: n = max(n, 2)
        if c.kind == 'valu':
            if c.is_dpp() and pv & c.rd: n = max(n, 2)
            if c.op.startswith('v_permlane') and pv & c.rd: n = max(n, 2)
            if c.op in ('v_readlane_b32', 'v_readfirstlane_b32') and pv & c.rd: n = max(n, 1)
            if p.op in TRANS and c.op not in TRANS and pv & c.rd: n = max(n, 1)
            if p.op in TRANS and pv & c.rd: n = max(n, 1)
            if ps & c.rd:
                n = max(n, 2)
                if c.op in ('v_readlane_b32', 'v_writelane_b32') and len(c.ops) > 2 and ps & _regs(c.ops[2]): n = max(n, 4)
            if (ps & _regs('exec')) and c.is_dpp(): n = max(n, 5)
            if (ps & _regs('exec')) and (c.op.startswith('v_readlane') or c.op.startswith('v_readfirstlane') or c.op.startswith('v_writelane') or c.op.startswith('v_permlane')): n = max(n, 4)
            if ('sdwa' in p.op or 'op_sel' in p.mods or 'dst_sel' in p.mods) and pv & (c.rd | c.wr): n = max(n, 1)
        if c.kind == 'mfma' and (ps & _regs('exec')): n = max(n, 4)
        if c.kind in ('vmem',) and ps & c.rd: n = max(n, 5)
        if c.kind in ('salu', 'smem') and ps & c.rd: n = max(n, 3)
        if c.op.startswith('s_cbranch_vcc') and ps & _regs('vcc'): n = max(n, 5)
    if p.kind == 'mfma':
        passes = 8 if '32x32' in p.op else 4
        if p.op.endswith('_f32') and 'x4_f32' in p.op: passes = 8
        d = p.wr
        tbl_read = {4: 8, 8: 12}[passes]
        if c.kind == 'mfma':
            cC = _regs(c.ops[3]); cAB = _regs(c.ops[1]) | _regs(c.ops[2])
            if d & cAB: n = max(n, tbl_read)
            if d & cC and cC != d: n = max(n, {4: 6, 8: 10}[passes])
            if d & c.wr and cC != d and not (d & cC): n = max(n, tbl_read)
        elif c.kind in ('valu', 'vmem', 'ds'):
            if d & (c.rd | c.wr): n = max(n, tbl_read)
        if c.kind == 'valu' and (_regs(p.ops[3]) & c.wr): n = max(n, {4: 3, 8: 7}[passes])
    if p.kind == 'vmem' and ('store' in p.op or 'atomic' in p.op) and ('x3' in p.op or 'x4' in p.op):
        if c.kind in ('valu', 'mfma') and (vonly(_regs(p.ops[0])) & c.wr): n = max(n, 2)
        elif c.kind in ('vmem', 'ds') and (vonly(_regs(p.ops[0])) & c.wr): n = max(n, 1)
    if p.kind == 'salu' and (p.wr & _regs('m0')):
        if c.kind == 'vmem' and 'lds' in c.mods: n = max(n, 1)
        if c.op.startswith('ds_') and 'addtid' in c.op: n = max(n, 1)
    return n

class Prog:
    def __init__(self):
        self.ins = []
        self._l = 0
    def __call__(self, s):
        for l in s.strip('\n').split('\n'):
            l = l.strip()
            if not l: continue
            self.ins.append(Ins(l))
    def lbl(self, stem='L'):
        self._l += 1
        return f'{stem}_{self._l}'
    def finalize(self, window=14):
        out = []
        for c in self.ins:
            if c.kind == 'meta':
                out.append(c); continue
            req = 0
            dist = 0
            for p in reversed(out):
                if p.kind == 'meta': continue
                if dist >= window: break
                r = need(p, c)
                if r > dist: req = max(req, r - dist)
                dist += p.states()
            while req > 0:
                k = min(req, 16)
                out.append(Ins(f's_nop {k-1}')); req -= k
            out.append(c)
        self.ins = out
        changed = True
        guard = 0
        while changed and guard < 50:
            changed = False; guard += 1
            labels = {i.text[:-1]: k for k, i in enumerate(self.ins) if i.label}
            for k, b in enumerate(self.ins):
                if b.kind == 'meta' or not (b.op.startswith('s_cbranch') or b.op == 's_branch'): continue
                tgt = labels.get(b.ops[0])
                if tgt is None: continue
                prods = []; dist = 1
                for p in reversed(self.ins[:k]):
                    if p.kind == 'meta': continue
                    if p.op in ('s_branch', 's_endpgm'): break
                    if dist >= window: break
                    prods.append((p, dist)); dist += p.states()
                req = 0; d2 = 0
                for c in self.ins[tgt:]:
                    if c.kind == 'meta': continue
                    if d2 >= window: break
                    for p, d in prods:
                        r = need(p, c)
                        if r > d + d2: req = max(req, r - d - d2)
                    d2 += c.states()
                    if c.op in ('s_branch', 's_endpgm'): break
                if req > 0:
                    self.ins.insert(k, Ins(f's_nop {min(req,16)-1}'))
                    changed = True
                    break
    def text(self):
        o = []
        for i in self.ins:
            o.append(i.text if i.label else '    ' + i.text)
        return '\n'.join(o) + '\n'
```

```python
import sys
from dsl import Prog
from asmlib import HEADER_COMMENT, KN

class Cfg:
    cF, cQ, cM = 16, 16, 16
    debug = False
    prefetch_code = True
    kv_gate_q = True
cfg = Cfg()

EPOCH = 0x0
MODP = 0x1000
QP = 0x8000
MODF = 0x20000
X2 = 0x23000
H3 = 0x40000
XP = 0xC0000
FP = 0x120000
DBG = 0x200000
FL_Q, C_KVI, C_MAX, C_O, C_RED, C_H = 0, 4, 8, 12, 16, 20
L_Q = 0x100
L_MX = 0x300
L_LS = 0x380
L_XS = 0x400
L_RED3 = 0x900
L_XA = 0xE00
L_SLOT = 0x1000
LDS_BYTES = 0x5000
LOG2E = 0x3FB8AA3B
SCALE = 0x3DB504F3
GOLD = 0x9E3779B9

def f32hex(x):
    import struct
    return struct.unpack('<I', struct.pack('<f', x))[0]

P = Prog()
ABORT = 'L_abort'

def stamp(i):
    if cfg.debug: P(f's_memrealtime s[{80+2*i}:{81+2*i}]')

def srd(base, ptr, nbytes):
    P(f"""
    s_mov_b32 s{base}, s{ptr}
    s_mov_b32 s{base+1}, s{ptr+1}
    s_mov_b32 s{base+2}, {nbytes}
    s_mov_b32 s{base+3}, 0x20000
    """)

def lds_wait(off, target, vt='v6', st='s60', sleep=1, op='ge'):
    l = P.lbl('Lw'); d = P.lbl('Ld')
    P(f"""
    v_mov_b32 v7, 0
    s_mov_b32 s61, 0x400000
    {l}:
    ds_read_b32 {vt}, v7 offset:{off}
    s_waitcnt lgkmcnt(0)
    v_readfirstlane_b32 {st}, {vt}
    s_cmp_ge_u32 {st}, {target}
    s_cbranch_scc1 {d}
    s_sub_u32 s61, s61, 1
    s_cbranch_scc1 {ABORT}
    """)
    if sleep: P(f's_sleep {sleep}')
    P(f"""
    s_branch {l}
    {d}:
    """)

def lds_add(off, vt='v6'):
    P(f"""
    v_mov_b32 v7, 0
    v_mov_b32 {vt}, 1
    s_mov_b64 s[62:63], exec
    s_mov_b64 exec, 1
    ds_add_u32 v7, {vt} offset:{off}
    s_mov_b64 exec, s[62:63]
    """)

def lds_add_rtn(off, sdst, vt='v6'):
    P(f"""
    v_mov_b32 v7, 0
    v_mov_b32 {vt}, 1
    s_mov_b64 s[62:63], exec
    s_mov_b64 exec, 1
    ds_add_rtn_u32 {vt}, v7, {vt} offset:{off}
    s_waitcnt lgkmcnt(0)
    v_readfirstlane_b32 {sdst}, {vt}
    s_mov_b64 exec, s[62:63]
    """)

def rne(dst, src, tmp=None):
    P(f'v_cvt_pk_bf16_f32 {dst}, {src}, {src}')
    P(f'v_lshlrev_b32 {dst}, 16, {dst}')

DPPM = 'row_mask:0xf bank_mask:0xf'
def xrow(op, v, t):
    for sw in ('v_permlane16_swap_b32', 'v_permlane32_swap_b32'):
        P(f'v_mov_b32 {t}, {v}')
        P(f'{sw} {v}, {t}')
        P(f'{op} {v}, {v}, {t}')

def xrow_multi(op, vs, ts):
    for sw in ('v_permlane16_swap_b32', 'v_permlane32_swap_b32'):
        for v, t in zip(vs, ts): P(f'v_mov_b32 {t}, {v}')
        for v, t in zip(vs, ts): P(f'{sw} {v}, {t}')
        for v, t in zip(vs, ts): P(f'{op} {v}, {v}, {t}')

def wave_sum(v, t):
    for d in ('quad_perm:[1,0,3,2]', 'quad_perm:[2,3,0,1]', 'row_half_mirror', 'row_mirror'):
        P(f'v_add_f32_dpp {v}, {v}, {v} {d} {DPPM}')
    xrow('v_add_f32', v, t)

def masks(base):
    P(f"""
    v_and_b32 v6, 1, v2
    v_lshlrev_b32 v6, 4, v6
    v_mov_b32 v7, 0xffff
    v_lshlrev_b32 v7, v6, v7
    v_bfe_u32 v6, v2, 1, 2
    """)
    for i in range(4):
        P(f'v_cmp_eq_u32 vcc, {i}, v6')
        P(f'v_cndmask_b32 v{base+i}, 0, v7, vcc')

def diag_mm(acc, wregs, xregs, mk, qa, qb):
    n = len(wregs)
    def prep(t):
        q = (qa, qb)[t & 1]
        for i in range(4): P(f'v_and_b32 v{q+i}, {xregs[t]}, v{mk+i}')
    prep(0)
    for t in range(n):
        if t + 1 < n: prep(t + 1)
        q = (qa, qb)[t & 1]
        c = '0' if t == 0 else f'v[{acc}:{acc+3}]'
        P(f'v_mfma_f32_16x16x32_bf16 v[{acc}:{acc+3}], v[{wregs[t]}:{wregs[t]+3}], v[{q}:{q+3}], {c}')

def poll(loads, check, pre=''):
    l = P.lbl('Lp')
    P('s_mov_b32 s64, 0x8000')
    P(f'{l}:')
    for x in loads: P(x)
    P('s_waitcnt vmcnt(0)')
    check()
    P(f"""
    s_sub_u32 s64, s64, 1
    s_cbranch_scc1 {ABORT}
    s_cbranch_vccnz {l}
    """)

def check_sentinel(regs, t='v6'):
    def f():
        rs = list(regs)
        P(f'v_max_u32 {t}, v{rs[0]}, v{rs[1]}' if len(rs) > 1 else f'v_mov_b32 {t}, v{rs[0]}')
        i = 2
        while i < len(rs):
            if i + 1 < len(rs):
                P(f'v_max3_u32 {t}, {t}, v{rs[i]}, v{rs[i+1]}'); i += 2
            else:
                P(f'v_max_u32 {t}, {t}, v{rs[i]}'); i += 1
        P(f'v_cmp_eq_u32 vcc, -1, {t}')
    return f

def check_tags(regs, t='v6', t2='v7'):
    def f():
        rs = list(regs)
        P(f'v_xor_b32 {t}, s7, v{rs[0]}')
        for r in rs[1:]:
            P(f'v_xor_b32 {t2}, s7, v{r}')
            P(f'v_or_b32 {t}, {t}, {t2}')
        P(f'v_cmp_ne_u32 vcc, 0, {t}')
    return f

def end_wave():
    P('s_branch L_exit')

def prologue():
    P(f"""
    s_cmp_ge_u32 s2, 256
    s_cbranch_scc1 L_end
    s_load_dwordx16 s[8:23], s[0:1], 0
    s_load_dwordx8 s[24:31], s[0:1], 64
    s_load_dwordx4 s[32:35], s[0:1], 96
    """)
    stamp(0)
    P(f"""
    v_lshrrev_b32 v4, 6, v0
    v_and_b32 v1, 63, v0
    v_and_b32 v2, 15, v1
    v_readfirstlane_b32 s3, v4
    v_lshrrev_b32 v3, 4, v1
    s_and_b32 s4, s2, 7
    s_lshl_b32 s4, s4, 1
    s_bfe_u32 s5, s2, 0x10003
    s_add_u32 s4, s4, s5
    s_lshr_b32 s5, s2, 4
    s_cmp_lg_u32 s3, 0
    s_cbranch_scc1 L_nozero
    v_lshlrev_b32 v4, 2, v1
    v_mov_b32 v5, 0
    ds_write_b32 v4, v5
    L_nozero:
    s_waitcnt lgkmcnt(0)
    s_load_dword s7, s[34:35], 0
    """)
    srd(44, 34, 0x40000000)
    if cfg.prefetch_code:
        P(f"""
        s_cmp_lg_u32 s3, 15
        s_cbranch_scc1 L_nopf
        s_getpc_b64 s[52:53]
        s_and_b32 s52, s52, 0xffffff00
        v_lshlrev_b32 v4, 7, v1
        """)
        for i in range(CODE_PF):
            P(f'global_load_dword v{120+i}, v4, s[52:53]')
            P('v_add_u32 v4, 0x2000, v4')
        P('L_nopf:')
    P('s_barrier')
    nkF, nkQ, nkM = cfg.cF//2, cfg.cQ//2, cfg.cM//2
    P(f"""
    s_cmp_ge_u32 s5, 13
    s_cbranch_scc1 L_classM
    s_cmp_ge_u32 s5, 9
    s_cbranch_scc1 L_classQ
    ; ---- class F
    s_cmp_ge_u32 s3, {16-nkF}
    s_cbranch_scc1 L_kvF
    s_cmp_eq_u32 s3, 0
    s_cbranch_scc1 L_commF
    s_cmp_le_u32 s3, 4
    s_cbranch_scc1 L_gu
    s_branch L_end
    L_classQ:
    s_cmp_ge_u32 s3, {16-nkQ}
    s_cbranch_scc1 L_kvQ
    s_cmp_eq_u32 s3, 0
    s_cbranch_scc1 L_commA
    s_cmp_le_u32 s3, 6
    s_cbranch_scc1 L_wq
    s_branch L_end
    L_classM:
    s_cmp_ge_u32 s3, {16-nkM}
    s_cbranch_scc1 L_kvM
    s_cmp_eq_u32 s3, 0
    s_cbranch_scc1 L_commA
    s_cmp_le_u32 s3, 6
    s_cbranch_scc1 L_mod
    s_branch L_end
    """)

def kv_role(name, nkv, tile_expr, gate, is_f):
    K0, V0, QF, SD, ACC, MK = 32, 64, 96, 112, 120, 8
    P(f'{name}:')
    P(f's_sub_u32 s53, s3, {16-nkv}')
    tile_expr()
    P(f"""
    s_lshl_b32 s54, s53, 1
    s_add_u32 s52, s52, s54
    s_lshl_b32 s52, s52, 12
    s_lshl_b32 s54, s4, 24
    s_add_u32 s52, s52, s54
    s_add_u32 s52, s52, {61440*256}
    s_add_u32 s55, s52, 4096
    """)
    srd(36, 10, 0x10000000)
    srd(40, 12, 0x10000000)
    P(f"""
    v_lshlrev_b32 v4, 8, v2
    v_lshl_add_u32 v4, v3, 4, v4
    v_lshlrev_b32 v5, 10, v3
    v_lshl_add_u32 v5, v2, 4, v5
    """)
    if gate: lds_wait(C_H, 6, sleep=2)
    stamp(1)
    for t in range(2):
        for s in range(4):
            r = K0 + 16*t + 4*s
            P(f'buffer_load_dwordx4 v[{r}:{r+3}], v4, s[36:39], s{52 if t == 0 else 55} offen offset:{64*s} nt')
    for t in range(2):
        for s in range(4):
            r = V0 + 16*t + 4*s
            P(f'buffer_load_dwordx4 v[{r}:{r+3}], v5, s[40:43], s{52 if t == 0 else 55} offen offset:{256*s} nt')
    lds_add(C_KVI)
    stamp(2)
    masks(MK)
    lds_wait(FL_Q, 1, sleep=2)
    stamp(3)
    P(f"""
    v_lshrrev_b32 v6, 3, v2
    v_lshlrev_b32 v6, 8, v6
    v_lshl_add_u32 v6, v3, 4, v6
    """)
    for s in range(4): P(f'ds_read_b128 v[{QF+4*s}:{QF+4*s+3}], v6 offset:{L_Q+64*s}')
    P('s_waitcnt vmcnt(8) lgkmcnt(0)')
    stamp(4)
    for s in range(4):
        for t in range(2):
            a = K0 + 16*t + 4*s; d = SD + 4*t
            c = '0' if s == 0 else f'v[{d}:{d+3}]'
            P(f'v_mfma_f32_16x16x32_bf16 v[{d}:{d+3}], v[{a}:{a+3}], v[{QF+4*s}:{QF+4*s+3}], {c}')
    P(f's_mov_b32 s56, {SCALE:#x}')
    P(f's_mov_b32 s57, 0xffff0000')
    P(f's_mov_b32 s58, {LOG2E:#x}')
    for p in range(4):
        a, b = SD + 2*p, SD + 2*p + 1
        t = 16 + p
        P(f'v_cvt_pk_bf16_f32 v{t}, v{a}, v{b}')
    for p in range(4):
        a, b = SD + 2*p, SD + 2*p + 1
        t = 16 + p
        P(f'v_lshlrev_b32 v{a}, 16, v{t}')
        P(f'v_and_b32 v{b}, s57, v{t}')
    for i in range(8): P(f'v_mul_f32 v{SD+i}, s56, v{SD+i}')
    for p in range(4): P(f'v_cvt_pk_bf16_f32 v{16+p}, v{SD+2*p}, v{SD+2*p+1}')
    for p in range(4):
        P(f'v_lshlrev_b32 v{SD+2*p}, 16, v{16+p}')
        P(f'v_and_b32 v{SD+2*p+1}, s57, v{16+p}')
    P(f"""
    v_max3_f32 v20, v{SD}, v{SD+1}, v{SD+2}
    v_max3_f32 v21, v{SD+3}, v{SD+4}, v{SD+5}
    v_max3_f32 v20, v20, v{SD+6}, v{SD+7}
    v_max_f32 v20, v20, v21
    """)
    xrow('v_max_f32', 'v20', 'v21')
    P(f"""
    v_lshrrev_b32 v22, 3, v2
    v_lshlrev_b32 v22, 2, v22
    s_lshl_b32 s59, s53, 3
    v_add_u32 v23, s59, v22
    s_mov_b64 s[62:63], exec
    s_mov_b64 exec, 0x101
    ds_write_b32 v23, v20 offset:{L_MX}
    s_mov_b64 exec, s[62:63]
    """)
    lds_add(C_MAX)
    lds_wait(C_MAX, nkv, sleep=0)
    for i in range(nkv): P(f'ds_read_b32 v{K0+i}, v22 offset:{L_MX+8*i}')
    P('s_waitcnt lgkmcnt(0)')
    P(f'v_mov_b32 v20, v{K0}')
    i = 1
    while i < nkv:
        if i + 1 < nkv: P(f'v_max3_f32 v20, v20, v{K0+i}, v{K0+i+1}'); i += 2
        else: P(f'v_max_f32 v20, v20, v{K0+i}'); i += 1
    P('v_mul_f32 v21, s58, v20')
    for i in range(8): P(f'v_fma_f32 v{SD+i}, v{SD+i}, s58, -v21')
    for i in range(8): P(f'v_exp_f32 v{SD+i}, v{SD+i}')
    P(f"""
    v_add_f32 v24, v{SD}, v{SD+1}
    v_add_f32 v25, v{SD+2}, v{SD+3}
    v_add_f32 v26, v{SD+4}, v{SD+5}
    v_add_f32 v27, v{SD+6}, v{SD+7}
    v_add_f32 v24, v24, v25
    v_add_f32 v26, v26, v27
    v_add_f32 v24, v24, v26
    """)
    for i in range(8): P(f'v_cvt_pk_bf16_f32 v{SD+i}, v{SD+i}, v{SD+i}')
    for i in range(8):
        for j in range(4): P(f'v_and_b32 v{K0+4*i+j}, v{SD+i}, v{MK+j}')
    xrow('v_add_f32', 'v24', 'v25')
    P(f"""
    s_mov_b64 s[62:63], exec
    s_mov_b64 exec, 0x101
    ds_write_b32 v23, v24 offset:{L_LS}
    s_mov_b64 exec, s[62:63]
    s_waitcnt vmcnt(0)
    """)
    stamp(5)
    for i in range(8):
        c = '0' if i == 0 else f'v[{ACC}:{ACC+3}]'
        P(f'v_mfma_f32_16x16x32_bf16 v[{ACC}:{ACC+3}], v[{V0+4*i}:{V0+4*i+3}], v[{K0+4*i}:{K0+4*i+3}], {c}')
    P(f"""
    s_lshl_b32 s59, s53, 10
    v_lshlrev_b32 v16, 4, v1
    v_add_u32 v17, s59, v16
    ds_write_b128 v17, v[{ACC}:{ACC+3}] offset:{L_SLOT}
    """)
    lds_add_rtn(C_O, 's60')
    ldone = P.lbl('Lkvdone')
    P(f"""
    s_cmp_lg_u32 s60, {nkv-1}
    s_cbranch_scc1 {ldone}
    """)
    for i in range(nkv): P(f'ds_read_b128 v[{K0+4*i}:{K0+4*i+3}], v16 offset:{L_SLOT+1024*i}')
    LS0 = 100
    for i in range(nkv): P(f'ds_read_b32 v{LS0+i}, v22 offset:{L_LS+8*i}')
    P('s_waitcnt lgkmcnt(0)')
    for i in range(1, nkv):
        for j in range(4): P(f'v_add_f32 v{K0+j}, v{K0+j}, v{K0+4*i+j}')
        P(f'v_add_f32 v{LS0}, v{LS0}, v{LS0+i}')
    P(f"""
    s_lshl_b32 s59, s4, 4
    s_add_u32 s59, s59, s5
    s_lshl_b32 s59, s59, 11
    s_add_u32 s59, s59, {H3}
    buffer_store_dwordx4 v[{K0}:{K0+3}], v16, s[44:47], s59 offen sc1
    v_mov_b32 v18, v20
    v_mov_b32 v19, v{LS0}
    v_and_b32 v17, 8, v1
    v_add_u32 v17, 1024, v17
    s_mov_b64 exec, 0x101
    buffer_store_dwordx2 v[18:19], v17, s[44:47], s59 offen sc1
    s_mov_b64 exec, -1
    """)
    stamp(6)
    P(f'{ldone}:')
    if is_f:
        P(f"""
        s_cmp_ge_u32 s53, 5
        s_cbranch_scc1 L_exit
        s_branch L_down
        """)
    else:
        end_wave()

def rowmm_loads(nE, W0, half_lbl):
    pass

def down_role():
    W0, MK, XS, ACC, QA, QB = 32, 8, 64, 72, 76, 80
    P('L_down:')
    srd(36, 24, 4608*1152)
    P(f"""
    s_mul_i32 s54, s4, 9
    s_add_u32 s54, s54, s5            ; phi
    s_mul_i32 s55, s54, {32*1152}
    s_cmp_eq_u32 s53, 4
    s_cbranch_scc1 L_down_half
    s_lshl_b32 s56, s53, 8
    s_add_u32 s55, s55, s56
    v_mul_u32_u24 v4, 1152, v3
    v_lshl_add_u32 v4, v2, 4, v4
    """)
    for e in range(8):
        P(f'buffer_load_dwordx4 v[{W0+4*e}:{W0+4*e+3}], v4, s[36:39], s55 offen nt')
        if e < 7: P(f's_add_u32 s55, s55, {4*1152}')
    P('v_lshlrev_b32 v5, 2, v3')
    P('s_mov_b32 s57, 16')
    P('s_mov_b32 s58, 8')
    P('s_branch L_down_go')
    P('L_down_half:')
    P(f"""
    s_add_u32 s55, s55, 1024
    v_lshrrev_b32 v6, 3, v2
    v_lshl_add_u32 v6, v6, 2, v3         ; 4*(m>>3) + g
    v_mul_u32_u24 v4, 1152, v6
    v_and_b32 v7, 7, v2
    v_lshl_add_u32 v4, v7, 4, v4
    """)
    for t in range(4):
        P(f'buffer_load_dwordx4 v[{W0+4*t}:{W0+4*t+3}], v4, s[36:39], s55 offen nt')
        if t < 3: P(f's_add_u32 s55, s55, {8*1152}')
    P('v_lshlrev_b32 v5, 2, v6')
    P('s_mov_b32 s57, 32')
    P('s_mov_b32 s58, 4')
    P('L_down_go:')
    masks(MK)
    P('s_barrier')
    P('s_barrier')
    stamp(7)
    P(f"""
    v_and_b32 v6, 31, v1
    v_lshlrev_b32 v6, 2, v6
    ds_read_b32 v16, v6 offset:{L_RED3}
    ds_read_b32 v17, v6 offset:{L_RED3+128}
    ds_read_b32 v18, v6 offset:{L_RED3+256}
    ds_read_b32 v19, v6 offset:{L_RED3+384}
    s_waitcnt lgkmcnt(0)
    v_add_f32 v16, v16, v17
    v_add_f32 v18, v18, v19
    """)
    rne('v16', 'v16'); rne('v18', 'v18')
    import math
    k1 = f32hex(0.044715); k2 = f32hex(-2.0*math.sqrt(2.0/math.pi)*math.log2(math.e))
    P(f"""
    s_mov_b32 s60, {k1:#x}
    s_mov_b32 s61, {k2:#x}
    v_mul_f32 v17, v16, v16
    v_mul_f32 v17, v17, v16
    v_fma_f32 v17, v17, s60, v16
    v_mul_f32 v17, s61, v17
    v_exp_f32 v17, v17
    v_add_f32 v17, 1.0, v17
    v_rcp_f32 v17, v17
    v_mul_f32 v16, v16, v17
    """)
    rne('v16', 'v16')
    P('v_mul_f32 v16, v16, v18')
    P('v_cvt_pk_bf16_f32 v16, v16, v16')
    for e in range(8):
        P(f'ds_bpermute_b32 v{XS+e}, v5, v16')
        P(f'v_add_u32 v5, s57, v5')
    P('s_waitcnt vmcnt(0) lgkmcnt(0)')
    P(f"""
    s_mul_i32 s59, s54, 3072
    s_add_u32 s59, s59, {FP}
    s_cmp_eq_u32 s53, 4
    s_cbranch_scc1 L_down_half2
    """)
    diag_mm(ACC, [W0+4*e for e in range(8)], [f'v{XS+e}' for e in range(8)], MK, QA, QB)
    store_block('s53')
    stamp(6)
    end_wave()
    P('L_down_half2:')
    diag_mm(ACC, [W0+4*t for t in range(4)], [f'v{XS+t}' for t in range(4)], MK, QA, QB)
    store_half(ACC)
    stamp(6)
    end_wave()

def store_block(sb, ACC=72):
    P(f"""
    s_lshl_b32 s60, {sb}, 9
    s_add_u32 s59, s59, s60
    v_lshlrev_b32 v6, 3, v3
    v_add_u32 v6, v6, v2
    v_lshlrev_b32 v6, 4, v6
    v_cmp_gt_u32 vcc, 8, v2
    s_and_saveexec_b64 s[62:63], vcc
    buffer_store_dwordx4 v[{ACC}:{ACC+3}], v6, s[44:47], s59 offen sc1
    s_mov_b64 exec, s[62:63]
    """)

def store_half(ACC):
    T = ACC + 12
    for j in range(4): P(f'v_mov_b32 v{T+j}, v{ACC+j}')
    for j in range(4): P(f'v_permlane32_swap_b32 v{ACC+j}, v{T+j}')
    for j in range(4): P(f'v_add_f32_dpp v{ACC+j}, v{T+j}, v{ACC+j} row_shl:8 {DPPM}')
    P(f"""
    s_add_u32 s59, s59, 2048
    v_lshlrev_b32 v6, 3, v3
    v_add_u32 v6, v6, v2
    v_lshlrev_b32 v6, 4, v6
    s_mov_b64 s[62:63], exec
    s_mov_b64 exec, 0x00ff00ff
    buffer_store_dwordx4 v[{ACC}:{ACC+3}], v6, s[44:47], s59 offen sc1
    s_mov_b64 exec, s[62:63]
    """)

def wo_role(nkv_label_suffix, nkv):
    W0, MK, XS, ACC, QA, QB = 32, 8, 76, 72, 88, 92
    P(f'L_wo{nkv_label_suffix}:')
    P(f"""
    s_cmp_ge_u32 s3, 6
    s_cbranch_scc1 L_exit
    """)
    lds_wait(C_KVI, nkv, sleep=2)
    P('s_branch L_wo_common')

def wo_common():
    W0, MK, XS, ACC, QA, QB = 32, 8, 100, 72, 88, 92
    P('L_wo_common:')
    srd(36, 16, 4096*1152)
    P(f"""
    s_sub_u32 s53, s3, 1              ; b
    s_sub_u32 s54, s5, 9              ; a
    s_mul_i32 s55, s54, 9
    s_lshl_b32 s56, s4, 8             ; 256 g
    """)
    def rowbase(dst, e):
        P(f"""
        s_add_u32 s57, s55, {e}
        s_bfe_u32 s58, s57, 0x10003
        s_lshl_b32 s58, s58, 7
        s_lshr_b32 s60, s57, 4
        s_lshl_b32 s60, s60, 5
        s_add_u32 s58, s58, s60
        s_and_b32 s60, s57, 7
        s_add_u32 s58, s58, s60
        s_add_u32 s58, s58, s56
        s_mul_i32 {dst}, s58, 1152
        """)
    P(f"""
    s_cmp_eq_u32 s53, 4
    s_cbranch_scc1 L_wo_half
    s_lshl_b32 s65, s53, 8
    v_mul_u32_u24 v4, {8*1152}, v3
    v_lshl_add_u32 v4, v2, 4, v4
    """)
    for e in range(10):
        if e == 9:
            P(f"""
            s_cmp_lt_u32 s54, 6
            s_cbranch_scc1 L_wo_l9
            """)
        rowbase('s66', e)
        P('s_add_u32 s66, s66, s65')
        P(f'buffer_load_dwordx4 v[{W0+4*e}:{W0+4*e+3}], v4, s[36:39], s66 offen nt')
    P('L_wo_l9:')
    P('v_lshlrev_b32 v5, 2, v3')
    masks(MK)
    stamp(3)
    P('s_barrier')
    stamp(4)
    for e in range(10): P(f'ds_read_b32 v{XS+e}, v5 offset:{L_XA+16*e}')
    P('s_waitcnt vmcnt(0) lgkmcnt(0)')
    P(f"""
    s_mul_i32 s59, s4, 7
    s_add_u32 s59, s59, s54
    s_mul_i32 s59, s59, 3072
    s_add_u32 s59, s59, {XP}
    s_cmp_lt_u32 s54, 6
    s_cbranch_scc1 L_wo_m9
    """)
    diag_mm(ACC, [W0+4*e for e in range(10)], [f'v{XS+e}' for e in range(10)], MK, QA, QB)
    P('s_branch L_wo_st')
    P('L_wo_m9:')
    diag_mm(ACC, [W0+4*e for e in range(9)], [f'v{XS+e}' for e in range(9)], MK, QA, QB)
    P('L_wo_st:')
    store_block('s53')
    stamp(5)
    end_wave()
    P('L_wo_half:')
    P(f"""
    v_mul_u32_u24 v4, {8*1152}, v3
    v_and_b32 v6, 7, v2
    v_lshl_add_u32 v4, v6, 4, v4
    v_add_u32 v4, 1024, v4
    v_cmp_lt_u32 s[68:69], 7, v2
    """)
    for t in range(5):
        rowbase('s66', 2*t)
        rowbase('s67', 2*t+1)
        if t == 4:
            P(f"""
            s_cmp_lt_u32 s54, 6
            s_cselect_b32 s67, 0x40000000, s67
            """)
        P(f"""
        v_mov_b32 v6, s66
        v_mov_b32 v7, s67
        v_cndmask_b32 v6, v6, v7, s[68:69]
        v_add_u32 v6, v6, v4
        buffer_load_dwordx4 v[{W0+4*t}:{W0+4*t+3}], v6, s[36:39], 0 offen nt
        """)
    P(f"""
    v_lshrrev_b32 v5, 3, v2
    v_lshl_add_u32 v5, v5, 2, v3
    v_lshlrev_b32 v5, 2, v5
    """)
    masks(MK)
    stamp(3)
    P('s_barrier')
    stamp(4)
    for t in range(5): P(f'ds_read_b32 v{XS+t}, v5 offset:{L_XA+32*t}')
    P('s_waitcnt vmcnt(0) lgkmcnt(0)')
    P(f"""
    s_mul_i32 s59, s4, 7
    s_add_u32 s59, s59, s54
    s_mul_i32 s59, s59, 3072
    s_add_u32 s59, s59, {XP}
    """)
    diag_mm(ACC, [W0+4*t for t in range(5)], [f'v{XS+t}' for t in range(5)], MK, QA, QB)
    store_half(ACC)
    stamp(5)
    end_wave()

def ln_stats(XA, mean_b, rstd, t1, t2):
    P(f'v_add_f32 {t1}, v{XA}, v{XA+1}')
    for i in range(2, 9): P(f'v_add_f32 {t1}, {t1}, v{XA+i}')
    wave_sum(t1, t2)
    P(f's_mov_b32 s60, {f32hex(1.0/576.0):#x}')
    P(f'v_mul_f32 {t1}, s60, {t1}')
    P(f'v_sub_f32 {t2}, v{XA}, {t1}')
    P(f'v_mul_f32 {rstd}, {t2}, {t2}')
    for i in range(1, 9):
        P(f'v_sub_f32 {t2}, v{XA+i}, {t1}')
        P(f'v_fmac_f32 {rstd}, {t2}, {t2}')
    wave_sum(rstd, t2)
    P(f'v_mul_f32 {rstd}, s60, {rstd}')
    rne(rstd, rstd)
    P(f'v_add_f32 {rstd}, {f32hex(1e-5):#x}, {rstd}')
    rne(rstd, rstd)
    P(f'v_sqrt_f32 {rstd}, {rstd}')
    rne(rstd, rstd)
    P(f'v_rcp_f32 {rstd}, {rstd}')
    rne(mean_b, t1)

def wq_role(nkv):
    W0, MK, XS, ACC, QA, QB, XA = 32, 8, 80, 92, 96, 100, 104
    P('L_wq:')
    srd(36, 14, 576*8192)
    srd(40, 8, 1152)
    P(f"""
    s_sub_u32 s53, s3, 1              ; j
    s_sub_u32 s54, s5, 9              ; qi
    s_lshr_b32 s55, s54, 1            ; ch
    s_and_b32 s56, s54, 1             ; kh
    s_mul_i32 s57, s56, 288
    s_mul_i32 s58, s53, 48
    s_add_u32 s57, s57, s58
    v_lshlrev_b32 v4, 1, v1
    """)
    for n in range(9): P(f'buffer_load_ushort v{XA+n}, v4, s[40:43], 0 offen offset:{128*n}')
    P(f"""
    s_lshl_b32 s58, s57, 1
    buffer_load_ushort v{XA+9}, v4, s[40:43], s58 offen
    s_lshl_b32 s58, s57, 13           ; row*8192
    s_lshl_b32 s59, s4, 9             ; 256 g * 2
    s_add_u32 s58, s58, s59
    s_lshl_b32 s59, s55, 8            ; 128 ch * 2
    s_add_u32 s58, s58, s59
    v_lshlrev_b32 v5, 13, v3
    v_lshl_add_u32 v5, v2, 4, v5
    """)
    for t in range(12):
        P(f'buffer_load_dwordx4 v[{W0+4*t}:{W0+4*t+3}], v5, s[36:39], s58 offen nt')
        if t < 11: P(f's_add_u32 s58, s58, {4*8192}')
    stamp(1)
    masks(MK)
    P('s_waitcnt vmcnt(12) lgkmcnt(0)')
    P(f's_add_u32 s7, s7, {GOLD:#x}')
    for n in range(10): P(f'v_lshlrev_b32 v{XA+n}, 16, v{XA+n}')
    ln_stats(XA, 'v16', 'v17', 'v18', 'v19')
    P(f'v_sub_f32 v18, v{XA+9}, v16')
    rne('v18', 'v18')
    P('v_mul_f32 v18, v18, v17')
    rne('v18', 'v18')
    P(f"""
    v_add_u32 v19, s57, v1
    v_lshlrev_b32 v19, 3, v19
    s_mov_b32 s66, {MODP}
    s_mov_b32 s67, {MODP+9216}
    s_mov_b32 s68, {MODP+4608}
    s_mov_b32 s69, {MODP+9216+4608}
    s_mov_b32 exec_hi, 0xffff
    """)
    poll([f'buffer_load_dwordx2 v[{20+2*i}:{21+2*i}], v19, s[44:47], s{66+i} offen sc1' for i in range(4)],
         check_tags([21, 23, 25, 27]))
    stamp(2)
    P(f"""
    v_add_f32 v20, v20, v22          ; sa
    v_add_f32 v24, v24, v26          ; ca
    """)
    rne('v20', 'v20'); rne('v24', 'v24')
    P('v_add_f32 v24, 1.0, v24'); rne('v24', 'v24')
    P('v_mul_f32 v18, v18, v24'); rne('v18', 'v18')
    P('v_add_f32 v18, v18, v20')
    P('v_cvt_pk_bf16_f32 v18, v18, v18')
    P(f"""
    s_lshl_b32 s59, s53, 8
    v_lshlrev_b32 v19, 2, v1
    v_add_u32 v19, s59, v19
    ds_write_b32 v19, v18 offset:{L_XS}
    s_mov_b64 exec, -1
    """)
    lds_add(C_H)
    P(f"""
    v_lshlrev_b32 v19, 2, v3
    v_add_u32 v19, s59, v19
    """)
    for t in range(12): P(f'ds_read_b32 v{XS+t}, v19 offset:{L_XS+16*t}')
    P('s_waitcnt vmcnt(0) lgkmcnt(0)')
    stamp(3)
    diag_mm(ACC, [W0+4*t for t in range(12)], [f'v{XS+t}' for t in range(12)], MK, QA, QB)
    P(f"""
    s_lshl_b32 s59, s53, 10
    v_lshlrev_b32 v16, 4, v1
    v_add_u32 v17, s59, v16
    ds_write_b128 v17, v[{ACC}:{ACC+3}] offset:{L_SLOT}
    """)
    lds_add_rtn(C_RED, 's60')
    P(f"""
    s_cmp_lg_u32 s60, 5
    s_cbranch_scc1 L_woQ
    """)
    for i in range(6): P(f'ds_read_b128 v[{W0+4*i}:{W0+4*i+3}], v16 offset:{L_SLOT+1024*i}')
    P('s_waitcnt lgkmcnt(0)')
    for i in range(1, 6):
        for jj in range(4): P(f'v_add_f32 v{W0+jj}, v{W0+jj}, v{W0+4*i+jj}')
    P(f"""
    s_lshl_b32 s59, s4, 12
    s_lshl_b32 s60, s54, 10
    s_add_u32 s59, s59, s60
    s_add_u32 s59, s59, {QP}
    v_lshlrev_b32 v17, 5, v3
    v_add_u32 v17, v17, v2
    v_lshlrev_b32 v17, 3, v17
    v_cmp_gt_u32 vcc, 8, v2
    s_and_saveexec_b64 s[62:63], vcc
    """)
    for rr in range(4):
        P(f'v_mov_b32 v{60+2*rr}, v{W0+rr}')
        P(f'v_mov_b32 v{61+2*rr}, s7')
    for rr in range(4):
        P(f'buffer_store_dwordx2 v[{60+2*rr}:{61+2*rr}], v17, s[44:47], s59 offen offset:{64*rr} sc1')
    P('s_mov_b64 exec, s[62:63]')
    stamp(4)
    P('s_branch L_woQ')

def mod_role_full():
    WA, WB, MK, XS, ACC, QA, QB, XA = 32, 56, 8, 104, 116, 120, 124, 16
    P('L_mod:')
    srd(36, 28, 576*6912)
    srd(40, 26, 1152)
    P(f"""
    s_sub_u32 s53, s3, 1              ; j
    s_mul_i32 s54, s4, 3
    s_add_u32 s54, s54, s5
    s_sub_u32 s54, s54, 13            ; mu
    v_lshlrev_b32 v4, 1, v1
    """)
    for n in range(9): P(f'buffer_load_ushort v{XA+n}, v4, s[40:43], 0 offen offset:{128*n}')
    P(f"""
    v_lshrrev_b32 v6, 3, v2
    v_lshl_add_u32 v6, v6, 2, v3
    v_mul_u32_u24 v5, 6912, v6
    v_and_b32 v7, 7, v2
    v_lshl_add_u32 v5, v7, 4, v5
    v_lshlrev_b32 v31, 2, v6
    """)
    P(f"""
    s_cmp_ge_u32 s54, 36
    s_cbranch_scc1 L_mod_noA
    s_lshr_b32 s55, s54, 1            ; cbk
    s_and_b32 s56, s54, 1             ; kh
    s_mul_i32 s57, s56, 288
    s_mul_i32 s58, s53, 48
    s_add_u32 s57, s57, s58
    s_mul_i32 s58, s57, 6912
    s_lshl_b32 s59, s55, 7
    s_add_u32 s58, s58, s59
    """)
    for t in range(6):
        P(f'buffer_load_dwordx4 v[{WA+4*t}:{WA+4*t+3}], v5, s[36:39], s58 offen nt')
        if t < 5: P(f's_add_u32 s58, s58, {8*6912}')
    P(f"""
    s_cmp_lt_u32 s54, 12
    s_cbranch_scc1 L_mod_w6
    L_mod_noA:
    s_sub_u32 s65, s54, 12            ; b
    s_mul_i32 s66, s53, 96
    s_mul_i32 s58, s66, 6912
    s_lshl_b32 s59, s65, 7
    s_add_u32 s58, s58, s59
    s_add_u32 s58, s58, 2304
    """)
    for t in range(12):
        P(f'buffer_load_dwordx4 v[{WB+4*t}:{WB+4*t+3}], v5, s[36:39], s58 offen nt')
        if t < 11: P(f's_add_u32 s58, s58, {8*6912}')
    P(f"""
    s_waitcnt vmcnt(12)
    s_branch L_mod_silu
    L_mod_w6:
    s_waitcnt vmcnt(6)
    L_mod_silu:
    """)
    stamp(1)
    P(f's_mov_b32 s60, {f32hex(-1.4426950408889634):#x}')
    for n in range(9): P(f'v_lshlrev_b32 v{XA+n}, 16, v{XA+n}')
    for n in range(9): P(f'v_mul_f32 v{104+n}, s60, v{XA+n}')
    for n in range(9): P(f'v_exp_f32 v{104+n}, v{104+n}')
    for n in range(9): P(f'v_add_f32 v{104+n}, 1.0, v{104+n}')
    for n in range(9): P(f'v_rcp_f32 v{104+n}, v{104+n}')
    for n in range(9): P(f'v_mul_f32 v{XA+n}, v{XA+n}, v{104+n}')
    for n in range(9): P(f'v_cvt_pk_bf16_f32 v{XA+n}, v{XA+n}, v{XA+n}')
    P('v_lshlrev_b32 v4, 2, v1')
    for n in range(9): P(f'ds_write_b32 v4, v{XA+n} offset:{L_XS+256*n}')
    masks(MK)
    P('s_waitcnt lgkmcnt(0)')
    P(f's_add_u32 s7, s7, {GOLD:#x}')
    P(f"""
    s_cmp_ge_u32 s54, 36
    s_cbranch_scc1 L_mod_B
    s_lshl_b32 s59, s57, 2
    v_add_u32 v4, s59, v31
    """)
    for t in range(6): P(f'ds_read_b32 v{XS+t}, v4 offset:{L_XS+32*t}')
    P(f"""
    s_cmp_lt_u32 s54, 12
    s_cbranch_scc1 L_mod_wA0
    s_waitcnt vmcnt(12) lgkmcnt(0)
    s_branch L_mod_A2
    L_mod_wA0:
    s_waitcnt vmcnt(0) lgkmcnt(0)
    L_mod_A2:
    """)
    diag_mm(ACC, [WA+4*t for t in range(6)], [f'v{XS+t}' for t in range(6)], MK, QA, QB)
    P(f"""
    s_lshl_b32 s59, s53, 10
    v_lshlrev_b32 v16, 4, v1
    v_add_u32 v17, s59, v16
    ds_write_b128 v17, v[{ACC}:{ACC+3}] offset:{L_SLOT}
    """)
    lds_add_rtn(C_RED, 's60')
    P(f"""
    s_cmp_lg_u32 s60, 5
    s_cbranch_scc1 L_mod_Adone
    """)
    def fold_reduce(base):
        for i in range(6): P(f'ds_read_b128 v[{base+4*i}:{base+4*i+3}], v16 offset:{L_SLOT+1024*i}')
        P('s_waitcnt lgkmcnt(0)')
        for i in range(1, 6):
            for jj in range(4): P(f'v_add_f32 v{base+jj}, v{base+jj}, v{base+4*i+jj}')
        T = base + 4
        for jj in range(4): P(f'v_mov_b32 v{T+jj}, v{base+jj}')
        for jj in range(4): P(f'v_permlane32_swap_b32 v{base+jj}, v{T+jj}')
        for jj in range(4): P(f'v_add_f32_dpp v{base+jj}, v{T+jj}, v{base+jj} row_shl:8 {DPPM}')
    fold_reduce(WA)
    P(f"""
    s_mul_i32 s59, s56, 9216
    s_lshl_b32 s60, s55, 9
    s_add_u32 s59, s59, s60
    s_add_u32 s59, s59, {MODP}
    v_lshlrev_b32 v17, 5, v3
    v_add_u32 v17, v17, v2
    v_lshlrev_b32 v17, 3, v17
    """)
    for rr in range(4):
        P(f'v_mov_b32 v{44+2*rr}, v{WA+rr}')
        P(f'v_mov_b32 v{45+2*rr}, s7')
    P('s_mov_b64 exec, 0x00ff00ff')
    for rr in range(4):
        P(f'buffer_store_dwordx2 v[{44+2*rr}:{45+2*rr}], v17, s[44:47], s59 offen offset:{64*rr} sc1')
    P('s_mov_b64 exec, -1')
    stamp(2)
    P('L_mod_Adone:')
    P(f"""
    s_cmp_lt_u32 s54, 12
    s_cbranch_scc1 L_woM
    L_mod_B:
    s_lshl_b32 s59, s66, 2
    v_add_u32 v4, s59, v31
    """)
    for t in range(12): P(f'ds_read_b32 v{XS+t}, v4 offset:{L_XS+32*t}')
    P('s_waitcnt vmcnt(0) lgkmcnt(0)')
    diag_mm(ACC, [WB+4*t for t in range(12)], [f'v{XS+t}' for t in range(12)], MK, QA, QB)
    P(f"""
    s_lshl_b32 s59, s53, 10
    v_lshlrev_b32 v16, 4, v1
    v_add_u32 v17, s59, v16
    ds_write_b128 v17, v[{ACC}:{ACC+3}] offset:{L_SLOT+6*1024}
    """)
    lds_add_rtn(C_H, 's60')
    P(f"""
    s_cmp_lg_u32 s60, 5
    s_cbranch_scc1 L_woM
    """)
    for i in range(6): P(f'ds_read_b128 v[{WB+4*i}:{WB+4*i+3}], v16 offset:{L_SLOT+1024*(6+i)}')
    P('s_waitcnt lgkmcnt(0)')
    for i in range(1, 6):
        for jj in range(4): P(f'v_add_f32 v{WB+jj}, v{WB+jj}, v{WB+4*i+jj}')
    T = WB + 4
    for jj in range(4): P(f'v_mov_b32 v{T+jj}, v{WB+jj}')
    for jj in range(4): P(f'v_permlane32_swap_b32 v{WB+jj}, v{T+jj}')
    for jj in range(4): P(f'v_add_f32_dpp v{WB+jj}, v{T+jj}, v{WB+jj} row_shl:8 {DPPM}')
    for jj in range(4): rne(f'v{WB+jj}', f'v{WB+jj}')
    P(f"""
    s_lshl_b32 s59, s65, 8
    s_add_u32 s59, s59, {MODF}
    v_lshlrev_b32 v17, 3, v3
    v_add_u32 v17, v17, v2
    v_lshlrev_b32 v17, 4, v17
    s_mov_b64 exec, 0x00ff00ff
    buffer_store_dwordx4 v[{WB}:{WB+3}], v17, s[44:47], s59 offen sc1
    s_mov_b64 exec, -1
    """)
    stamp(2)
    P('s_branch L_woM')

def clears(kind):
    P(f"""
    v_mov_b32 v8, -1
    v_mov_b32 v9, -1
    v_mov_b32 v10, -1
    v_mov_b32 v11, -1
    v_lshlrev_b32 v4, 4, v1
    s_lshl_b32 s52, s4, 4
    s_add_u32 s52, s52, s5
    s_lshl_b32 s52, s52, 11
    s_add_u32 s52, s52, {H3}
    buffer_store_dwordx4 v[8:11], v4, s[44:47], s52 offen sc1
    buffer_store_dwordx4 v[8:11], v4, s[44:47], s52 offen offset:1024 sc1
    """)
    if kind == 'F':
        P(f"""
        s_mul_i32 s52, s4, 9
        s_add_u32 s52, s52, s5
        s_mul_i32 s52, s52, 3072
        s_add_u32 s52, s52, {FP}
        """)
    else:
        P(f"""
        s_mul_i32 s52, s4, 7
        s_add_u32 s52, s52, s5
        s_sub_u32 s52, s52, 9
        s_mul_i32 s52, s52, 3072
        s_add_u32 s52, s52, {XP}
        """)
    for i in range(3): P(f'buffer_store_dwordx4 v[8:11], v4, s[44:47], s52 offen offset:{1024*i} sc1')
    if kind == 'A':
        l = P.lbl('Lnc')
        P(f"""
        s_cmp_lg_u32 s2, 255
        s_cbranch_scc1 {l}
        s_mov_b32 s52, {MODF}
        """)
        for i in range(15):
            P(f'buffer_store_dwordx4 v[8:11], v4, s[44:47], s52 offen sc1')
            P(f's_add_u32 s52, s52, 1024')
        P(f'{l}:')
    srd(48, 32, 256)
    P(f"""
    s_waitcnt vmcnt(0)
    s_and_b32 s52, s2, 3
    s_lshl_b32 s52, s52, 6
    v_mov_b32 v4, 0
    v_mov_b32 v5, 1
    s_mov_b64 exec, 1
    buffer_atomic_add v5, v4, s[48:51], s52 offen sc1
    s_mov_b64 exec, -1
    """)

def handshake():
    l = P.lbl('Lh')
    P(f"""
    v_lshlrev_b32 v4, 6, v1
    s_mov_b32 s64, 0x8000
    s_mov_b64 exec, 0xf
    {l}:
    buffer_load_dword v5, v4, s[48:51], 0 offen sc1
    s_waitcnt vmcnt(0)
    v_readlane_b32 s52, v5, 0
    v_readlane_b32 s53, v5, 1
    v_readlane_b32 s54, v5, 2
    v_readlane_b32 s55, v5, 3
    s_add_u32 s52, s52, s53
    s_add_u32 s54, s54, s55
    s_add_u32 s52, s52, s54
    s_sub_u32 s64, s64, 1
    s_cbranch_scc1 {ABORT}
    s_cmp_lt_u32 s52, 256
    s_cbranch_scc1 {l}
    s_mov_b64 exec, -1
    """)

def q_poll():
    P(f"""
    s_waitcnt lgkmcnt(0)
    s_add_u32 s7, s7, {GOLD:#x}
    s_lshl_b32 s52, s4, 12
    s_add_u32 s52, s52, {QP}
    v_lshlrev_b32 v4, 4, v1
    """)
    poll([f'buffer_load_dwordx4 v[{16+4*i}:{19+4*i}], v4, s[44:47], s52 offen offset:{1024*i} sc1' for i in range(4)],
         check_tags([17, 19, 21, 23, 25, 27, 29, 31]))
    P(f"""
    v_add_f32 v16, v16, v20
    v_add_f32 v18, v18, v22
    v_add_f32 v24, v24, v28
    v_add_f32 v26, v26, v30
    v_cvt_pk_bf16_f32 v16, v16, v18
    v_cvt_pk_bf16_f32 v24, v24, v26
    v_lshlrev_b32 v4, 2, v1
    ds_write_b32 v4, v16 offset:{L_Q}
    ds_write_b32 v4, v24 offset:{L_Q+256}
    s_waitcnt lgkmcnt(0)
    """)
    lds_add(FL_Q)

def reduce_parity(base, n_i):
    for i in range(1, n_i):
        for j in range(4): P(f'v_add_f32 v{base+j}, v{base+j}, v{base+4*i+j}')
    for d in ('quad_perm:[2,3,0,1]', 'row_ror:4', 'row_ror:8'):
        for j in range(4): P(f'v_add_f32_dpp v{base+j}, v{base+j}, v{base+j} {d} {DPPM}')
    xrow_multi('v_add_f32', [f'v{base+j}' for j in range(4)], [f'v{base+4+j}' for j in range(4)])

def commA_role():
    P('L_commA:')
    P('s_setprio 3')
    clears('A')
    stamp(1)
    q_poll()
    stamp(2)
    handshake()
    P(f"""
    s_sub_u32 s54, s5, 9              ; a
    s_mul_i32 s55, s4, 7
    s_add_u32 s55, s55, s54
    v_and_b32 v100, 1, v1               ; pi
    s_lshl_b32 s56, s55, 1
    v_add_u32 v4, s56, v100
    v_and_b32 v4, 7, v4
    s_lshr_b32 s56, s55, 2
    s_lshl_b32 s56, s56, 5
    v_add_u32 v4, s56, v4
    v_lshlrev_b32 v101, 1, v4
    v_lshlrev_b32 v102, 4, v100
    s_cmp_ge_u32 s55, 72
    s_cbranch_scc1 L_cA_nored1
    """)
    srd(40, 8, 1152)
    for r in range(4): P(f'buffer_load_ushort v{104+r}, v101, s[40:43], 0 offen offset:{16*r}')
    P(f"""
    s_lshl_b32 s56, s55, 5
    s_add_u32 s56, s56, {MODF}
    s_add_u32 s57, s56, {3*2304}
    """)
    poll([f'buffer_load_dwordx4 v[108:111], v102, s[44:47], s56 offen sc1',
          f'buffer_load_dwordx4 v[112:115], v102, s[44:47], s57 offen sc1'],
         check_sentinel(range(108, 116)))
    for r in range(4): P(f'v_lshlrev_b32 v{104+r}, 16, v{104+r}')
    P('L_cA_nored1:')
    stamp(3)
    P(f"""
    s_cmp_eq_u32 s54, 6
    s_cselect_b32 s57, 10, 9            ; E
    s_mul_i32 s56, s54, 9               ; 9a
    v_add_u32 v4, s56, v2               ; l_src = 9a + e
    v_lshlrev_b32 v5, 4, v4             ; *16
    v_cmp_gt_u32 vcc, s57, v2
    v_mov_b32 v6, 1024
    v_cndmask_b32 v5, v6, v5, vcc
    v_lshlrev_b32 v6, 11, v3
    v_add_u32 v5, v5, v6                ; + s_local*2048
    v_bfe_u32 v4, v4, 3, 1              ; head
    v_lshlrev_b32 v4, 3, v4
    v_add_u32 v4, v4, v6
    v_add_u32 v4, 1024, v4
    s_lshl_b32 s58, s4, 15
    s_add_u32 s58, s58, {H3}
    s_add_u32 s59, s58, 8192
    s_add_u32 s60, s58, 16384
    s_add_u32 s61, s58, 24576
    """)
    O, S = 16, 32
    loads = []
    for i in range(4):
        loads.append(f'buffer_load_dwordx4 v[{O+4*i}:{O+4*i+3}], v5, s[44:47], s{58+i} offen sc1')
        loads.append(f'buffer_load_dwordx2 v[{S+2*i}:{S+2*i+1}], v4, s[44:47], s{58+i} offen sc1')
    poll(loads, check_sentinel(range(16, 40)))
    stamp(4)
    P(f"""
    v_max3_f32 v40, v{S}, v{S+2}, v{S+4}
    v_max_f32 v40, v40, v{S+6}
    """)
    xrow('v_max_f32', 'v40', 'v41')
    P(f's_mov_b32 s56, {LOG2E:#x}')
    for i in range(4): P(f'v_sub_f32 v{42+i}, v{S+2*i}, v40')
    for i in range(4): P(f'v_mul_f32 v{42+i}, s56, v{42+i}')
    for i in range(4): P(f'v_exp_f32 v{42+i}, v{42+i}')
    P(f'v_mul_f32 v46, v42, v{S+1}')
    for i in range(1, 4): P(f'v_fmac_f32 v46, v{42+i}, v{S+2*i+1}')
    for j in range(4): P(f'v_mul_f32 v{48+j}, v42, v{O+j}')
    for i in range(1, 4):
        for j in range(4): P(f'v_fmac_f32 v{48+j}, v{42+i}, v{O+4*i+j}')
    xrow_multi('v_add_f32', ['v46', 'v48', 'v49', 'v50', 'v51'], ['v52', 'v53', 'v54', 'v55', 'v56'])
    P('v_rcp_f32 v46, v46')
    for j in range(4): P(f'v_mul_f32 v{48+j}, v{48+j}, v46')
    for j in range(4): P(f'v_cvt_pk_bf16_f32 v{48+j}, v{48+j}, v{48+j}')
    P(f'v_cmp_gt_u32 vcc, s57, v2')
    for j in range(4): P(f'v_cndmask_b32 v{48+j}, 0, v{48+j}, vcc')
    P(f"""
    v_lshlrev_b32 v4, 4, v1
    s_mov_b64 exec, 0xffff
    ds_write_b128 v4, v[48:51] offset:{L_XA}
    s_mov_b64 exec, -1
    s_waitcnt lgkmcnt(0)
    s_barrier
    """)
    stamp(5)
    P(f"""
    s_cmp_ge_u32 s55, 72
    s_cbranch_scc1 L_exit
    """)
    P(f"""
    v_lshrrev_b32 v4, 1, v1
    v_mul_u32_u24 v4, 3072, v4
    v_add_u32 v4, v4, v102              ; + pi*16
    v_mov_b32 v6, 0x40000000
    v_cmp_gt_u32 vcc, 32, v1
    v_cndmask_b32 v5, v6, v4, vcc
    s_lshl_b32 s56, s55, 5
    s_add_u32 s58, s56, {XP}
    s_add_u32 s59, s58, {32*3072}
    s_add_u32 s60, s58, {64*3072}
    s_add_u32 s61, s58, {96*3072}
    """)
    poll([f'buffer_load_dwordx4 v[{16+4*i}:{19+4*i}], {"v4" if i < 3 else "v5"}, s[44:47], s{58+i} offen sc1' for i in range(4)],
         check_sentinel(range(16, 32)))
    stamp(6)
    reduce_parity(16, 4)
    for j in range(4): rne(f'v{16+j}', f'v{16+j}')
    for j in range(4): P(f'v_mul_f32 v{16+j}, v{16+j}, v{108+j}')
    for j in range(4): rne(f'v{16+j}', f'v{16+j}')
    for j in range(4): P(f'v_add_f32 v{16+j}, v{16+j}, v{104+j}')
    for j in range(4): rne(f'v{116+j}', f'v{16+j}')
    P(f"""
    s_add_u32 s57, s56, {X2}
    s_mov_b64 exec, 3
    buffer_store_dwordx4 v[116:119], v102, s[44:47], s57 offen sc1
    s_mov_b64 exec, -1
    """)
    P(f"""
    s_add_u32 s58, s56, {FP}
    s_add_u32 s59, s58, {32*3072}
    s_add_u32 s60, s58, {64*3072}
    s_add_u32 s61, s58, {96*3072}
    s_add_u32 s65, s58, {128*3072}
    """)
    sreg = ['s58', 's59', 's60', 's61', 's65']
    poll([f'buffer_load_dwordx4 v[{16+4*i}:{19+4*i}], {"v4" if i < 4 else "v5"}, s[44:47], {sreg[i]} offen sc1' for i in range(5)],
         check_sentinel(range(16, 36)))
    stamp(7)
    reduce_parity(16, 5)
    for j in range(4): rne(f'v{16+j}', f'v{16+j}')
    for j in range(4): P(f'v_mul_f32 v{16+j}, v{16+j}, v{112+j}')
    for j in range(4): rne(f'v{16+j}', f'v{16+j}')
    for j in range(4): P(f'v_add_f32 v{16+j}, v{16+j}, v{116+j}')
    for j in range(4): P(f'v_cvt_pk_bf16_f32 v{16+j}, v{16+j}, v{16+j}')
    srd(40, 30, 1152)
    P('s_mov_b64 exec, 3')
    for j in range(4): P(f'buffer_store_short v{16+j}, v101, s[40:43], 0 offen offset:{16*j}')
    P('s_mov_b64 exec, -1')
    P(f"""
    s_cmp_lg_u32 s55, 0
    s_cbranch_scc1 L_exit
    v_mov_b32 v4, {EPOCH}
    v_mov_b32 v5, s7
    s_mov_b64 exec, 1
    buffer_store_dword v5, v4, s[44:47], 0 offen sc1
    s_mov_b64 exec, -1
    """)
    end_wave()

def commF_role():
    P('L_commF:')
    P('s_setprio 3')
    clears('F')
    stamp(1)
    q_poll()
    stamp(2)
    handshake()
    P(f"""
    v_lshlrev_b32 v4, 2, v1
    s_mov_b32 s56, {MODF+2304}
    s_mov_b32 s57, {MODF+2*2304}
    """)
    SB, CB, XA = 32, 44, 16
    poll([f'buffer_load_dword v{SB+n}, v4, s[44:47], s56 offen offset:{256*n} sc1' for n in range(9)] +
         [f'buffer_load_dword v{CB+n}, v4, s[44:47], s57 offen offset:{256*n} sc1' for n in range(9)],
         check_sentinel(list(range(SB, SB+9)) + list(range(CB, CB+9))))
    for n in range(9): P(f'v_add_f32 v{CB+n}, 1.0, v{CB+n}')
    for n in range(9): rne(f'v{CB+n}', f'v{CB+n}')
    stamp(3)
    P(f's_mov_b32 s56, {X2}')
    poll([f'buffer_load_dword v{XA+n}, v4, s[44:47], s56 offen offset:{256*n} sc1' for n in range(9)],
         check_sentinel(range(XA, XA+9)))
    stamp(4)
    ln_stats(XA, 'v60', 'v61', 'v62', 'v63')
    for n in range(9): P(f'v_sub_f32 v{XA+n}, v{XA+n}, v60')
    for n in range(9): rne(f'v{XA+n}', f'v{XA+n}')
    for n in range(9): P(f'v_mul_f32 v{XA+n}, v{XA+n}, v61')
    for n in range(9): rne(f'v{XA+n}', f'v{XA+n}')
    for n in range(9): P(f'v_mul_f32 v{XA+n}, v{XA+n}, v{CB+n}')
    for n in range(9): rne(f'v{XA+n}', f'v{XA+n}')
    for n in range(9): P(f'v_add_f32 v{XA+n}, v{XA+n}, v{SB+n}')
    for n in range(9): P(f'v_cvt_pk_bf16_f32 v{XA+n}, v{XA+n}, v{XA+n}')
    P('v_lshlrev_b32 v4, 1, v1')
    for n in range(9): P(f'ds_write_b16 v4, v{XA+n} offset:{L_XS+128*n}')
    P('s_waitcnt lgkmcnt(0)')
    P('s_barrier')
    stamp(5)
    end_wave()

def gu_role(nkv):
    RAW, MKx = 32, 8
    P('L_gu:')
    P(f"""
    s_sub_u32 s53, s3, 1              ; i
    s_lshr_b32 s54, s53, 1            ; matrix
    s_and_b32 s55, s53, 1             ; K half
    s_cmp_eq_u32 s54, 0
    s_cselect_b32 s36, s20, s22
    s_cselect_b32 s37, s21, s23
    s_mov_b32 s38, {576*9216}
    s_mov_b32 s39, 0x20000
    s_mul_i32 s56, s4, 9
    s_add_u32 s56, s56, s5            ; phi
    s_lshl_b32 s56, s56, 6
    s_mul_i32 s57, s55, {9*32*9216}
    s_add_u32 s56, s56, s57
    v_mul_u32_u24 v4, {2*9216}, v3
    v_lshl_add_u32 v4, v2, 2, v4
    s_mov_b32 s58, 0x05040100
    s_mov_b32 s59, 0x07060302
    """)
    lds_wait(C_KVI, nkv, sleep=2)
    stamp(1)
    def loads(u):
        for j in range(8):
            off = (32*u + 8*(j & 3) + (j >> 2)) * 9216
            P(f's_add_u32 s57, s56, {off}')
            P(f'buffer_load_dword v{RAW+8*u+j}, v4, s[36:39], s57 offen nt')
    def perm(u):
        src = RAW + 8*u
        dst = src - 8
        for i in range(4):
            P(f'v_perm_b32 v{dst+i}, v{src+2*i+1}, v{src+2*i}, s58')
            P(f'v_perm_b32 v{dst+4+i}, v{src+2*i+1}, v{src+2*i}, s59')
    DEPTH = 4
    for u in range(9):
        loads(u)
        if u >= DEPTH:
            P(f's_waitcnt vmcnt({8*DEPTH})')
            perm(u - DEPTH)
    for u in range(9 - DEPTH, 9):
        P(f's_waitcnt vmcnt({8*(8-u)})')
        perm(u)
    stamp(2)
    P(f"""
    s_mul_i32 s57, s55, {9*64}
    v_lshlrev_b32 v5, 4, v3
    v_add_u32 v5, s57, v5
    s_barrier
    """)
    stamp(3)
    AF = [96+4*u for u in range(8)] + [20]
    for u in range(9): P(f'ds_read_b128 v[{AF[u]}:{AF[u]+3}], v5 offset:{L_XS+64*u}')
    for u in range(9):
        P(f's_waitcnt lgkmcnt({8-u})')
        f0 = RAW - 8 + 8*u
        c0 = '0' if u == 0 else 'v[8:11]'
        c1 = '0' if u == 0 else 'v[12:15]'
        P(f'v_mfma_f32_16x16x32_bf16 v[8:11], v[{AF[u]}:{AF[u]+3}], v[{f0}:{f0+3}], {c0}')
        P(f'v_mfma_f32_16x16x32_bf16 v[12:15], v[{AF[u]}:{AF[u]+3}], v[{f0+4}:{f0+7}], {c1}')
    P(f"""
    v_mov_b32 v16, v8
    v_mov_b32 v17, v12
    s_lshl_b32 s57, s53, 7
    v_lshlrev_b32 v5, 3, v1
    v_add_u32 v5, s57, v5
    s_mov_b64 exec, 0xffff
    ds_write_b64 v5, v[16:17] offset:{L_RED3}
    s_mov_b64 exec, -1
    s_waitcnt lgkmcnt(0)
    s_barrier
    """)
    stamp(4)
    end_wave()

def build():
    global CODE_PF
    CODE_PF = 4
    prologue()
    cF, cQ, cM = cfg.cF, cfg.cQ, cfg.cM
    assert 9*cF + 4*cQ + 3*cM == 256 and cF % 2 == 0 and cQ % 2 == 0 and cM % 2 == 0 and cF//2 >= 5
    kv_role('L_kvF', cF//2, lambda: P(f's_mul_i32 s52, s5, {cF}'), False, True)
    kv_role('L_kvQ', cQ//2, lambda: P(f's_sub_u32 s52, s5, 9\ns_mul_i32 s52, s52, {cQ}\ns_add_u32 s52, s52, {9*cF}'), cfg.kv_gate_q, False)
    kv_role('L_kvM', cM//2, lambda: P(f's_sub_u32 s52, s5, 13\ns_mul_i32 s52, s52, {cM}\ns_add_u32 s52, s52, {9*cF+4*cQ}'), False, False)
    down_role()
    wq_role(cQ//2)
    mod_role_full()
    wo_role('Q', cQ//2)
    wo_role('M', cM//2)
    wo_common()
    commA_role()
    commF_role()
    gu_role(cF//2)
    P('L_abort:')
    P('s_mov_b64 exec, -1')
    P('L_exit:')
    if cfg.debug:
        P(f"""
        s_waitcnt lgkmcnt(0)
        s_lshl_b32 s60, s2, 4
        s_add_u32 s60, s60, s3
        s_lshl_b32 s60, s60, 6
        s_add_u32 s60, s60, {DBG}
        s_memrealtime s[96:97]
        s_waitcnt lgkmcnt(0)
        v_mov_b32 v8, s96
        """)
        for i in range(8): P(f'v_writelane_b32 v8, s{80+2*i}, {i}')
        P(f"""
        v_and_b32 v1, 63, v0
        v_lshlrev_b32 v7, 2, v1
        s_mov_b64 exec, 0x1ff
        buffer_store_dword v8, v7, s[44:47], s60 offen
        """)
    P('L_end:')
    P('s_endpgm')
    P.finalize()
    body = P.text()
    return (HEADER_COMMENT +
f"""; @launch grid=(256,1,1) block=(1024,1,1) lds={LDS_BYTES}
.amdgcn_target "amdgcn-amd-amdhsa--gfx950"
.text
.globl {KN}
.p2align 8
.type {KN},@function
{KN}:
{body}
.section .rodata,"a"
.p2align 6
.amdhsa_kernel {KN}
  .amdhsa_next_free_vgpr 128
  .amdhsa_next_free_sgpr 102
  .amdhsa_accum_offset 128
  .amdhsa_group_segment_fixed_size 0
  .amdhsa_kernarg_size 112
  .amdhsa_user_sgpr_count 2
  .amdhsa_user_sgpr_kernarg_segment_ptr 1
  .amdhsa_system_sgpr_workgroup_id_x 1
.end_amdhsa_kernel
""")

if __name__ == '__main__':
    import argparse
    ap = argparse.ArgumentParser()
    ap.add_argument('-o', default='k.s')
    ap.add_argument('--debug', action='store_true')
    ap.add_argument('--tiles', default='16,16,16')
    ap.add_argument('--nopf', action='store_true')
    a = ap.parse_args()
    cfg.debug = a.debug
    cfg.cF, cfg.cQ, cfg.cM = map(int, a.tiles.split(','))
    if a.nopf: cfg.prefetch_code = False
    open(a.o, 'w').write(build())
```

```python
import sys, math, struct
from dsl import Prog
from asmlib import HEADER_COMMENT, KN

class Cfg:
    cF, cQ, cM = 22, 4, 14
    debug = False
    prefetch_code = True
    kF, kQ, kM = '0', '0', '0'
    gu_depth = 4
    gul = 0
    gu_gate = 'pub'
    k_first = True
    pre_barrier = 1
    wo_k = 4
    b_k = 4
    q_sleep = 4
    poll_sleep = 0
    kvonly = False
    q_wo_gate = False
    q_wo_first = True
    stagger = 6
    pipe = True
    gu_early = 3
    b_on = 'M'
    m_gate_pub = False
cfg = Cfg()

EPOCH = 0x0
MODP = 0x1000
QF = 0x8000
MODF = 0x20000
X2 = 0x28000
X2S = 0x1400
H3 = 0x40000
H3S = 2560
XP = 0xE0000
FP = 0x160000
PS = 4608
DBG = 0x300000
FL_Q, C_KVI, C_MAX, C_O, C_RED, C_H, C_G, FL_PUB, C_K, C_B, C_GA, C_B2, C_WO = 0, 4, 8, 12, 16, 20, 24, 28, 32, 36, 40, 44, 48
L_ZERO = 0x100
L_Q = 0x200
L_MX = 0x400
L_LS = 0x480
L_XS = 0x500
L_RED3 = 0xA00
L_XA = 0x1100
L_SLOT = 0x1200
L_OSLOT = 0x1200 + 18*1024
LDS_BYTES = 0x1200 + 30*1024
LOG2E = 0x3FB8AA3B
SCALE = 0x3DB504F3
GOLD0, GOLD1 = 0x7F4A7C15, 0x9E3779B9
def f32hex(x): return struct.unpack('<I', struct.pack('<f', x))[0]

P = Prog()
ABORT = 'L_abort'
DPPM = 'row_mask:0xf bank_mask:0xf'

def stamp(i):
    if cfg.debug: P(f's_memrealtime s[{80+2*i}:{81+2*i}]')

def srd(base, ptr, nbytes):
    P(f"""
    s_mov_b32 s{base}, s{ptr}
    s_mov_b32 s{base+1}, s{ptr+1}
    s_mov_b32 s{base+2}, {nbytes}
    s_mov_b32 s{base+3}, 0x20000
    """)

def tag_ready():
    P(f"""
    s_waitcnt lgkmcnt(0)
    s_add_u32 s6, s6, {GOLD0:#x}
    s_add_u32 s7, s7, {GOLD1:#x}
    """)

def lds_wait(off, target, sleep=1):
    l = P.lbl('Lw'); d = P.lbl('Ld')
    P(f"""
    v_mov_b32 v7, 0
    s_mov_b32 s61, 0x400000
    {l}:
    ds_read_b32 v6, v7 offset:{off}
    s_waitcnt lgkmcnt(0)
    v_readfirstlane_b32 s60, v6
    s_cmp_ge_u32 s60, {target}
    s_cbranch_scc1 {d}
    s_sub_u32 s61, s61, 1
    s_cbranch_scc1 {ABORT}
    """)
    if sleep: P(f's_sleep {sleep}')
    P(f"""
    s_branch {l}
    {d}:
    """)

def lds_add(off):
    P(f"""
    v_mov_b32 v7, 0
    v_mov_b32 v6, 1
    s_mov_b64 s[62:63], exec
    s_mov_b64 exec, 1
    ds_add_u32 v7, v6 offset:{off}
    s_mov_b64 exec, s[62:63]
    """)

def lds_add_rtn(off, sdst):
    P(f"""
    v_mov_b32 v7, 0
    v_mov_b32 v6, 1
    s_mov_b64 s[62:63], exec
    s_mov_b64 exec, 1
    ds_add_rtn_u32 v6, v7, v6 offset:{off}
    s_waitcnt lgkmcnt(0)
    v_readfirstlane_b32 {sdst}, v6
    s_mov_b64 exec, s[62:63]
    """)

def rne(dst, src):
    P(f'v_cvt_pk_bf16_f32 {dst}, {src}, {src}')
    P(f'v_lshlrev_b32 {dst}, 16, {dst}')

def rne_many(regs):
    for r in regs: P(f'v_cvt_pk_bf16_f32 v{r}, v{r}, v{r}')
    for r in regs: P(f'v_lshlrev_b32 v{r}, 16, v{r}')

def xrow_multi(op, vs, ts):
    for sw in ('v_permlane16_swap_b32', 'v_permlane32_swap_b32'):
        for v, t in zip(vs, ts): P(f'v_mov_b32 {t}, {v}')
        for v, t in zip(vs, ts): P(f'{sw} {v}, {t}')
        for v, t in zip(vs, ts): P(f'{op} {v}, {v}, {t}')

def wave_sum(v, t):
    for d in ('quad_perm:[1,0,3,2]', 'quad_perm:[2,3,0,1]', 'row_half_mirror', 'row_mirror'):
        P(f'v_add_f32_dpp {v}, {v}, {v} {d} {DPPM}')
    xrow_multi('v_add_f32', [v], [t])

def masks(base):
    P(f"""
    v_and_b32 v6, 1, v2
    v_lshlrev_b32 v6, 4, v6
    v_mov_b32 v7, 0xffff
    v_lshlrev_b32 v7, v6, v7
    v_bfe_u32 v6, v2, 1, 2
    """)
    for i in range(4):
        P(f'v_cmp_eq_u32 vcc, {i}, v6')
        P(f'v_cndmask_b32 v{base+i}, 0, v7, vcc')

def diag_mm(acc, wregs, xregs, mk, qa, qb):
    n = len(wregs)
    def prep(t):
        q = (qa, qb)[t & 1]
        for i in range(4): P(f'v_and_b32 v{q+i}, {xregs[t]}, v{mk+i}')
    prep(0)
    for t in range(n):
        if t + 1 < n: prep(t + 1)
        q = (qa, qb)[t & 1]
        c = '0' if t == 0 else f'v[{acc}:{acc+3}]'
        P(f'v_mfma_f32_16x16x32_bf16 v[{acc}:{acc+3}], v[{wregs[t]}:{wregs[t]+3}], v[{q}:{q+3}], {c}')

def poll(loads, check):
    l = P.lbl('Lp'); l2 = P.lbl('Lp')
    P('s_mov_b32 s64, 0x8000')
    if cfg.poll_sleep:
        P(f's_branch {l2}')
        P(f'{l}:')
        P(f's_sleep {cfg.poll_sleep}')
        P(f'{l2}:')
    else:
        P(f'{l}:')
    for x in loads: P(x)
    P('s_waitcnt vmcnt(0)')
    check()
    P(f"""
    s_sub_u32 s64, s64, 1
    s_cbranch_scc1 {ABORT}
    s_cbranch_vccnz {l}
    """)


def poll2(mk_loads, mk_check, post, baseA, baseB, nloads):
    la = P.lbl('Lq'); lb = P.lbl('Lq'); ga = P.lbl('Lq'); gb = P.lbl('Lq'); done = P.lbl('Lq')
    P('s_mov_b32 s64, 0x8000')
    for x in mk_loads(baseA): P(x)
    P(f's_sleep {cfg.stagger}')
    P(f'{la}:')
    for x in mk_loads(baseB): P(x)
    P(f's_waitcnt vmcnt({nloads})')
    mk_check(baseA)
    P(f"""
    s_cbranch_vccz {ga}
    s_sub_u32 s64, s64, 1
    s_cbranch_scc1 {ABORT}
    """)
    for x in mk_loads(baseA): P(x)
    P(f's_waitcnt vmcnt({nloads})')
    mk_check(baseB)
    P(f"""
    s_cbranch_vccz {gb}
    s_branch {la}
    """)
    P(f'{gb}:')
    post(baseB)
    P(f's_branch {done}')
    P(f'{ga}:')
    post(baseA)
    P(f'{done}:')

def check_g(bases):
    def f():
        n = len(bases)
        assert n <= 8 + 5
        prs = [66 + 2*i for i in range(7)] + [96, 98]
        assert n <= len(prs) + 1
        for i, b in enumerate(bases):
            dst = 'vcc' if i == n - 1 else f's[{prs[i]}:{prs[i]+1}]'
            P(f'v_cmp_ne_u64 {dst}, s[6:7], v[{b+2}:{b+3}]')
        for i in range(n - 1):
            P(f's_or_b64 vcc, vcc, s[{prs[i]}:{prs[i]+1}]')
    return f

def check_tags32(regs, t='v6', t2='v7'):
    def f():
        rs = list(regs)
        P(f'v_xor_b32 {t}, s7, v{rs[0]}')
        for r in rs[1:]:
            P(f'v_xor_b32 {t2}, s7, v{r}')
            P(f'v_or_b32 {t}, {t}, {t2}')
        P(f'v_cmp_ne_u32 vcc, 0, {t}')
    return f

def end_wave(): P('s_branch L_exit')

def make_granules(G, ACC):
    P(f'v_mov_b32 v{G}, v{ACC}')
    P(f'v_mov_b32 v{G+1}, v{ACC+1}')
    P(f'v_mov_b32 v{G+4}, v{ACC+2}')
    P(f'v_mov_b32 v{G+5}, v{ACC+3}')
def tag_fill(G):
    for o in (2, 6):
        P(f'v_mov_b32 v{G+o}, s6')
        P(f'v_mov_b32 v{G+o+1}, s7')

def prologue():
    P(f"""
    s_cmp_ge_u32 s2, 256
    s_cbranch_scc1 L_end
    s_load_dwordx16 s[8:23], s[0:1], 0
    s_load_dwordx8 s[24:31], s[0:1], 64
    s_load_dwordx4 s[32:35], s[0:1], 96
    """)
    stamp(0)
    P(f"""
    v_lshrrev_b32 v4, 6, v0
    v_and_b32 v1, 63, v0
    v_and_b32 v2, 15, v1
    v_readfirstlane_b32 s3, v4
    v_lshrrev_b32 v3, 4, v1
    s_and_b32 s4, s2, 7
    s_lshl_b32 s4, s4, 1
    s_bfe_u32 s5, s2, 0x10003
    s_add_u32 s4, s4, s5
    s_lshr_b32 s5, s2, 4
    s_cmp_lg_u32 s3, 0
    s_cbranch_scc1 L_nozero
    v_lshlrev_b32 v4, 2, v1
    v_mov_b32 v5, 0
    ds_write_b32 v4, v5
    ds_write_b32 v4, v5 offset:256
    ds_write_b32 v4, v5 offset:{L_XA}
    L_nozero:
    s_waitcnt lgkmcnt(0)
    s_load_dwordx2 s[6:7], s[34:35], 0
    """)
    srd(44, 34, 0x40000000)
    nkF, nkQ, nkM = cfg.cF//2, cfg.cQ//2, cfg.cM//2
    if cfg.kvonly:
        P(f"""
        s_cmp_lt_u32 s5, 3
        s_cselect_b32 s60, {16-nkM}, {16-nkQ}
        s_cmp_ge_u32 s5, 7
        s_cselect_b32 s60, {16-nkF}, s60
        s_cmp_ge_u32 s3, s60
        s_cbranch_scc1 L_kvgo
        s_barrier
        s_branch L_end
        L_kvgo:
        """)
    P(f"""
    s_cmp_lt_u32 s5, 3
    s_cbranch_scc1 L_classM
    s_cmp_lt_u32 s5, 7
    s_cbranch_scc1 L_classQ
    s_cmp_eq_u32 s3, 0
    s_cbranch_scc1 L_kvF0
    s_cmp_le_u32 s3, 4
    s_cbranch_scc1 L_gu
    s_cmp_ge_u32 s3, {16-min(nkF, 11)}
    s_cbranch_scc1 L_kvF
    s_branch L_idle
    L_classQ:
    s_cmp_ge_u32 s3, {16-nkQ}
    s_cbranch_scc1 L_kvQ
    s_cmp_eq_u32 s3, 0
    s_cbranch_scc1 L_commA
    s_cmp_le_u32 s3, 6
    s_cbranch_scc1 L_wq
    s_cmp_le_u32 s3, 9
    s_cbranch_scc1 L_woQ
    s_branch L_idle
    L_classM:
    s_cmp_ge_u32 s3, {16-nkM}
    s_cbranch_scc1 L_kvM
    s_cmp_eq_u32 s3, 0
    s_cbranch_scc1 L_commA
    s_cmp_le_u32 s3, 6
    s_cbranch_scc1 L_mod
    s_cmp_le_u32 s3, 9
    s_cbranch_scc1 L_woM
    L_idle:
    s_barrier
    s_branch L_end
    """)

def kv_role(name, nkv, tile_expr, gate, is_f, kinf='0'):
    K0, V0, QF_, SD, TT, ACC, MK = 32, 64, 96, 24, 28, 96, 8
    if is_f:
        P('L_kvF0:')
        if nkv == 12:
            P('s_mov_b32 s53, 11')
            P('s_branch L_kvFgo')
        else:
            P('s_branch L_idle')
        P(f'{name}:')
        P(f's_sub_u32 s53, s3, {16-min(nkv, 11)}')
        P('L_kvFgo:')
    else:
        P(f'{name}:')
        P(f's_sub_u32 s53, s3, {16-nkv}')
    tile_expr()
    P(f"""
    s_lshl_b32 s54, s53, 1
    s_add_u32 s52, s52, s54
    s_lshl_b32 s52, s52, 12
    s_lshl_b32 s54, s4, 24
    s_add_u32 s52, s52, s54
    s_add_u32 s52, s52, {61440*256}
    s_add_u32 s55, s52, 4096
    """)
    srd(36, 10, 0x10000000)
    srd(40, 12, 0x10000000)
    P(f"""
    v_and_b32 v4, 7, v1
    v_lshlrev_b32 v4, 8, v4
    v_lshrrev_b32 v5, 3, v1
    v_lshl_add_u32 v4, v5, 4, v4          ; K: (l&7)*256 + (l>>3)*16
    v_lshlrev_b32 v5, 10, v3
    v_lshl_add_u32 v5, v2, 4, v5          ; V: gq*1024 + m*16
    """)
    if cfg.kvonly: gate = None
    if gate:
        P('s_barrier')
        lds_wait(gate[0], gate[1], sleep=2)
    stamp(1)
    st = {'n': 0}
    lim = lambda i: int(kinf[min(i, len(kinf)-1)], 16)
    def issue(r, vo, srdr, sreg, off):
        n = st['n']
        if not gate and n == cfg.pre_barrier: P('s_barrier')
        k = lim(n)
        if k and n >= k: P(f's_waitcnt vmcnt({k-1})')
        P(f'buffer_load_dwordx4 v[{r}:{r+3}], {vo}, s[{srdr}:{srdr+3}], {sreg} offen offset:{off} nt')
        st['n'] += 1
    for u in range(4):
        for hh in range(2):
            issue(K0 + 4*(2*u+hh), 'v4', 36, 's52' if u < 2 else 's55', (u & 1)*2048 + hh*128)
    if cfg.k_first:
        lds_add(C_K)
        lds_wait(C_K, nkv, sleep=1)
    for t in range(2):
        for r_ in range(4):
            issue(V0 + 16*t + 4*r_, 'v5', 40, 's52' if t == 0 else 's55', 256*r_)
    lds_add(C_KVI)
    stamp(2)
    if cfg.kvonly:
        P('s_waitcnt vmcnt(8)'); stamp(4)
        P('s_waitcnt vmcnt(0)'); stamp(5)
        end_wave(); return
    masks(MK)
    P(f"""
    v_bfe_u32 v12, v2, 2, 1
    v_lshlrev_b32 v22, 2, v12
    v_lshlrev_b32 v12, 8, v12
    v_lshrrev_b32 v13, 3, v2
    v_lshl_add_u32 v13, v3, 1, v13        ; 2g + par
    v_lshl_add_u32 v12, v13, 4, v12
    v_add_u32 v12, {L_Q}, v12
    v_and_b32 v13, 3, v2
    v_mov_b32 v14, {L_ZERO}
    """)
    for u in range(4):
        P(f'v_cmp_eq_u32 vcc, {u}, v13')
        P(f'v_cndmask_b32 v{16+u}, v14, v12, vcc')
    P(f"""
    v_and_b32 v12, 1, v3
    v_lshlrev_b32 v12, 4, v12
    v_lshrrev_b32 v13, 3, v2
    v_lshl_add_u32 v12, v13, 2, v12
    v_lshrrev_b32 v13, 1, v3
    v_add_u32 v12, v12, v13
    v_lshlrev_b32 v20, 2, v12
    v_add_u32 v21, 8, v20
    """)
    tag_ready()
    lds_wait(FL_Q, 4, sleep=2)
    stamp(3)
    for u in range(4):
        for hh in range(2):
            r = QF_ + 4*(2*u+hh)
            P(f'ds_read_b128 v[{r}:{r+3}], v{16+u} offset:{128*hh}')
    P('s_waitcnt vmcnt(8)')
    stamp(4)
    for i in range(8):
        P(f's_waitcnt lgkmcnt({7-i})')
        c = '0' if i == 0 else f'v[{SD}:{SD+3}]'
        P(f'v_mfma_f32_16x16x32_bf16 v[{SD}:{SD+3}], v[{K0+4*i}:{K0+4*i+3}], v[{QF_+4*i}:{QF_+4*i+3}], {c}')
    for j in range(4): P(f'v_mov_b32 v{TT+j}, v{SD+j}')
    for j in range(4): P(f'v_permlane32_swap_b32 v{SD+j}, v{TT+j}')
    for j in range(4): P(f'v_add_f32_dpp v{SD+j}, v{TT+j}, v{SD+j} row_shl:8 {DPPM}')
    P(f's_mov_b32 s56, {SCALE:#x}')
    P(f's_mov_b32 s57, 0xffff0000')
    P(f's_mov_b32 s58, {LOG2E:#x}')
    for rep in range(2):
        for p in range(2): P(f'v_cvt_pk_bf16_f32 v{TT+p}, v{SD+2*p}, v{SD+2*p+1}')
        for p in range(2):
            P(f'v_lshlrev_b32 v{SD+2*p}, 16, v{TT+p}')
            P(f'v_and_b32 v{SD+2*p+1}, s57, v{TT+p}')
        if rep == 0:
            for i in range(4): P(f'v_mul_f32 v{SD+i}, s56, v{SD+i}')
    P(f"""
    v_max3_f32 v12, v{SD}, v{SD+1}, v{SD+2}
    v_max_f32 v12, v12, v{SD+3}
    v_max_f32_dpp v12, v12, v12 quad_perm:[1,0,3,2] {DPPM}
    v_max_f32_dpp v12, v12, v12 quad_perm:[2,3,0,1] {DPPM}
    v_mov_b32 v13, v12
    v_permlane16_swap_b32 v12, v13
    v_max_f32 v12, v12, v13
    s_lshl_b32 s59, s53, 3
    v_add_u32 v23, s59, v22
    s_mov_b64 s[62:63], exec
    s_mov_b64 exec, 0x11
    ds_write_b32 v23, v12 offset:{L_MX}
    s_mov_b64 exec, s[62:63]
    """)
    lds_add(C_MAX)
    lds_wait(C_MAX, nkv, sleep=0)
    for i in range(nkv): P(f'ds_read_b32 v{K0+i}, v22 offset:{L_MX+8*i}')
    P('s_waitcnt lgkmcnt(0)')
    MX = 15
    P(f'v_mov_b32 v{MX}, v{K0}')
    i = 1
    while i < nkv:
        if i + 1 < nkv: P(f'v_max3_f32 v{MX}, v{MX}, v{K0+i}, v{K0+i+1}'); i += 2
        else: P(f'v_max_f32 v{MX}, v{MX}, v{K0+i}'); i += 1
    P(f'v_mul_f32 v13, s58, v{MX}')
    for i in range(4): P(f'v_fma_f32 v{SD+i}, v{SD+i}, s58, -v13')
    for i in range(4): P(f'v_exp_f32 v{SD+i}, v{SD+i}')
    P(f"""
    v_add_f32 v12, v{SD}, v{SD+1}
    v_add_f32 v13, v{SD+2}, v{SD+3}
    """)
    for i in range(4): P(f'v_cvt_pk_bf16_f32 v{SD+i}, v{SD+i}, v{SD+i}')
    P('v_add_f32 v12, v12, v13')
    G = 104
    for t in range(2):
        for r_ in range(4): P(f'ds_bpermute_b32 v{G+4*t+r_}, v{20+t}, v{SD+r_}')
    P(f"""
    v_add_f32_dpp v12, v12, v12 quad_perm:[1,0,3,2] {DPPM}
    v_add_f32_dpp v12, v12, v12 quad_perm:[2,3,0,1] {DPPM}
    v_mov_b32 v13, v12
    v_permlane16_swap_b32 v12, v13
    v_add_f32 v12, v12, v13
    s_mov_b64 s[62:63], exec
    s_mov_b64 exec, 0x11
    ds_write_b32 v23, v12 offset:{L_LS}
    s_mov_b64 exec, s[62:63]
    s_waitcnt lgkmcnt(1)
    """)
    for i in range(8):
        for j in range(4): P(f'v_and_b32 v{K0+4*i+j}, v{G+i}, v{MK+j}')
    GR = 112
    tag_fill(GR)
    P(f'v_mov_b32 v122, s6\nv_mov_b32 v123, s7')
    P('s_waitcnt vmcnt(0)')
    stamp(5)
    for i in range(8):
        c = '0' if i == 0 else f'v[{ACC}:{ACC+3}]'
        P(f'v_mfma_f32_16x16x32_bf16 v[{ACC}:{ACC+3}], v[{V0+4*i}:{V0+4*i+3}], v[{K0+4*i}:{K0+4*i+3}], {c}')
    P(f"""
    s_lshl_b32 s59, s53, 10
    v_lshlrev_b32 v16, 4, v1
    v_add_u32 v17, s59, v16
    ds_write_b128 v17, v[{ACC}:{ACC+3}] offset:{L_OSLOT}
    """)
    lds_add_rtn(C_O, 's60')
    ldone = P.lbl('Lkvdone')
    P(f"""
    s_cmp_lg_u32 s60, {nkv-1}
    s_cbranch_scc1 {ldone}
    """)
    for i in range(nkv): P(f'ds_read_b128 v[{K0+4*i}:{K0+4*i+3}], v16 offset:{L_OSLOT+1024*i}')
    LS0 = 100
    for i in range(nkv): P(f'ds_read_b32 v{LS0+i}, v22 offset:{L_LS+8*i}')
    P(f"""
    s_lshl_b32 s59, s4, 4
    s_add_u32 s59, s59, s5
    s_mul_i32 s59, s59, {H3S}
    s_add_u32 s59, s59, {H3}
    v_lshlrev_b32 v17, 2, v22
    s_waitcnt lgkmcnt(0)
    """)
    regs = list(range(nkv))
    while len(regs) > 1:
        nxt = []
        for a in range(0, len(regs) - 1, 2):
            x, y = regs[a], regs[a+1]
            for j in range(4): P(f'v_add_f32 v{K0+4*x+j}, v{K0+4*x+j}, v{K0+4*y+j}')
            P(f'v_add_f32 v{LS0+x}, v{LS0+x}, v{LS0+y}')
            nxt.append(x)
        if len(regs) % 2: nxt.append(regs[-1])
        regs = nxt
    make_granules(GR, K0)
    P(f"""
    v_mov_b32 v120, v{MX}
    v_mov_b32 v121, v{LS0}
    buffer_store_dwordx4 v[{GR}:{GR+3}], v16, s[44:47], s59 offen sc1
    buffer_store_dwordx4 v[{GR+4}:{GR+7}], v16, s[44:47], s59 offen offset:1024 sc1
    s_mov_b64 exec, 0x11
    buffer_store_dwordx4 v[120:123], v17, s[44:47], s59 offen offset:2048 sc1
    s_mov_b64 exec, -1
    """)
    lds_add(FL_PUB)
    stamp(6)
    P(f'{ldone}:')
    if is_f:
        P(f"""
        s_cmp_lt_u32 s53, 5
        s_cbranch_scc1 L_down
        s_cmp_eq_u32 s53, 5
        s_cbranch_scc1 L_commF
        s_branch L_exit
        """)
    else:
        end_wave()

def store_block(sb, ACC, G):
    make_granules(G, ACC)
    P(f"""
    s_lshl_b32 s60, {sb}, 9
    s_add_u32 s59, s59, s60
    s_add_u32 s65, s59, 2304
    v_cmp_gt_u32 vcc, 8, v2
    s_and_saveexec_b64 s[62:63], vcc
    buffer_store_dwordx4 v[{G}:{G+3}], v12, s[44:47], s59 offen sc1
    buffer_store_dwordx4 v[{G+4}:{G+7}], v12, s[44:47], s65 offen sc1
    s_mov_b64 exec, s[62:63]
    """)

def store_addr():
    P(f"""
    v_lshlrev_b32 v12, 3, v3
    v_add_u32 v12, v12, v2
    v_lshlrev_b32 v12, 4, v12
    """)

def store_half(ACC, G):
    T = G
    for j in range(4): P(f'v_mov_b32 v{T+8+j}, v{ACC+j}')
    for j in range(4): P(f'v_permlane32_swap_b32 v{ACC+j}, v{T+8+j}')
    for j in range(4): P(f'v_add_f32_dpp v{ACC+j}, v{T+8+j}, v{ACC+j} row_shl:8 {DPPM}')
    make_granules(G, ACC)
    P(f"""
    s_add_u32 s59, s59, 2048
    s_add_u32 s65, s59, 2304
    s_mov_b64 s[62:63], exec
    s_mov_b64 exec, 0x00ff00ff
    buffer_store_dwordx4 v[{G}:{G+3}], v12, s[44:47], s59 offen sc1
    buffer_store_dwordx4 v[{G+4}:{G+7}], v12, s[44:47], s65 offen sc1
    s_mov_b64 exec, s[62:63]
    """)

def down_role():
    W0, MK, XS, ACC, QA, QB, G = 32, 8, 64, 72, 76, 80, 84
    P('L_down:')
    lds_wait(FL_PUB, 1, sleep=1)
    srd(36, 24, 4608*1152)
    P(f"""
    s_mul_i32 s54, s4, 9
    s_add_u32 s54, s54, s5
    s_sub_u32 s54, s54, 7             ; phi
    s_mul_i32 s55, s54, {32*1152}
    s_cmp_eq_u32 s53, 4
    s_cbranch_scc1 L_down_half
    s_lshl_b32 s56, s53, 8
    s_add_u32 s55, s55, s56
    v_mul_u32_u24 v4, 1152, v3
    v_lshl_add_u32 v4, v2, 4, v4
    """)
    for e in range(8):
        P(f'buffer_load_dwordx4 v[{W0+4*e}:{W0+4*e+3}], v4, s[36:39], s55 offen nt')
        if e < 7: P(f's_add_u32 s55, s55, {4*1152}')
    P('v_lshlrev_b32 v5, 2, v3')
    P('s_mov_b32 s57, 16')
    P('s_branch L_down_go')
    P('L_down_half:')
    P(f"""
    s_add_u32 s55, s55, 1024
    v_lshrrev_b32 v6, 3, v2
    v_lshl_add_u32 v6, v6, 2, v3
    v_mul_u32_u24 v4, 1152, v6
    v_and_b32 v7, 7, v2
    v_lshl_add_u32 v4, v7, 4, v4
    v_lshlrev_b32 v5, 2, v6
    """)
    for t in range(4):
        P(f'buffer_load_dwordx4 v[{W0+4*t}:{W0+4*t+3}], v4, s[36:39], s55 offen nt')
        if t < 3: P(f's_add_u32 s55, s55, {8*1152}')
    P('s_mov_b32 s57, 32')
    P('L_down_go:')
    masks(MK)
    store_addr()
    tag_fill(G)
    for e in range(8):
        P(f'v_mov_b32 v{104+e}, v5')
        if e < 7: P('v_add_u32 v5, s57, v5')
    P(f"""
    s_mul_i32 s59, s54, {PS}
    s_add_u32 s59, s59, {FP}
    v_and_b32 v6, 31, v1
    v_lshlrev_b32 v13, 2, v6
    """)
    P('s_barrier')
    P('s_barrier')
    stamp(7)
    P(f"""
    ds_read_b32 v16, v13 offset:{L_RED3}
    ds_read_b32 v17, v13 offset:{L_RED3+128}
    ds_read_b32 v18, v13 offset:{L_RED3+256}
    ds_read_b32 v19, v13 offset:{L_RED3+384}
    s_waitcnt lgkmcnt(0)
    v_add_f32 v16, v16, v17
    v_add_f32 v18, v18, v19
    """)
    rne_many([16, 18])
    k1 = f32hex(0.044715); k2 = f32hex(-2.0*math.sqrt(2.0/math.pi)*math.log2(math.e))
    P(f"""
    s_mov_b32 s60, {k1:#x}
    s_mov_b32 s61, {k2:#x}
    v_mul_f32 v17, v16, v16
    v_mul_f32 v17, v17, v16
    v_fma_f32 v17, v17, s60, v16
    v_mul_f32 v17, s61, v17
    v_exp_f32 v17, v17
    v_add_f32 v17, 1.0, v17
    v_rcp_f32 v17, v17
    v_mul_f32 v16, v16, v17
    """)
    rne('v16', 'v16')
    P('v_mul_f32 v16, v16, v18')
    P('v_cvt_pk_bf16_f32 v16, v16, v16')
    for e in range(8): P(f'ds_bpermute_b32 v{XS+e}, v{104+e}, v16')
    P('s_waitcnt vmcnt(0) lgkmcnt(0)')
    P(f"""
    s_cmp_eq_u32 s53, 4
    s_cbranch_scc1 L_down_half2
    """)
    diag_mm(ACC, [W0+4*e for e in range(8)], [f'v{XS+e}' for e in range(8)], MK, QA, QB)
    store_block('s53', ACC, G)
    stamp(6)
    end_wave()
    P('L_down_half2:')
    diag_mm(ACC, [W0+4*t for t in range(4)], [f'v{XS+t}' for t in range(4)], MK, QA, QB)
    store_half(ACC, G)
    stamp(6)
    end_wave()

def wo_role(suffix, nkv):
    P(f'L_wo{suffix}:')
    P('s_barrier')
    if suffix == 'M': lds_wait(C_B2, 6, sleep=2)
    elif cfg.q_wo_gate: lds_wait(C_G, 1, sleep=2)
    P('s_branch L_wo_common')

def wo_common():
    W0, MK, XS, G = 32, 8, 112, 16
    A0, A1, QA, QB = 24, 28, 0, 0
    P('L_wo_common:')
    srd(36, 16, 4096*1152)
    P(f"""
    s_sub_u32 s53, s3, 7              ; 0,1,2
    s_mov_b32 s54, s5                 ; a
    s_mul_i32 s55, s54, 9
    s_lshl_b32 s56, s4, 8
    """)
    def rowbase(dst, e):
        P(f"""
        s_add_u32 s57, s55, {e}
        s_bfe_u32 s58, s57, 0x10003
        s_lshl_b32 s58, s58, 7
        s_lshr_b32 s60, s57, 4
        s_lshl_b32 s60, s60, 5
        s_add_u32 s58, s58, s60
        s_and_b32 s60, s57, 7
        s_add_u32 s58, s58, s60
        s_add_u32 s58, s58, s56
        s_mul_i32 {dst}, s58, 1152
        """)
    def common_post():
        lds_add(C_WO)
        masks(MK)
        store_addr()
        tag_ready()
        P(f"""
        s_mul_i32 s59, s4, 7
        s_add_u32 s59, s59, s54
        s_mul_i32 s59, s59, {PS}
        s_add_u32 s59, s59, {XP}
        """)
    P(f"""
    s_cmp_eq_u32 s53, 2
    s_cbranch_scc1 L_wo_half
    s_lshl_b32 s65, s53, 9
    v_mul_u32_u24 v4, {8*1152}, v3
    v_lshl_add_u32 v4, v2, 4, v4
    """)
    for e in range(10):
        if e == 9:
            P(f"""
            s_cmp_lt_u32 s54, 6
            s_cbranch_scc1 L_wo_l9
            """)
        rowbase('s66', e)
        P('s_add_u32 s66, s66, s65')
        P(f'buffer_load_dwordx4 v[{W0+8*e}:{W0+8*e+3}], v4, s[36:39], s66 offen nt')
        P(f'buffer_load_dwordx4 v[{W0+8*e+4}:{W0+8*e+7}], v4, s[36:39], s66 offen offset:256 nt')
    P('L_wo_l9:')
    P('v_lshlrev_b32 v5, 2, v3')
    common_post()
    GA, GB = 16, 120
    tag_fill(GA); tag_fill(GB)
    stamp(5)
    P('s_barrier')
    stamp(6)
    XS2 = [112, 113, 114, 115, 116, 117, 118, 119, 13, 14]
    for e in range(10): P(f'ds_read_b32 v{XS2[e]}, v5 offset:{L_XA+16*e}')
    P('s_waitcnt vmcnt(0) lgkmcnt(0)')
    def mm(n):
        qs = ((60+0, ), )
        QAa, QBb = 0, 0
        def prep(e, q):
            for i in range(4): P(f'v_and_b32 v{q+i}, v{XS2[e]}, v{MK+i}')
        Q2 = (4, 4)
        for e in range(n):
            q = 4 if e == 0 else W0 + 8*(e-1)
            prep(e, q)
            c0 = '0' if e == 0 else f'v[{A0}:{A0+3}]'
            c1 = '0' if e == 0 else f'v[{A1}:{A1+3}]'
            P(f'v_mfma_f32_16x16x32_bf16 v[{A0}:{A0+3}], v[{W0+8*e}:{W0+8*e+3}], v[{q}:{q+3}], {c0}')
            P(f'v_mfma_f32_16x16x32_bf16 v[{A1}:{A1+3}], v[{W0+8*e+4}:{W0+8*e+7}], v[{q}:{q+3}], {c1}')
    P(f"""
    s_cmp_lt_u32 s54, 6
    s_cbranch_scc1 L_wo_m9
    """)
    mm(10)
    P('s_branch L_wo_st')
    P('L_wo_m9:')
    mm(9)
    P('L_wo_st:')
    make_granules(GA, A0)
    make_granules(GB, A1)
    P(f"""
    s_lshl_b32 s60, s53, 10
    s_add_u32 s59, s59, s60
    s_add_u32 s65, s59, 2304
    v_cmp_gt_u32 vcc, 8, v2
    s_and_saveexec_b64 s[62:63], vcc
    buffer_store_dwordx4 v[{GA}:{GA+3}], v12, s[44:47], s59 offen sc1
    buffer_store_dwordx4 v[{GB}:{GB+3}], v12, s[44:47], s59 offen offset:512 sc1
    buffer_store_dwordx4 v[{GA+4}:{GA+7}], v12, s[44:47], s65 offen sc1
    buffer_store_dwordx4 v[{GB+4}:{GB+7}], v12, s[44:47], s65 offen offset:512 sc1
    s_mov_b64 exec, s[62:63]
    """)
    stamp(7)
    end_wave()
    P('L_wo_half:')
    P(f"""
    v_mul_u32_u24 v4, {8*1152}, v3
    v_and_b32 v6, 7, v2
    v_lshl_add_u32 v4, v6, 4, v4
    v_add_u32 v4, 1024, v4
    v_cmp_lt_u32 s[68:69], 7, v2
    """)
    for t in range(5):
        rowbase('s66', 2*t)
        rowbase('s67', 2*t+1)
        if t == 4:
            P(f"""
            s_cmp_lt_u32 s54, 6
            s_cselect_b32 s67, 0x40000000, s67
            """)
        P(f"""
        v_mov_b32 v6, s66
        v_mov_b32 v7, s67
        v_cndmask_b32 v6, v6, v7, s[68:69]
        v_add_u32 v6, v6, v4
        buffer_load_dwordx4 v[{W0+4*t}:{W0+4*t+3}], v6, s[36:39], 0 offen nt
        """)
    P(f"""
    v_lshrrev_b32 v5, 3, v2
    v_lshl_add_u32 v5, v5, 2, v3
    v_lshlrev_b32 v5, 2, v5
    """)
    common_post()
    GH = 96
    tag_fill(GH)
    stamp(5)
    P('s_barrier')
    stamp(6)
    for t in range(5): P(f'ds_read_b32 v{112+t}, v5 offset:{L_XA+32*t}')
    P('s_waitcnt vmcnt(0) lgkmcnt(0)')
    diag_mm(72, [W0+4*t for t in range(5)], [f'v{112+t}' for t in range(5)], MK, 76, 80)
    store_half(72, GH)
    stamp(7)
    end_wave()

def q_fetch(nxt):
    l = P.lbl('Lqf'); l2 = P.lbl('Lqf'); l3 = P.lbl('Lqf')
    P(f"""
    s_cmp_gt_u32 s3, 4
    s_cbranch_scc1 {nxt}
    s_lshl_b32 s38, s4, 10
    s_lshl_b32 s39, s3, 8
    s_add_u32 s38, s38, s39
    s_add_u32 s38, s38, {QF-256}
    s_add_u32 s36, s34, s38
    s_addc_u32 s37, s35, 0
    s_mov_b32 s42, 0x40000
    s_branch {l3}
    {l}:
    s_sleep {cfg.q_sleep}
    {l3}:
    s_load_dwordx2 s[40:41], s[36:37], 128 glc
    s_sub_u32 s42, s42, 1
    s_cbranch_scc1 {ABORT}
    s_waitcnt lgkmcnt(0)
    s_cmp_lg_u32 s41, s7
    s_cbranch_scc1 {l}
    {l2}:
    s_load_dwordx16 s[48:63], s[36:37], 0 glc
    s_load_dwordx16 s[64:79], s[36:37], 64 glc
    s_sub_u32 s42, s42, 1
    s_cbranch_scc1 {ABORT}
    s_waitcnt lgkmcnt(0)
    s_add_u32 s43, s48, s7
    """)
    for i in range(49, 80): P(f's_add_u32 s43, s43, s{i}')
    P(f"""
    s_cmp_lg_u32 s43, s40
    s_cbranch_scc1 {l2}
    """)
    for i in range(32): P(f'v_writelane_b32 v20, s{48+i}, {i}')
    P(f"""
    v_and_b32 v21, 3, v1
    v_lshlrev_b32 v21, 2, v21
    v_bfe_u32 v22, v1, 2, 2
    v_add_u32 v21, v21, v22
    v_and_b32 v22, 16, v1
    v_add_u32 v21, v21, v22
    v_lshlrev_b32 v21, 2, v21
    s_lshl_b32 s38, s3, 7
    v_add_u32 v21, s38, v21
    s_mov_b64 exec, 0xffffffff
    ds_write_b32 v21, v20 offset:{L_Q-128}
    s_mov_b64 exec, -1
    """)
    srd(44, 34, 0x40000000)
    lds_add(FL_Q)

def ln_stats(regs, mean_b, rstd, t1, t2, maskfix=None):
    P(f'v_add_f32 {t1}, v{regs[0]}, v{regs[1]}')
    for r in regs[2:]: P(f'v_add_f32 {t1}, {t1}, v{r}')
    wave_sum(t1, t2)
    P(f's_mov_b32 s60, {f32hex(1.0/576.0):#x}')
    P(f'v_mul_f32 {t1}, s60, {t1}')
    first = True
    for r in regs:
        P(f'v_sub_f32 {t2}, v{r}, {t1}')
        if maskfix and r in maskfix[0]: P(f'v_cndmask_b32 {t2}, 0, {t2}, {maskfix[1]}')
        if first: P(f'v_mul_f32 {rstd}, {t2}, {t2}'); first = False
        else: P(f'v_fmac_f32 {rstd}, {t2}, {t2}')
    wave_sum(rstd, t2)
    P(f'v_mul_f32 {rstd}, s60, {rstd}')
    rne(rstd, rstd)
    P(f'v_add_f32 {rstd}, {f32hex(1e-5):#x}, {rstd}')
    rne(rstd, rstd)
    P(f'v_sqrt_f32 {rstd}, {rstd}')
    rne(rstd, rstd)
    P(f'v_rcp_f32 {rstd}, {rstd}')
    rne(mean_b, t1)

def fold_reduce(base, slot0):
    for i in range(6): P(f'ds_read_b128 v[{base+4*i}:{base+4*i+3}], v16 offset:{L_SLOT+1024*(slot0+i)}')
    P('s_waitcnt lgkmcnt(0)')
    for (x, y) in ((0, 1), (2, 3), (4, 5), (0, 2), (0, 4)):
        for jj in range(4): P(f'v_add_f32 v{base+4*x+jj}, v{base+4*x+jj}, v{base+4*y+jj}')
    T = base + 4
    for jj in range(4): P(f'v_mov_b32 v{T+jj}, v{base+jj}')
    for jj in range(4): P(f'v_permlane32_swap_b32 v{base+jj}, v{T+jj}')
    for jj in range(4): P(f'v_add_f32_dpp v{base+jj}, v{T+jj}, v{base+jj} row_shl:8 {DPPM}')

def silu(regs, tmps):
    P(f's_mov_b32 s60, {f32hex(-1.4426950408889634):#x}')
    for r in regs: P(f'v_lshlrev_b32 v{r}, 16, v{r}')
    for r, t in zip(regs, tmps): P(f'v_mul_f32 v{t}, s60, v{r}')
    for r, t in zip(regs, tmps): P(f'v_exp_f32 v{t}, v{t}')
    for r, t in zip(regs, tmps): P(f'v_add_f32 v{t}, 1.0, v{t}')
    for r, t in zip(regs, tmps): P(f'v_rcp_f32 v{t}, v{t}')
    for r, t in zip(regs, tmps): P(f'v_mul_f32 v{r}, v{r}, v{t}')
    for r, t in zip(regs, tmps): P(f'v_cvt_pk_bf16_f32 v{r}, v{r}, v{r}')

def wq_role():
    WB, MK, XS, ACC, QA, QB, XA = 56, 8, 104, 116, 120, 124, 32
    XSB = L_SLOT + 12*1024
    P('L_wq:')
    srd(36, 14, 576*8192)
    srd(40, 8, 1152)
    P(f"""
    s_sub_u32 s53, s3, 1              ; j
    s_sub_u32 s54, s5, 3              ; qi
    s_mul_i32 s57, s53, 96
    v_lshlrev_b32 v4, 1, v1
    """)
    for n in range(9): P(f'buffer_load_ushort v{XA+n}, v4, s[40:43], 0 offen offset:{128*n}')
    P(f"""
    v_and_b32 v6, 31, v1
    v_lshlrev_b32 v7, 1, v6
    s_lshl_b32 s58, s57, 1
    buffer_load_ushort v{XA+9}, v4, s[40:43], s58 offen
    buffer_load_ushort v{XA+10}, v7, s[40:43], s58 offen offset:128
    v_lshrrev_b32 v13, 3, v2
    v_lshl_add_u32 v13, v13, 2, v3
    v_lshlrev_b32 v5, 13, v13
    v_and_b32 v7, 7, v2
    v_lshl_add_u32 v5, v7, 4, v5
    s_lshl_b32 s58, s57, 13
    s_lshl_b32 s59, s4, 9
    s_add_u32 s58, s58, s59
    s_lshl_b32 s59, s54, 7
    s_add_u32 s58, s58, s59
    """)
    for t in range(12):
        P(f'buffer_load_dwordx4 v[{WB+4*t}:{WB+4*t+3}], v5, s[36:39], s58 offen nt')
        if t < 11: P(f's_add_u32 s58, s58, {8*8192}')
    stamp(1)
    P('s_barrier')
    P(f"""
    v_add_u32 v28, s57, v1
    v_lshlrev_b32 v28, 3, v28
    v_add_u32 v29, s57, v6
    v_lshlrev_b32 v29, 3, v29
    v_add_u32 v29, 512, v29
    v_lshlrev_b32 v31, 2, v13
    s_lshl_b32 s67, s53, 10
    v_add_u32 v31, s67, v31
    v_lshlrev_b32 v30, 2, v1
    v_add_u32 v30, s67, v30
    v_lshlrev_b32 v27, 2, v6
    v_add_u32 v27, s67, v27
    """)
    masks(MK)
    P('s_waitcnt vmcnt(12)')
    tag_ready()
    for n in range(11): P(f'v_lshlrev_b32 v{XA+n}, 16, v{XA+n}')
    ln_stats(list(range(XA, XA+9)), 'v16', 'v17', 'v18', 'v19')
    for n in (9, 10): P(f'v_sub_f32 v{XA+n}, v{XA+n}, v16')
    rne_many([XA+9, XA+10])
    for n in (9, 10): P(f'v_mul_f32 v{XA+n}, v{XA+n}, v17')
    rne_many([XA+9, XA+10])
    P(f"""
    v_mov_b32 v20, v{XA+9}
    v_mov_b32 v21, v{XA+10}
    s_mov_b32 s66, {MODP}
    s_mov_b32 s68, {MODP+9216}
    s_mov_b32 s69, {MODP+4608}
    s_mov_b32 s70, {MODP+9216+4608}
    """)
    G = 32
    sr = ['s66', 's68', 's69', 's70']
    loads = []
    for st_, va in enumerate(('v28', 'v29')):
        for i in range(4):
            r = G + 8*st_ + 2*i
            loads.append(f'buffer_load_dwordx2 v[{r}:{r+1}], {va}, s[44:47], {sr[i]} offen sc1')
    P('s_waitcnt vmcnt(0)')
    stamp(5)
    poll(loads, check_tags32([G+1+2*i for i in range(8)]))
    stamp(2)
    for st_ in range(2):
        b = G + 8*st_
        P(f'v_add_f32 v{b}, v{b}, v{b+2}')
        P(f'v_add_f32 v{b+4}, v{b+4}, v{b+6}')
    rne_many([G, G+4, G+8, G+12])
    for st_ in range(2): P(f'v_add_f32 v{G+8*st_+4}, 1.0, v{G+8*st_+4}')
    rne_many([G+4, G+12])
    for st_ in range(2): P(f'v_mul_f32 v{20+st_}, v{20+st_}, v{G+8*st_+4}')
    rne_many([20, 21])
    for st_ in range(2): P(f'v_add_f32 v{20+st_}, v{20+st_}, v{G+8*st_}')
    for st_ in range(2): P(f'v_cvt_pk_bf16_f32 v{20+st_}, v{20+st_}, v{20+st_}')
    P(f"""
    ds_write_b32 v30, v20 offset:{XSB}
    ds_write_b32 v27, v21 offset:{XSB+256}
    """)
    for t in range(12): P(f'ds_read_b32 v{XS+t}, v31 offset:{XSB+32*t}')
    P('s_waitcnt lgkmcnt(0)')
    stamp(3)
    diag_mm(ACC, [WB+4*t for t in range(12)], [f'v{XS+t}' for t in range(12)], MK, QA, QB)
    P(f"""
    s_lshl_b32 s59, s53, 10
    v_lshlrev_b32 v16, 4, v1
    v_add_u32 v19, s59, v16
    ds_write_b128 v19, v[{ACC}:{ACC+3}] offset:{L_SLOT}
    """)
    lds_add_rtn(C_RED, 's60')
    P(f"""
    s_cmp_lg_u32 s60, 5
    s_cbranch_scc1 L_wq_done
    """)
    fold_reduce(WB, 0)
    for r in range(4): P(f'v_mov_b32_dpp v{WB+4+r}, v{WB+r} quad_perm:[1,0,3,2] {DPPM}')
    for r in range(4): P(f'v_cvt_pk_bf16_f32 v{WB+r}, v{WB+r}, v{WB+4+r}')
    P(f"""
    v_add_u32 v{WB+4}, v{WB}, v{WB+1}
    v_add3_u32 v{WB+4}, v{WB+4}, v{WB+2}, v{WB+3}
    s_mov_b32 s60, 0x00550055
    s_mov_b32 s61, 0
    v_cndmask_b32 v{WB+4}, 0, v{WB+4}, s[60:61]
    v_add_u32_dpp v{WB+4}, v{WB+4}, v{WB+4} quad_perm:[2,3,0,1] {DPPM}
    v_add_u32_dpp v{WB+4}, v{WB+4}, v{WB+4} row_shl:4 {DPPM} bound_ctrl:0
    v_lshrrev_b32 v19, 1, v2
    v_lshl_add_u32 v19, v3, 2, v19
    v_lshlrev_b32 v19, 4, v19            ; (gq*4 + c/2)*16
    v_readlane_b32 s60, v{WB+4}, 0
    v_readlane_b32 s61, v{WB+4}, 16
    s_add_u32 s60, s60, s61
    s_add_u32 s60, s60, s7
    s_mov_b32 s61, 128
    v_writelane_b32 v{WB}, s60, 1
    v_writelane_b32 v{WB+1}, s7, 1
    v_writelane_b32 v19, s61, 1
    s_lshl_b32 s59, s4, 10
    s_lshl_b32 s60, s54, 8
    s_add_u32 s59, s59, s60
    s_add_u32 s59, s59, {QF}
    s_mov_b64 exec, 0x00550057
    buffer_store_dwordx4 v[{WB}:{WB+3}], v19, s[44:47], s59 offen sc1
    s_mov_b64 exec, -1
    """)
    lds_add(C_G)
    stamp(4)
    P('L_wq_done:')
    q_fetch('L_exit')
    end_wave()

def mod_role():
    WA, MK, XS, ACC, QA, QB = 32, 8, 104, 116, 120, 124
    XSB = L_SLOT + 12*1024
    P('L_mod:')
    P(f"""
    s_mov_b32 s54, s2
    s_cmp_ge_u32 s54, 36
    s_cbranch_scc1 L_mod_noA
    """)
    srd(36, 28, 576*6912)
    srd(40, 26, 1152)
    P(f"""
    s_sub_u32 s53, s3, 1              ; j
    v_lshlrev_b32 v4, 1, v1
    s_and_b32 s56, s54, 1             ; kh
    s_mul_i32 s57, s56, 288
    s_mul_i32 s58, s53, 48
    s_add_u32 s57, s57, s58
    s_lshl_b32 s58, s57, 1
    buffer_load_ushort v16, v4, s[40:43], s58 offen
    v_lshrrev_b32 v13, 3, v2
    v_lshl_add_u32 v13, v13, 2, v3
    v_mul_u32_u24 v5, 6912, v13
    v_and_b32 v7, 7, v2
    v_lshl_add_u32 v5, v7, 4, v5
    s_lshr_b32 s55, s54, 1            ; cbk
    s_mul_i32 s58, s57, 6912
    s_lshl_b32 s59, s55, 7
    s_add_u32 s58, s58, s59
    """)
    for t in range(6):
        P(f'buffer_load_dwordx4 v[{WA+4*t}:{WA+4*t+3}], v5, s[36:39], s58 offen nt')
        if t < 5: P(f's_add_u32 s58, s58, {8*6912}')
    P('s_barrier')
    P(f"""
    v_lshlrev_b32 v31, 2, v13
    s_lshl_b32 s67, s53, 10
    v_add_u32 v31, s67, v31
    v_lshlrev_b32 v30, 2, v1
    v_add_u32 v30, s67, v30
    s_mul_i32 s65, s56, 9216
    s_lshl_b32 s60, s55, 9
    s_add_u32 s65, s65, s60
    s_add_u32 s65, s65, {MODP}
    v_lshlrev_b32 v29, 5, v3
    v_add_u32 v29, v29, v2
    v_lshlrev_b32 v29, 3, v29
    """)
    masks(MK)
    tag_ready()
    for rr in range(4): P(f'v_mov_b32 v{61+2*rr}, s7')
    P('s_waitcnt vmcnt(6)')
    stamp(1)
    silu([16], [19])
    P(f'ds_write_b32 v30, v16 offset:{XSB}')
    for t in range(6): P(f'ds_read_b32 v{XS+t}, v31 offset:{XSB+32*t}')
    P('s_waitcnt vmcnt(0) lgkmcnt(0)')
    stamp(2)
    lds_add(C_G)
    diag_mm(ACC, [WA+4*t for t in range(6)], [f'v{XS+t}' for t in range(6)], MK, QA, QB)
    P(f"""
    s_lshl_b32 s59, s53, 10
    v_lshlrev_b32 v16, 4, v1
    v_add_u32 v19, s59, v16
    ds_write_b128 v19, v[{ACC}:{ACC+3}] offset:{L_SLOT}
    """)
    lds_add_rtn(C_RED, 's60')
    P(f"""
    s_cmp_lg_u32 s60, 5
    s_cbranch_scc1 L_mod_fin
    """)
    fold_reduce(WA, 0)
    for rr in range(4): P(f'v_mov_b32 v{60+2*rr}, v{WA+rr}')
    P('s_mov_b64 exec, 0x00ff00ff')
    for rr in range(4):
        P(f'buffer_store_dwordx2 v[{60+2*rr}:{61+2*rr}], v29, s[44:47], s65 offen offset:{64*rr} sc1')
    P('s_mov_b64 exec, -1')
    lds_add(C_H)
    stamp(3)
    P('s_branch L_mod_fin')
    P('L_mod_noA:')
    P('s_barrier')
    if cfg.b_on != 'M': lds_add(C_G)
    lds_add(C_H)
    tag_ready()
    P('L_mod_fin:')
    if cfg.b_on == 'M':
        lds_wait(C_H, 1, sleep=0)
        P(f"""
        s_cmp_lt_u32 s2, 12
        s_cbranch_scc1 L_mod_nob
        s_sub_u32 s65, s2, 12
        s_sub_u32 s53, s3, 1
        """)
        modb_body('M')
        P('s_branch L_mod_q')
        P('L_mod_nob:')
        lds_add(C_B2)
        P('L_mod_q:')
    q_fetch('L_exit')
    end_wave()

def modb_body(cls):
    WB, MK, XS, ACC, QA, QB, G = 56, 8, 104, 116, 120, 124, 32
    done = 'L_exit' if cls == 'Q' else 'L_modb_done'
    srd(36, 28, 576*6912)
    srd(40, 26, 1152)
    P(f"""
    v_lshlrev_b32 v4, 1, v1
    s_mul_i32 s66, s53, 96
    s_lshl_b32 s59, s66, 1
    buffer_load_ushort v17, v4, s[40:43], s59 offen
    buffer_load_ushort v18, v4, s[40:43], s59 offen offset:128
    v_lshrrev_b32 v13, 3, v2
    v_lshl_add_u32 v13, v13, 2, v3
    v_mul_u32_u24 v5, 6912, v13
    v_and_b32 v7, 7, v2
    v_lshl_add_u32 v5, v7, 4, v5
    v_lshlrev_b32 v31, 2, v13
    s_lshl_b32 s67, s53, 9
    v_add_u32 v31, s67, v31
    v_lshlrev_b32 v30, 2, v1
    v_add_u32 v30, s67, v30
    s_mul_i32 s58, s66, 6912
    s_lshl_b32 s59, s65, 7
    s_add_u32 s58, s58, s59
    s_add_u32 s58, s58, 2304
    """)
    def wloads():
        for t in range(12):
            if cls == 'Q' and cfg.b_k and t >= cfg.b_k: P(f's_waitcnt vmcnt({cfg.b_k-1})')
            P(f'buffer_load_dwordx4 v[{WB+4*t}:{WB+4*t+3}], v5, s[36:39], s58 offen nt')
            if t < 11: P(f's_add_u32 s58, s58, {8*6912}')
    if cls == 'M':
        wloads()
        lds_add(C_B2)
        masks(MK)
        P('s_waitcnt vmcnt(12)')
    else:
        masks(MK)
        P('s_waitcnt vmcnt(0)')
        tag_ready()
    tag_fill(G)
    silu([17, 18], [19, 20])
    P(f"""
    ds_write_b32 v30, v17 offset:{L_XS}
    ds_write_b32 v30, v18 offset:{L_XS+256}
    """)
    for t in range(12): P(f'ds_read_b32 v{XS+t}, v31 offset:{L_XS+32*t}')
    if cls == 'Q':
        lds_wait(C_G, 1, sleep=2)
        stamp(1)
        wloads()
    P('s_waitcnt vmcnt(0) lgkmcnt(0)')
    diag_mm(ACC, [WB+4*t for t in range(12)], [f'v{XS+t}' for t in range(12)], MK, QA, QB)
    P(f"""
    s_lshl_b32 s59, s53, 10
    v_lshlrev_b32 v16, 4, v1
    v_add_u32 v19, s59, v16
    ds_write_b128 v19, v[{ACC}:{ACC+3}] offset:{L_SLOT+6*1024}
    """)
    lds_add_rtn(C_B, 's60')
    P(f"""
    s_cmp_lg_u32 s60, 5
    s_cbranch_scc1 {done}
    """)
    fold_reduce(WB, 6)
    rne_many([WB+jj for jj in range(4)])
    make_granules(G, WB)
    P(f"""
    s_lshl_b32 s59, s65, 9
    s_add_u32 s59, s59, {MODF}
    v_lshlrev_b32 v19, 3, v3
    v_add_u32 v19, v19, v2
    v_lshlrev_b32 v19, 5, v19
    s_mov_b64 exec, 0x00ff00ff
    buffer_store_dwordx4 v[{G}:{G+3}], v19, s[44:47], s59 offen sc1
    buffer_store_dwordx4 v[{G+4}:{G+7}], v19, s[44:47], s59 offen offset:16 sc1
    s_mov_b64 exec, -1
    """)
    stamp(4)
    if cls == 'Q': end_wave()
    else: P('L_modb_done:')

def modb_role():
    P('L_modb:')
    P('s_barrier')
    if cfg.b_on != 'Q':
        P('s_branch L_end')
        return
    P(f"""
    s_sub_u32 s65, s2, 48            ; b
    s_cmp_ge_u32 s65, 36
    s_cbranch_scc1 L_exit
    s_sub_u32 s53, s3, 7              ; j
    """)
    modb_body('Q')

def prefetch_code():
    if not cfg.prefetch_code: return
    P(f"""
    s_getpc_b64 s[52:53]
    L_pc:
    s_sub_u32 s52, s52, L_pc-{KN}
    s_subb_u32 s53, s53, 0
    v_lshlrev_b32 v4, 7, v1
    """)
    for i in range(CODE_PF):
        P(f'v_cmp_gt_u32 vcc, L_codeend-{KN}, v4')
        P('s_and_saveexec_b64 s[62:63], vcc')
        P(f'global_load_dword v{16+i}, v4, s[52:53]')
        P('s_mov_b64 exec, s[62:63]')
        P('v_add_u32 v4, 0x2000, v4')

def reduce4(a, b, n_i, base):
    regs = list(range(n_i))
    while len(regs) > 1:
        nxt = []
        for k in range(0, len(regs) - 1, 2):
            x, y = regs[k], regs[k+1]
            for j in range(2): P(f'v_add_f32 v{base+4*x+j}, v{base+4*x+j}, v{base+4*y+j}')
            nxt.append(x)
        if len(regs) % 2: nxt.append(regs[-1])
        regs = nxt
    for d in ('row_ror:4', 'row_ror:8'):
        for j in range(2): P(f'v_add_f32_dpp v{base+j}, v{base+j}, v{base+j} {d} {DPPM}')
    xrow_multi('v_add_f32', [f'v{base+j}' for j in range(2)], [f'v{base+2+j}' for j in range(2)])

def commA_role():
    P('L_commA:')
    P('s_setprio 3')
    P('s_barrier')
    P(f"""
    s_mov_b32 s54, s5                 ; a
    s_mul_i32 s55, s4, 7
    s_add_u32 s55, s55, s54           ; rho
    v_and_b32 v112, 3, v1
    v_lshrrev_b32 v4, 1, v112           ; pi
    s_lshl_b32 s56, s55, 1
    v_add_u32 v4, s56, v4
    v_and_b32 v4, 7, v4
    s_lshr_b32 s56, s55, 2
    s_lshl_b32 s56, s56, 5
    v_add_u32 v4, s56, v4
    v_and_b32 v5, 1, v112               ; gamma
    v_lshl_add_u32 v4, v5, 4, v4
    v_lshlrev_b32 v113, 1, v4
    v_lshlrev_b32 v114, 4, v112
    """)
    srd(40, 8, 1152)
    P(f"""
    buffer_load_ushort v116, v113, s[40:43], 0 offen
    buffer_load_ushort v117, v113, s[40:43], 0 offen offset:16
    s_cmp_eq_u32 s54, 6
    s_cselect_b32 s57, 10, 9            ; E
    s_mul_i32 s56, s54, 9
    v_add_u32 v4, s56, v2               ; l_src = 9a + e
    v_mul_u32_u24 v6, {H3S}, v3
    v_lshl_add_u32 v5, v4, 4, v6
    v_bfe_u32 v4, v4, 3, 1              ; head
    v_lshl_add_u32 v4, v4, 4, v6
    v_add_u32 v4, 2048, v4
    s_mul_i32 s48, s4, {16*H3S}
    s_add_u32 s48, s48, {H3}
    s_add_u32 s49, s48, {4*H3S}
    s_add_u32 s50, s48, {8*H3S}
    s_add_u32 s51, s48, {12*H3S}
    v_lshrrev_b32 v115, 2, v1
    v_mul_u32_u24 v115, {PS}, v115
    v_and_b32 v6, 1, v112
    v_mul_u32_u24 v6, 2304, v6
    v_add_u32 v115, v115, v6
    v_lshrrev_b32 v6, 1, v112
    v_lshl_add_u32 v115, v6, 4, v115
    v_lshrrev_b32 v6, 2, v1
    v_mul_u32_u24 v118, {X2S}, v6
    v_add_u32 v118, v118, v114
    v_lshlrev_b32 v119, 4, v1
    """)
    tag_ready()
    P('v_mov_b32 v122, s6\nv_mov_b32 v123, s7')
    stamp(1)
    lds_wait(FL_PUB, 1, sleep=1)
    stamp(2)
    P(f"""
    v_lshlrev_b32 v116, 16, v116
    v_cmp_gt_u32 vcc, s57, v2
    s_mov_b32 s56, {LOG2E:#x}
    s_mov_b64 exec, vcc
    """)
    def h3_loads(B):
        o = []
        for i in range(4):
            b = B + 12*i
            o.append(f'buffer_load_dwordx4 v[{b}:{b+3}], v5, s[44:47], s{48+i} offen sc1')
            o.append(f'buffer_load_dwordx4 v[{b+4}:{b+7}], v5, s[44:47], s{48+i} offen offset:1024 sc1')
            o.append(f'buffer_load_dwordx4 v[{b+8}:{b+11}], v4, s[44:47], s{48+i} offen sc1')
        return o
    def h3_check(B):
        bases = [B + 12*i + o for i in range(4) for o in (0, 4, 8)]
        check_g(bases[:6])()
        P('s_mov_b64 s[62:63], vcc')
        check_g(bases[6:])()
        P('s_or_b64 vcc, vcc, s[62:63]')
    def h3_post(B):
        M = [B+12*i+8 for i in range(4)]; L = [m+1 for m in M]; W = [m+2 for m in M]
        P(f"""
        v_max3_f32 v12, v{M[0]}, v{M[1]}, v{M[2]}
        v_max_f32 v12, v12, v{M[3]}
        """)
        xrow_multi('v_max_f32', ['v12'], ['v13'])
        for i in range(4): P(f'v_sub_f32 v{W[i]}, v{M[i]}, v12')
        for i in range(4): P(f'v_mul_f32 v{W[i]}, s56, v{W[i]}')
        for i in range(4): P(f'v_exp_f32 v{W[i]}, v{W[i]}')
        O = lambda i, j: B + 12*i + (j >> 1)*4 + (j & 1)
        P(f'v_mul_f32 v14, v{W[0]}, v{L[0]}')
        for j in range(4): P(f'v_mul_f32 v{8+j}, v{W[0]}, v{O(0,j)}')
        for i in range(1, 4):
            P(f'v_fmac_f32 v14, v{W[i]}, v{L[i]}')
            for j in range(4): P(f'v_fmac_f32 v{8+j}, v{W[i]}, v{O(i,j)}')
        xrow_multi('v_add_f32', ['v14', 'v8', 'v9', 'v10', 'v11'], [f'v{B+2}', f'v{B+3}', f'v{B+6}', f'v{B+7}', f'v{B+11}'])
        P('v_rcp_f32 v14, v14')
        for j in range(4): P(f'v_mul_f32 v{8+j}, v{8+j}, v14')
        for j in range(4): P(f'v_cvt_pk_bf16_f32 v{8+j}, v{8+j}, v{8+j}')
    if cfg.pipe: poll2(h3_loads, h3_check, h3_post, 16, 64, 12)
    else:
        poll(h3_loads(16), lambda: h3_check(16)); h3_post(16)
    stamp(4)
    P(f"""
    s_and_b32 exec_lo, exec_lo, 0xffff
    s_mov_b32 exec_hi, 0
    ds_write_b128 v119, v[8:11] offset:{L_XA}
    s_mov_b64 exec, -1
    s_cmp_ge_u32 s55, 72
    s_cselect_b32 s65, 1, 0
    s_lshl_b32 s56, s55, 5              ; rho*32
    s_add_u32 s48, s56, {XP}
    """)
    for i in range(1, 7): P(f's_add_u32 s{48+i}, s{47+i}, {16*PS}')
    P(f"""
    s_lshl_b32 s57, s55, 6
    s_add_u32 s58, s57, {MODF}
    v_lshlrev_b32 v117, 16, v117
    s_waitcnt lgkmcnt(0)
    s_barrier
    """)
    stamp(5)
    P(f"""
    s_cmp_lg_u32 s65, 0
    s_cbranch_scc1 L_exit
    """)
    def red_loads(n):
        def f(B):
            return [f'buffer_load_dwordx4 v[{B+4*n}:{B+4*n+3}], v114, s[44:47], s58 offen sc1'] + \
                   [f'buffer_load_dwordx4 v[{B+4*i}:{B+4*i+3}], v115, s[44:47], s{48+i} offen sc1' for i in range(n)]
        return f
    def red_check(n):
        def f(B):
            bases = [B+4*i for i in range(n+1)]
            if n + 1 <= 8: check_g(bases)()
            else:
                check_g(bases[:5])()
                P('s_mov_b64 s[62:63], vcc')
                check_g(bases[5:])()
                P('s_or_b64 vcc, vcc, s[62:63]')
        return f
    def xp_post(B):
        reduce4(0, 1, 7, B)
        rne_many([B, B+1])
        for j in range(2): P(f'v_mul_f32 v{B+j}, v{B+j}, v{B+28+j}')
        rne_many([B, B+1])
        for j in range(2): P(f'v_add_f32 v{120+j}, v{B+j}, v{116+j}')
        rne_many([120, 121])
    if cfg.pipe: poll2(red_loads(7), red_check(7), xp_post, 16, 48, 8)
    else:
        poll(red_loads(7)(16), lambda: red_check(7)(16)); xp_post(16)
    P(f"""
    s_add_u32 s59, s57, {X2}
    s_mov_b64 exec, 0xffffffff
    buffer_store_dwordx4 v[120:123], v118, s[44:47], s59 offen sc1
    s_mov_b64 exec, -1
    """)
    stamp(6)
    P(f's_add_u32 s48, s56, {FP}')
    for i in range(1, 9): P(f's_add_u32 s{48+i}, s{47+i}, {16*PS}')
    P(f's_add_u32 s58, s57, {MODF+864*16}')
    srd(40, 30, 1152)
    def fp_post(B):
        reduce4(0, 1, 9, B)
        rne_many([B, B+1])
        for j in range(2): P(f'v_mul_f32 v{B+j}, v{B+j}, v{B+36+j}')
        rne_many([B, B+1])
        for j in range(2): P(f'v_add_f32 v{8+j}, v{B+j}, v{120+j}')
        for j in range(2): P(f'v_cvt_pk_bf16_f32 v{8+j}, v{8+j}, v{8+j}')
    if cfg.pipe: poll2(red_loads(9), red_check(9), fp_post, 24, 64, 10)
    else:
        poll(red_loads(9)(24), lambda: red_check(9)(24)); fp_post(24)
    P(f"""
    s_mov_b64 exec, 0xf
    buffer_store_short v8, v113, s[40:43], 0 offen
    buffer_store_short v9, v113, s[40:43], 0 offen offset:16
    s_mov_b64 exec, -1
    """)
    stamp(7)
    P(f"""
    s_mul_i32 s55, s4, 7
    s_add_u32 s55, s55, s5
    s_cmp_lg_u32 s55, 0
    s_cbranch_scc1 L_exit
    v_mov_b32 v4, {EPOCH}
    v_mov_b32 v8, s6
    v_mov_b32 v9, s7
    s_mov_b64 exec, 1
    buffer_store_dwordx2 v[8:9], v4, s[44:47], 0 offen sc1
    s_mov_b64 exec, -1
    """)
    end_wave()

def commF_role():
    P('L_commF:')
    P('s_setprio 3')
    SB, CB, XA = 32, 52, 72
    P(f"""
    v_lshlrev_b32 v4, 4, v1             ; granule l
    v_and_b32 v5, 31, v1
    v_lshlrev_b32 v5, 4, v5
    s_mov_b32 s56, {MODF+288*16}
    s_mov_b32 s57, {MODF+576*16}
    s_add_u32 s58, s56, 4096
    s_add_u32 s59, s57, 4096
    s_and_b32 s52, s2, 7
    s_mul_i32 s52, s52, {X2S}
    s_add_u32 s52, s52, {X2}
    s_add_u32 s53, s52, 4096
    v_cmp_gt_u32 s[54:55], 32, v1
    """)
    lds_wait(FL_PUB, 1, sleep=1)
    def gl(base, sreg, sreg2):
        return [f'buffer_load_dwordx4 v[{base+4*n}:{base+4*n+3}], v4, s[44:47], {sreg} offen offset:{1024*n} sc1' for n in range(4)] + \
               [f'buffer_load_dwordx4 v[{base+16}:{base+19}], v5, s[44:47], {sreg2} offen sc1']
    def chk():
        check_g([SB+4*n for n in range(5)])()
        P('s_mov_b64 s[62:63], vcc')
        check_g([CB+4*n for n in range(5)])()
        P('s_or_b64 vcc, vcc, s[62:63]')
    poll(gl(SB, 's56', 's58') + gl(CB, 's57', 's59'), chk)
    cbv = [CB+4*n+j for n in range(5) for j in range(2)]
    sbv = [SB+4*n+j for n in range(5) for j in range(2)]
    xav = [XA+4*n+j for n in range(5) for j in range(2)]
    for r in cbv: P(f'v_add_f32 v{r}, 1.0, v{r}')
    rne_many(cbv)
    P('v_lshlrev_b32 v6, 2, v1')
    def x2_post(B):
        xv = [B+4*n+j for n in range(5) for j in range(2)]
        for r in xv[8:]: P(f'v_cndmask_b32 v{r}, 0, v{r}, s[54:55]')
        ln_stats(xv, 'v112', 'v113', 'v114', 'v115', maskfix=(xv[8:], 's[54:55]'))
        for r in xv: P(f'v_sub_f32 v{r}, v{r}, v112')
        rne_many(xv)
        for r in xv: P(f'v_mul_f32 v{r}, v{r}, v113')
        rne_many(xv)
        for r, c in zip(xv, cbv): P(f'v_mul_f32 v{r}, v{r}, v{c}')
        rne_many(xv)
        for r, c in zip(xv, sbv): P(f'v_add_f32 v{r}, v{r}, v{c}')
        for n in range(5): P(f'v_cvt_pk_bf16_f32 v{B+4*n}, v{B+4*n}, v{B+4*n+1}')
        for n in range(4): P(f'ds_write_b32 v6, v{B+4*n} offset:{L_XS+256*n}')
        P(f"""
        s_mov_b64 exec, 0xffffffff
        ds_write_b32 v6, v{B+16} offset:{L_XS+1024}
        s_mov_b64 exec, -1
        """)
    if cfg.pipe: poll2(lambda B: gl(B, 's52', 's53'), lambda B: check_g([B+4*n for n in range(5)])(), x2_post, 72, 92, 5)
    else:
        poll(gl(72, 's52', 's53'), check_g([72+4*n for n in range(5)])); x2_post(72)
    stamp(7)
    P("""
    s_waitcnt lgkmcnt(0)
    s_barrier
    """)
    end_wave()

def gu_role(nkv):
    RAW = 32
    NA = cfg.gu_early
    P('L_gu:')
    def setup():
        P(f"""
        s_sub_u32 s53, s3, 1              ; i
        s_lshr_b32 s54, s53, 1            ; matrix
        s_and_b32 s55, s53, 1             ; K half
        s_cmp_eq_u32 s54, 0
        s_cselect_b32 s36, s20, s22
        s_cselect_b32 s37, s21, s23
        s_mov_b32 s38, {576*9216}
        s_mov_b32 s39, 0x20000
        s_mul_i32 s56, s4, 9
        s_add_u32 s56, s56, s5
        s_sub_u32 s56, s56, 7             ; phi
        s_lshl_b32 s56, s56, 6
        s_mul_i32 s57, s55, {9*32*9216}
        s_add_u32 s56, s56, s57
        s_mov_b32 s58, 0x05040100
        s_mov_b32 s59, 0x07060302
        """)
    def loads(u, thr=True):
        for j in range(8):
            off = (32*u + 8*(j & 3) + (j >> 2)) * 9216
            P(f's_add_u32 s57, s56, {off}')
            if thr and cfg.gul and 8*(u-NA) + j >= cfg.gul: P(f's_waitcnt vmcnt({cfg.gul-1})')
            P(f'buffer_load_dword v{RAW+8*u+j}, v4, s[36:39], s57 offen nt')
    def perm(u):
        src = RAW + 8*u
        dst = src - 8
        for i in range(4):
            P(f'v_perm_b32 v{dst+i}, v{src+2*i+1}, v{src+2*i}, s58')
            P(f'v_perm_b32 v{dst+4+i}, v{src+2*i+1}, v{src+2*i}, s59')
    P('s_cmp_lg_u32 s3, 1\ns_cbranch_scc1 L_gu_nopf')
    prefetch_code()
    P('L_gu_nopf:')
    setup()
    P(f"""
    v_mul_u32_u24 v4, {2*9216}, v3
    v_lshl_add_u32 v4, v2, 2, v4
    """)
    for u in range(NA):
        loads(u, thr=False)
        if u == 0: P('s_barrier')
    if NA == 0: P('s_barrier')
    lds_add(C_GA)
    tag_ready()
    q_fetch('L_gu2')
    P('L_gu2:')
    stamp(5)
    setup()
    P('s_waitcnt vmcnt(0)')
    for u in range(NA): perm(u)
    if cfg.gu_gate == 'pub': lds_wait(FL_PUB, 1, sleep=2)
    else: lds_wait(C_KVI, nkv, sleep=2)
    stamp(1)
    DEPTH = cfg.gu_depth
    for u in range(NA, 9):
        loads(u)
        if u - DEPTH >= NA:
            P(f's_waitcnt vmcnt({8*DEPTH})')
            perm(u - DEPTH)
    for u in range(max(NA, 9 - DEPTH), 9):
        P(f's_waitcnt vmcnt({8*(8-u)})')
        perm(u)
    stamp(2)
    P(f"""
    s_mul_i32 s57, s55, {9*64}
    v_lshlrev_b32 v5, 4, v3
    v_add_u32 v5, s57, v5
    s_lshl_b32 s57, s53, 7
    v_lshlrev_b32 v6, 3, v1
    v_add_u32 v6, s57, v6
    s_barrier
    """)
    stamp(3)
    AF = [96+4*u for u in range(8)] + [20]
    for u in range(9): P(f'ds_read_b128 v[{AF[u]}:{AF[u]+3}], v5 offset:{L_XS+64*u}')
    for u in range(9):
        P(f's_waitcnt lgkmcnt({8-u})')
        f0 = RAW - 8 + 8*u
        c0 = '0' if u == 0 else 'v[8:11]'
        c1 = '0' if u == 0 else 'v[12:15]'
        P(f'v_mfma_f32_16x16x32_bf16 v[8:11], v[{AF[u]}:{AF[u]+3}], v[{f0}:{f0+3}], {c0}')
        P(f'v_mfma_f32_16x16x32_bf16 v[12:15], v[{AF[u]}:{AF[u]+3}], v[{f0+4}:{f0+7}], {c1}')
    P(f"""
    v_mov_b32 v16, v8
    v_mov_b32 v17, v12
    s_mov_b64 exec, 0xffff
    ds_write_b64 v6, v[16:17] offset:{L_RED3}
    s_mov_b64 exec, -1
    s_waitcnt lgkmcnt(0)
    s_barrier
    """)
    stamp(4)
    end_wave()

def build():
    global CODE_PF
    CODE_PF = 4
    prologue()
    cF, cQ, cM = cfg.cF, cfg.cQ, cfg.cM
    assert 9*cF + 4*cQ + 3*cM == 256 and cF % 2 == 0 and cQ % 2 == 0 and cM % 2 == 0 and cF//2 >= 6 and cQ <= 12 and cM <= 12 and cfg.b_on == 'M'
    kv_role('L_kvF', cF//2, lambda: P(f's_sub_u32 s52, s5, 7\ns_mul_i32 s52, s52, {cF}\ns_add_u32 s52, s52, {3*cM+4*cQ}'), (C_GA, 4) if cfg.gu_early else None, True, cfg.kF)
    kv_role('L_kvQ', cQ//2, lambda: P(f's_sub_u32 s52, s5, 3\ns_mul_i32 s52, s52, {cQ}\ns_add_u32 s52, s52, {3*cM}'), (C_G, 1), False, cfg.kQ)
    kv_role('L_kvM', cM//2, lambda: P(f's_mul_i32 s52, s5, {cM}'), (C_WO, 3), False, cfg.kM)
    down_role()
    wq_role()
    mod_role()
    wo_role('Q', cQ//2)
    wo_role('M', cM//2)
    wo_common()
    commA_role()
    commF_role()
    gu_role(cF//2)
    P('L_abort:')
    P('s_mov_b64 exec, -1')
    P('L_exit:')
    if cfg.debug:
        P(f"""
        s_waitcnt lgkmcnt(0)
        s_lshl_b32 s60, s2, 4
        s_add_u32 s60, s60, s3
        s_lshl_b32 s60, s60, 6
        s_add_u32 s60, s60, {DBG}
        s_memrealtime s[96:97]
        s_waitcnt lgkmcnt(0)
        v_mov_b32 v8, s96
        """)
        for i in range(8): P(f'v_writelane_b32 v8, s{80+2*i}, {i}')
        P(f"""
        v_and_b32 v1, 63, v0
        v_lshlrev_b32 v7, 2, v1
        s_mov_b64 exec, 0x1ff
        buffer_store_dword v8, v7, s[44:47], s60 offen
        """)
    P('L_end:')
    P('s_endpgm')
    P('L_codeend:')
    P.finalize()
    body = P.text()
    return (HEADER_COMMENT +
f"""; @launch grid=(256,1,1) block=(1024,1,1) lds={LDS_BYTES}
.amdgcn_target "amdgcn-amd-amdhsa--gfx950"
.text
.globl {KN}
.p2align 8
.type {KN},@function
{KN}:
{body}
.section .rodata,"a"
.p2align 6
.amdhsa_kernel {KN}
  .amdhsa_next_free_vgpr 128
  .amdhsa_next_free_sgpr 102
  .amdhsa_accum_offset 128
  .amdhsa_group_segment_fixed_size 0
  .amdhsa_kernarg_size 112
  .amdhsa_user_sgpr_count 2
  .amdhsa_user_sgpr_kernarg_segment_ptr 1
  .amdhsa_system_sgpr_workgroup_id_x 1
.end_amdhsa_kernel
""")

if __name__ == '__main__':
    import argparse
    ap = argparse.ArgumentParser()
    ap.add_argument('-o', default='k.s')
    ap.add_argument('--debug', action='store_true')
    ap.add_argument('--tiles', default='22,4,14')
    ap.add_argument('--set', nargs='*', default=[])
    a = ap.parse_args()
    cfg.debug = a.debug
    cfg.cF, cfg.cQ, cfg.cM = map(int, a.tiles.split(','))
    for kv in a.set:
        k, v = kv.split('=')
        old = getattr(cfg, k)
        setattr(cfg, k, type(old)(int(v)) if isinstance(old, (bool, int)) else v)
    open(a.o, 'w').write(build())
```

```python
import sys, math, struct
from dsl import Prog
from asmlib import HEADER_COMMENT, KN

class Cfg:
    cF, cQ, cM = 22, 4, 14
    debug = False
    prefetch_code = True
    kF, kQ, kM = '0', '0', '0'
    gu_depth = 4
    gul = 0
    gu_gate = 'pub'
    k_first = True
    pre_barrier = 1
    wo_k = 4
    b_k = 4
    q_sleep = 4
    poll_sleep = 0
    kvonly = False
    hdbg = False
    q_wo_gate = False
    q_wo_first = True
    stagger = 6
    pipe = True
    gu_early = 3
    b_on = 'M'
    m_gate_pub = False
cfg = Cfg()

EPOCH = 0x0
MODP = 0x1000
QF = 0x8000
MODF = 0x20000
X2 = 0x28000
X2S = 0x1400
H3 = 0x40000
H3S = 2560
XP = 0xE0000
FP = 0x160000
PS = 4608
DBG = 0x300000
FL_Q, C_KVI, C_MAX, C_O, C_RED, C_H, C_G, FL_PUB, C_K, C_B, C_GA, C_B2, C_WO = 0, 4, 8, 12, 16, 20, 24, 28, 32, 36, 40, 44, 48
L_ZERO = 0x100
L_Q = 0x200
L_MX = 0x400
L_LS = 0x480
L_XS = 0x500
L_RED3 = 0xA00
L_XA = 0x1100
L_SLOT = 0x1200
L_OSLOT = 0x1200 + 18*1024
LDS_BYTES = 0x1200 + 30*1024
LOG2E = 0x3FB8AA3B
SCALE = 0x3DB504F3
GOLD0, GOLD1 = 0x7F4A7C15, 0x9E3779B9
def f32hex(x): return struct.unpack('<I', struct.pack('<f', x))[0]

P = Prog()
ABORT = 'L_abort'
DPPM = 'row_mask:0xf bank_mask:0xf'

def stamp(i):
    if cfg.debug or cfg.hdbg: P(f's_memrealtime s[{80+2*i}:{81+2*i}]')

def role(n):
    if cfg.hdbg: P(f's_mov_b32 s98, {n}')

def srd(base, ptr, nbytes):
    P(f"""
    s_mov_b32 s{base}, s{ptr}
    s_mov_b32 s{base+1}, s{ptr+1}
    s_mov_b32 s{base+2}, {nbytes}
    s_mov_b32 s{base+3}, 0x20000
    """)

def tag_ready():
    P(f"""
    s_waitcnt lgkmcnt(0)
    s_add_u32 s6, s6, {GOLD0:#x}
    s_add_u32 s7, s7, {GOLD1:#x}
    """)

def lds_wait(off, target, sleep=1):
    l = P.lbl('Lw'); d = P.lbl('Ld')
    P(f"""
    v_mov_b32 v7, 0
    s_mov_b32 s61, 0x400000
    {l}:
    ds_read_b32 v6, v7 offset:{off}
    s_waitcnt lgkmcnt(0)
    v_readfirstlane_b32 s60, v6
    s_cmp_ge_u32 s60, {target}
    s_cbranch_scc1 {d}
    s_sub_u32 s61, s61, 1
    s_cbranch_scc1 {ABORT}
    """)
    if sleep: P(f's_sleep {sleep}')
    P(f"""
    s_branch {l}
    {d}:
    """)

def lds_add(off):
    P(f"""
    v_mov_b32 v7, 0
    v_mov_b32 v6, 1
    s_mov_b64 s[62:63], exec
    s_mov_b64 exec, 1
    ds_add_u32 v7, v6 offset:{off}
    s_mov_b64 exec, s[62:63]
    """)

def lds_add_rtn(off, sdst):
    P(f"""
    v_mov_b32 v7, 0
    v_mov_b32 v6, 1
    s_mov_b64 s[62:63], exec
    s_mov_b64 exec, 1
    ds_add_rtn_u32 v6, v7, v6 offset:{off}
    s_waitcnt lgkmcnt(0)
    v_readfirstlane_b32 {sdst}, v6
    s_mov_b64 exec, s[62:63]
    """)

def rne(dst, src):
    P(f'v_cvt_pk_bf16_f32 {dst}, {src}, {src}')
    P(f'v_lshlrev_b32 {dst}, 16, {dst}')

def rne_many(regs):
    for r in regs: P(f'v_cvt_pk_bf16_f32 v{r}, v{r}, v{r}')
    for r in regs: P(f'v_lshlrev_b32 v{r}, 16, v{r}')

def xrow_multi(op, vs, ts):
    for sw in ('v_permlane16_swap_b32', 'v_permlane32_swap_b32'):
        for v, t in zip(vs, ts): P(f'v_mov_b32 {t}, {v}')
        for v, t in zip(vs, ts): P(f'{sw} {v}, {t}')
        for v, t in zip(vs, ts): P(f'{op} {v}, {v}, {t}')

def wave_sum(v, t):
    for d in ('quad_perm:[1,0,3,2]', 'quad_perm:[2,3,0,1]', 'row_half_mirror', 'row_mirror'):
        P(f'v_add_f32_dpp {v}, {v}, {v} {d} {DPPM}')
    xrow_multi('v_add_f32', [v], [t])

def masks(base):
    P(f"""
    v_and_b32 v6, 1, v2
    v_lshlrev_b32 v6, 4, v6
    v_mov_b32 v7, 0xffff
    v_lshlrev_b32 v7, v6, v7
    v_bfe_u32 v6, v2, 1, 2
    """)
    for i in range(4):
        P(f'v_cmp_eq_u32 vcc, {i}, v6')
        P(f'v_cndmask_b32 v{base+i}, 0, v7, vcc')

def diag_mm(acc, wregs, xregs, mk, qa, qb):
    n = len(wregs)
    def prep(t):
        q = (qa, qb)[t & 1]
        for i in range(4): P(f'v_and_b32 v{q+i}, {xregs[t]}, v{mk+i}')
    prep(0)
    for t in range(n):
        if t + 1 < n: prep(t + 1)
        q = (qa, qb)[t & 1]
        c = '0' if t == 0 else f'v[{acc}:{acc+3}]'
        P(f'v_mfma_f32_16x16x32_bf16 v[{acc}:{acc+3}], v[{wregs[t]}:{wregs[t]+3}], v[{q}:{q+3}], {c}')

def poll(loads, check):
    l = P.lbl('Lp'); l2 = P.lbl('Lp')
    P('s_mov_b32 s64, 0x8000')
    if cfg.poll_sleep:
        P(f's_branch {l2}')
        P(f'{l}:')
        P(f's_sleep {cfg.poll_sleep}')
        P(f'{l2}:')
    else:
        P(f'{l}:')
    for x in loads: P(x)
    P('s_waitcnt vmcnt(0)')
    check()
    P(f"""
    s_sub_u32 s64, s64, 1
    s_cbranch_scc1 {ABORT}
    s_cbranch_vccnz {l}
    """)


def poll2(mk_loads, mk_check, post, baseA, baseB, nloads):
    la = P.lbl('Lq'); lb = P.lbl('Lq'); ga = P.lbl('Lq'); gb = P.lbl('Lq'); done = P.lbl('Lq')
    P('s_mov_b32 s64, 0x8000')
    for x in mk_loads(baseA): P(x)
    P(f's_sleep {cfg.stagger}')
    P(f'{la}:')
    for x in mk_loads(baseB): P(x)
    P(f's_waitcnt vmcnt({nloads})')
    mk_check(baseA)
    P(f"""
    s_cbranch_vccz {ga}
    s_sub_u32 s64, s64, 1
    s_cbranch_scc1 {ABORT}
    """)
    for x in mk_loads(baseA): P(x)
    P(f's_waitcnt vmcnt({nloads})')
    mk_check(baseB)
    P(f"""
    s_cbranch_vccz {gb}
    s_branch {la}
    """)
    P(f'{gb}:')
    post(baseB)
    P(f's_branch {done}')
    P(f'{ga}:')
    post(baseA)
    P(f'{done}:')

def check_g(bases):
    def f():
        n = len(bases)
        assert n <= 8 + 5
        prs = [66 + 2*i for i in range(7)] + [96, 98]
        assert n <= len(prs) + 1
        for i, b in enumerate(bases):
            dst = 'vcc' if i == n - 1 else f's[{prs[i]}:{prs[i]+1}]'
            P(f'v_cmp_ne_u64 {dst}, s[6:7], v[{b+2}:{b+3}]')
        for i in range(n - 1):
            P(f's_or_b64 vcc, vcc, s[{prs[i]}:{prs[i]+1}]')
    return f

def check_tags32(regs, t='v6', t2='v7'):
    def f():
        rs = list(regs)
        P(f'v_xor_b32 {t}, s7, v{rs[0]}')
        for r in rs[1:]:
            P(f'v_xor_b32 {t2}, s7, v{r}')
            P(f'v_or_b32 {t}, {t}, {t2}')
        P(f'v_cmp_ne_u32 vcc, 0, {t}')
    return f

def end_wave(): P('s_branch L_exit')

def make_granules(G, ACC):
    P(f'v_mov_b32 v{G}, v{ACC}')
    P(f'v_mov_b32 v{G+1}, v{ACC+1}')
    P(f'v_mov_b32 v{G+4}, v{ACC+2}')
    P(f'v_mov_b32 v{G+5}, v{ACC+3}')
def tag_fill(G):
    for o in (2, 6):
        P(f'v_mov_b32 v{G+o}, s6')
        P(f'v_mov_b32 v{G+o+1}, s7')

def prologue():
    P(f"""
    s_cmp_ge_u32 s2, 256
    s_cbranch_scc1 L_end
    s_load_dwordx16 s[8:23], s[0:1], 0
    s_load_dwordx8 s[24:31], s[0:1], 64
    s_load_dwordx4 s[32:35], s[0:1], 96
    """)
    if cfg.hdbg:
        for i in range(1, 8): P(f's_mov_b32 s{80+2*i}, 0')
        P('s_mov_b32 s98, 0')
    stamp(0)
    P(f"""
    v_lshrrev_b32 v4, 6, v0
    v_and_b32 v1, 63, v0
    v_and_b32 v2, 15, v1
    v_readfirstlane_b32 s3, v4
    v_lshrrev_b32 v3, 4, v1
    s_and_b32 s4, s2, 7
    s_lshl_b32 s4, s4, 1
    s_bfe_u32 s5, s2, 0x10003
    s_add_u32 s4, s4, s5
    s_lshr_b32 s5, s2, 4
    s_cmp_lg_u32 s3, 0
    s_cbranch_scc1 L_nozero
    v_lshlrev_b32 v4, 2, v1
    v_mov_b32 v5, 0
    ds_write_b32 v4, v5
    ds_write_b32 v4, v5 offset:256
    ds_write_b32 v4, v5 offset:{L_XA}
    L_nozero:
    s_waitcnt lgkmcnt(0)
    s_load_dwordx2 s[6:7], s[34:35], 0
    """)
    srd(44, 34, 0x40000000)
    nkF, nkQ, nkM = cfg.cF//2, cfg.cQ//2, cfg.cM//2
    if cfg.kvonly:
        P(f"""
        s_cmp_lt_u32 s5, 3
        s_cselect_b32 s60, {16-nkM}, {16-nkQ}
        s_cmp_ge_u32 s5, 7
        s_cselect_b32 s60, {16-nkF}, s60
        s_cmp_ge_u32 s3, s60
        s_cbranch_scc1 L_kvgo
        s_barrier
        s_branch L_end
        L_kvgo:
        """)
    P(f"""
    s_cmp_lt_u32 s5, 3
    s_cbranch_scc1 L_classM
    s_cmp_lt_u32 s5, 7
    s_cbranch_scc1 L_classQ
    s_cmp_eq_u32 s3, 0
    s_cbranch_scc1 L_kvF0
    s_cmp_le_u32 s3, 4
    s_cbranch_scc1 L_gu
    s_cmp_ge_u32 s3, {16-min(nkF, 11)}
    s_cbranch_scc1 L_kvF
    s_branch L_idle
    L_classQ:
    s_cmp_ge_u32 s3, {16-nkQ}
    s_cbranch_scc1 L_kvQ
    s_cmp_eq_u32 s3, 0
    s_cbranch_scc1 L_commA
    s_cmp_le_u32 s3, 6
    s_cbranch_scc1 L_wq
    s_cmp_le_u32 s3, 9
    s_cbranch_scc1 L_woQ
    s_branch L_idle
    L_classM:
    s_cmp_ge_u32 s3, {16-nkM}
    s_cbranch_scc1 L_kvM
    s_cmp_eq_u32 s3, 0
    s_cbranch_scc1 L_commA
    s_cmp_le_u32 s3, 6
    s_cbranch_scc1 L_mod
    s_cmp_le_u32 s3, 9
    s_cbranch_scc1 L_woM
    L_idle:
    s_barrier
    s_branch L_end
    """)

def kv_role(name, nkv, tile_expr, gate, is_f, kinf='0'):
    K0, V0, QF_, SD, TT, ACC, MK = 32, 64, 96, 24, 28, 96, 8
    if is_f:
        P('L_kvF0:')
        if nkv == 12:
            P('s_mov_b32 s53, 11')
            P('s_branch L_kvFgo')
        else:
            P('s_branch L_idle')
        P(f'{name}:')
        P(f's_sub_u32 s53, s3, {16-min(nkv, 11)}')
        P('L_kvFgo:')
    else:
        P(f'{name}:')
        P(f's_sub_u32 s53, s3, {16-nkv}')
    role(1)
    tile_expr()
    P(f"""
    s_lshl_b32 s54, s53, 1
    s_add_u32 s52, s52, s54
    s_lshl_b32 s52, s52, 12
    s_lshl_b32 s54, s4, 24
    s_add_u32 s52, s52, s54
    s_add_u32 s52, s52, {61440*256}
    s_add_u32 s55, s52, 4096
    """)
    srd(36, 10, 0x10000000)
    srd(40, 12, 0x10000000)
    P(f"""
    v_and_b32 v4, 7, v1
    v_lshlrev_b32 v4, 8, v4
    v_lshrrev_b32 v5, 3, v1
    v_lshl_add_u32 v4, v5, 4, v4          ; K: (l&7)*256 + (l>>3)*16
    v_lshlrev_b32 v5, 10, v3
    v_lshl_add_u32 v5, v2, 4, v5          ; V: gq*1024 + m*16
    """)
    if cfg.kvonly: gate = None
    if gate:
        P('s_barrier')
        lds_wait(gate[0], gate[1], sleep=2)
    stamp(1)
    st = {'n': 0}
    lim = lambda i: int(kinf[min(i, len(kinf)-1)], 16)
    def issue(r, vo, srdr, sreg, off):
        n = st['n']
        if not gate and n == cfg.pre_barrier: P('s_barrier')
        k = lim(n)
        if k and n >= k: P(f's_waitcnt vmcnt({k-1})')
        P(f'buffer_load_dwordx4 v[{r}:{r+3}], {vo}, s[{srdr}:{srdr+3}], {sreg} offen offset:{off} nt')
        st['n'] += 1
    for u in range(4):
        for hh in range(2):
            issue(K0 + 4*(2*u+hh), 'v4', 36, 's52' if u < 2 else 's55', (u & 1)*2048 + hh*128)
    if cfg.k_first:
        lds_add(C_K)
        lds_wait(C_K, nkv, sleep=1)
    for t in range(2):
        for r_ in range(4):
            issue(V0 + 16*t + 4*r_, 'v5', 40, 's52' if t == 0 else 's55', 256*r_)
    lds_add(C_KVI)
    stamp(2)
    if cfg.kvonly:
        P('s_waitcnt vmcnt(8)'); stamp(4)
        P('s_waitcnt vmcnt(0)'); stamp(5)
        end_wave(); return
    masks(MK)
    P(f"""
    v_bfe_u32 v12, v2, 2, 1
    v_lshlrev_b32 v22, 2, v12
    v_lshlrev_b32 v12, 8, v12
    v_lshrrev_b32 v13, 3, v2
    v_lshl_add_u32 v13, v3, 1, v13        ; 2g + par
    v_lshl_add_u32 v12, v13, 4, v12
    v_add_u32 v12, {L_Q}, v12
    v_and_b32 v13, 3, v2
    v_mov_b32 v14, {L_ZERO}
    """)
    for u in range(4):
        P(f'v_cmp_eq_u32 vcc, {u}, v13')
        P(f'v_cndmask_b32 v{16+u}, v14, v12, vcc')
    P(f"""
    v_and_b32 v12, 1, v3
    v_lshlrev_b32 v12, 4, v12
    v_lshrrev_b32 v13, 3, v2
    v_lshl_add_u32 v12, v13, 2, v12
    v_lshrrev_b32 v13, 1, v3
    v_add_u32 v12, v12, v13
    v_lshlrev_b32 v20, 2, v12
    v_add_u32 v21, 8, v20
    """)
    tag_ready()
    lds_wait(FL_Q, 4, sleep=2)
    stamp(3)
    for u in range(4):
        for hh in range(2):
            r = QF_ + 4*(2*u+hh)
            P(f'ds_read_b128 v[{r}:{r+3}], v{16+u} offset:{128*hh}')
    P('s_waitcnt vmcnt(8)')
    stamp(4)
    for i in range(8):
        P(f's_waitcnt lgkmcnt({7-i})')
        c = '0' if i == 0 else f'v[{SD}:{SD+3}]'
        P(f'v_mfma_f32_16x16x32_bf16 v[{SD}:{SD+3}], v[{K0+4*i}:{K0+4*i+3}], v[{QF_+4*i}:{QF_+4*i+3}], {c}')
    for j in range(4): P(f'v_mov_b32 v{TT+j}, v{SD+j}')
    for j in range(4): P(f'v_permlane32_swap_b32 v{SD+j}, v{TT+j}')
    for j in range(4): P(f'v_add_f32_dpp v{SD+j}, v{TT+j}, v{SD+j} row_shl:8 {DPPM}')
    P(f's_mov_b32 s56, {SCALE:#x}')
    P(f's_mov_b32 s57, 0xffff0000')
    P(f's_mov_b32 s58, {LOG2E:#x}')
    for rep in range(2):
        for p in range(2): P(f'v_cvt_pk_bf16_f32 v{TT+p}, v{SD+2*p}, v{SD+2*p+1}')
        for p in range(2):
            P(f'v_lshlrev_b32 v{SD+2*p}, 16, v{TT+p}')
            P(f'v_and_b32 v{SD+2*p+1}, s57, v{TT+p}')
        if rep == 0:
            for i in range(4): P(f'v_mul_f32 v{SD+i}, s56, v{SD+i}')
    P(f"""
    v_max3_f32 v12, v{SD}, v{SD+1}, v{SD+2}
    v_max_f32 v12, v12, v{SD+3}
    v_max_f32_dpp v12, v12, v12 quad_perm:[1,0,3,2] {DPPM}
    v_max_f32_dpp v12, v12, v12 quad_perm:[2,3,0,1] {DPPM}
    v_mov_b32 v13, v12
    v_permlane16_swap_b32 v12, v13
    v_max_f32 v12, v12, v13
    s_lshl_b32 s59, s53, 3
    v_add_u32 v23, s59, v22
    s_mov_b64 s[62:63], exec
    s_mov_b64 exec, 0x11
    ds_write_b32 v23, v12 offset:{L_MX}
    s_mov_b64 exec, s[62:63]
    """)
    lds_add(C_MAX)
    lds_wait(C_MAX, nkv, sleep=0)
    for i in range(nkv): P(f'ds_read_b32 v{K0+i}, v22 offset:{L_MX+8*i}')
    P('s_waitcnt lgkmcnt(0)')
    MX = 15
    P(f'v_mov_b32 v{MX}, v{K0}')
    i = 1
    while i < nkv:
        if i + 1 < nkv: P(f'v_max3_f32 v{MX}, v{MX}, v{K0+i}, v{K0+i+1}'); i += 2
        else: P(f'v_max_f32 v{MX}, v{MX}, v{K0+i}'); i += 1
    P(f'v_mul_f32 v13, s58, v{MX}')
    for i in range(4): P(f'v_fma_f32 v{SD+i}, v{SD+i}, s58, -v13')
    for i in range(4): P(f'v_exp_f32 v{SD+i}, v{SD+i}')
    P(f"""
    v_add_f32 v12, v{SD}, v{SD+1}
    v_add_f32 v13, v{SD+2}, v{SD+3}
    """)
    for i in range(4): P(f'v_cvt_pk_bf16_f32 v{SD+i}, v{SD+i}, v{SD+i}')
    P('v_add_f32 v12, v12, v13')
    G = 104
    for t in range(2):
        for r_ in range(4): P(f'ds_bpermute_b32 v{G+4*t+r_}, v{20+t}, v{SD+r_}')
    P(f"""
    v_add_f32_dpp v12, v12, v12 quad_perm:[1,0,3,2] {DPPM}
    v_add_f32_dpp v12, v12, v12 quad_perm:[2,3,0,1] {DPPM}
    v_mov_b32 v13, v12
    v_permlane16_swap_b32 v12, v13
    v_add_f32 v12, v12, v13
    s_mov_b64 s[62:63], exec
    s_mov_b64 exec, 0x11
    ds_write_b32 v23, v12 offset:{L_LS}
    s_mov_b64 exec, s[62:63]
    s_waitcnt lgkmcnt(1)
    """)
    for i in range(8):
        for j in range(4): P(f'v_and_b32 v{K0+4*i+j}, v{G+i}, v{MK+j}')
    GR = 112
    tag_fill(GR)
    P(f'v_mov_b32 v122, s6\nv_mov_b32 v123, s7')
    P('s_waitcnt vmcnt(0)')
    stamp(5)
    for i in range(8):
        c = '0' if i == 0 else f'v[{ACC}:{ACC+3}]'
        P(f'v_mfma_f32_16x16x32_bf16 v[{ACC}:{ACC+3}], v[{V0+4*i}:{V0+4*i+3}], v[{K0+4*i}:{K0+4*i+3}], {c}')
    P(f"""
    s_lshl_b32 s59, s53, 10
    v_lshlrev_b32 v16, 4, v1
    v_add_u32 v17, s59, v16
    ds_write_b128 v17, v[{ACC}:{ACC+3}] offset:{L_OSLOT}
    """)
    lds_add_rtn(C_O, 's60')
    ldone = P.lbl('Lkvdone')
    P(f"""
    s_cmp_lg_u32 s60, {nkv-1}
    s_cbranch_scc1 {ldone}
    """)
    for i in range(nkv): P(f'ds_read_b128 v[{K0+4*i}:{K0+4*i+3}], v16 offset:{L_OSLOT+1024*i}')
    LS0 = 100
    for i in range(nkv): P(f'ds_read_b32 v{LS0+i}, v22 offset:{L_LS+8*i}')
    P(f"""
    s_lshl_b32 s59, s4, 4
    s_add_u32 s59, s59, s5
    s_mul_i32 s59, s59, {H3S}
    s_add_u32 s59, s59, {H3}
    v_lshlrev_b32 v17, 2, v22
    s_waitcnt lgkmcnt(0)
    """)
    regs = list(range(nkv))
    while len(regs) > 1:
        nxt = []
        for a in range(0, len(regs) - 1, 2):
            x, y = regs[a], regs[a+1]
            for j in range(4): P(f'v_add_f32 v{K0+4*x+j}, v{K0+4*x+j}, v{K0+4*y+j}')
            P(f'v_add_f32 v{LS0+x}, v{LS0+x}, v{LS0+y}')
            nxt.append(x)
        if len(regs) % 2: nxt.append(regs[-1])
        regs = nxt
    make_granules(GR, K0)
    P(f"""
    v_mov_b32 v120, v{MX}
    v_mov_b32 v121, v{LS0}
    buffer_store_dwordx4 v[{GR}:{GR+3}], v16, s[44:47], s59 offen sc1
    buffer_store_dwordx4 v[{GR+4}:{GR+7}], v16, s[44:47], s59 offen offset:1024 sc1
    s_mov_b64 exec, 0x11
    buffer_store_dwordx4 v[120:123], v17, s[44:47], s59 offen offset:2048 sc1
    s_mov_b64 exec, -1
    """)
    lds_add(FL_PUB)
    stamp(6)
    P(f'{ldone}:')
    if is_f:
        P(f"""
        s_cmp_lt_u32 s53, 5
        s_cbranch_scc1 L_down
        s_cmp_eq_u32 s53, 5
        s_cbranch_scc1 L_commF
        s_branch L_exit
        """)
    else:
        end_wave()

def store_block(sb, ACC, G):
    make_granules(G, ACC)
    P(f"""
    s_lshl_b32 s60, {sb}, 9
    s_add_u32 s59, s59, s60
    s_add_u32 s65, s59, 2304
    v_cmp_gt_u32 vcc, 8, v2
    s_and_saveexec_b64 s[62:63], vcc
    buffer_store_dwordx4 v[{G}:{G+3}], v12, s[44:47], s59 offen sc1
    buffer_store_dwordx4 v[{G+4}:{G+7}], v12, s[44:47], s65 offen sc1
    s_mov_b64 exec, s[62:63]
    """)

def store_addr():
    P(f"""
    v_lshlrev_b32 v12, 3, v3
    v_add_u32 v12, v12, v2
    v_lshlrev_b32 v12, 4, v12
    """)

def store_half(ACC, G):
    T = G
    for j in range(4): P(f'v_mov_b32 v{T+8+j}, v{ACC+j}')
    for j in range(4): P(f'v_permlane32_swap_b32 v{ACC+j}, v{T+8+j}')
    for j in range(4): P(f'v_add_f32_dpp v{ACC+j}, v{T+8+j}, v{ACC+j} row_shl:8 {DPPM}')
    make_granules(G, ACC)
    P(f"""
    s_add_u32 s59, s59, 2048
    s_add_u32 s65, s59, 2304
    s_mov_b64 s[62:63], exec
    s_mov_b64 exec, 0x00ff00ff
    buffer_store_dwordx4 v[{G}:{G+3}], v12, s[44:47], s59 offen sc1
    buffer_store_dwordx4 v[{G+4}:{G+7}], v12, s[44:47], s65 offen sc1
    s_mov_b64 exec, s[62:63]
    """)

def down_role():
    W0, MK, XS, ACC, QA, QB, G = 32, 8, 64, 72, 76, 80, 84
    P('L_down:')
    role(8)
    lds_wait(FL_PUB, 1, sleep=1)
    srd(36, 24, 4608*1152)
    P(f"""
    s_mul_i32 s54, s4, 9
    s_add_u32 s54, s54, s5
    s_sub_u32 s54, s54, 7             ; phi
    s_mul_i32 s55, s54, {32*1152}
    s_cmp_eq_u32 s53, 4
    s_cbranch_scc1 L_down_half
    s_lshl_b32 s56, s53, 8
    s_add_u32 s55, s55, s56
    v_mul_u32_u24 v4, 1152, v3
    v_lshl_add_u32 v4, v2, 4, v4
    """)
    for e in range(8):
        P(f'buffer_load_dwordx4 v[{W0+4*e}:{W0+4*e+3}], v4, s[36:39], s55 offen nt')
        if e < 7: P(f's_add_u32 s55, s55, {4*1152}')
    P('v_lshlrev_b32 v5, 2, v3')
    P('s_mov_b32 s57, 16')
    P('s_branch L_down_go')
    P('L_down_half:')
    P(f"""
    s_add_u32 s55, s55, 1024
    v_lshrrev_b32 v6, 3, v2
    v_lshl_add_u32 v6, v6, 2, v3
    v_mul_u32_u24 v4, 1152, v6
    v_and_b32 v7, 7, v2
    v_lshl_add_u32 v4, v7, 4, v4
    v_lshlrev_b32 v5, 2, v6
    """)
    for t in range(4):
        P(f'buffer_load_dwordx4 v[{W0+4*t}:{W0+4*t+3}], v4, s[36:39], s55 offen nt')
        if t < 3: P(f's_add_u32 s55, s55, {8*1152}')
    P('s_mov_b32 s57, 32')
    P('L_down_go:')
    masks(MK)
    store_addr()
    tag_fill(G)
    for e in range(8):
        P(f'v_mov_b32 v{104+e}, v5')
        if e < 7: P('v_add_u32 v5, s57, v5')
    P(f"""
    s_mul_i32 s59, s54, {PS}
    s_add_u32 s59, s59, {FP}
    v_and_b32 v6, 31, v1
    v_lshlrev_b32 v13, 2, v6
    """)
    P('s_barrier')
    P('s_barrier')
    stamp(7)
    P(f"""
    ds_read_b32 v16, v13 offset:{L_RED3}
    ds_read_b32 v17, v13 offset:{L_RED3+128}
    ds_read_b32 v18, v13 offset:{L_RED3+256}
    ds_read_b32 v19, v13 offset:{L_RED3+384}
    s_waitcnt lgkmcnt(0)
    v_add_f32 v16, v16, v17
    v_add_f32 v18, v18, v19
    """)
    rne_many([16, 18])
    k1 = f32hex(0.044715); k2 = f32hex(-2.0*math.sqrt(2.0/math.pi)*math.log2(math.e))
    P(f"""
    s_mov_b32 s60, {k1:#x}
    s_mov_b32 s61, {k2:#x}
    v_mul_f32 v17, v16, v16
    v_mul_f32 v17, v17, v16
    v_fma_f32 v17, v17, s60, v16
    v_mul_f32 v17, s61, v17
    v_exp_f32 v17, v17
    v_add_f32 v17, 1.0, v17
    v_rcp_f32 v17, v17
    v_mul_f32 v16, v16, v17
    """)
    rne('v16', 'v16')
    P('v_mul_f32 v16, v16, v18')
    P('v_cvt_pk_bf16_f32 v16, v16, v16')
    for e in range(8): P(f'ds_bpermute_b32 v{XS+e}, v{104+e}, v16')
    P('s_waitcnt vmcnt(0) lgkmcnt(0)')
    P(f"""
    s_cmp_eq_u32 s53, 4
    s_cbranch_scc1 L_down_half2
    """)
    diag_mm(ACC, [W0+4*e for e in range(8)], [f'v{XS+e}' for e in range(8)], MK, QA, QB)
    store_block('s53', ACC, G)
    stamp(6)
    end_wave()
    P('L_down_half2:')
    diag_mm(ACC, [W0+4*t for t in range(4)], [f'v{XS+t}' for t in range(4)], MK, QA, QB)
    store_half(ACC, G)
    stamp(6)
    end_wave()

def wo_role(suffix, nkv):
    P(f'L_wo{suffix}:')
    P('s_barrier')
    if suffix == 'M': lds_wait(C_B2, 6, sleep=2)
    elif cfg.q_wo_gate: lds_wait(C_G, 1, sleep=2)
    P('s_branch L_wo_common')

def wo_common():
    W0, MK, XS, G = 32, 8, 112, 16
    A0, A1, QA, QB = 24, 28, 0, 0
    P('L_wo_common:')
    role(4)
    srd(36, 16, 4096*1152)
    P(f"""
    s_sub_u32 s53, s3, 7              ; 0,1,2
    s_mov_b32 s54, s5                 ; a
    s_mul_i32 s55, s54, 9
    s_lshl_b32 s56, s4, 8
    """)
    def rowbase(dst, e):
        P(f"""
        s_add_u32 s57, s55, {e}
        s_bfe_u32 s58, s57, 0x10003
        s_lshl_b32 s58, s58, 7
        s_lshr_b32 s60, s57, 4
        s_lshl_b32 s60, s60, 5
        s_add_u32 s58, s58, s60
        s_and_b32 s60, s57, 7
        s_add_u32 s58, s58, s60
        s_add_u32 s58, s58, s56
        s_mul_i32 {dst}, s58, 1152
        """)
    def common_post():
        lds_add(C_WO)
        masks(MK)
        store_addr()
        tag_ready()
        P(f"""
        s_mul_i32 s59, s4, 7
        s_add_u32 s59, s59, s54
        s_mul_i32 s59, s59, {PS}
        s_add_u32 s59, s59, {XP}
        """)
    P(f"""
    s_cmp_eq_u32 s53, 2
    s_cbranch_scc1 L_wo_half
    s_lshl_b32 s65, s53, 9
    v_mul_u32_u24 v4, {8*1152}, v3
    v_lshl_add_u32 v4, v2, 4, v4
    """)
    for e in range(10):
        if e == 9:
            P(f"""
            s_cmp_lt_u32 s54, 6
            s_cbranch_scc1 L_wo_l9
            """)
        rowbase('s66', e)
        P('s_add_u32 s66, s66, s65')
        P(f'buffer_load_dwordx4 v[{W0+8*e}:{W0+8*e+3}], v4, s[36:39], s66 offen nt')
        P(f'buffer_load_dwordx4 v[{W0+8*e+4}:{W0+8*e+7}], v4, s[36:39], s66 offen offset:256 nt')
    P('L_wo_l9:')
    P('v_lshlrev_b32 v5, 2, v3')
    common_post()
    GA, GB = 16, 120
    tag_fill(GA); tag_fill(GB)
    stamp(5)
    P('s_barrier')
    stamp(6)
    XS2 = [112, 113, 114, 115, 116, 117, 118, 119, 13, 14]
    for e in range(10): P(f'ds_read_b32 v{XS2[e]}, v5 offset:{L_XA+16*e}')
    P('s_waitcnt vmcnt(0) lgkmcnt(0)')
    def mm(n):
        qs = ((60+0, ), )
        QAa, QBb = 0, 0
        def prep(e, q):
            for i in range(4): P(f'v_and_b32 v{q+i}, v{XS2[e]}, v{MK+i}')
        Q2 = (4, 4)
        for e in range(n):
            q = 4 if e == 0 else W0 + 8*(e-1)
            prep(e, q)
            c0 = '0' if e == 0 else f'v[{A0}:{A0+3}]'
            c1 = '0' if e == 0 else f'v[{A1}:{A1+3}]'
            P(f'v_mfma_f32_16x16x32_bf16 v[{A0}:{A0+3}], v[{W0+8*e}:{W0+8*e+3}], v[{q}:{q+3}], {c0}')
            P(f'v_mfma_f32_16x16x32_bf16 v[{A1}:{A1+3}], v[{W0+8*e+4}:{W0+8*e+7}], v[{q}:{q+3}], {c1}')
    P(f"""
    s_cmp_lt_u32 s54, 6
    s_cbranch_scc1 L_wo_m9
    """)
    mm(10)
    P('s_branch L_wo_st')
    P('L_wo_m9:')
    mm(9)
    P('L_wo_st:')
    make_granules(GA, A0)
    make_granules(GB, A1)
    P(f"""
    s_lshl_b32 s60, s53, 10
    s_add_u32 s59, s59, s60
    s_add_u32 s65, s59, 2304
    v_cmp_gt_u32 vcc, 8, v2
    s_and_saveexec_b64 s[62:63], vcc
    buffer_store_dwordx4 v[{GA}:{GA+3}], v12, s[44:47], s59 offen sc1
    buffer_store_dwordx4 v[{GB}:{GB+3}], v12, s[44:47], s59 offen offset:512 sc1
    buffer_store_dwordx4 v[{GA+4}:{GA+7}], v12, s[44:47], s65 offen sc1
    buffer_store_dwordx4 v[{GB+4}:{GB+7}], v12, s[44:47], s65 offen offset:512 sc1
    s_mov_b64 exec, s[62:63]
    """)
    stamp(7)
    end_wave()
    P('L_wo_half:')
    P(f"""
    v_mul_u32_u24 v4, {8*1152}, v3
    v_and_b32 v6, 7, v2
    v_lshl_add_u32 v4, v6, 4, v4
    v_add_u32 v4, 1024, v4
    v_cmp_lt_u32 s[68:69], 7, v2
    """)
    for t in range(5):
        rowbase('s66', 2*t)
        rowbase('s67', 2*t+1)
        if t == 4:
            P(f"""
            s_cmp_lt_u32 s54, 6
            s_cselect_b32 s67, 0x40000000, s67
            """)
        P(f"""
        v_mov_b32 v6, s66
        v_mov_b32 v7, s67
        v_cndmask_b32 v6, v6, v7, s[68:69]
        v_add_u32 v6, v6, v4
        buffer_load_dwordx4 v[{W0+4*t}:{W0+4*t+3}], v6, s[36:39], 0 offen nt
        """)
    P(f"""
    v_lshrrev_b32 v5, 3, v2
    v_lshl_add_u32 v5, v5, 2, v3
    v_lshlrev_b32 v5, 2, v5
    """)
    common_post()
    GH = 96
    tag_fill(GH)
    stamp(5)
    P('s_barrier')
    stamp(6)
    for t in range(5): P(f'ds_read_b32 v{112+t}, v5 offset:{L_XA+32*t}')
    P('s_waitcnt vmcnt(0) lgkmcnt(0)')
    diag_mm(72, [W0+4*t for t in range(5)], [f'v{112+t}' for t in range(5)], MK, 76, 80)
    store_half(72, GH)
    stamp(7)
    end_wave()

def q_fetch(nxt):
    l = P.lbl('Lqf'); l2 = P.lbl('Lqf'); l3 = P.lbl('Lqf')
    P(f"""
    s_cmp_gt_u32 s3, 4
    s_cbranch_scc1 {nxt}
    s_lshl_b32 s38, s4, 10
    s_lshl_b32 s39, s3, 8
    s_add_u32 s38, s38, s39
    s_add_u32 s38, s38, {QF-256}
    s_add_u32 s36, s34, s38
    s_addc_u32 s37, s35, 0
    s_mov_b32 s42, 0x40000
    s_branch {l3}
    {l}:
    s_sleep {cfg.q_sleep}
    {l3}:
    s_load_dwordx2 s[40:41], s[36:37], 128 glc
    s_sub_u32 s42, s42, 1
    s_cbranch_scc1 {ABORT}
    s_waitcnt lgkmcnt(0)
    s_cmp_lg_u32 s41, s7
    s_cbranch_scc1 {l}
    {l2}:
    s_load_dwordx16 s[48:63], s[36:37], 0 glc
    s_load_dwordx16 s[64:79], s[36:37], 64 glc
    s_sub_u32 s42, s42, 1
    s_cbranch_scc1 {ABORT}
    s_waitcnt lgkmcnt(0)
    s_add_u32 s43, s48, s7
    """)
    for i in range(49, 80): P(f's_add_u32 s43, s43, s{i}')
    P(f"""
    s_cmp_lg_u32 s43, s40
    s_cbranch_scc1 {l2}
    """)
    for i in range(32): P(f'v_writelane_b32 v20, s{48+i}, {i}')
    P(f"""
    v_and_b32 v21, 3, v1
    v_lshlrev_b32 v21, 2, v21
    v_bfe_u32 v22, v1, 2, 2
    v_add_u32 v21, v21, v22
    v_and_b32 v22, 16, v1
    v_add_u32 v21, v21, v22
    v_lshlrev_b32 v21, 2, v21
    s_lshl_b32 s38, s3, 7
    v_add_u32 v21, s38, v21
    s_mov_b64 exec, 0xffffffff
    ds_write_b32 v21, v20 offset:{L_Q-128}
    s_mov_b64 exec, -1
    """)
    srd(44, 34, 0x40000000)
    lds_add(FL_Q)

def ln_stats(regs, mean_b, rstd, t1, t2, maskfix=None):
    P(f'v_add_f32 {t1}, v{regs[0]}, v{regs[1]}')
    for r in regs[2:]: P(f'v_add_f32 {t1}, {t1}, v{r}')
    wave_sum(t1, t2)
    P(f's_mov_b32 s60, {f32hex(1.0/576.0):#x}')
    P(f'v_mul_f32 {t1}, s60, {t1}')
    first = True
    for r in regs:
        P(f'v_sub_f32 {t2}, v{r}, {t1}')
        if maskfix and r in maskfix[0]: P(f'v_cndmask_b32 {t2}, 0, {t2}, {maskfix[1]}')
        if first: P(f'v_mul_f32 {rstd}, {t2}, {t2}'); first = False
        else: P(f'v_fmac_f32 {rstd}, {t2}, {t2}')
    wave_sum(rstd, t2)
    P(f'v_mul_f32 {rstd}, s60, {rstd}')
    rne(rstd, rstd)
    P(f'v_add_f32 {rstd}, {f32hex(1e-5):#x}, {rstd}')
    rne(rstd, rstd)
    P(f'v_sqrt_f32 {rstd}, {rstd}')
    rne(rstd, rstd)
    P(f'v_rcp_f32 {rstd}, {rstd}')
    rne(mean_b, t1)

def fold_reduce(base, slot0):
    for i in range(6): P(f'ds_read_b128 v[{base+4*i}:{base+4*i+3}], v16 offset:{L_SLOT+1024*(slot0+i)}')
    P('s_waitcnt lgkmcnt(0)')
    for (x, y) in ((0, 1), (2, 3), (4, 5), (0, 2), (0, 4)):
        for jj in range(4): P(f'v_add_f32 v{base+4*x+jj}, v{base+4*x+jj}, v{base+4*y+jj}')
    T = base + 4
    for jj in range(4): P(f'v_mov_b32 v{T+jj}, v{base+jj}')
    for jj in range(4): P(f'v_permlane32_swap_b32 v{base+jj}, v{T+jj}')
    for jj in range(4): P(f'v_add_f32_dpp v{base+jj}, v{T+jj}, v{base+jj} row_shl:8 {DPPM}')

def silu(regs, tmps):
    P(f's_mov_b32 s60, {f32hex(-1.4426950408889634):#x}')
    for r in regs: P(f'v_lshlrev_b32 v{r}, 16, v{r}')
    for r, t in zip(regs, tmps): P(f'v_mul_f32 v{t}, s60, v{r}')
    for r, t in zip(regs, tmps): P(f'v_exp_f32 v{t}, v{t}')
    for r, t in zip(regs, tmps): P(f'v_add_f32 v{t}, 1.0, v{t}')
    for r, t in zip(regs, tmps): P(f'v_rcp_f32 v{t}, v{t}')
    for r, t in zip(regs, tmps): P(f'v_mul_f32 v{r}, v{r}, v{t}')
    for r, t in zip(regs, tmps): P(f'v_cvt_pk_bf16_f32 v{r}, v{r}, v{r}')

def wq_role():
    WB, MK, XS, ACC, QA, QB, XA = 56, 8, 104, 116, 120, 124, 32
    XSB = L_SLOT + 12*1024
    P('L_wq:')
    role(2)
    srd(36, 14, 576*8192)
    srd(40, 8, 1152)
    P(f"""
    s_sub_u32 s53, s3, 1              ; j
    s_sub_u32 s54, s5, 3              ; qi
    s_mul_i32 s57, s53, 96
    v_lshlrev_b32 v4, 1, v1
    """)
    for n in range(9): P(f'buffer_load_ushort v{XA+n}, v4, s[40:43], 0 offen offset:{128*n}')
    P(f"""
    v_and_b32 v6, 31, v1
    v_lshlrev_b32 v7, 1, v6
    s_lshl_b32 s58, s57, 1
    buffer_load_ushort v{XA+9}, v4, s[40:43], s58 offen
    buffer_load_ushort v{XA+10}, v7, s[40:43], s58 offen offset:128
    v_lshrrev_b32 v13, 3, v2
    v_lshl_add_u32 v13, v13, 2, v3
    v_lshlrev_b32 v5, 13, v13
    v_and_b32 v7, 7, v2
    v_lshl_add_u32 v5, v7, 4, v5
    s_lshl_b32 s58, s57, 13
    s_lshl_b32 s59, s4, 9
    s_add_u32 s58, s58, s59
    s_lshl_b32 s59, s54, 7
    s_add_u32 s58, s58, s59
    """)
    for t in range(12):
        P(f'buffer_load_dwordx4 v[{WB+4*t}:{WB+4*t+3}], v5, s[36:39], s58 offen nt')
        if t < 11: P(f's_add_u32 s58, s58, {8*8192}')
    stamp(1)
    P('s_barrier')
    P(f"""
    v_add_u32 v28, s57, v1
    v_lshlrev_b32 v28, 3, v28
    v_add_u32 v29, s57, v6
    v_lshlrev_b32 v29, 3, v29
    v_add_u32 v29, 512, v29
    v_lshlrev_b32 v31, 2, v13
    s_lshl_b32 s67, s53, 10
    v_add_u32 v31, s67, v31
    v_lshlrev_b32 v30, 2, v1
    v_add_u32 v30, s67, v30
    v_lshlrev_b32 v27, 2, v6
    v_add_u32 v27, s67, v27
    """)
    masks(MK)
    P('s_waitcnt vmcnt(12)')
    tag_ready()
    for n in range(11): P(f'v_lshlrev_b32 v{XA+n}, 16, v{XA+n}')
    ln_stats(list(range(XA, XA+9)), 'v16', 'v17', 'v18', 'v19')
    for n in (9, 10): P(f'v_sub_f32 v{XA+n}, v{XA+n}, v16')
    rne_many([XA+9, XA+10])
    for n in (9, 10): P(f'v_mul_f32 v{XA+n}, v{XA+n}, v17')
    rne_many([XA+9, XA+10])
    P(f"""
    v_mov_b32 v20, v{XA+9}
    v_mov_b32 v21, v{XA+10}
    s_mov_b32 s66, {MODP}
    s_mov_b32 s68, {MODP+9216}
    s_mov_b32 s69, {MODP+4608}
    s_mov_b32 s70, {MODP+9216+4608}
    """)
    G = 32
    sr = ['s66', 's68', 's69', 's70']
    loads = []
    for st_, va in enumerate(('v28', 'v29')):
        for i in range(4):
            r = G + 8*st_ + 2*i
            loads.append(f'buffer_load_dwordx2 v[{r}:{r+1}], {va}, s[44:47], {sr[i]} offen sc1')
    P('s_waitcnt vmcnt(0)')
    stamp(5)
    poll(loads, check_tags32([G+1+2*i for i in range(8)]))
    stamp(2)
    for st_ in range(2):
        b = G + 8*st_
        P(f'v_add_f32 v{b}, v{b}, v{b+2}')
        P(f'v_add_f32 v{b+4}, v{b+4}, v{b+6}')
    rne_many([G, G+4, G+8, G+12])
    for st_ in range(2): P(f'v_add_f32 v{G+8*st_+4}, 1.0, v{G+8*st_+4}')
    rne_many([G+4, G+12])
    for st_ in range(2): P(f'v_mul_f32 v{20+st_}, v{20+st_}, v{G+8*st_+4}')
    rne_many([20, 21])
    for st_ in range(2): P(f'v_add_f32 v{20+st_}, v{20+st_}, v{G+8*st_}')
    for st_ in range(2): P(f'v_cvt_pk_bf16_f32 v{20+st_}, v{20+st_}, v{20+st_}')
    P(f"""
    ds_write_b32 v30, v20 offset:{XSB}
    ds_write_b32 v27, v21 offset:{XSB+256}
    """)
    for t in range(12): P(f'ds_read_b32 v{XS+t}, v31 offset:{XSB+32*t}')
    P('s_waitcnt lgkmcnt(0)')
    stamp(3)
    diag_mm(ACC, [WB+4*t for t in range(12)], [f'v{XS+t}' for t in range(12)], MK, QA, QB)
    P(f"""
    s_lshl_b32 s59, s53, 10
    v_lshlrev_b32 v16, 4, v1
    v_add_u32 v19, s59, v16
    ds_write_b128 v19, v[{ACC}:{ACC+3}] offset:{L_SLOT}
    """)
    lds_add_rtn(C_RED, 's60')
    P(f"""
    s_cmp_lg_u32 s60, 5
    s_cbranch_scc1 L_wq_done
    """)
    fold_reduce(WB, 0)
    for r in range(4): P(f'v_mov_b32_dpp v{WB+4+r}, v{WB+r} quad_perm:[1,0,3,2] {DPPM}')
    for r in range(4): P(f'v_cvt_pk_bf16_f32 v{WB+r}, v{WB+r}, v{WB+4+r}')
    P(f"""
    v_add_u32 v{WB+4}, v{WB}, v{WB+1}
    v_add3_u32 v{WB+4}, v{WB+4}, v{WB+2}, v{WB+3}
    s_mov_b32 s60, 0x00550055
    s_mov_b32 s61, 0
    v_cndmask_b32 v{WB+4}, 0, v{WB+4}, s[60:61]
    v_add_u32_dpp v{WB+4}, v{WB+4}, v{WB+4} quad_perm:[2,3,0,1] {DPPM}
    v_add_u32_dpp v{WB+4}, v{WB+4}, v{WB+4} row_shl:4 {DPPM} bound_ctrl:0
    v_lshrrev_b32 v19, 1, v2
    v_lshl_add_u32 v19, v3, 2, v19
    v_lshlrev_b32 v19, 4, v19            ; (gq*4 + c/2)*16
    v_readlane_b32 s60, v{WB+4}, 0
    v_readlane_b32 s61, v{WB+4}, 16
    s_add_u32 s60, s60, s61
    s_add_u32 s60, s60, s7
    s_mov_b32 s61, 128
    v_writelane_b32 v{WB}, s60, 1
    v_writelane_b32 v{WB+1}, s7, 1
    v_writelane_b32 v19, s61, 1
    s_lshl_b32 s59, s4, 10
    s_lshl_b32 s60, s54, 8
    s_add_u32 s59, s59, s60
    s_add_u32 s59, s59, {QF}
    s_mov_b64 exec, 0x00550057
    buffer_store_dwordx4 v[{WB}:{WB+3}], v19, s[44:47], s59 offen sc1
    s_mov_b64 exec, -1
    """)
    lds_add(C_G)
    stamp(4)
    P('L_wq_done:')
    q_fetch('L_exit')
    end_wave()

def mod_role():
    WA, MK, XS, ACC, QA, QB = 32, 8, 104, 116, 120, 124
    XSB = L_SLOT + 12*1024
    P('L_mod:')
    role(3)
    P(f"""
    s_mov_b32 s54, s2
    s_cmp_ge_u32 s54, 36
    s_cbranch_scc1 L_mod_noA
    """)
    srd(36, 28, 576*6912)
    srd(40, 26, 1152)
    P(f"""
    s_sub_u32 s53, s3, 1              ; j
    v_lshlrev_b32 v4, 1, v1
    s_and_b32 s56, s54, 1             ; kh
    s_mul_i32 s57, s56, 288
    s_mul_i32 s58, s53, 48
    s_add_u32 s57, s57, s58
    s_lshl_b32 s58, s57, 1
    buffer_load_ushort v16, v4, s[40:43], s58 offen
    v_lshrrev_b32 v13, 3, v2
    v_lshl_add_u32 v13, v13, 2, v3
    v_mul_u32_u24 v5, 6912, v13
    v_and_b32 v7, 7, v2
    v_lshl_add_u32 v5, v7, 4, v5
    s_lshr_b32 s55, s54, 1            ; cbk
    s_mul_i32 s58, s57, 6912
    s_lshl_b32 s59, s55, 7
    s_add_u32 s58, s58, s59
    """)
    for t in range(6):
        P(f'buffer_load_dwordx4 v[{WA+4*t}:{WA+4*t+3}], v5, s[36:39], s58 offen nt')
        if t < 5: P(f's_add_u32 s58, s58, {8*6912}')
    P('s_barrier')
    P(f"""
    v_lshlrev_b32 v31, 2, v13
    s_lshl_b32 s67, s53, 10
    v_add_u32 v31, s67, v31
    v_lshlrev_b32 v30, 2, v1
    v_add_u32 v30, s67, v30
    s_mul_i32 s65, s56, 9216
    s_lshl_b32 s60, s55, 9
    s_add_u32 s65, s65, s60
    s_add_u32 s65, s65, {MODP}
    v_lshlrev_b32 v29, 5, v3
    v_add_u32 v29, v29, v2
    v_lshlrev_b32 v29, 3, v29
    """)
    masks(MK)
    tag_ready()
    for rr in range(4): P(f'v_mov_b32 v{61+2*rr}, s7')
    P('s_waitcnt vmcnt(6)')
    stamp(1)
    silu([16], [19])
    P(f'ds_write_b32 v30, v16 offset:{XSB}')
    for t in range(6): P(f'ds_read_b32 v{XS+t}, v31 offset:{XSB+32*t}')
    P('s_waitcnt vmcnt(0) lgkmcnt(0)')
    stamp(2)
    lds_add(C_G)
    diag_mm(ACC, [WA+4*t for t in range(6)], [f'v{XS+t}' for t in range(6)], MK, QA, QB)
    P(f"""
    s_lshl_b32 s59, s53, 10
    v_lshlrev_b32 v16, 4, v1
    v_add_u32 v19, s59, v16
    ds_write_b128 v19, v[{ACC}:{ACC+3}] offset:{L_SLOT}
    """)
    lds_add_rtn(C_RED, 's60')
    P(f"""
    s_cmp_lg_u32 s60, 5
    s_cbranch_scc1 L_mod_fin
    """)
    fold_reduce(WA, 0)
    for rr in range(4): P(f'v_mov_b32 v{60+2*rr}, v{WA+rr}')
    P('s_mov_b64 exec, 0x00ff00ff')
    for rr in range(4):
        P(f'buffer_store_dwordx2 v[{60+2*rr}:{61+2*rr}], v29, s[44:47], s65 offen offset:{64*rr} sc1')
    P('s_mov_b64 exec, -1')
    lds_add(C_H)
    stamp(3)
    P('s_branch L_mod_fin')
    P('L_mod_noA:')
    P('s_barrier')
    if cfg.b_on != 'M': lds_add(C_G)
    lds_add(C_H)
    tag_ready()
    P('L_mod_fin:')
    if cfg.b_on == 'M':
        lds_wait(C_H, 1, sleep=0)
        P(f"""
        s_cmp_lt_u32 s2, 12
        s_cbranch_scc1 L_mod_nob
        s_sub_u32 s65, s2, 12
        s_sub_u32 s53, s3, 1
        """)
        modb_body('M')
        P('s_branch L_mod_q')
        P('L_mod_nob:')
        lds_add(C_B2)
        P('L_mod_q:')
    q_fetch('L_exit')
    end_wave()

def modb_body(cls):
    WB, MK, XS, ACC, QA, QB, G = 56, 8, 104, 116, 120, 124, 32
    done = 'L_exit' if cls == 'Q' else 'L_modb_done'
    srd(36, 28, 576*6912)
    srd(40, 26, 1152)
    P(f"""
    v_lshlrev_b32 v4, 1, v1
    s_mul_i32 s66, s53, 96
    s_lshl_b32 s59, s66, 1
    buffer_load_ushort v17, v4, s[40:43], s59 offen
    buffer_load_ushort v18, v4, s[40:43], s59 offen offset:128
    v_lshrrev_b32 v13, 3, v2
    v_lshl_add_u32 v13, v13, 2, v3
    v_mul_u32_u24 v5, 6912, v13
    v_and_b32 v7, 7, v2
    v_lshl_add_u32 v5, v7, 4, v5
    v_lshlrev_b32 v31, 2, v13
    s_lshl_b32 s67, s53, 9
    v_add_u32 v31, s67, v31
    v_lshlrev_b32 v30, 2, v1
    v_add_u32 v30, s67, v30
    s_mul_i32 s58, s66, 6912
    s_lshl_b32 s59, s65, 7
    s_add_u32 s58, s58, s59
    s_add_u32 s58, s58, 2304
    """)
    def wloads():
        for t in range(12):
            if cls == 'Q' and cfg.b_k and t >= cfg.b_k: P(f's_waitcnt vmcnt({cfg.b_k-1})')
            P(f'buffer_load_dwordx4 v[{WB+4*t}:{WB+4*t+3}], v5, s[36:39], s58 offen nt')
            if t < 11: P(f's_add_u32 s58, s58, {8*6912}')
    if cls == 'M':
        wloads()
        lds_add(C_B2)
        masks(MK)
        P('s_waitcnt vmcnt(12)')
    else:
        masks(MK)
        P('s_waitcnt vmcnt(0)')
        tag_ready()
    tag_fill(G)
    silu([17, 18], [19, 20])
    P(f"""
    ds_write_b32 v30, v17 offset:{L_XS}
    ds_write_b32 v30, v18 offset:{L_XS+256}
    """)
    for t in range(12): P(f'ds_read_b32 v{XS+t}, v31 offset:{L_XS+32*t}')
    if cls == 'Q':
        lds_wait(C_G, 1, sleep=2)
        stamp(1)
        wloads()
    P('s_waitcnt vmcnt(0) lgkmcnt(0)')
    diag_mm(ACC, [WB+4*t for t in range(12)], [f'v{XS+t}' for t in range(12)], MK, QA, QB)
    P(f"""
    s_lshl_b32 s59, s53, 10
    v_lshlrev_b32 v16, 4, v1
    v_add_u32 v19, s59, v16
    ds_write_b128 v19, v[{ACC}:{ACC+3}] offset:{L_SLOT+6*1024}
    """)
    lds_add_rtn(C_B, 's60')
    P(f"""
    s_cmp_lg_u32 s60, 5
    s_cbranch_scc1 {done}
    """)
    fold_reduce(WB, 6)
    rne_many([WB+jj for jj in range(4)])
    make_granules(G, WB)
    P(f"""
    s_lshl_b32 s59, s65, 9
    s_add_u32 s59, s59, {MODF}
    v_lshlrev_b32 v19, 3, v3
    v_add_u32 v19, v19, v2
    v_lshlrev_b32 v19, 5, v19
    s_mov_b64 exec, 0x00ff00ff
    buffer_store_dwordx4 v[{G}:{G+3}], v19, s[44:47], s59 offen sc1
    buffer_store_dwordx4 v[{G+4}:{G+7}], v19, s[44:47], s59 offen offset:16 sc1
    s_mov_b64 exec, -1
    """)
    stamp(4)
    if cls == 'Q': end_wave()
    else: P('L_modb_done:')

def modb_role():
    P('L_modb:')
    P('s_barrier')
    if cfg.b_on != 'Q':
        P('s_branch L_end')
        return
    P(f"""
    s_sub_u32 s65, s2, 48            ; b
    s_cmp_ge_u32 s65, 36
    s_cbranch_scc1 L_exit
    s_sub_u32 s53, s3, 7              ; j
    """)
    modb_body('Q')

def prefetch_code():
    if not cfg.prefetch_code: return
    P(f"""
    s_getpc_b64 s[52:53]
    L_pc:
    s_sub_u32 s52, s52, L_pc-{KN}
    s_subb_u32 s53, s53, 0
    v_lshlrev_b32 v4, 7, v1
    """)
    for i in range(CODE_PF):
        P(f'v_cmp_gt_u32 vcc, L_codeend-{KN}, v4')
        P('s_and_saveexec_b64 s[62:63], vcc')
        P(f'global_load_dword v{16+i}, v4, s[52:53]')
        P('s_mov_b64 exec, s[62:63]')
        P('v_add_u32 v4, 0x2000, v4')

def reduce4(a, b, n_i, base):
    regs = list(range(n_i))
    while len(regs) > 1:
        nxt = []
        for k in range(0, len(regs) - 1, 2):
            x, y = regs[k], regs[k+1]
            for j in range(2): P(f'v_add_f32 v{base+4*x+j}, v{base+4*x+j}, v{base+4*y+j}')
            nxt.append(x)
        if len(regs) % 2: nxt.append(regs[-1])
        regs = nxt
    for d in ('row_ror:4', 'row_ror:8'):
        for j in range(2): P(f'v_add_f32_dpp v{base+j}, v{base+j}, v{base+j} {d} {DPPM}')
    xrow_multi('v_add_f32', [f'v{base+j}' for j in range(2)], [f'v{base+2+j}' for j in range(2)])

def commA_role():
    P('L_commA:')
    role(5)
    P('s_setprio 3')
    P('s_barrier')
    P(f"""
    s_mov_b32 s54, s5                 ; a
    s_mul_i32 s55, s4, 7
    s_add_u32 s55, s55, s54           ; rho
    v_and_b32 v112, 3, v1
    v_lshrrev_b32 v4, 1, v112           ; pi
    s_lshl_b32 s56, s55, 1
    v_add_u32 v4, s56, v4
    v_and_b32 v4, 7, v4
    s_lshr_b32 s56, s55, 2
    s_lshl_b32 s56, s56, 5
    v_add_u32 v4, s56, v4
    v_and_b32 v5, 1, v112               ; gamma
    v_lshl_add_u32 v4, v5, 4, v4
    v_lshlrev_b32 v113, 1, v4
    v_lshlrev_b32 v114, 4, v112
    """)
    srd(40, 8, 1152)
    P(f"""
    buffer_load_ushort v116, v113, s[40:43], 0 offen
    buffer_load_ushort v117, v113, s[40:43], 0 offen offset:16
    s_cmp_eq_u32 s54, 6
    s_cselect_b32 s57, 10, 9            ; E
    s_mul_i32 s56, s54, 9
    v_add_u32 v4, s56, v2               ; l_src = 9a + e
    v_mul_u32_u24 v6, {H3S}, v3
    v_lshl_add_u32 v5, v4, 4, v6
    v_bfe_u32 v4, v4, 3, 1              ; head
    v_lshl_add_u32 v4, v4, 4, v6
    v_add_u32 v4, 2048, v4
    s_mul_i32 s48, s4, {16*H3S}
    s_add_u32 s48, s48, {H3}
    s_add_u32 s49, s48, {4*H3S}
    s_add_u32 s50, s48, {8*H3S}
    s_add_u32 s51, s48, {12*H3S}
    v_lshrrev_b32 v115, 2, v1
    v_mul_u32_u24 v115, {PS}, v115
    v_and_b32 v6, 1, v112
    v_mul_u32_u24 v6, 2304, v6
    v_add_u32 v115, v115, v6
    v_lshrrev_b32 v6, 1, v112
    v_lshl_add_u32 v115, v6, 4, v115
    v_lshrrev_b32 v6, 2, v1
    v_mul_u32_u24 v118, {X2S}, v6
    v_add_u32 v118, v118, v114
    v_lshlrev_b32 v119, 4, v1
    """)
    tag_ready()
    P('v_mov_b32 v122, s6\nv_mov_b32 v123, s7')
    stamp(1)
    lds_wait(FL_PUB, 1, sleep=1)
    stamp(2)
    P(f"""
    v_lshlrev_b32 v116, 16, v116
    v_cmp_gt_u32 vcc, s57, v2
    s_mov_b32 s56, {LOG2E:#x}
    s_mov_b64 exec, vcc
    """)
    def h3_loads(B):
        o = []
        for i in range(4):
            b = B + 12*i
            o.append(f'buffer_load_dwordx4 v[{b}:{b+3}], v5, s[44:47], s{48+i} offen sc1')
            o.append(f'buffer_load_dwordx4 v[{b+4}:{b+7}], v5, s[44:47], s{48+i} offen offset:1024 sc1')
            o.append(f'buffer_load_dwordx4 v[{b+8}:{b+11}], v4, s[44:47], s{48+i} offen sc1')
        return o
    def h3_check(B):
        bases = [B + 12*i + o for i in range(4) for o in (0, 4, 8)]
        check_g(bases[:6])()
        P('s_mov_b64 s[62:63], vcc')
        check_g(bases[6:])()
        P('s_or_b64 vcc, vcc, s[62:63]')
    def h3_post(B):
        M = [B+12*i+8 for i in range(4)]; L = [m+1 for m in M]; W = [m+2 for m in M]
        P(f"""
        v_max3_f32 v12, v{M[0]}, v{M[1]}, v{M[2]}
        v_max_f32 v12, v12, v{M[3]}
        """)
        xrow_multi('v_max_f32', ['v12'], ['v13'])
        for i in range(4): P(f'v_sub_f32 v{W[i]}, v{M[i]}, v12')
        for i in range(4): P(f'v_mul_f32 v{W[i]}, s56, v{W[i]}')
        for i in range(4): P(f'v_exp_f32 v{W[i]}, v{W[i]}')
        O = lambda i, j: B + 12*i + (j >> 1)*4 + (j & 1)
        P(f'v_mul_f32 v14, v{W[0]}, v{L[0]}')
        for j in range(4): P(f'v_mul_f32 v{8+j}, v{W[0]}, v{O(0,j)}')
        for i in range(1, 4):
            P(f'v_fmac_f32 v14, v{W[i]}, v{L[i]}')
            for j in range(4): P(f'v_fmac_f32 v{8+j}, v{W[i]}, v{O(i,j)}')
        xrow_multi('v_add_f32', ['v14', 'v8', 'v9', 'v10', 'v11'], [f'v{B+2}', f'v{B+3}', f'v{B+6}', f'v{B+7}', f'v{B+11}'])
        P('v_rcp_f32 v14, v14')
        for j in range(4): P(f'v_mul_f32 v{8+j}, v{8+j}, v14')
        for j in range(4): P(f'v_cvt_pk_bf16_f32 v{8+j}, v{8+j}, v{8+j}')
    if cfg.pipe: poll2(h3_loads, h3_check, h3_post, 16, 64, 12)
    else:
        poll(h3_loads(16), lambda: h3_check(16)); h3_post(16)
    stamp(4)
    P(f"""
    s_and_b32 exec_lo, exec_lo, 0xffff
    s_mov_b32 exec_hi, 0
    ds_write_b128 v119, v[8:11] offset:{L_XA}
    s_mov_b64 exec, -1
    s_cmp_ge_u32 s55, 72
    s_cselect_b32 s65, 1, 0
    s_lshl_b32 s56, s55, 5              ; rho*32
    s_add_u32 s48, s56, {XP}
    """)
    for i in range(1, 7): P(f's_add_u32 s{48+i}, s{47+i}, {16*PS}')
    P(f"""
    s_lshl_b32 s57, s55, 6
    s_add_u32 s58, s57, {MODF}
    v_lshlrev_b32 v117, 16, v117
    s_waitcnt lgkmcnt(0)
    s_barrier
    """)
    stamp(5)
    P(f"""
    s_cmp_lg_u32 s65, 0
    s_cbranch_scc1 L_exit
    """)
    def red_loads(n):
        def f(B):
            return [f'buffer_load_dwordx4 v[{B+4*n}:{B+4*n+3}], v114, s[44:47], s58 offen sc1'] + \
                   [f'buffer_load_dwordx4 v[{B+4*i}:{B+4*i+3}], v115, s[44:47], s{48+i} offen sc1' for i in range(n)]
        return f
    def red_check(n):
        def f(B):
            bases = [B+4*i for i in range(n+1)]
            if n + 1 <= 8: check_g(bases)()
            else:
                check_g(bases[:5])()
                P('s_mov_b64 s[62:63], vcc')
                check_g(bases[5:])()
                P('s_or_b64 vcc, vcc, s[62:63]')
        return f
    def xp_post(B):
        reduce4(0, 1, 7, B)
        rne_many([B, B+1])
        for j in range(2): P(f'v_mul_f32 v{B+j}, v{B+j}, v{B+28+j}')
        rne_many([B, B+1])
        for j in range(2): P(f'v_add_f32 v{120+j}, v{B+j}, v{116+j}')
        rne_many([120, 121])
    if cfg.pipe: poll2(red_loads(7), red_check(7), xp_post, 16, 48, 8)
    else:
        poll(red_loads(7)(16), lambda: red_check(7)(16)); xp_post(16)
    P(f"""
    s_add_u32 s59, s57, {X2}
    s_mov_b64 exec, 0xffffffff
    buffer_store_dwordx4 v[120:123], v118, s[44:47], s59 offen sc1
    s_mov_b64 exec, -1
    """)
    stamp(6)
    P(f's_add_u32 s48, s56, {FP}')
    for i in range(1, 9): P(f's_add_u32 s{48+i}, s{47+i}, {16*PS}')
    P(f's_add_u32 s58, s57, {MODF+864*16}')
    srd(40, 30, 1152)
    def fp_post(B):
        reduce4(0, 1, 9, B)
        rne_many([B, B+1])
        for j in range(2): P(f'v_mul_f32 v{B+j}, v{B+j}, v{B+36+j}')
        rne_many([B, B+1])
        for j in range(2): P(f'v_add_f32 v{8+j}, v{B+j}, v{120+j}')
        for j in range(2): P(f'v_cvt_pk_bf16_f32 v{8+j}, v{8+j}, v{8+j}')
    if cfg.pipe: poll2(red_loads(9), red_check(9), fp_post, 24, 64, 10)
    else:
        poll(red_loads(9)(24), lambda: red_check(9)(24)); fp_post(24)
    P(f"""
    s_mov_b64 exec, 0xf
    buffer_store_short v8, v113, s[40:43], 0 offen
    buffer_store_short v9, v113, s[40:43], 0 offen offset:16
    s_mov_b64 exec, -1
    """)
    stamp(7)
    P(f"""
    s_mul_i32 s55, s4, 7
    s_add_u32 s55, s55, s5
    s_cmp_lg_u32 s55, 0
    s_cbranch_scc1 L_exit
    v_mov_b32 v4, {EPOCH}
    v_mov_b32 v8, s6
    v_mov_b32 v9, s7
    s_mov_b64 exec, 1
    buffer_store_dwordx2 v[8:9], v4, s[44:47], 0 offen sc1
    s_mov_b64 exec, -1
    """)
    end_wave()

def commF_role():
    P('L_commF:')
    role(6)
    P('s_setprio 3')
    SB, CB, XA = 32, 52, 72
    P(f"""
    v_lshlrev_b32 v4, 4, v1             ; granule l
    v_and_b32 v5, 31, v1
    v_lshlrev_b32 v5, 4, v5
    s_mov_b32 s56, {MODF+288*16}
    s_mov_b32 s57, {MODF+576*16}
    s_add_u32 s58, s56, 4096
    s_add_u32 s59, s57, 4096
    s_and_b32 s52, s2, 7
    s_mul_i32 s52, s52, {X2S}
    s_add_u32 s52, s52, {X2}
    s_add_u32 s53, s52, 4096
    v_cmp_gt_u32 s[54:55], 32, v1
    """)
    lds_wait(FL_PUB, 1, sleep=1)
    def gl(base, sreg, sreg2):
        return [f'buffer_load_dwordx4 v[{base+4*n}:{base+4*n+3}], v4, s[44:47], {sreg} offen offset:{1024*n} sc1' for n in range(4)] + \
               [f'buffer_load_dwordx4 v[{base+16}:{base+19}], v5, s[44:47], {sreg2} offen sc1']
    def chk():
        check_g([SB+4*n for n in range(5)])()
        P('s_mov_b64 s[62:63], vcc')
        check_g([CB+4*n for n in range(5)])()
        P('s_or_b64 vcc, vcc, s[62:63]')
    poll(gl(SB, 's56', 's58') + gl(CB, 's57', 's59'), chk)
    cbv = [CB+4*n+j for n in range(5) for j in range(2)]
    sbv = [SB+4*n+j for n in range(5) for j in range(2)]
    xav = [XA+4*n+j for n in range(5) for j in range(2)]
    for r in cbv: P(f'v_add_f32 v{r}, 1.0, v{r}')
    rne_many(cbv)
    P('v_lshlrev_b32 v6, 2, v1')
    def x2_post(B):
        xv = [B+4*n+j for n in range(5) for j in range(2)]
        for r in xv[8:]: P(f'v_cndmask_b32 v{r}, 0, v{r}, s[54:55]')
        ln_stats(xv, 'v112', 'v113', 'v114', 'v115', maskfix=(xv[8:], 's[54:55]'))
        for r in xv: P(f'v_sub_f32 v{r}, v{r}, v112')
        rne_many(xv)
        for r in xv: P(f'v_mul_f32 v{r}, v{r}, v113')
        rne_many(xv)
        for r, c in zip(xv, cbv): P(f'v_mul_f32 v{r}, v{r}, v{c}')
        rne_many(xv)
        for r, c in zip(xv, sbv): P(f'v_add_f32 v{r}, v{r}, v{c}')
        for n in range(5): P(f'v_cvt_pk_bf16_f32 v{B+4*n}, v{B+4*n}, v{B+4*n+1}')
        for n in range(4): P(f'ds_write_b32 v6, v{B+4*n} offset:{L_XS+256*n}')
        P(f"""
        s_mov_b64 exec, 0xffffffff
        ds_write_b32 v6, v{B+16} offset:{L_XS+1024}
        s_mov_b64 exec, -1
        """)
    if cfg.pipe: poll2(lambda B: gl(B, 's52', 's53'), lambda B: check_g([B+4*n for n in range(5)])(), x2_post, 72, 92, 5)
    else:
        poll(gl(72, 's52', 's53'), check_g([72+4*n for n in range(5)])); x2_post(72)
    stamp(7)
    P("""
    s_waitcnt lgkmcnt(0)
    s_barrier
    """)
    end_wave()

def gu_role(nkv):
    RAW = 32
    NA = cfg.gu_early
    P('L_gu:')
    role(7)
    def setup():
        P(f"""
        s_sub_u32 s53, s3, 1              ; i
        s_lshr_b32 s54, s53, 1            ; matrix
        s_and_b32 s55, s53, 1             ; K half
        s_cmp_eq_u32 s54, 0
        s_cselect_b32 s36, s20, s22
        s_cselect_b32 s37, s21, s23
        s_mov_b32 s38, {576*9216}
        s_mov_b32 s39, 0x20000
        s_mul_i32 s56, s4, 9
        s_add_u32 s56, s56, s5
        s_sub_u32 s56, s56, 7             ; phi
        s_lshl_b32 s56, s56, 6
        s_mul_i32 s57, s55, {9*32*9216}
        s_add_u32 s56, s56, s57
        s_mov_b32 s58, 0x05040100
        s_mov_b32 s59, 0x07060302
        """)
    def loads(u, thr=True):
        for j in range(8):
            off = (32*u + 8*(j & 3) + (j >> 2)) * 9216
            P(f's_add_u32 s57, s56, {off}')
            if thr and cfg.gul and 8*(u-NA) + j >= cfg.gul: P(f's_waitcnt vmcnt({cfg.gul-1})')
            P(f'buffer_load_dword v{RAW+8*u+j}, v4, s[36:39], s57 offen nt')
    def perm(u):
        src = RAW + 8*u
        dst = src - 8
        for i in range(4):
            P(f'v_perm_b32 v{dst+i}, v{src+2*i+1}, v{src+2*i}, s58')
            P(f'v_perm_b32 v{dst+4+i}, v{src+2*i+1}, v{src+2*i}, s59')
    P('s_cmp_lg_u32 s3, 1\ns_cbranch_scc1 L_gu_nopf')
    prefetch_code()
    P('L_gu_nopf:')
    setup()
    P(f"""
    v_mul_u32_u24 v4, {2*9216}, v3
    v_lshl_add_u32 v4, v2, 2, v4
    """)
    for u in range(NA):
        loads(u, thr=False)
        if u == 0: P('s_barrier')
    if NA == 0: P('s_barrier')
    lds_add(C_GA)
    tag_ready()
    q_fetch('L_gu2')
    P('L_gu2:')
    stamp(5)
    setup()
    P('s_waitcnt vmcnt(0)')
    for u in range(NA): perm(u)
    if cfg.gu_gate == 'pub': lds_wait(FL_PUB, 1, sleep=2)
    else: lds_wait(C_KVI, nkv, sleep=2)
    stamp(1)
    DEPTH = cfg.gu_depth
    for u in range(NA, 9):
        loads(u)
        if u - DEPTH >= NA:
            P(f's_waitcnt vmcnt({8*DEPTH})')
            perm(u - DEPTH)
    for u in range(max(NA, 9 - DEPTH), 9):
        P(f's_waitcnt vmcnt({8*(8-u)})')
        perm(u)
    stamp(2)
    P(f"""
    s_mul_i32 s57, s55, {9*64}
    v_lshlrev_b32 v5, 4, v3
    v_add_u32 v5, s57, v5
    s_lshl_b32 s57, s53, 7
    v_lshlrev_b32 v6, 3, v1
    v_add_u32 v6, s57, v6
    s_barrier
    """)
    stamp(3)
    AF = [96+4*u for u in range(8)] + [20]
    for u in range(9): P(f'ds_read_b128 v[{AF[u]}:{AF[u]+3}], v5 offset:{L_XS+64*u}')
    for u in range(9):
        P(f's_waitcnt lgkmcnt({8-u})')
        f0 = RAW - 8 + 8*u
        c0 = '0' if u == 0 else 'v[8:11]'
        c1 = '0' if u == 0 else 'v[12:15]'
        P(f'v_mfma_f32_16x16x32_bf16 v[8:11], v[{AF[u]}:{AF[u]+3}], v[{f0}:{f0+3}], {c0}')
        P(f'v_mfma_f32_16x16x32_bf16 v[12:15], v[{AF[u]}:{AF[u]+3}], v[{f0+4}:{f0+7}], {c1}')
    P(f"""
    v_mov_b32 v16, v8
    v_mov_b32 v17, v12
    s_mov_b64 exec, 0xffff
    ds_write_b64 v6, v[16:17] offset:{L_RED3}
    s_mov_b64 exec, -1
    s_waitcnt lgkmcnt(0)
    s_barrier
    """)
    stamp(4)
    end_wave()

def build():
    global CODE_PF
    CODE_PF = 4
    prologue()
    cF, cQ, cM = cfg.cF, cfg.cQ, cfg.cM
    assert 9*cF + 4*cQ + 3*cM == 256 and cF % 2 == 0 and cQ % 2 == 0 and cM % 2 == 0 and cF//2 >= 6 and cQ <= 12 and cM <= 12 and cfg.b_on == 'M'
    kv_role('L_kvF', cF//2, lambda: P(f's_sub_u32 s52, s5, 7\ns_mul_i32 s52, s52, {cF}\ns_add_u32 s52, s52, {3*cM+4*cQ}'), (C_GA, 4) if cfg.gu_early else None, True, cfg.kF)
    kv_role('L_kvQ', cQ//2, lambda: P(f's_sub_u32 s52, s5, 3\ns_mul_i32 s52, s52, {cQ}\ns_add_u32 s52, s52, {3*cM}'), (C_G, 1), False, cfg.kQ)
    kv_role('L_kvM', cM//2, lambda: P(f's_mul_i32 s52, s5, {cM}'), (C_WO, 3), False, cfg.kM)
    down_role()
    wq_role()
    mod_role()
    wo_role('Q', cQ//2)
    wo_role('M', cM//2)
    wo_common()
    commA_role()
    commF_role()
    gu_role(cF//2)
    P('L_abort:')
    P('s_mov_b64 exec, -1')
    P('L_exit:')
    if cfg.debug:
        P(f"""
        s_waitcnt lgkmcnt(0)
        s_lshl_b32 s60, s2, 4
        s_add_u32 s60, s60, s3
        s_lshl_b32 s60, s60, 6
        s_add_u32 s60, s60, {DBG}
        s_memrealtime s[96:97]
        s_waitcnt lgkmcnt(0)
        v_mov_b32 v8, s96
        """)
        for i in range(8): P(f'v_writelane_b32 v8, s{80+2*i}, {i}')
        P(f"""
        v_and_b32 v1, 63, v0
        v_lshlrev_b32 v7, 2, v1
        s_mov_b64 exec, 0x1ff
        buffer_store_dword v8, v7, s[44:47], s60 offen
        """)
    if cfg.hdbg:
        SL = {(3, 3): 3, (2, 2): 4, (2, 4): 5, (1, 3): 6, (1, 5): 7, (1, 6): 8, (5, 4): 9, (5, 6): 10, (6, 7): 11, (8, 6): 12, (7, 2): 13, (5, 7): 14, (6, 3): 6, (6, 5): 7, (6, 6): 8, (8, 3): 6, (8, 5): 7, (4, 7): 15}
        P("""
        s_waitcnt lgkmcnt(0)
        s_memrealtime s[96:97]
        s_mov_b32 s68, s32
        s_mov_b32 s69, s33
        s_mov_b32 s70, 256
        s_mov_b32 s71, 0x20000
        s_mov_b64 exec, 1
        s_waitcnt lgkmcnt(0)
        v_mov_b32 v8, s96
        v_mov_b32 v9, 4
        buffer_atomic_umax v8, v9, s[68:71], 0 offen sc1
        s_not_b32 s96, s80
        v_mov_b32 v8, s96
        v_mov_b32 v9, 0
        buffer_atomic_umax v8, v9, s[68:71], 0 offen sc1
        v_mov_b32 v8, s80
        v_mov_b32 v9, 8
        buffer_atomic_umax v8, v9, s[68:71], 0 offen sc1
        """)
        for r in range(1, 9):
            l = P.lbl('Lhd')
            P(f's_cmp_lg_u32 s98, {r}')
            P(f's_cbranch_scc1 {l}')
            for (rr, k), slot in SL.items():
                if rr == r:
                    P(f'v_mov_b32 v8, s{80+2*k}')
                    P(f'v_mov_b32 v9, {4*slot}')
                    P('buffer_atomic_umax v8, v9, s[68:71], 0 offen sc1')
            P(f'{l}:')
    P('L_end:')
    P('s_endpgm')
    P('L_codeend:')
    P.finalize()
    body = P.text()
    return (HEADER_COMMENT +
f"""; @launch grid=(256,1,1) block=(1024,1,1) lds={LDS_BYTES}
.amdgcn_target "amdgcn-amd-amdhsa--gfx950"
.text
.globl {KN}
.p2align 8
.type {KN},@function
{KN}:
{body}
.section .rodata,"a"
.p2align 6
.amdhsa_kernel {KN}
  .amdhsa_next_free_vgpr 128
  .amdhsa_next_free_sgpr 102
  .amdhsa_accum_offset 128
  .amdhsa_group_segment_fixed_size 0
  .amdhsa_kernarg_size 112
  .amdhsa_user_sgpr_count 2
  .amdhsa_user_sgpr_kernarg_segment_ptr 1
  .amdhsa_system_sgpr_workgroup_id_x 1
.end_amdhsa_kernel
""")

if __name__ == '__main__':
    import argparse
    ap = argparse.ArgumentParser()
    ap.add_argument('-o', default='k.s')
    ap.add_argument('--debug', action='store_true')
    ap.add_argument('--tiles', default='22,4,14')
    ap.add_argument('--set', nargs='*', default=[])
    a = ap.parse_args()
    cfg.debug = a.debug
    cfg.cF, cfg.cQ, cfg.cM = map(int, a.tiles.split(','))
    for kv in a.set:
        k, v = kv.split('=')
        old = getattr(cfg, k)
        setattr(cfg, k, type(old)(int(v)) if isinstance(old, (bool, int)) else v)
    open(a.o, 'w').write(build())
```

```python
import sys, math, struct
from dsl import Prog
from asmlib import HEADER_COMMENT, KN

class Cfg:
    cF, cQ, cM = 22, 4, 14
    debug = False
    prefetch_code = True
    kF, kQ, kM = '0', '0', '0'
    gu_depth = 4
    gul = 0
    gu_gate = 'pub'
    k_first = True
    pre_barrier = 1
    wo_k = 4
    b_k = 4
    q_sleep = 4
    poll_sleep = 0
    kvonly = False
    h3_local = True
    local_tries = 200
    m_order = 'a_kv_wo_b'
    gu_dyn = 0
    q_order = 'kv_wo'
    order2 = True
    wq_first = False
    q_direct = True
    hdbg = False
    q_wo_gate = False
    q_wo_first = True
    stagger = 6
    pipe = True
    gu_early = 3
    b_on = 'M'
    m_gate_pub = False
cfg = Cfg()

EPOCH = 0x0
MODP = 0x1000
QF = 0x8000
MODF = 0x20000
X2 = 0x28000
X2S = 0x1400
H3 = 0x40000
H3S = 2560
XP = 0xE0000
FP = 0x160000
PS = 4608
H3L = 0x210000
DBG = 0x300000
FL_Q, C_KVI, C_MAX, C_O, C_RED, C_H, C_G, FL_PUB, C_K, C_B, C_GA, C_B2, C_WO = 0, 4, 8, 12, 16, 20, 24, 28, 32, 36, 40, 44, 48
L_ZERO = 0x100
L_Q = 0x200
L_MX = 0x400
L_LS = 0x480
L_XS = 0x500
L_RED3 = 0xA00
L_XA = 0x1100
L_SLOT = 0x1200
L_OSLOT = 0x1200 + 18*1024
LDS_BYTES = 0x1200 + 30*1024
LOG2E = 0x3FB8AA3B
SCALE = 0x3DB504F3
GOLD0, GOLD1 = 0x7F4A7C15, 0x9E3779B9
def f32hex(x): return struct.unpack('<I', struct.pack('<f', x))[0]

P = Prog()
ABORT = 'L_abort'
DPPM = 'row_mask:0xf bank_mask:0xf'

def stamp(i):
    if cfg.debug or cfg.hdbg: P(f's_memrealtime s[{80+2*i}:{81+2*i}]')

def role(n):
    if cfg.hdbg: P(f's_mov_b32 s98, {n}')

def srd(base, ptr, nbytes):
    P(f"""
    s_mov_b32 s{base}, s{ptr}
    s_mov_b32 s{base+1}, s{ptr+1}
    s_mov_b32 s{base+2}, {nbytes}
    s_mov_b32 s{base+3}, 0x20000
    """)

def tag_ready():
    P(f"""
    s_waitcnt lgkmcnt(0)
    s_add_u32 s6, s6, {GOLD0:#x}
    s_add_u32 s7, s7, {GOLD1:#x}
    """)

def lds_wait(off, target, sleep=1):
    l = P.lbl('Lw'); d = P.lbl('Ld')
    P(f"""
    v_mov_b32 v7, 0
    s_mov_b32 s61, 0x400000
    {l}:
    ds_read_b32 v6, v7 offset:{off}
    s_waitcnt lgkmcnt(0)
    v_readfirstlane_b32 s60, v6
    s_cmp_ge_u32 s60, {target}
    s_cbranch_scc1 {d}
    s_sub_u32 s61, s61, 1
    s_cbranch_scc1 {ABORT}
    """)
    if sleep: P(f's_sleep {sleep}')
    P(f"""
    s_branch {l}
    {d}:
    """)

def lds_add(off):
    P(f"""
    v_mov_b32 v7, 0
    v_mov_b32 v6, 1
    s_mov_b64 s[62:63], exec
    s_mov_b64 exec, 1
    ds_add_u32 v7, v6 offset:{off}
    s_mov_b64 exec, s[62:63]
    """)

def lds_add_rtn(off, sdst):
    P(f"""
    v_mov_b32 v7, 0
    v_mov_b32 v6, 1
    s_mov_b64 s[62:63], exec
    s_mov_b64 exec, 1
    ds_add_rtn_u32 v6, v7, v6 offset:{off}
    s_waitcnt lgkmcnt(0)
    v_readfirstlane_b32 {sdst}, v6
    s_mov_b64 exec, s[62:63]
    """)

def rne(dst, src):
    P(f'v_cvt_pk_bf16_f32 {dst}, {src}, {src}')
    P(f'v_lshlrev_b32 {dst}, 16, {dst}')

def rne_many(regs):
    for r in regs: P(f'v_cvt_pk_bf16_f32 v{r}, v{r}, v{r}')
    for r in regs: P(f'v_lshlrev_b32 v{r}, 16, v{r}')

def xrow_multi(op, vs, ts):
    for sw in ('v_permlane16_swap_b32', 'v_permlane32_swap_b32'):
        for v, t in zip(vs, ts): P(f'v_mov_b32 {t}, {v}')
        for v, t in zip(vs, ts): P(f'{sw} {v}, {t}')
        for v, t in zip(vs, ts): P(f'{op} {v}, {v}, {t}')

def wave_sum(v, t):
    for d in ('quad_perm:[1,0,3,2]', 'quad_perm:[2,3,0,1]', 'row_half_mirror', 'row_mirror'):
        P(f'v_add_f32_dpp {v}, {v}, {v} {d} {DPPM}')
    xrow_multi('v_add_f32', [v], [t])

def masks(base):
    P(f"""
    v_and_b32 v6, 1, v2
    v_lshlrev_b32 v6, 4, v6
    v_mov_b32 v7, 0xffff
    v_lshlrev_b32 v7, v6, v7
    v_bfe_u32 v6, v2, 1, 2
    """)
    for i in range(4):
        P(f'v_cmp_eq_u32 vcc, {i}, v6')
        P(f'v_cndmask_b32 v{base+i}, 0, v7, vcc')

def diag_mm(acc, wregs, xregs, mk, qa, qb):
    n = len(wregs)
    def prep(t):
        q = (qa, qb)[t & 1]
        for i in range(4): P(f'v_and_b32 v{q+i}, {xregs[t]}, v{mk+i}')
    prep(0)
    for t in range(n):
        if t + 1 < n: prep(t + 1)
        q = (qa, qb)[t & 1]
        c = '0' if t == 0 else f'v[{acc}:{acc+3}]'
        P(f'v_mfma_f32_16x16x32_bf16 v[{acc}:{acc+3}], v[{wregs[t]}:{wregs[t]+3}], v[{q}:{q+3}], {c}')

def poll(loads, check):
    l = P.lbl('Lp'); l2 = P.lbl('Lp')
    P('s_mov_b32 s64, 0x8000')
    if cfg.poll_sleep:
        P(f's_branch {l2}')
        P(f'{l}:')
        P(f's_sleep {cfg.poll_sleep}')
        P(f'{l2}:')
    else:
        P(f'{l}:')
    for x in loads: P(x)
    P('s_waitcnt vmcnt(0)')
    check()
    P(f"""
    s_sub_u32 s64, s64, 1
    s_cbranch_scc1 {ABORT}
    s_cbranch_vccnz {l}
    """)


def poll2(mk_loads, mk_check, post, baseA, baseB, nloads):
    la = P.lbl('Lq'); lb = P.lbl('Lq'); ga = P.lbl('Lq'); gb = P.lbl('Lq'); done = P.lbl('Lq')
    P('s_mov_b32 s64, 0x8000')
    for x in mk_loads(baseA): P(x)
    P(f's_sleep {cfg.stagger}')
    P(f'{la}:')
    for x in mk_loads(baseB): P(x)
    P(f's_waitcnt vmcnt({nloads})')
    mk_check(baseA)
    P(f"""
    s_cbranch_vccz {ga}
    s_sub_u32 s64, s64, 1
    s_cbranch_scc1 {ABORT}
    """)
    for x in mk_loads(baseA): P(x)
    P(f's_waitcnt vmcnt({nloads})')
    mk_check(baseB)
    P(f"""
    s_cbranch_vccz {gb}
    s_branch {la}
    """)
    P(f'{gb}:')
    post(baseB)
    P(f's_branch {done}')
    P(f'{ga}:')
    post(baseA)
    P(f'{done}:')

def check_g(bases):
    def f():
        n = len(bases)
        assert n <= 8 + 5
        prs = [66 + 2*i for i in range(7)] + [96, 98]
        assert n <= len(prs) + 1
        for i, b in enumerate(bases):
            dst = 'vcc' if i == n - 1 else f's[{prs[i]}:{prs[i]+1}]'
            P(f'v_cmp_ne_u64 {dst}, s[6:7], v[{b+2}:{b+3}]')
        for i in range(n - 1):
            P(f's_or_b64 vcc, vcc, s[{prs[i]}:{prs[i]+1}]')
    return f

def check_tags32(regs, t='v6', t2='v7'):
    def f():
        rs = list(regs)
        P(f'v_xor_b32 {t}, s7, v{rs[0]}')
        for r in rs[1:]:
            P(f'v_xor_b32 {t2}, s7, v{r}')
            P(f'v_or_b32 {t}, {t}, {t2}')
        P(f'v_cmp_ne_u32 vcc, 0, {t}')
    return f

def end_wave(): P('s_branch L_exit')

def make_granules(G, ACC):
    P(f'v_mov_b32 v{G}, v{ACC}')
    P(f'v_mov_b32 v{G+1}, v{ACC+1}')
    P(f'v_mov_b32 v{G+4}, v{ACC+2}')
    P(f'v_mov_b32 v{G+5}, v{ACC+3}')
def tag_fill(G):
    for o in (2, 6):
        P(f'v_mov_b32 v{G+o}, s6')
        P(f'v_mov_b32 v{G+o+1}, s7')

def prologue():
    P(f"""
    s_cmp_ge_u32 s2, 256
    s_cbranch_scc1 L_end
    s_load_dwordx16 s[8:23], s[0:1], 0
    s_load_dwordx8 s[24:31], s[0:1], 64
    s_load_dwordx4 s[32:35], s[0:1], 96
    """)
    if cfg.hdbg:
        for i in range(1, 8): P(f's_mov_b32 s{80+2*i}, 0')
        P('s_mov_b32 s98, 0')
    stamp(0)
    P(f"""
    v_lshrrev_b32 v4, 6, v0
    v_and_b32 v1, 63, v0
    v_and_b32 v2, 15, v1
    v_readfirstlane_b32 s3, v4
    v_lshrrev_b32 v3, 4, v1
    s_and_b32 s4, s2, 7
    s_lshl_b32 s4, s4, 1
    s_bfe_u32 s5, s2, 0x10003
    s_add_u32 s4, s4, s5
    s_lshr_b32 s5, s2, 4
    s_cmp_lg_u32 s3, 0
    s_cbranch_scc1 L_nozero
    v_lshlrev_b32 v4, 2, v1
    v_mov_b32 v5, 0
    ds_write_b32 v4, v5
    ds_write_b32 v4, v5 offset:256
    ds_write_b32 v4, v5 offset:{L_XA}
    L_nozero:
    s_waitcnt lgkmcnt(0)
    s_load_dwordx2 s[6:7], s[34:35], 0
    """)
    srd(44, 34, 0x40000000)
    nkF, nkQ, nkM = cfg.cF//2, cfg.cQ//2, cfg.cM//2
    if cfg.kvonly:
        P(f"""
        s_cmp_lt_u32 s5, 3
        s_cselect_b32 s60, {16-nkM}, {16-nkQ}
        s_cmp_ge_u32 s5, 7
        s_cselect_b32 s60, {16-nkF}, s60
        s_cmp_ge_u32 s3, s60
        s_cbranch_scc1 L_kvgo
        s_barrier
        s_branch L_end
        L_kvgo:
        """)
    P(f"""
    s_cmp_lt_u32 s5, 3
    s_cbranch_scc1 L_classM
    s_cmp_lt_u32 s5, 7
    s_cbranch_scc1 L_classQ
    s_cmp_eq_u32 s3, 0
    s_cbranch_scc1 L_kvF0
    s_cmp_le_u32 s3, 4
    s_cbranch_scc1 L_gu
    s_cmp_ge_u32 s3, {16-min(nkF, 11)}
    s_cbranch_scc1 L_kvF
    s_branch L_idle
    L_classQ:
    s_cmp_ge_u32 s3, {16-nkQ}
    s_cbranch_scc1 L_kvQ
    s_cmp_eq_u32 s3, 0
    s_cbranch_scc1 L_commA
    s_cmp_le_u32 s3, 6
    s_cbranch_scc1 L_wq
    s_cmp_le_u32 s3, 9
    s_cbranch_scc1 L_woQ
    s_branch L_idle
    L_classM:
    s_cmp_ge_u32 s3, {16-nkM}
    s_cbranch_scc1 L_kvM
    s_cmp_eq_u32 s3, 0
    s_cbranch_scc1 L_commA
    s_cmp_le_u32 s3, 6
    s_cbranch_scc1 L_mod
    s_cmp_le_u32 s3, 9
    s_cbranch_scc1 L_woM
    L_idle:
    s_barrier
    s_branch L_end
    """)

def kv_role(name, nkv, tile_expr, gate, is_f, kinf='0'):
    K0, V0, QF_, SD, TT, ACC, MK = 32, 64, 96, 24, 28, 96, 8
    if is_f:
        P('L_kvF0:')
        if nkv == 12:
            P('s_mov_b32 s53, 11')
            P('s_branch L_kvFgo')
        else:
            P('s_branch L_idle')
        P(f'{name}:')
        P(f's_sub_u32 s53, s3, {16-min(nkv, 11)}')
        P('L_kvFgo:')
    else:
        P(f'{name}:')
        P(f's_sub_u32 s53, s3, {16-nkv}')
    role(1)
    tile_expr()
    P(f"""
    s_lshl_b32 s54, s53, 1
    s_add_u32 s52, s52, s54
    s_lshl_b32 s52, s52, 12
    s_lshl_b32 s54, s4, 24
    s_add_u32 s52, s52, s54
    s_add_u32 s52, s52, {61440*256}
    s_add_u32 s55, s52, 4096
    """)
    srd(36, 10, 0x10000000)
    srd(40, 12, 0x10000000)
    P(f"""
    v_and_b32 v4, 7, v1
    v_lshlrev_b32 v4, 8, v4
    v_lshrrev_b32 v5, 3, v1
    v_lshl_add_u32 v4, v5, 4, v4          ; K: (l&7)*256 + (l>>3)*16
    v_lshlrev_b32 v5, 10, v3
    v_lshl_add_u32 v5, v2, 4, v5          ; V: gq*1024 + m*16
    """)
    if cfg.kvonly: gate = None
    if gate:
        P('s_barrier')
        lds_wait(gate[0], gate[1], sleep=2)
    stamp(1)
    st = {'n': 0}
    lim = lambda i: int(kinf[min(i, len(kinf)-1)], 16)
    def issue(r, vo, srdr, sreg, off):
        n = st['n']
        if not gate and n == cfg.pre_barrier: P('s_barrier')
        k = lim(n)
        if k and n >= k: P(f's_waitcnt vmcnt({k-1})')
        P(f'buffer_load_dwordx4 v[{r}:{r+3}], {vo}, s[{srdr}:{srdr+3}], {sreg} offen offset:{off} nt')
        st['n'] += 1
    for u in range(4):
        for hh in range(2):
            issue(K0 + 4*(2*u+hh), 'v4', 36, 's52' if u < 2 else 's55', (u & 1)*2048 + hh*128)
    if cfg.k_first:
        lds_add(C_K)
        lds_wait(C_K, nkv, sleep=1)
    for t in range(2):
        for r_ in range(4):
            issue(V0 + 16*t + 4*r_, 'v5', 40, 's52' if t == 0 else 's55', 256*r_)
    lds_add(C_KVI)
    stamp(2)
    if cfg.kvonly:
        P('s_waitcnt vmcnt(8)'); stamp(4)
        P('s_waitcnt vmcnt(0)'); stamp(5)
        end_wave(); return
    masks(MK)
    P(f"""
    v_bfe_u32 v12, v2, 2, 1
    v_lshlrev_b32 v22, 2, v12
    v_lshlrev_b32 v12, 8, v12
    v_lshrrev_b32 v13, 3, v2
    v_lshl_add_u32 v13, v3, 1, v13        ; 2g + par
    v_lshl_add_u32 v12, v13, 4, v12
    v_add_u32 v12, {L_Q}, v12
    v_and_b32 v13, 3, v2
    v_mov_b32 v14, {L_ZERO}
    """)
    for u in range(4):
        P(f'v_cmp_eq_u32 vcc, {u}, v13')
        P(f'v_cndmask_b32 v{16+u}, v14, v12, vcc')
    P(f"""
    v_and_b32 v12, 1, v3
    v_lshlrev_b32 v12, 4, v12
    v_lshrrev_b32 v13, 3, v2
    v_lshl_add_u32 v12, v13, 2, v12
    v_lshrrev_b32 v13, 1, v3
    v_add_u32 v12, v12, v13
    v_lshlrev_b32 v20, 2, v12
    v_add_u32 v21, 8, v20
    """)
    tag_ready()
    lds_wait(FL_Q, 4, sleep=2)
    stamp(3)
    for u in range(4):
        for hh in range(2):
            r = QF_ + 4*(2*u+hh)
            P(f'ds_read_b128 v[{r}:{r+3}], v{16+u} offset:{128*hh}')
    P('s_waitcnt vmcnt(8)')
    stamp(4)
    for i in range(8):
        P(f's_waitcnt lgkmcnt({7-i})')
        c = '0' if i == 0 else f'v[{SD}:{SD+3}]'
        P(f'v_mfma_f32_16x16x32_bf16 v[{SD}:{SD+3}], v[{K0+4*i}:{K0+4*i+3}], v[{QF_+4*i}:{QF_+4*i+3}], {c}')
    for j in range(4): P(f'v_mov_b32 v{TT+j}, v{SD+j}')
    for j in range(4): P(f'v_permlane32_swap_b32 v{SD+j}, v{TT+j}')
    for j in range(4): P(f'v_add_f32_dpp v{SD+j}, v{TT+j}, v{SD+j} row_shl:8 {DPPM}')
    P(f's_mov_b32 s56, {SCALE:#x}')
    P(f's_mov_b32 s57, 0xffff0000')
    P(f's_mov_b32 s58, {LOG2E:#x}')
    for rep in range(2):
        for p in range(2): P(f'v_cvt_pk_bf16_f32 v{TT+p}, v{SD+2*p}, v{SD+2*p+1}')
        for p in range(2):
            P(f'v_lshlrev_b32 v{SD+2*p}, 16, v{TT+p}')
            P(f'v_and_b32 v{SD+2*p+1}, s57, v{TT+p}')
        if rep == 0:
            for i in range(4): P(f'v_mul_f32 v{SD+i}, s56, v{SD+i}')
    P(f"""
    v_max3_f32 v12, v{SD}, v{SD+1}, v{SD+2}
    v_max_f32 v12, v12, v{SD+3}
    v_max_f32_dpp v12, v12, v12 quad_perm:[1,0,3,2] {DPPM}
    v_max_f32_dpp v12, v12, v12 quad_perm:[2,3,0,1] {DPPM}
    v_mov_b32 v13, v12
    v_permlane16_swap_b32 v12, v13
    v_max_f32 v12, v12, v13
    s_lshl_b32 s59, s53, 3
    v_add_u32 v23, s59, v22
    s_mov_b64 s[62:63], exec
    s_mov_b64 exec, 0x11
    ds_write_b32 v23, v12 offset:{L_MX}
    s_mov_b64 exec, s[62:63]
    """)
    lds_add(C_MAX)
    lds_wait(C_MAX, nkv, sleep=0)
    for i in range(nkv): P(f'ds_read_b32 v{K0+i}, v22 offset:{L_MX+8*i}')
    P('s_waitcnt lgkmcnt(0)')
    MX = 15
    P(f'v_mov_b32 v{MX}, v{K0}')
    i = 1
    while i < nkv:
        if i + 1 < nkv: P(f'v_max3_f32 v{MX}, v{MX}, v{K0+i}, v{K0+i+1}'); i += 2
        else: P(f'v_max_f32 v{MX}, v{MX}, v{K0+i}'); i += 1
    P(f'v_mul_f32 v13, s58, v{MX}')
    for i in range(4): P(f'v_fma_f32 v{SD+i}, v{SD+i}, s58, -v13')
    for i in range(4): P(f'v_exp_f32 v{SD+i}, v{SD+i}')
    P(f"""
    v_add_f32 v12, v{SD}, v{SD+1}
    v_add_f32 v13, v{SD+2}, v{SD+3}
    """)
    for i in range(4): P(f'v_cvt_pk_bf16_f32 v{SD+i}, v{SD+i}, v{SD+i}')
    P('v_add_f32 v12, v12, v13')
    G = 104
    for t in range(2):
        for r_ in range(4): P(f'ds_bpermute_b32 v{G+4*t+r_}, v{20+t}, v{SD+r_}')
    P(f"""
    v_add_f32_dpp v12, v12, v12 quad_perm:[1,0,3,2] {DPPM}
    v_add_f32_dpp v12, v12, v12 quad_perm:[2,3,0,1] {DPPM}
    v_mov_b32 v13, v12
    v_permlane16_swap_b32 v12, v13
    v_add_f32 v12, v12, v13
    s_mov_b64 s[62:63], exec
    s_mov_b64 exec, 0x11
    ds_write_b32 v23, v12 offset:{L_LS}
    s_mov_b64 exec, s[62:63]
    s_waitcnt lgkmcnt(1)
    """)
    for i in range(8):
        for j in range(4): P(f'v_and_b32 v{K0+4*i+j}, v{G+i}, v{MK+j}')
    GR = 112
    tag_fill(GR)
    P(f'v_mov_b32 v122, s6\nv_mov_b32 v123, s7')
    P('s_waitcnt vmcnt(0)')
    stamp(5)
    for i in range(8):
        c = '0' if i == 0 else f'v[{ACC}:{ACC+3}]'
        P(f'v_mfma_f32_16x16x32_bf16 v[{ACC}:{ACC+3}], v[{V0+4*i}:{V0+4*i+3}], v[{K0+4*i}:{K0+4*i+3}], {c}')
    P(f"""
    s_lshl_b32 s59, s53, 10
    v_lshlrev_b32 v16, 4, v1
    v_add_u32 v17, s59, v16
    ds_write_b128 v17, v[{ACC}:{ACC+3}] offset:{L_OSLOT}
    """)
    lds_add_rtn(C_O, 's60')
    ldone = P.lbl('Lkvdone')
    P(f"""
    s_cmp_lg_u32 s60, {nkv-1}
    s_cbranch_scc1 {ldone}
    """)
    P('v_lshlrev_b32 v18, 3, v1')
    for i in range(nkv):
        P(f'ds_read_b64 v[{K0+4*i}:{K0+4*i+1}], v18 offset:{L_OSLOT+1024*i}')
        P(f'ds_read_b64 v[{K0+4*i+2}:{K0+4*i+3}], v18 offset:{L_OSLOT+1024*i+512}')
    LS0 = 100
    for i in range(nkv): P(f'ds_read_b32 v{LS0+i}, v22 offset:{L_LS+8*i}')
    P(f"""
    s_lshl_b32 s59, s4, 4
    s_add_u32 s59, s59, s5
    s_mul_i32 s59, s59, {H3S}
    s_add_u32 s59, s59, {H3}
    s_waitcnt lgkmcnt(0)
    """)
    regs = list(range(nkv))
    while len(regs) > 1:
        nxt = []
        for a in range(0, len(regs) - 1, 2):
            x, y = regs[a], regs[a+1]
            for j in range(4): P(f'v_add_f32 v{K0+4*x+j}, v{K0+4*x+j}, v{K0+4*y+j}')
            P(f'v_add_f32 v{LS0+x}, v{LS0+x}, v{LS0+y}')
            nxt.append(x)
        if len(regs) % 2: nxt.append(regs[-1])
        regs = nxt
    make_granules(GR, K0)
    P(f"""
    v_mov_b32 v120, v{MX}
    v_mov_b32 v121, v{LS0}
    """)
    if cfg.h3_local:
        P(f"""
        s_add_u32 s65, s59, {H3L - H3}
        buffer_store_dwordx4 v[{GR}:{GR+3}], v16, s[44:47], s65 offen
        buffer_store_dwordx4 v[{GR+4}:{GR+7}], v16, s[44:47], s65 offen offset:1024
        s_mov_b64 exec, 0xff
        buffer_store_dwordx4 v[120:123], v16, s[44:47], s65 offen offset:2048
        s_mov_b64 exec, -1
        """)
    P(f"""
    buffer_store_dwordx4 v[{GR}:{GR+3}], v16, s[44:47], s59 offen sc1
    buffer_store_dwordx4 v[{GR+4}:{GR+7}], v16, s[44:47], s59 offen offset:1024 sc1
    s_mov_b64 exec, 0xff
    buffer_store_dwordx4 v[120:123], v16, s[44:47], s59 offen offset:2048 sc1
    s_mov_b64 exec, -1
    """)
    lds_add(FL_PUB)
    stamp(6)
    P(f'{ldone}:')
    if is_f:
        P(f"""
        s_cmp_lt_u32 s53, 5
        s_cbranch_scc1 L_down
        s_cmp_eq_u32 s53, 5
        s_cbranch_scc1 L_commF
        s_branch L_exit
        """)
    else:
        end_wave()

def pack_pair(G, ACC):
    P(f'v_mov_b32 v{G}, v{ACC}')
    P(f'v_mov_b32 v{G+1}, v{ACC+1}')
    P(f'v_mov_b32_dpp v{G}, v{ACC+2} row_shr:8 row_mask:0xf bank_mask:0xc')
    P(f'v_mov_b32_dpp v{G+1}, v{ACC+3} row_shr:8 row_mask:0xf bank_mask:0xc')

def store_addr():
    P(f"""
    v_and_b32 v12, 7, v2
    v_lshl_add_u32 v12, v3, 3, v12
    v_lshlrev_b32 v12, 5, v12
    v_lshrrev_b32 v6, 3, v2
    v_lshl_add_u32 v12, v6, 4, v12
    """)

def tag_fill1(G):
    P(f'v_mov_b32 v{G+2}, s6')
    P(f'v_mov_b32 v{G+3}, s7')

def store_block(sb, ACC, G):
    pack_pair(G, ACC)
    P(f"""
    s_lshl_b32 s60, {sb}, 10
    s_add_u32 s59, s59, s60
    buffer_store_dwordx4 v[{G}:{G+3}], v12, s[44:47], s59 offen sc1
    """)

def store_half(ACC, G):
    T = G + 4
    for j in range(4): P(f'v_mov_b32 v{T+j}, v{ACC+j}')
    for j in range(4): P(f'v_permlane32_swap_b32 v{ACC+j}, v{T+j}')
    for j in range(4): P(f'v_add_f32_dpp v{ACC+j}, v{T+j}, v{ACC+j} row_shl:8 {DPPM}')
    pack_pair(G, ACC)
    P(f"""
    s_add_u32 s59, s59, 4096
    s_mov_b64 s[62:63], exec
    s_mov_b64 exec, 0xffffffff
    buffer_store_dwordx4 v[{G}:{G+3}], v12, s[44:47], s59 offen sc1
    s_mov_b64 exec, s[62:63]
    """)

def down_role():
    W0, MK, XS, ACC, QA, QB, G = 32, 8, 64, 72, 76, 80, 84
    P('L_down:')
    role(8)
    lds_wait(FL_PUB, 1, sleep=1)
    srd(36, 24, 4608*1152)
    P(f"""
    s_mul_i32 s54, s4, 9
    s_add_u32 s54, s54, s5
    s_sub_u32 s54, s54, 7             ; phi
    s_mul_i32 s55, s54, {32*1152}
    s_cmp_eq_u32 s53, 4
    s_cbranch_scc1 L_down_half
    s_lshl_b32 s56, s53, 8
    s_add_u32 s55, s55, s56
    v_mul_u32_u24 v4, 1152, v3
    v_lshl_add_u32 v4, v2, 4, v4
    """)
    for e in range(8):
        P(f'buffer_load_dwordx4 v[{W0+4*e}:{W0+4*e+3}], v4, s[36:39], s55 offen nt')
        if e < 7: P(f's_add_u32 s55, s55, {4*1152}')
    P('v_lshlrev_b32 v5, 2, v3')
    P('s_mov_b32 s57, 16')
    P('s_branch L_down_go')
    P('L_down_half:')
    P(f"""
    s_add_u32 s55, s55, 1024
    v_lshrrev_b32 v6, 3, v2
    v_lshl_add_u32 v6, v6, 2, v3
    v_mul_u32_u24 v4, 1152, v6
    v_and_b32 v7, 7, v2
    v_lshl_add_u32 v4, v7, 4, v4
    v_lshlrev_b32 v5, 2, v6
    """)
    for t in range(4):
        P(f'buffer_load_dwordx4 v[{W0+4*t}:{W0+4*t+3}], v4, s[36:39], s55 offen nt')
        if t < 3: P(f's_add_u32 s55, s55, {8*1152}')
    P('s_mov_b32 s57, 32')
    P('L_down_go:')
    masks(MK)
    store_addr()
    tag_fill1(G)
    for e in range(8):
        P(f'v_mov_b32 v{104+e}, v5')
        if e < 7: P('v_add_u32 v5, s57, v5')
    P(f"""
    s_mul_i32 s59, s54, {PS}
    s_add_u32 s59, s59, {FP}
    v_and_b32 v6, 31, v1
    v_lshlrev_b32 v13, 2, v6
    """)
    P('s_barrier')
    P('s_barrier')
    stamp(7)
    P(f"""
    ds_read_b32 v16, v13 offset:{L_RED3}
    ds_read_b32 v17, v13 offset:{L_RED3+128}
    ds_read_b32 v18, v13 offset:{L_RED3+256}
    ds_read_b32 v19, v13 offset:{L_RED3+384}
    s_waitcnt lgkmcnt(0)
    v_add_f32 v16, v16, v17
    v_add_f32 v18, v18, v19
    """)
    rne_many([16, 18])
    k1 = f32hex(0.044715); k2 = f32hex(-2.0*math.sqrt(2.0/math.pi)*math.log2(math.e))
    P(f"""
    s_mov_b32 s60, {k1:#x}
    s_mov_b32 s61, {k2:#x}
    v_mul_f32 v17, v16, v16
    v_mul_f32 v17, v17, v16
    v_fma_f32 v17, v17, s60, v16
    v_mul_f32 v17, s61, v17
    v_exp_f32 v17, v17
    v_add_f32 v17, 1.0, v17
    v_rcp_f32 v17, v17
    v_mul_f32 v16, v16, v17
    """)
    rne('v16', 'v16')
    P('v_mul_f32 v16, v16, v18')
    P('v_cvt_pk_bf16_f32 v16, v16, v16')
    for e in range(8): P(f'ds_bpermute_b32 v{XS+e}, v{104+e}, v16')
    P('s_waitcnt vmcnt(0) lgkmcnt(0)')
    P(f"""
    s_cmp_eq_u32 s53, 4
    s_cbranch_scc1 L_down_half2
    """)
    diag_mm(ACC, [W0+4*e for e in range(8)], [f'v{XS+e}' for e in range(8)], MK, QA, QB)
    store_block('s53', ACC, G)
    stamp(6)
    end_wave()
    P('L_down_half2:')
    diag_mm(ACC, [W0+4*t for t in range(4)], [f'v{XS+t}' for t in range(4)], MK, QA, QB)
    store_half(ACC, G)
    stamp(6)
    end_wave()

def wo_role(suffix, nkv):
    P(f'L_wo{suffix}:')
    P('s_barrier')
    if cfg.order2 and suffix == 'Q' and cfg.q_order == 'wo_kv': lds_wait(C_G, 1, sleep=2)
    elif cfg.order2: lds_wait(C_KVI, nkv, sleep=2)
    elif suffix == 'M': lds_wait(C_B2, 6, sleep=2)
    elif cfg.q_wo_gate: lds_wait(C_G, 1, sleep=2)
    P('s_branch L_wo_common')

def wo_common():
    W0, MK, XS, G = 32, 8, 112, 16
    A0, A1, QA, QB = 24, 28, 0, 0
    P('L_wo_common:')
    role(4)
    srd(36, 16, 4096*1152)
    P(f"""
    s_sub_u32 s53, s3, 7              ; 0,1,2
    s_mov_b32 s54, s5                 ; a
    s_mul_i32 s55, s54, 9
    s_lshl_b32 s56, s4, 8
    """)
    def rowbase(dst, e):
        P(f"""
        s_add_u32 s57, s55, {e}
        s_bfe_u32 s58, s57, 0x10003
        s_lshl_b32 s58, s58, 7
        s_lshr_b32 s60, s57, 4
        s_lshl_b32 s60, s60, 5
        s_add_u32 s58, s58, s60
        s_and_b32 s60, s57, 7
        s_add_u32 s58, s58, s60
        s_add_u32 s58, s58, s56
        s_mul_i32 {dst}, s58, 1152
        """)
    def common_post():
        lds_add(C_WO)
        masks(MK)
        store_addr()
        tag_ready()
        P(f"""
        s_mul_i32 s59, s4, 7
        s_add_u32 s59, s59, s54
        s_mul_i32 s59, s59, {PS}
        s_add_u32 s59, s59, {XP}
        """)
    P(f"""
    s_cmp_eq_u32 s53, 2
    s_cbranch_scc1 L_wo_half
    s_lshl_b32 s65, s53, 9
    v_mul_u32_u24 v4, {8*1152}, v3
    v_lshl_add_u32 v4, v2, 4, v4
    """)
    for e in range(10):
        if e == 9:
            P(f"""
            s_cmp_lt_u32 s54, 6
            s_cbranch_scc1 L_wo_l9
            """)
        rowbase('s66', e)
        P('s_add_u32 s66, s66, s65')
        P(f'buffer_load_dwordx4 v[{W0+8*e}:{W0+8*e+3}], v4, s[36:39], s66 offen nt')
        P(f'buffer_load_dwordx4 v[{W0+8*e+4}:{W0+8*e+7}], v4, s[36:39], s66 offen offset:256 nt')
    P('L_wo_l9:')
    P('v_lshlrev_b32 v5, 2, v3')
    common_post()
    GA, GB = 16, 20
    tag_fill1(GA); tag_fill1(GB)
    stamp(5)
    P('s_barrier')
    stamp(6)
    XS2 = [112, 113, 114, 115, 116, 117, 118, 119, 13, 14]
    for e in range(10): P(f'ds_read_b32 v{XS2[e]}, v5 offset:{L_XA+16*e}')
    P('s_waitcnt vmcnt(0) lgkmcnt(0)')
    def mm(n):
        qs = ((60+0, ), )
        QAa, QBb = 0, 0
        def prep(e, q):
            for i in range(4): P(f'v_and_b32 v{q+i}, v{XS2[e]}, v{MK+i}')
        Q2 = (4, 4)
        for e in range(n):
            q = 4 if e == 0 else W0 + 8*(e-1)
            prep(e, q)
            c0 = '0' if e == 0 else f'v[{A0}:{A0+3}]'
            c1 = '0' if e == 0 else f'v[{A1}:{A1+3}]'
            P(f'v_mfma_f32_16x16x32_bf16 v[{A0}:{A0+3}], v[{W0+8*e}:{W0+8*e+3}], v[{q}:{q+3}], {c0}')
            P(f'v_mfma_f32_16x16x32_bf16 v[{A1}:{A1+3}], v[{W0+8*e+4}:{W0+8*e+7}], v[{q}:{q+3}], {c1}')
    P(f"""
    s_cmp_lt_u32 s54, 6
    s_cbranch_scc1 L_wo_m9
    """)
    mm(10)
    P('s_branch L_wo_st')
    P('L_wo_m9:')
    mm(9)
    P('L_wo_st:')
    pack_pair(GA, A0)
    pack_pair(GB, A1)
    P(f"""
    s_lshl_b32 s60, s53, 11
    s_add_u32 s59, s59, s60
    buffer_store_dwordx4 v[{GA}:{GA+3}], v12, s[44:47], s59 offen sc1
    buffer_store_dwordx4 v[{GB}:{GB+3}], v12, s[44:47], s59 offen offset:1024 sc1
    """)
    stamp(7)
    end_wave()
    P('L_wo_half:')
    P(f"""
    v_mul_u32_u24 v4, {8*1152}, v3
    v_and_b32 v6, 7, v2
    v_lshl_add_u32 v4, v6, 4, v4
    v_add_u32 v4, 1024, v4
    v_cmp_lt_u32 s[68:69], 7, v2
    """)
    for t in range(5):
        rowbase('s66', 2*t)
        rowbase('s67', 2*t+1)
        if t == 4:
            P(f"""
            s_cmp_lt_u32 s54, 6
            s_cselect_b32 s67, 0x40000000, s67
            """)
        P(f"""
        v_mov_b32 v6, s66
        v_mov_b32 v7, s67
        v_cndmask_b32 v6, v6, v7, s[68:69]
        v_add_u32 v6, v6, v4
        buffer_load_dwordx4 v[{W0+4*t}:{W0+4*t+3}], v6, s[36:39], 0 offen nt
        """)
    P(f"""
    v_lshrrev_b32 v5, 3, v2
    v_lshl_add_u32 v5, v5, 2, v3
    v_lshlrev_b32 v5, 2, v5
    """)
    common_post()
    GH = 96
    tag_fill1(GH)
    stamp(5)
    P('s_barrier')
    stamp(6)
    for t in range(5): P(f'ds_read_b32 v{112+t}, v5 offset:{L_XA+32*t}')
    P('s_waitcnt vmcnt(0) lgkmcnt(0)')
    diag_mm(72, [W0+4*t for t in range(5)], [f'v{112+t}' for t in range(5)], MK, 76, 80)
    store_half(72, GH)
    stamp(7)
    end_wave()

def q_fetch(nxt):
    l = P.lbl('Lqf'); l2 = P.lbl('Lqf'); l3 = P.lbl('Lqf')
    P(f"""
    s_cmp_gt_u32 s3, 4
    s_cbranch_scc1 {nxt}
    s_lshl_b32 s38, s4, 10
    s_lshl_b32 s39, s3, 8
    s_add_u32 s38, s38, s39
    s_add_u32 s38, s38, {QF-256}
    s_add_u32 s36, s34, s38
    s_addc_u32 s37, s35, 0
    s_mov_b32 s42, 0x40000
    """)
    if cfg.q_direct:
        P(f"""
        s_branch {l3}
        {l}:
        s_sleep {cfg.q_sleep}
        {l3}:
        s_load_dwordx2 s[40:41], s[36:37], 128 glc
        s_load_dwordx16 s[48:63], s[36:37], 0 glc
        s_load_dwordx16 s[64:79], s[36:37], 64 glc
        s_sub_u32 s42, s42, 1
        s_cbranch_scc1 {ABORT}
        s_waitcnt lgkmcnt(0)
        s_cmp_lg_u32 s41, s7
        s_cbranch_scc1 {l}
        s_add_u32 s43, s48, s7
        """)
        for i in range(49, 80): P(f's_add_u32 s43, s43, s{i}')
        P(f"""
        s_cmp_lg_u32 s43, s40
        s_cbranch_scc1 {l3}
        """)
    else:
        P(f"""
        s_branch {l3}
        {l}:
        s_sleep {cfg.q_sleep}
        {l3}:
        s_load_dwordx2 s[40:41], s[36:37], 128 glc
        s_sub_u32 s42, s42, 1
        s_cbranch_scc1 {ABORT}
        s_waitcnt lgkmcnt(0)
        s_cmp_lg_u32 s41, s7
        s_cbranch_scc1 {l}
        {l2}:
        s_load_dwordx16 s[48:63], s[36:37], 0 glc
        s_load_dwordx16 s[64:79], s[36:37], 64 glc
        s_sub_u32 s42, s42, 1
        s_cbranch_scc1 {ABORT}
        s_waitcnt lgkmcnt(0)
        s_add_u32 s43, s48, s7
        """)
        for i in range(49, 80): P(f's_add_u32 s43, s43, s{i}')
        P(f"""
        s_cmp_lg_u32 s43, s40
        s_cbranch_scc1 {l2}
        """)
    for i in range(32): P(f'v_writelane_b32 v20, s{48+i}, {i}')
    P(f"""
    v_and_b32 v21, 3, v1
    v_lshlrev_b32 v21, 2, v21
    v_bfe_u32 v22, v1, 2, 2
    v_add_u32 v21, v21, v22
    v_and_b32 v22, 16, v1
    v_add_u32 v21, v21, v22
    v_lshlrev_b32 v21, 2, v21
    s_lshl_b32 s38, s3, 7
    v_add_u32 v21, s38, v21
    s_mov_b64 exec, 0xffffffff
    ds_write_b32 v21, v20 offset:{L_Q-128}
    s_mov_b64 exec, -1
    """)
    srd(44, 34, 0x40000000)
    lds_add(FL_Q)

def ln_stats(regs, mean_b, rstd, t1, t2, maskfix=None):
    P(f'v_add_f32 {t1}, v{regs[0]}, v{regs[1]}')
    for r in regs[2:]: P(f'v_add_f32 {t1}, {t1}, v{r}')
    wave_sum(t1, t2)
    P(f's_mov_b32 s60, {f32hex(1.0/576.0):#x}')
    P(f'v_mul_f32 {t1}, s60, {t1}')
    first = True
    for r in regs:
        P(f'v_sub_f32 {t2}, v{r}, {t1}')
        if maskfix and r in maskfix[0]: P(f'v_cndmask_b32 {t2}, 0, {t2}, {maskfix[1]}')
        if first: P(f'v_mul_f32 {rstd}, {t2}, {t2}'); first = False
        else: P(f'v_fmac_f32 {rstd}, {t2}, {t2}')
    wave_sum(rstd, t2)
    P(f'v_mul_f32 {rstd}, s60, {rstd}')
    rne(rstd, rstd)
    P(f'v_add_f32 {rstd}, {f32hex(1e-5):#x}, {rstd}')
    rne(rstd, rstd)
    P(f'v_sqrt_f32 {rstd}, {rstd}')
    rne(rstd, rstd)
    P(f'v_rcp_f32 {rstd}, {rstd}')
    rne(mean_b, t1)

def fold_reduce(base, slot0):
    for i in range(6): P(f'ds_read_b128 v[{base+4*i}:{base+4*i+3}], v16 offset:{L_SLOT+1024*(slot0+i)}')
    P('s_waitcnt lgkmcnt(0)')
    for (x, y) in ((0, 1), (2, 3), (4, 5), (0, 2), (0, 4)):
        for jj in range(4): P(f'v_add_f32 v{base+4*x+jj}, v{base+4*x+jj}, v{base+4*y+jj}')
    T = base + 4
    for jj in range(4): P(f'v_mov_b32 v{T+jj}, v{base+jj}')
    for jj in range(4): P(f'v_permlane32_swap_b32 v{base+jj}, v{T+jj}')
    for jj in range(4): P(f'v_add_f32_dpp v{base+jj}, v{T+jj}, v{base+jj} row_shl:8 {DPPM}')

def silu(regs, tmps):
    P(f's_mov_b32 s60, {f32hex(-1.4426950408889634):#x}')
    for r in regs: P(f'v_lshlrev_b32 v{r}, 16, v{r}')
    for r, t in zip(regs, tmps): P(f'v_mul_f32 v{t}, s60, v{r}')
    for r, t in zip(regs, tmps): P(f'v_exp_f32 v{t}, v{t}')
    for r, t in zip(regs, tmps): P(f'v_add_f32 v{t}, 1.0, v{t}')
    for r, t in zip(regs, tmps): P(f'v_rcp_f32 v{t}, v{t}')
    for r, t in zip(regs, tmps): P(f'v_mul_f32 v{r}, v{r}, v{t}')
    for r, t in zip(regs, tmps): P(f'v_cvt_pk_bf16_f32 v{r}, v{r}, v{r}')

def wq_role():
    WB, MK, XS, ACC, QA, QB, XA = 56, 8, 104, 116, 120, 124, 32
    XSB = L_SLOT + 12*1024
    P('L_wq:')
    role(2)
    srd(36, 14, 576*8192)
    srd(40, 8, 1152)
    P(f"""
    s_sub_u32 s53, s3, 1              ; j
    s_sub_u32 s54, s5, 3              ; qi
    s_mul_i32 s57, s53, 96
    v_lshlrev_b32 v4, 1, v1
    """)
    for n in range(9): P(f'buffer_load_ushort v{XA+n}, v4, s[40:43], 0 offen offset:{128*n}')
    P(f"""
    v_and_b32 v6, 31, v1
    v_lshlrev_b32 v7, 1, v6
    s_lshl_b32 s58, s57, 1
    buffer_load_ushort v{XA+9}, v4, s[40:43], s58 offen
    buffer_load_ushort v{XA+10}, v7, s[40:43], s58 offen offset:128
    v_lshrrev_b32 v13, 3, v2
    v_lshl_add_u32 v13, v13, 2, v3
    v_lshlrev_b32 v5, 13, v13
    v_and_b32 v7, 7, v2
    v_lshl_add_u32 v5, v7, 4, v5
    s_lshl_b32 s58, s57, 13
    s_lshl_b32 s59, s4, 9
    s_add_u32 s58, s58, s59
    s_lshl_b32 s59, s54, 7
    s_add_u32 s58, s58, s59
    """)
    for t in range(12):
        P(f'buffer_load_dwordx4 v[{WB+4*t}:{WB+4*t+3}], v5, s[36:39], s58 offen nt')
        if t < 11: P(f's_add_u32 s58, s58, {8*8192}')
    stamp(1)
    P('s_barrier')
    P(f"""
    v_add_u32 v28, s57, v1
    v_lshlrev_b32 v28, 3, v28
    v_add_u32 v29, s57, v6
    v_lshlrev_b32 v29, 3, v29
    v_add_u32 v29, 512, v29
    v_lshlrev_b32 v31, 2, v13
    s_lshl_b32 s67, s53, 10
    v_add_u32 v31, s67, v31
    v_lshlrev_b32 v30, 2, v1
    v_add_u32 v30, s67, v30
    v_lshlrev_b32 v27, 2, v6
    v_add_u32 v27, s67, v27
    """)
    masks(MK)
    P('s_waitcnt vmcnt(12)')
    tag_ready()
    for n in range(11): P(f'v_lshlrev_b32 v{XA+n}, 16, v{XA+n}')
    ln_stats(list(range(XA, XA+9)), 'v16', 'v17', 'v18', 'v19')
    for n in (9, 10): P(f'v_sub_f32 v{XA+n}, v{XA+n}, v16')
    rne_many([XA+9, XA+10])
    for n in (9, 10): P(f'v_mul_f32 v{XA+n}, v{XA+n}, v17')
    rne_many([XA+9, XA+10])
    P(f"""
    v_mov_b32 v20, v{XA+9}
    v_mov_b32 v21, v{XA+10}
    s_mov_b32 s66, {MODP}
    s_mov_b32 s68, {MODP+9216}
    s_mov_b32 s69, {MODP+4608}
    s_mov_b32 s70, {MODP+9216+4608}
    """)
    G = 32
    sr = ['s66', 's68', 's69', 's70']
    loads = []
    for st_, va in enumerate(('v28', 'v29')):
        for i in range(4):
            r = G + 8*st_ + 2*i
            loads.append(f'buffer_load_dwordx2 v[{r}:{r+1}], {va}, s[44:47], {sr[i]} offen sc1')
    if cfg.wq_first:
        P('s_waitcnt vmcnt(0)')
        stamp(5)
    poll(loads, check_tags32([G+1+2*i for i in range(8)]))
    stamp(2)
    for st_ in range(2):
        b = G + 8*st_
        P(f'v_add_f32 v{b}, v{b}, v{b+2}')
        P(f'v_add_f32 v{b+4}, v{b+4}, v{b+6}')
    rne_many([G, G+4, G+8, G+12])
    for st_ in range(2): P(f'v_add_f32 v{G+8*st_+4}, 1.0, v{G+8*st_+4}')
    rne_many([G+4, G+12])
    for st_ in range(2): P(f'v_mul_f32 v{20+st_}, v{20+st_}, v{G+8*st_+4}')
    rne_many([20, 21])
    for st_ in range(2): P(f'v_add_f32 v{20+st_}, v{20+st_}, v{G+8*st_}')
    for st_ in range(2): P(f'v_cvt_pk_bf16_f32 v{20+st_}, v{20+st_}, v{20+st_}')
    P(f"""
    ds_write_b32 v30, v20 offset:{XSB}
    ds_write_b32 v27, v21 offset:{XSB+256}
    """)
    for t in range(12): P(f'ds_read_b32 v{XS+t}, v31 offset:{XSB+32*t}')
    P('s_waitcnt lgkmcnt(0)')
    stamp(3)
    diag_mm(ACC, [WB+4*t for t in range(12)], [f'v{XS+t}' for t in range(12)], MK, QA, QB)
    P(f"""
    s_lshl_b32 s59, s53, 10
    v_lshlrev_b32 v16, 4, v1
    v_add_u32 v19, s59, v16
    ds_write_b128 v19, v[{ACC}:{ACC+3}] offset:{L_SLOT}
    """)
    lds_add_rtn(C_RED, 's60')
    P(f"""
    s_cmp_lg_u32 s60, 5
    s_cbranch_scc1 L_wq_done
    """)
    fold_reduce(WB, 0)
    for r in range(4): P(f'v_mov_b32_dpp v{WB+4+r}, v{WB+r} quad_perm:[1,0,3,2] {DPPM}')
    for r in range(4): P(f'v_cvt_pk_bf16_f32 v{WB+r}, v{WB+r}, v{WB+4+r}')
    P(f"""
    v_add_u32 v{WB+4}, v{WB}, v{WB+1}
    v_add3_u32 v{WB+4}, v{WB+4}, v{WB+2}, v{WB+3}
    s_mov_b32 s60, 0x00550055
    s_mov_b32 s61, 0
    v_cndmask_b32 v{WB+4}, 0, v{WB+4}, s[60:61]
    v_add_u32_dpp v{WB+4}, v{WB+4}, v{WB+4} quad_perm:[2,3,0,1] {DPPM}
    v_add_u32_dpp v{WB+4}, v{WB+4}, v{WB+4} row_shl:4 {DPPM} bound_ctrl:0
    v_lshrrev_b32 v19, 1, v2
    v_lshl_add_u32 v19, v3, 2, v19
    v_lshlrev_b32 v19, 4, v19            ; (gq*4 + c/2)*16
    v_readlane_b32 s60, v{WB+4}, 0
    v_readlane_b32 s61, v{WB+4}, 16
    s_add_u32 s60, s60, s61
    s_add_u32 s60, s60, s7
    s_mov_b32 s61, 128
    v_writelane_b32 v{WB}, s60, 1
    v_writelane_b32 v{WB+1}, s7, 1
    v_writelane_b32 v19, s61, 1
    s_lshl_b32 s59, s4, 10
    s_lshl_b32 s60, s54, 8
    s_add_u32 s59, s59, s60
    s_add_u32 s59, s59, {QF}
    s_mov_b64 exec, 0x00550057
    buffer_store_dwordx4 v[{WB}:{WB+3}], v19, s[44:47], s59 offen sc1
    s_mov_b64 exec, -1
    """)
    lds_add(C_G)
    stamp(4)
    P('L_wq_done:')
    q_fetch('L_exit')
    end_wave()

def mod_role():
    WA, MK, XS, ACC, QA, QB = 32, 8, 104, 116, 120, 124
    XSB = L_SLOT + 12*1024
    P('L_mod:')
    role(3)
    P(f"""
    s_mov_b32 s54, s2
    s_cmp_ge_u32 s54, 36
    s_cbranch_scc1 L_mod_noA
    """)
    srd(36, 28, 576*6912)
    srd(40, 26, 1152)
    P(f"""
    s_sub_u32 s53, s3, 1              ; j
    v_lshlrev_b32 v4, 1, v1
    s_and_b32 s56, s54, 1             ; kh
    s_mul_i32 s57, s56, 288
    s_mul_i32 s58, s53, 48
    s_add_u32 s57, s57, s58
    s_lshl_b32 s58, s57, 1
    buffer_load_ushort v16, v4, s[40:43], s58 offen
    v_lshrrev_b32 v13, 3, v2
    v_lshl_add_u32 v13, v13, 2, v3
    v_mul_u32_u24 v5, 6912, v13
    v_and_b32 v7, 7, v2
    v_lshl_add_u32 v5, v7, 4, v5
    s_lshr_b32 s55, s54, 1            ; cbk
    s_mul_i32 s58, s57, 6912
    s_lshl_b32 s59, s55, 7
    s_add_u32 s58, s58, s59
    """)
    for t in range(6):
        P(f'buffer_load_dwordx4 v[{WA+4*t}:{WA+4*t+3}], v5, s[36:39], s58 offen nt')
        if t < 5: P(f's_add_u32 s58, s58, {8*6912}')
    P('s_barrier')
    P(f"""
    v_lshlrev_b32 v31, 2, v13
    s_lshl_b32 s67, s53, 10
    v_add_u32 v31, s67, v31
    v_lshlrev_b32 v30, 2, v1
    v_add_u32 v30, s67, v30
    s_mul_i32 s65, s56, 9216
    s_lshl_b32 s60, s55, 9
    s_add_u32 s65, s65, s60
    s_add_u32 s65, s65, {MODP}
    v_lshlrev_b32 v29, 5, v3
    v_add_u32 v29, v29, v2
    v_lshlrev_b32 v29, 3, v29
    """)
    masks(MK)
    tag_ready()
    for rr in range(4): P(f'v_mov_b32 v{61+2*rr}, s7')
    P('s_waitcnt vmcnt(6)')
    stamp(1)
    silu([16], [19])
    P(f'ds_write_b32 v30, v16 offset:{XSB}')
    for t in range(6): P(f'ds_read_b32 v{XS+t}, v31 offset:{XSB+32*t}')
    P('s_waitcnt vmcnt(0) lgkmcnt(0)')
    stamp(2)
    lds_add(C_G)
    diag_mm(ACC, [WA+4*t for t in range(6)], [f'v{XS+t}' for t in range(6)], MK, QA, QB)
    P(f"""
    s_lshl_b32 s59, s53, 10
    v_lshlrev_b32 v16, 4, v1
    v_add_u32 v19, s59, v16
    ds_write_b128 v19, v[{ACC}:{ACC+3}] offset:{L_SLOT}
    """)
    lds_add_rtn(C_RED, 's60')
    P(f"""
    s_cmp_lg_u32 s60, 5
    s_cbranch_scc1 L_mod_fin
    """)
    fold_reduce(WA, 0)
    for rr in range(4): P(f'v_mov_b32 v{60+2*rr}, v{WA+rr}')
    P('s_mov_b64 exec, 0x00ff00ff')
    for rr in range(4):
        P(f'buffer_store_dwordx2 v[{60+2*rr}:{61+2*rr}], v29, s[44:47], s65 offen offset:{64*rr} sc1')
    P('s_mov_b64 exec, -1')
    lds_add(C_H)
    stamp(3)
    P('s_branch L_mod_fin')
    P('L_mod_noA:')
    P('s_barrier')
    if cfg.b_on != 'M': lds_add(C_G)
    lds_add(C_H)
    tag_ready()
    P('L_mod_fin:')
    if cfg.b_on == 'M':
        lds_wait(C_H, 1, sleep=0)
        if cfg.order2:
            P(f"""
            s_cmp_lt_u32 s2, 12
            s_cbranch_scc1 L_mod_nob
            s_sub_u32 s53, s3, 1
            s_sub_u32 s65, s2, 36
            s_cmp_ge_u32 s2, 36
            s_cbranch_scc1 L_mod_bgo
            s_mov_b32 s65, s2
            """)
            if cfg.m_order == 'a_b_kv_wo':
                P('s_branch L_mod_bgo')
            P('s_mov_b32 s98, s65' if not cfg.hdbg else 's_mov_b32 s99, s65')
            q_fetch('L_mod_q2')
            P('L_mod_q2:')
            P('s_mov_b32 s65, s98' if not cfg.hdbg else 's_mov_b32 s65, s99')
            P('s_sub_u32 s53, s3, 1')
            P('s_mov_b32 s100, 1')
            lds_wait(C_WO, 3, sleep=2)
            P('s_branch L_mod_bgo2')
            P('L_mod_bgo:')
            P('s_mov_b32 s100, 0')
            P('L_mod_bgo2:')
        else:
            P(f"""
            s_cmp_lt_u32 s2, 12
            s_cbranch_scc1 L_mod_nob
            s_sub_u32 s65, s2, 12
            s_sub_u32 s53, s3, 1
            """)
        modb_body('M')
        if cfg.order2:
            P('s_cmp_lg_u32 s100, 0\ns_cbranch_scc1 L_exit')
        P('s_branch L_mod_q')
        P('L_mod_nob:')
        lds_add(C_B2)
        P('L_mod_q:')
    q_fetch('L_exit')
    end_wave()

def modb_body(cls):
    WB, MK, XS, ACC, QA, QB, G = 56, 8, 104, 116, 120, 124, 32
    done = 'L_exit' if cls == 'Q' else 'L_modb_done'
    srd(36, 28, 576*6912)
    srd(40, 26, 1152)
    P(f"""
    v_lshlrev_b32 v4, 1, v1
    s_mul_i32 s66, s53, 96
    s_lshl_b32 s59, s66, 1
    buffer_load_ushort v17, v4, s[40:43], s59 offen
    buffer_load_ushort v18, v4, s[40:43], s59 offen offset:128
    v_lshrrev_b32 v13, 3, v2
    v_lshl_add_u32 v13, v13, 2, v3
    v_mul_u32_u24 v5, 6912, v13
    v_and_b32 v7, 7, v2
    v_lshl_add_u32 v5, v7, 4, v5
    v_lshlrev_b32 v31, 2, v13
    s_lshl_b32 s67, s53, 9
    v_add_u32 v31, s67, v31
    v_lshlrev_b32 v30, 2, v1
    v_add_u32 v30, s67, v30
    s_mul_i32 s58, s66, 6912
    s_lshl_b32 s59, s65, 7
    s_add_u32 s58, s58, s59
    s_add_u32 s58, s58, 2304
    """)
    def wloads():
        for t in range(12):
            if cls == 'Q' and cfg.b_k and t >= cfg.b_k: P(f's_waitcnt vmcnt({cfg.b_k-1})')
            P(f'buffer_load_dwordx4 v[{WB+4*t}:{WB+4*t+3}], v5, s[36:39], s58 offen nt')
            if t < 11: P(f's_add_u32 s58, s58, {8*6912}')
    if cls == 'M':
        wloads()
        lds_add(C_B2)
        masks(MK)
        P('s_waitcnt vmcnt(12)')
    else:
        masks(MK)
        P('s_waitcnt vmcnt(0)')
        tag_ready()
    tag_fill(G)
    silu([17, 18], [19, 20])
    P(f"""
    ds_write_b32 v30, v17 offset:{L_XS}
    ds_write_b32 v30, v18 offset:{L_XS+256}
    """)
    for t in range(12): P(f'ds_read_b32 v{XS+t}, v31 offset:{L_XS+32*t}')
    if cls == 'Q':
        lds_wait(C_G, 1, sleep=2)
        stamp(1)
        wloads()
    P('s_waitcnt vmcnt(0) lgkmcnt(0)')
    diag_mm(ACC, [WB+4*t for t in range(12)], [f'v{XS+t}' for t in range(12)], MK, QA, QB)
    P(f"""
    s_lshl_b32 s59, s53, 10
    v_lshlrev_b32 v16, 4, v1
    v_add_u32 v19, s59, v16
    ds_write_b128 v19, v[{ACC}:{ACC+3}] offset:{L_SLOT+6*1024}
    """)
    lds_add_rtn(C_B, 's60')
    P(f"""
    s_cmp_lg_u32 s60, 5
    s_cbranch_scc1 {done}
    """)
    fold_reduce(WB, 6)
    rne_many([WB+jj for jj in range(4)])
    make_granules(G, WB)
    P(f"""
    s_lshl_b32 s59, s65, 9
    s_add_u32 s59, s59, {MODF}
    v_lshlrev_b32 v19, 3, v3
    v_add_u32 v19, v19, v2
    v_lshlrev_b32 v19, 5, v19
    s_mov_b64 exec, 0x00ff00ff
    buffer_store_dwordx4 v[{G}:{G+3}], v19, s[44:47], s59 offen sc1
    buffer_store_dwordx4 v[{G+4}:{G+7}], v19, s[44:47], s59 offen offset:16 sc1
    s_mov_b64 exec, -1
    """)
    stamp(4)
    if cls == 'Q': end_wave()
    else: P('L_modb_done:')

def modb_role():
    P('L_modb:')
    P('s_barrier')
    if cfg.b_on != 'Q':
        P('s_branch L_end')
        return
    P(f"""
    s_sub_u32 s65, s2, 48            ; b
    s_cmp_ge_u32 s65, 36
    s_cbranch_scc1 L_exit
    s_sub_u32 s53, s3, 7              ; j
    """)
    modb_body('Q')

def prefetch_code():
    if not cfg.prefetch_code: return
    P(f"""
    s_getpc_b64 s[52:53]
    L_pc:
    s_sub_u32 s52, s52, L_pc-{KN}
    s_subb_u32 s53, s53, 0
    v_lshlrev_b32 v4, 7, v1
    """)
    for i in range(CODE_PF):
        P(f'v_cmp_gt_u32 vcc, L_codeend-{KN}, v4')
        P('s_and_saveexec_b64 s[62:63], vcc')
        P(f'global_load_dword v{16+i}, v4, s[52:53]')
        P('s_mov_b64 exec, s[62:63]')
        P('v_add_u32 v4, 0x2000, v4')

def reduce4(a, b, n_i, base):
    regs = list(range(n_i))
    while len(regs) > 1:
        nxt = []
        for k in range(0, len(regs) - 1, 2):
            x, y = regs[k], regs[k+1]
            for j in range(2): P(f'v_add_f32 v{base+4*x+j}, v{base+4*x+j}, v{base+4*y+j}')
            nxt.append(x)
        if len(regs) % 2: nxt.append(regs[-1])
        regs = nxt
    for d in ('row_ror:4', 'row_ror:8'):
        for j in range(2): P(f'v_add_f32_dpp v{base+j}, v{base+j}, v{base+j} {d} {DPPM}')
    xrow_multi('v_add_f32', [f'v{base+j}' for j in range(2)], [f'v{base+2+j}' for j in range(2)])

def commA_role():
    P('L_commA:')
    role(5)
    P('s_setprio 3')
    P('s_barrier')
    P(f"""
    s_mov_b32 s54, s5                 ; a
    s_mul_i32 s55, s4, 7
    s_add_u32 s55, s55, s54           ; rho
    v_and_b32 v112, 3, v1
    v_lshrrev_b32 v4, 1, v112           ; pi
    s_lshl_b32 s56, s55, 1
    v_add_u32 v4, s56, v4
    v_and_b32 v4, 7, v4
    s_lshr_b32 s56, s55, 2
    s_lshl_b32 s56, s56, 5
    v_add_u32 v4, s56, v4
    v_and_b32 v5, 1, v112               ; gamma
    v_lshl_add_u32 v4, v5, 4, v4
    v_lshlrev_b32 v113, 1, v4
    v_lshlrev_b32 v114, 4, v112
    """)
    srd(40, 8, 1152)
    P(f"""
    buffer_load_ushort v116, v113, s[40:43], 0 offen
    buffer_load_ushort v117, v113, s[40:43], 0 offen offset:16
    s_cmp_eq_u32 s54, 6
    s_cselect_b32 s57, 10, 9            ; E
    s_mul_i32 s56, s54, 9
    v_add_u32 v4, s56, v2               ; l_src = 9a + e
    v_mul_u32_u24 v6, {H3S}, v3
    v_lshl_add_u32 v5, v4, 5, v6
    v_bfe_u32 v4, v4, 3, 1              ; head
    v_lshl_add_u32 v4, v4, 6, v6
    v_add_u32 v4, 2048, v4
    s_mul_i32 s48, s4, {16*H3S}
    s_add_u32 s48, s48, {H3}
    s_add_u32 s49, s48, {4*H3S}
    s_add_u32 s50, s48, {8*H3S}
    s_add_u32 s51, s48, {12*H3S}
    v_lshrrev_b32 v115, 2, v1
    v_mul_u32_u24 v115, {PS}, v115
    v_add_u32 v115, v115, v114
    v_lshrrev_b32 v6, 2, v1
    v_mul_u32_u24 v118, {X2S}, v6
    v_add_u32 v118, v118, v114
    v_lshlrev_b32 v119, 4, v1
    """)
    tag_ready()
    P('v_mov_b32 v122, s6\nv_mov_b32 v123, s7')
    lds_wait(FL_PUB, 1, sleep=1)
    P(f"""
    v_lshlrev_b32 v116, 16, v116
    v_cmp_gt_u32 vcc, s57, v2
    s_mov_b32 s56, {LOG2E:#x}
    s_mov_b64 exec, vcc
    """)
    def h3_loads(B):
        o = []
        for i in range(4):
            b = B + 12*i
            o.append(f'buffer_load_dwordx4 v[{b}:{b+3}], v5, s[44:47], s{48+i} offen sc1')
            o.append(f'buffer_load_dwordx4 v[{b+4}:{b+7}], v5, s[44:47], s{48+i} offen offset:16 sc1')
            o.append(f'buffer_load_dwordx4 v[{b+8}:{b+11}], v4, s[44:47], s{48+i} offen sc1')
        return o
    def h3_check(B):
        bases = [B + 12*i + o for i in range(4) for o in (0, 4, 8)]
        check_g(bases[:6])()
        P('s_mov_b64 s[62:63], vcc')
        check_g(bases[6:])()
        P('s_or_b64 vcc, vcc, s[62:63]')
    def h3_post(B):
        M = [B+12*i+8 for i in range(4)]; L = [m+1 for m in M]; W = [m+2 for m in M]
        P(f"""
        v_max3_f32 v12, v{M[0]}, v{M[1]}, v{M[2]}
        v_max_f32 v12, v12, v{M[3]}
        """)
        xrow_multi('v_max_f32', ['v12'], ['v13'])
        for i in range(4): P(f'v_sub_f32 v{W[i]}, v{M[i]}, v12')
        for i in range(4): P(f'v_mul_f32 v{W[i]}, s56, v{W[i]}')
        for i in range(4): P(f'v_exp_f32 v{W[i]}, v{W[i]}')
        O = lambda i, j: B + 12*i + (j >> 1)*4 + (j & 1)
        P(f'v_mul_f32 v14, v{W[0]}, v{L[0]}')
        for j in range(4): P(f'v_mul_f32 v{8+j}, v{W[0]}, v{O(0,j)}')
        for i in range(1, 4):
            P(f'v_fmac_f32 v14, v{W[i]}, v{L[i]}')
            for j in range(4): P(f'v_fmac_f32 v{8+j}, v{W[i]}, v{O(i,j)}')
        xrow_multi('v_add_f32', ['v14', 'v8', 'v9', 'v10', 'v11'], [f'v{B+2}', f'v{B+3}', f'v{B+6}', f'v{B+7}', f'v{B+11}'])
        P('v_rcp_f32 v14, v14')
        for j in range(4): P(f'v_mul_f32 v{8+j}, v{8+j}, v14')
        for j in range(4): P(f'v_cvt_pk_bf16_f32 v{8+j}, v{8+j}, v{8+j}')
    if cfg.h3_local:
        l = P.lbl('Lhl'); ok = P.lbl('Lhl'); far = P.lbl('Lhl')
        for i in range(4): P(f's_add_u32 s{48+i}, s{48+i}, {H3L - H3}')
        P(f's_mov_b32 s64, {cfg.local_tries}')
        P(f'{l}:')
        for x in h3_loads(16): P(x)
        P('s_waitcnt vmcnt(0)')
        h3_check(16)
        P(f"""
        s_cbranch_vccz {ok}
        s_sub_u32 s64, s64, 1
        s_cbranch_scc0 {l}
        """)
        for i in range(4): P(f's_sub_u32 s{48+i}, s{48+i}, {H3L - H3}')
        poll(h3_loads(16), lambda: h3_check(16))
        P(f'{ok}:')
        if cfg.debug: P(f's_sub_u32 s82, {cfg.local_tries}, s64')
        h3_post(16)
    else:
        poll(h3_loads(16), lambda: h3_check(16))
        if cfg.debug: P('s_sub_u32 s82, 0x8000, s64')
        h3_post(16)
    stamp(4)
    P(f"""
    s_and_b32 exec_lo, exec_lo, 0xffff
    s_mov_b32 exec_hi, 0
    ds_write_b128 v119, v[8:11] offset:{L_XA}
    s_mov_b64 exec, -1
    s_cmp_ge_u32 s55, 72
    s_cselect_b32 s65, 1, 0
    s_lshl_b32 s56, s55, 6              ; rho*64
    s_add_u32 s48, s56, {XP}
    """)
    for i in range(1, 7): P(f's_add_u32 s{48+i}, s{47+i}, {16*PS}')
    P(f"""
    s_lshl_b32 s57, s55, 6
    s_add_u32 s58, s57, {MODF}
    v_lshlrev_b32 v117, 16, v117
    s_waitcnt lgkmcnt(0)
    s_barrier
    """)
    stamp(5)
    P(f"""
    s_cmp_lg_u32 s65, 0
    s_cbranch_scc1 L_exit
    """)
    def red_loads(n):
        def f(B):
            return [f'buffer_load_dwordx4 v[{B+4*n}:{B+4*n+3}], v114, s[44:47], s58 offen sc1'] + \
                   [f'buffer_load_dwordx4 v[{B+4*i}:{B+4*i+3}], v115, s[44:47], s{48+i} offen sc1' for i in range(n)]
        return f
    def red_check(n):
        def f(B):
            bases = [B+4*i for i in range(n+1)]
            if n + 1 <= 8: check_g(bases)()
            else:
                check_g(bases[:5])()
                P('s_mov_b64 s[62:63], vcc')
                check_g(bases[5:])()
                P('s_or_b64 vcc, vcc, s[62:63]')
        return f
    def xp_post(B):
        reduce4(0, 1, 7, B)
        rne_many([B, B+1])
        for j in range(2): P(f'v_mul_f32 v{B+j}, v{B+j}, v{B+28+j}')
        rne_many([B, B+1])
        for j in range(2): P(f'v_add_f32 v{120+j}, v{B+j}, v{116+j}')
        rne_many([120, 121])
    if cfg.pipe: poll2(red_loads(7), red_check(7), xp_post, 16, 48, 8)
    else:
        poll(red_loads(7)(16), lambda: red_check(7)(16))
        if cfg.debug: P('s_sub_u32 s84, 0x8000, s64')
        xp_post(16)
    P(f"""
    s_add_u32 s59, s57, {X2}
    s_mov_b64 exec, 0xffffffff
    buffer_store_dwordx4 v[120:123], v118, s[44:47], s59 offen sc1
    s_mov_b64 exec, -1
    """)
    stamp(6)
    P(f's_add_u32 s48, s56, {FP}')
    for i in range(1, 9): P(f's_add_u32 s{48+i}, s{47+i}, {16*PS}')
    P(f's_add_u32 s58, s57, {MODF+864*16}')
    srd(40, 30, 1152)
    def fp_post(B):
        reduce4(0, 1, 9, B)
        rne_many([B, B+1])
        for j in range(2): P(f'v_mul_f32 v{B+j}, v{B+j}, v{B+36+j}')
        rne_many([B, B+1])
        for j in range(2): P(f'v_add_f32 v{8+j}, v{B+j}, v{120+j}')
        for j in range(2): P(f'v_cvt_pk_bf16_f32 v{8+j}, v{8+j}, v{8+j}')
    if cfg.pipe: poll2(red_loads(9), red_check(9), fp_post, 24, 64, 10)
    else:
        poll(red_loads(9)(24), lambda: red_check(9)(24))
        if cfg.debug: P('s_sub_u32 s86, 0x8000, s64')
        fp_post(24)
    P(f"""
    s_mov_b64 exec, 0xf
    buffer_store_short v8, v113, s[40:43], 0 offen
    buffer_store_short v9, v113, s[40:43], 0 offen offset:16
    s_mov_b64 exec, -1
    """)
    stamp(7)
    P(f"""
    s_mul_i32 s55, s4, 7
    s_add_u32 s55, s55, s5
    s_cmp_lg_u32 s55, 0
    s_cbranch_scc1 L_exit
    v_mov_b32 v4, {EPOCH}
    v_mov_b32 v8, s6
    v_mov_b32 v9, s7
    s_mov_b64 exec, 1
    buffer_store_dwordx2 v[8:9], v4, s[44:47], 0 offen sc1
    s_mov_b64 exec, -1
    """)
    end_wave()

def commF_role():
    P('L_commF:')
    role(6)
    P('s_setprio 3')
    SB, CB, XA = 32, 52, 72
    P(f"""
    v_lshlrev_b32 v4, 4, v1             ; granule l
    v_and_b32 v5, 31, v1
    v_lshlrev_b32 v5, 4, v5
    s_mov_b32 s56, {MODF+288*16}
    s_mov_b32 s57, {MODF+576*16}
    s_add_u32 s58, s56, 4096
    s_add_u32 s59, s57, 4096
    s_and_b32 s52, s2, 7
    s_mul_i32 s52, s52, {X2S}
    s_add_u32 s52, s52, {X2}
    s_add_u32 s53, s52, 4096
    v_cmp_gt_u32 s[54:55], 32, v1
    """)
    lds_wait(FL_PUB, 1, sleep=1)
    def gl(base, sreg, sreg2):
        return [f'buffer_load_dwordx4 v[{base+4*n}:{base+4*n+3}], v4, s[44:47], {sreg} offen offset:{1024*n} sc1' for n in range(4)] + \
               [f'buffer_load_dwordx4 v[{base+16}:{base+19}], v5, s[44:47], {sreg2} offen sc1']
    def chk():
        check_g([SB+4*n for n in range(5)])()
        P('s_mov_b64 s[62:63], vcc')
        check_g([CB+4*n for n in range(5)])()
        P('s_or_b64 vcc, vcc, s[62:63]')
    poll(gl(SB, 's56', 's58') + gl(CB, 's57', 's59'), chk)
    cbv = [CB+4*n+j for n in range(5) for j in range(2)]
    sbv = [SB+4*n+j for n in range(5) for j in range(2)]
    xav = [XA+4*n+j for n in range(5) for j in range(2)]
    for r in cbv: P(f'v_add_f32 v{r}, 1.0, v{r}')
    rne_many(cbv)
    P('v_lshlrev_b32 v6, 2, v1')
    def x2_post(B):
        xv = [B+4*n+j for n in range(5) for j in range(2)]
        for r in xv[8:]: P(f'v_cndmask_b32 v{r}, 0, v{r}, s[54:55]')
        ln_stats(xv, 'v112', 'v113', 'v114', 'v115', maskfix=(xv[8:], 's[54:55]'))
        for r in xv: P(f'v_sub_f32 v{r}, v{r}, v112')
        rne_many(xv)
        for r in xv: P(f'v_mul_f32 v{r}, v{r}, v113')
        rne_many(xv)
        for r, c in zip(xv, cbv): P(f'v_mul_f32 v{r}, v{r}, v{c}')
        rne_many(xv)
        for r, c in zip(xv, sbv): P(f'v_add_f32 v{r}, v{r}, v{c}')
        for n in range(5): P(f'v_cvt_pk_bf16_f32 v{B+4*n}, v{B+4*n}, v{B+4*n+1}')
        for n in range(4): P(f'ds_write_b32 v6, v{B+4*n} offset:{L_XS+256*n}')
        P(f"""
        s_mov_b64 exec, 0xffffffff
        ds_write_b32 v6, v{B+16} offset:{L_XS+1024}
        s_mov_b64 exec, -1
        """)
    if cfg.pipe: poll2(lambda B: gl(B, 's52', 's53'), lambda B: check_g([B+4*n for n in range(5)])(), x2_post, 72, 92, 5)
    else:
        poll(gl(72, 's52', 's53'), check_g([72+4*n for n in range(5)])); x2_post(72)
    stamp(7)
    P("""
    s_waitcnt lgkmcnt(0)
    s_barrier
    """)
    end_wave()

def gu_role(nkv):
    RAW = 32
    NA = cfg.gu_early
    P('L_gu:')
    role(7)
    def setup():
        P(f"""
        s_sub_u32 s53, s3, 1              ; i
        s_lshr_b32 s54, s53, 1            ; matrix
        s_and_b32 s55, s53, 1             ; K half
        s_cmp_eq_u32 s54, 0
        s_cselect_b32 s36, s20, s22
        s_cselect_b32 s37, s21, s23
        s_mov_b32 s38, {576*9216}
        s_mov_b32 s39, 0x20000
        s_mul_i32 s56, s4, 9
        s_add_u32 s56, s56, s5
        s_sub_u32 s56, s56, 7             ; phi
        s_lshl_b32 s56, s56, 6
        s_mul_i32 s57, s55, {9*32*9216}
        s_add_u32 s56, s56, s57
        s_mov_b32 s58, 0x05040100
        s_mov_b32 s59, 0x07060302
        """)
    def loads(u, thr=True):
        for j in range(8):
            off = (32*u + 8*(j & 3) + (j >> 2)) * 9216
            P(f's_add_u32 s57, s56, {off}')
            if thr and cfg.gul and 8*(u-NA) + j >= cfg.gul: P(f's_waitcnt vmcnt({cfg.gul-1})')
            P(f'buffer_load_dword v{RAW+8*u+j}, v4, s[36:39], s57 offen nt')
    def perm(u):
        src = RAW + 8*u
        dst = src - 8
        for i in range(4):
            P(f'v_perm_b32 v{dst+i}, v{src+2*i+1}, v{src+2*i}, s58')
            P(f'v_perm_b32 v{dst+4+i}, v{src+2*i+1}, v{src+2*i}, s59')
    P('s_cmp_lg_u32 s3, 1\ns_cbranch_scc1 L_gu_nopf')
    prefetch_code()
    P('L_gu_nopf:')
    setup()
    P(f"""
    v_mul_u32_u24 v4, {2*9216}, v3
    v_lshl_add_u32 v4, v2, 2, v4
    """)
    for u in range(NA):
        loads(u, thr=False)
        if u == 0: P('s_barrier')
    if NA == 0: P('s_barrier')
    lds_add(C_GA)
    tag_ready()
    q_fetch('L_gu2')
    P('L_gu2:')
    stamp(5)
    setup()
    P('s_waitcnt vmcnt(0)')
    for u in range(NA): perm(u)
    if cfg.gu_gate == 'pub': lds_wait(FL_PUB, 1, sleep=2)
    else: lds_wait(C_KVI, nkv, sleep=2)
    stamp(1)
    DEPTH = cfg.gu_depth
    for u in range(NA, 9):
        if cfg.gu_dyn and u > NA:
            l = P.lbl('Lgd')
            P(f"""
            v_mov_b32 v7, 0
            ds_read_b32 v6, v7 offset:{FL_PUB}
            s_waitcnt lgkmcnt(0)
            v_readfirstlane_b32 s60, v6
            s_cmp_lg_u32 s60, 0
            s_cbranch_scc1 {l}
            s_waitcnt vmcnt({cfg.gu_dyn})
            {l}:
            """)
        loads(u)
        if u - DEPTH >= NA:
            P(f's_waitcnt vmcnt({8*DEPTH})')
            perm(u - DEPTH)
    for u in range(max(NA, 9 - DEPTH), 9):
        P(f's_waitcnt vmcnt({8*(8-u)})')
        perm(u)
    stamp(2)
    P(f"""
    s_mul_i32 s57, s55, {9*64}
    v_lshlrev_b32 v5, 4, v3
    v_add_u32 v5, s57, v5
    s_lshl_b32 s57, s53, 7
    v_lshlrev_b32 v6, 3, v1
    v_add_u32 v6, s57, v6
    s_barrier
    """)
    stamp(3)
    AF = [96+4*u for u in range(8)] + [20]
    for u in range(9): P(f'ds_read_b128 v[{AF[u]}:{AF[u]+3}], v5 offset:{L_XS+64*u}')
    for u in range(9):
        P(f's_waitcnt lgkmcnt({8-u})')
        f0 = RAW - 8 + 8*u
        c0 = '0' if u == 0 else 'v[8:11]'
        c1 = '0' if u == 0 else 'v[12:15]'
        P(f'v_mfma_f32_16x16x32_bf16 v[8:11], v[{AF[u]}:{AF[u]+3}], v[{f0}:{f0+3}], {c0}')
        P(f'v_mfma_f32_16x16x32_bf16 v[12:15], v[{AF[u]}:{AF[u]+3}], v[{f0+4}:{f0+7}], {c1}')
    P(f"""
    v_mov_b32 v16, v8
    v_mov_b32 v17, v12
    s_mov_b64 exec, 0xffff
    ds_write_b64 v6, v[16:17] offset:{L_RED3}
    s_mov_b64 exec, -1
    s_waitcnt lgkmcnt(0)
    s_barrier
    """)
    stamp(4)
    end_wave()

def build():
    global CODE_PF
    CODE_PF = 4
    prologue()
    cF, cQ, cM = cfg.cF, cfg.cQ, cfg.cM
    assert 9*cF + 4*cQ + 3*cM == 256 and cF % 2 == 0 and cQ % 2 == 0 and cM % 2 == 0 and cF//2 >= 6 and cQ <= 12 and cM <= 12
    kv_role('L_kvF', cF//2, lambda: P(f's_sub_u32 s52, s5, 7\ns_mul_i32 s52, s52, {cF}\ns_add_u32 s52, s52, {3*cM+4*cQ}'), (C_GA, 4) if cfg.gu_early else None, True, cfg.kF)
    kv_role('L_kvQ', cQ//2, lambda: P(f's_sub_u32 s52, s5, 3\ns_mul_i32 s52, s52, {cQ}\ns_add_u32 s52, s52, {3*cM}'), ((C_WO, 3) if cfg.q_order == 'wo_kv' else (C_G, 1)), False, cfg.kQ)
    kv_role('L_kvM', cM//2, lambda: P(f's_mul_i32 s52, s5, {cM}'), ((C_B2, 6) if cfg.m_order == 'a_b_kv_wo' else ((C_H, 1) if cfg.order2 else (C_WO, 3))), False, cfg.kM)
    down_role()
    wq_role()
    mod_role()
    wo_role('Q', cQ//2)
    wo_role('M', cM//2)
    wo_common()
    commA_role()
    commF_role()
    gu_role(cF//2)
    P('L_abort:')
    P('s_mov_b64 exec, -1')
    P('L_exit:')
    if cfg.debug:
        P(f"""
        s_waitcnt lgkmcnt(0)
        s_lshl_b32 s60, s2, 4
        s_add_u32 s60, s60, s3
        s_lshl_b32 s60, s60, 6
        s_add_u32 s60, s60, {DBG}
        s_memrealtime s[96:97]
        s_waitcnt lgkmcnt(0)
        v_mov_b32 v8, s96
        """)
        for i in range(8): P(f'v_writelane_b32 v8, s{80+2*i}, {i}')
        P(f"""
        v_and_b32 v1, 63, v0
        v_lshlrev_b32 v7, 2, v1
        s_mov_b64 exec, 0x1ff
        buffer_store_dword v8, v7, s[44:47], s60 offen
        """)
    if cfg.hdbg:
        SL = {(3, 3): 3, (2, 2): 4, (2, 4): 5, (1, 3): 6, (1, 5): 7, (1, 6): 8, (5, 4): 9, (5, 6): 10, (6, 7): 11, (8, 6): 12, (7, 2): 13, (5, 7): 14, (6, 3): 6, (6, 5): 7, (6, 6): 8, (8, 3): 6, (8, 5): 7, (4, 7): 15}
        P("""
        s_waitcnt lgkmcnt(0)
        s_memrealtime s[96:97]
        s_mov_b32 s68, s32
        s_mov_b32 s69, s33
        s_mov_b32 s70, 256
        s_mov_b32 s71, 0x20000
        s_mov_b64 exec, 1
        s_waitcnt lgkmcnt(0)
        v_mov_b32 v8, s96
        v_mov_b32 v9, 4
        buffer_atomic_umax v8, v9, s[68:71], 0 offen sc1
        s_not_b32 s96, s80
        v_mov_b32 v8, s96
        v_mov_b32 v9, 0
        buffer_atomic_umax v8, v9, s[68:71], 0 offen sc1
        v_mov_b32 v8, s80
        v_mov_b32 v9, 8
        buffer_atomic_umax v8, v9, s[68:71], 0 offen sc1
        """)
        for r in range(1, 9):
            l = P.lbl('Lhd')
            P(f's_cmp_lg_u32 s98, {r}')
            P(f's_cbranch_scc1 {l}')
            for (rr, k), slot in SL.items():
                if rr == r:
                    P(f'v_mov_b32 v8, s{80+2*k}')
                    P(f'v_mov_b32 v9, {4*slot}')
                    P('buffer_atomic_umax v8, v9, s[68:71], 0 offen sc1')
            P(f'{l}:')
    P('L_end:')
    P('s_endpgm')
    P('L_codeend:')
    P.finalize()
    body = P.text()
    return (HEADER_COMMENT +
f"""; @launch grid=(256,1,1) block=(1024,1,1) lds={LDS_BYTES}
.amdgcn_target "amdgcn-amd-amdhsa--gfx950"
.text
.globl {KN}
.p2align 8
.type {KN},@function
{KN}:
{body}
.section .rodata,"a"
.p2align 6
.amdhsa_kernel {KN}
  .amdhsa_next_free_vgpr 128
  .amdhsa_next_free_sgpr 102
  .amdhsa_accum_offset 128
  .amdhsa_group_segment_fixed_size 0
  .amdhsa_kernarg_size 112
  .amdhsa_user_sgpr_count 2
  .amdhsa_user_sgpr_kernarg_segment_ptr 1
  .amdhsa_system_sgpr_workgroup_id_x 1
.end_amdhsa_kernel
""")

if __name__ == '__main__':
    import argparse
    ap = argparse.ArgumentParser()
    ap.add_argument('-o', default='k.s')
    ap.add_argument('--debug', action='store_true')
    ap.add_argument('--tiles', default='22,4,14')
    ap.add_argument('--set', nargs='*', default=[])
    a = ap.parse_args()
    cfg.debug = a.debug
    cfg.cF, cfg.cQ, cfg.cM = map(int, a.tiles.split(','))
    for kv in a.set:
        k, v = kv.split('=')
        old = getattr(cfg, k)
        setattr(cfg, k, type(old)(int(v)) if isinstance(old, (bool, int)) else v)
    open(a.o, 'w').write(build())
```

```python
import sys, math, struct
from dsl import Prog
from asmlib import HEADER_COMMENT, KN

class Cfg:
    cF, cQ, cM = 22, 4, 14
    debug = False
    prefetch_code = True
    kF, kQ, kM = '0', '0', '0'
    gu_depth = 4
    gul = 0
    gu_gate = 'pub'
    k_first = True
    pre_barrier = 1
    wo_k = 4
    b_k = 4
    q_sleep = 4
    poll_sleep = 0
    kvonly = False
    pf_early = 16
    pf_gu = True
    h3_local = True
    local_tries = 200
    m_order = 'a_kv_wo_b'
    gu_dyn = 0
    q_order = 'kv_wo'
    order2 = True
    wq_first = False
    q_direct = True
    hdbg = False
    q_wo_gate = False
    q_wo_first = True
    stagger = 6
    pipe = True
    gu_early = 3
    b_on = 'M'
    m_gate_pub = False
cfg = Cfg()

EPOCH = 0x0
MODP = 0x1000
QF = 0x8000
MODF = 0x20000
X2 = 0x28000
X2S = 0x1400
H3 = 0x40000
H3S = 2560
XP = 0xE0000
FP = 0x160000
PS = 4608
H3L = 0x210000
DBG = 0x300000
FL_Q, C_KVI, C_MAX, C_O, C_RED, C_H, C_G, FL_PUB, C_K, C_B, C_GA, C_B2, C_WO = 0, 4, 8, 12, 16, 20, 24, 28, 32, 36, 40, 44, 48
L_ZERO = 0x100
L_Q = 0x200
L_MX = 0x400
L_LS = 0x480
L_XS = 0x500
L_RED3 = 0xA00
L_XA = 0x1100
L_SLOT = 0x1200
L_OSLOT = 0x1200 + 18*1024
LDS_BYTES = 0x1200 + 30*1024
LOG2E = 0x3FB8AA3B
SCALE = 0x3DB504F3
GOLD0, GOLD1 = 0x7F4A7C15, 0x9E3779B9
def f32hex(x): return struct.unpack('<I', struct.pack('<f', x))[0]

P = Prog()
ABORT = 'L_abort'
DPPM = 'row_mask:0xf bank_mask:0xf'

def stamp(i):
    if cfg.debug or cfg.hdbg: P(f's_memrealtime s[{80+2*i}:{81+2*i}]')

def role(n):
    if cfg.hdbg: P(f's_mov_b32 s98, {n}')

def srd(base, ptr, nbytes):
    P(f"""
    s_mov_b32 s{base}, s{ptr}
    s_mov_b32 s{base+1}, s{ptr+1}
    s_mov_b32 s{base+2}, {nbytes}
    s_mov_b32 s{base+3}, 0x20000
    """)

def tag_ready():
    P(f"""
    s_waitcnt lgkmcnt(0)
    s_add_u32 s6, s6, {GOLD0:#x}
    s_add_u32 s7, s7, {GOLD1:#x}
    """)

def lds_wait(off, target, sleep=1):
    l = P.lbl('Lw'); d = P.lbl('Ld')
    P(f"""
    v_mov_b32 v7, 0
    s_mov_b32 s61, 0x400000
    {l}:
    ds_read_b32 v6, v7 offset:{off}
    s_waitcnt lgkmcnt(0)
    v_readfirstlane_b32 s60, v6
    s_cmp_ge_u32 s60, {target}
    s_cbranch_scc1 {d}
    s_sub_u32 s61, s61, 1
    s_cbranch_scc1 {ABORT}
    """)
    if sleep: P(f's_sleep {sleep}')
    P(f"""
    s_branch {l}
    {d}:
    """)

def lds_add(off):
    P(f"""
    v_mov_b32 v7, 0
    v_mov_b32 v6, 1
    s_mov_b64 s[62:63], exec
    s_mov_b64 exec, 1
    ds_add_u32 v7, v6 offset:{off}
    s_mov_b64 exec, s[62:63]
    """)

def lds_add_rtn(off, sdst):
    P(f"""
    v_mov_b32 v7, 0
    v_mov_b32 v6, 1
    s_mov_b64 s[62:63], exec
    s_mov_b64 exec, 1
    ds_add_rtn_u32 v6, v7, v6 offset:{off}
    s_waitcnt lgkmcnt(0)
    v_readfirstlane_b32 {sdst}, v6
    s_mov_b64 exec, s[62:63]
    """)

def rne(dst, src):
    P(f'v_cvt_pk_bf16_f32 {dst}, {src}, {src}')
    P(f'v_lshlrev_b32 {dst}, 16, {dst}')

def rne_many(regs):
    for r in regs: P(f'v_cvt_pk_bf16_f32 v{r}, v{r}, v{r}')
    for r in regs: P(f'v_lshlrev_b32 v{r}, 16, v{r}')

def xrow_multi(op, vs, ts):
    for sw in ('v_permlane16_swap_b32', 'v_permlane32_swap_b32'):
        for v, t in zip(vs, ts): P(f'v_mov_b32 {t}, {v}')
        for v, t in zip(vs, ts): P(f'{sw} {v}, {t}')
        for v, t in zip(vs, ts): P(f'{op} {v}, {v}, {t}')

def wave_sum(v, t):
    for d in ('quad_perm:[1,0,3,2]', 'quad_perm:[2,3,0,1]', 'row_half_mirror', 'row_mirror'):
        P(f'v_add_f32_dpp {v}, {v}, {v} {d} {DPPM}')
    xrow_multi('v_add_f32', [v], [t])

def masks(base):
    P(f"""
    v_and_b32 v6, 1, v2
    v_lshlrev_b32 v6, 4, v6
    v_mov_b32 v7, 0xffff
    v_lshlrev_b32 v7, v6, v7
    v_bfe_u32 v6, v2, 1, 2
    """)
    for i in range(4):
        P(f'v_cmp_eq_u32 vcc, {i}, v6')
        P(f'v_cndmask_b32 v{base+i}, 0, v7, vcc')

def diag_mm(acc, wregs, xregs, mk, qa, qb):
    n = len(wregs)
    def prep(t):
        q = (qa, qb)[t & 1]
        for i in range(4): P(f'v_and_b32 v{q+i}, {xregs[t]}, v{mk+i}')
    prep(0)
    for t in range(n):
        if t + 1 < n: prep(t + 1)
        q = (qa, qb)[t & 1]
        c = '0' if t == 0 else f'v[{acc}:{acc+3}]'
        P(f'v_mfma_f32_16x16x32_bf16 v[{acc}:{acc+3}], v[{wregs[t]}:{wregs[t]+3}], v[{q}:{q+3}], {c}')

def poll(loads, check):
    l = P.lbl('Lp'); l2 = P.lbl('Lp')
    P('s_mov_b32 s64, 0x8000')
    if cfg.poll_sleep:
        P(f's_branch {l2}')
        P(f'{l}:')
        P(f's_sleep {cfg.poll_sleep}')
        P(f'{l2}:')
    else:
        P(f'{l}:')
    for x in loads: P(x)
    P('s_waitcnt vmcnt(0)')
    check()
    P(f"""
    s_sub_u32 s64, s64, 1
    s_cbranch_scc1 {ABORT}
    s_cbranch_vccnz {l}
    """)


def poll2(mk_loads, mk_check, post, baseA, baseB, nloads):
    la = P.lbl('Lq'); lb = P.lbl('Lq'); ga = P.lbl('Lq'); gb = P.lbl('Lq'); done = P.lbl('Lq')
    P('s_mov_b32 s64, 0x8000')
    for x in mk_loads(baseA): P(x)
    P(f's_sleep {cfg.stagger}')
    P(f'{la}:')
    for x in mk_loads(baseB): P(x)
    P(f's_waitcnt vmcnt({nloads})')
    mk_check(baseA)
    P(f"""
    s_cbranch_vccz {ga}
    s_sub_u32 s64, s64, 1
    s_cbranch_scc1 {ABORT}
    """)
    for x in mk_loads(baseA): P(x)
    P(f's_waitcnt vmcnt({nloads})')
    mk_check(baseB)
    P(f"""
    s_cbranch_vccz {gb}
    s_branch {la}
    """)
    P(f'{gb}:')
    post(baseB)
    P(f's_branch {done}')
    P(f'{ga}:')
    post(baseA)
    P(f'{done}:')

def check_g(bases):
    def f():
        n = len(bases)
        assert n <= 8 + 5
        prs = [66 + 2*i for i in range(7)] + [96, 98]
        assert n <= len(prs) + 1
        for i, b in enumerate(bases):
            dst = 'vcc' if i == n - 1 else f's[{prs[i]}:{prs[i]+1}]'
            P(f'v_cmp_ne_u64 {dst}, s[6:7], v[{b+2}:{b+3}]')
        for i in range(n - 1):
            P(f's_or_b64 vcc, vcc, s[{prs[i]}:{prs[i]+1}]')
    return f

def check_tags32(regs, t='v6', t2='v7'):
    def f():
        rs = list(regs)
        P(f'v_xor_b32 {t}, s7, v{rs[0]}')
        for r in rs[1:]:
            P(f'v_xor_b32 {t2}, s7, v{r}')
            P(f'v_or_b32 {t}, {t}, {t2}')
        P(f'v_cmp_ne_u32 vcc, 0, {t}')
    return f

def end_wave(): P('s_branch L_exit')

def make_granules(G, ACC):
    P(f'v_mov_b32 v{G}, v{ACC}')
    P(f'v_mov_b32 v{G+1}, v{ACC+1}')
    P(f'v_mov_b32 v{G+4}, v{ACC+2}')
    P(f'v_mov_b32 v{G+5}, v{ACC+3}')
def tag_fill(G):
    for o in (2, 6):
        P(f'v_mov_b32 v{G+o}, s6')
        P(f'v_mov_b32 v{G+o+1}, s7')

def prologue():
    P(f"""
    s_cmp_ge_u32 s2, 256
    s_cbranch_scc1 L_end
    s_load_dwordx16 s[8:23], s[0:1], 0
    s_load_dwordx8 s[24:31], s[0:1], 64
    s_load_dwordx4 s[32:35], s[0:1], 96
    """)
    if cfg.prefetch_code and cfg.pf_early:
        P(f"""
        s_cmp_ge_u32 s2, {cfg.pf_early}
        s_cbranch_scc1 L_nopf0
        v_lshrrev_b32 v4, 6, v0
        v_cmp_ne_u32 vcc, 10, v4
        s_cbranch_vccnz L_nopf0
        v_and_b32 v1, 63, v0
        """)
        prefetch_code('0', 124)
        P('L_nopf0:')
    if cfg.hdbg:
        for i in range(1, 8): P(f's_mov_b32 s{80+2*i}, 0')
        P('s_mov_b32 s98, 0')
    stamp(0)
    P(f"""
    v_lshrrev_b32 v4, 6, v0
    v_and_b32 v1, 63, v0
    v_and_b32 v2, 15, v1
    v_readfirstlane_b32 s3, v4
    v_lshrrev_b32 v3, 4, v1
    s_and_b32 s4, s2, 7
    s_lshl_b32 s4, s4, 1
    s_bfe_u32 s5, s2, 0x10003
    s_add_u32 s4, s4, s5
    s_lshr_b32 s5, s2, 4
    s_cmp_lg_u32 s3, 0
    s_cbranch_scc1 L_nozero
    v_lshlrev_b32 v4, 2, v1
    v_mov_b32 v5, 0
    ds_write_b32 v4, v5
    ds_write_b32 v4, v5 offset:256
    ds_write_b32 v4, v5 offset:{L_XA}
    L_nozero:
    s_waitcnt lgkmcnt(0)
    s_load_dwordx2 s[6:7], s[34:35], 0
    """)
    srd(44, 34, 0x40000000)
    nkF, nkQ, nkM = cfg.cF//2, cfg.cQ//2, cfg.cM//2
    if cfg.kvonly:
        P(f"""
        s_cmp_lt_u32 s5, 3
        s_cselect_b32 s60, {16-nkM}, {16-nkQ}
        s_cmp_ge_u32 s5, 7
        s_cselect_b32 s60, {16-nkF}, s60
        s_cmp_ge_u32 s3, s60
        s_cbranch_scc1 L_kvgo
        s_barrier
        s_branch L_end
        L_kvgo:
        """)
    P(f"""
    s_cmp_lt_u32 s5, 3
    s_cbranch_scc1 L_classM
    s_cmp_lt_u32 s5, 7
    s_cbranch_scc1 L_classQ
    s_cmp_eq_u32 s3, 0
    s_cbranch_scc1 L_kvF0
    s_cmp_le_u32 s3, 4
    s_cbranch_scc1 L_gu
    s_cmp_ge_u32 s3, {16-min(nkF, 11)}
    s_cbranch_scc1 L_kvF
    s_branch L_idle
    L_classQ:
    s_cmp_ge_u32 s3, {16-nkQ}
    s_cbranch_scc1 L_kvQ
    s_cmp_eq_u32 s3, 0
    s_cbranch_scc1 L_commA
    s_cmp_le_u32 s3, 6
    s_cbranch_scc1 L_wq
    s_cmp_le_u32 s3, 9
    s_cbranch_scc1 L_woQ
    s_branch L_idle
    L_classM:
    s_cmp_ge_u32 s3, {16-nkM}
    s_cbranch_scc1 L_kvM
    s_cmp_eq_u32 s3, 0
    s_cbranch_scc1 L_commA
    s_cmp_le_u32 s3, 6
    s_cbranch_scc1 L_mod
    s_cmp_le_u32 s3, 9
    s_cbranch_scc1 L_woM
    L_idle:
    s_barrier
    s_waitcnt vmcnt(0)
    s_branch L_end
    """)

def kv_role(name, nkv, tile_expr, gate, is_f, kinf='0'):
    K0, V0, QF_, SD, TT, ACC, MK = 32, 64, 96, 24, 28, 96, 8
    if is_f:
        P('L_kvF0:')
        if nkv == 12:
            P('s_mov_b32 s53, 11')
            P('s_branch L_kvFgo')
        else:
            P('s_branch L_idle')
        P(f'{name}:')
        P(f's_sub_u32 s53, s3, {16-min(nkv, 11)}')
        P('L_kvFgo:')
    else:
        P(f'{name}:')
        P(f's_sub_u32 s53, s3, {16-nkv}')
    role(1)
    tile_expr()
    P(f"""
    s_lshl_b32 s54, s53, 1
    s_add_u32 s52, s52, s54
    s_lshl_b32 s52, s52, 12
    s_lshl_b32 s54, s4, 24
    s_add_u32 s52, s52, s54
    s_add_u32 s52, s52, {61440*256}
    s_add_u32 s55, s52, 4096
    """)
    srd(36, 10, 0x10000000)
    srd(40, 12, 0x10000000)
    P(f"""
    v_and_b32 v4, 7, v1
    v_lshlrev_b32 v4, 8, v4
    v_lshrrev_b32 v5, 3, v1
    v_lshl_add_u32 v4, v5, 4, v4          ; K: (l&7)*256 + (l>>3)*16
    v_lshlrev_b32 v5, 10, v3
    v_lshl_add_u32 v5, v2, 4, v5          ; V: gq*1024 + m*16
    """)
    if cfg.kvonly: gate = None
    if gate:
        P('s_barrier')
        lds_wait(gate[0], gate[1], sleep=2)
    stamp(1)
    st = {'n': 0}
    lim = lambda i: int(kinf[min(i, len(kinf)-1)], 16)
    def issue(r, vo, srdr, sreg, off):
        n = st['n']
        if not gate and n == cfg.pre_barrier: P('s_barrier')
        k = lim(n)
        if k and n >= k: P(f's_waitcnt vmcnt({k-1})')
        P(f'buffer_load_dwordx4 v[{r}:{r+3}], {vo}, s[{srdr}:{srdr+3}], {sreg} offen offset:{off} nt')
        st['n'] += 1
    for u in range(4):
        for hh in range(2):
            issue(K0 + 4*(2*u+hh), 'v4', 36, 's52' if u < 2 else 's55', (u & 1)*2048 + hh*128)
    if cfg.k_first:
        lds_add(C_K)
        lds_wait(C_K, nkv, sleep=1)
    for t in range(2):
        for r_ in range(4):
            issue(V0 + 16*t + 4*r_, 'v5', 40, 's52' if t == 0 else 's55', 256*r_)
    lds_add(C_KVI)
    stamp(2)
    if cfg.kvonly:
        P('s_waitcnt vmcnt(8)'); stamp(4)
        P('s_waitcnt vmcnt(0)'); stamp(5)
        end_wave(); return
    masks(MK)
    P(f"""
    v_bfe_u32 v12, v2, 2, 1
    v_lshlrev_b32 v22, 2, v12
    v_lshlrev_b32 v12, 8, v12
    v_lshrrev_b32 v13, 3, v2
    v_lshl_add_u32 v13, v3, 1, v13        ; 2g + par
    v_lshl_add_u32 v12, v13, 4, v12
    v_add_u32 v12, {L_Q}, v12
    v_and_b32 v13, 3, v2
    v_mov_b32 v14, {L_ZERO}
    """)
    for u in range(4):
        P(f'v_cmp_eq_u32 vcc, {u}, v13')
        P(f'v_cndmask_b32 v{16+u}, v14, v12, vcc')
    P(f"""
    v_and_b32 v12, 1, v3
    v_lshlrev_b32 v12, 4, v12
    v_lshrrev_b32 v13, 3, v2
    v_lshl_add_u32 v12, v13, 2, v12
    v_lshrrev_b32 v13, 1, v3
    v_add_u32 v12, v12, v13
    v_lshlrev_b32 v20, 2, v12
    v_add_u32 v21, 8, v20
    """)
    tag_ready()
    lds_wait(FL_Q, 4, sleep=2)
    stamp(3)
    P('s_waitcnt vmcnt(16)')
    for u in range(4):
        for hh in range(2):
            r = QF_ + 4*(2*u+hh)
            P(f'ds_read_b128 v[{r}:{r+3}], v{16+u} offset:{128*hh}')
    P('s_waitcnt vmcnt(8)')
    stamp(4)
    for i in range(8):
        P(f's_waitcnt lgkmcnt({7-i})')
        c = '0' if i == 0 else f'v[{SD}:{SD+3}]'
        P(f'v_mfma_f32_16x16x32_bf16 v[{SD}:{SD+3}], v[{K0+4*i}:{K0+4*i+3}], v[{QF_+4*i}:{QF_+4*i+3}], {c}')
    for j in range(4): P(f'v_mov_b32 v{TT+j}, v{SD+j}')
    for j in range(4): P(f'v_permlane32_swap_b32 v{SD+j}, v{TT+j}')
    for j in range(4): P(f'v_add_f32_dpp v{SD+j}, v{TT+j}, v{SD+j} row_shl:8 {DPPM}')
    P(f's_mov_b32 s56, {SCALE:#x}')
    P(f's_mov_b32 s57, 0xffff0000')
    P(f's_mov_b32 s58, {LOG2E:#x}')
    for rep in range(2):
        for p in range(2): P(f'v_cvt_pk_bf16_f32 v{TT+p}, v{SD+2*p}, v{SD+2*p+1}')
        for p in range(2):
            P(f'v_lshlrev_b32 v{SD+2*p}, 16, v{TT+p}')
            P(f'v_and_b32 v{SD+2*p+1}, s57, v{TT+p}')
        if rep == 0:
            for i in range(4): P(f'v_mul_f32 v{SD+i}, s56, v{SD+i}')
    P(f"""
    v_max3_f32 v12, v{SD}, v{SD+1}, v{SD+2}
    v_max_f32 v12, v12, v{SD+3}
    v_max_f32_dpp v12, v12, v12 quad_perm:[1,0,3,2] {DPPM}
    v_max_f32_dpp v12, v12, v12 quad_perm:[2,3,0,1] {DPPM}
    v_mov_b32 v13, v12
    v_permlane16_swap_b32 v12, v13
    v_max_f32 v12, v12, v13
    s_lshl_b32 s59, s53, 3
    v_add_u32 v23, s59, v22
    s_mov_b64 s[62:63], exec
    s_mov_b64 exec, 0x11
    ds_write_b32 v23, v12 offset:{L_MX}
    s_mov_b64 exec, s[62:63]
    """)
    lds_add(C_MAX)
    lds_wait(C_MAX, nkv, sleep=0)
    for i in range(nkv): P(f'ds_read_b32 v{K0+i}, v22 offset:{L_MX+8*i}')
    P('s_waitcnt lgkmcnt(0)')
    MX = 15
    P(f'v_mov_b32 v{MX}, v{K0}')
    i = 1
    while i < nkv:
        if i + 1 < nkv: P(f'v_max3_f32 v{MX}, v{MX}, v{K0+i}, v{K0+i+1}'); i += 2
        else: P(f'v_max_f32 v{MX}, v{MX}, v{K0+i}'); i += 1
    P(f'v_mul_f32 v13, s58, v{MX}')
    for i in range(4): P(f'v_fma_f32 v{SD+i}, v{SD+i}, s58, -v13')
    for i in range(4): P(f'v_exp_f32 v{SD+i}, v{SD+i}')
    P(f"""
    v_add_f32 v12, v{SD}, v{SD+1}
    v_add_f32 v13, v{SD+2}, v{SD+3}
    """)
    for i in range(4): P(f'v_cvt_pk_bf16_f32 v{SD+i}, v{SD+i}, v{SD+i}')
    P('v_add_f32 v12, v12, v13')
    G = 104
    for t in range(2):
        for r_ in range(4): P(f'ds_bpermute_b32 v{G+4*t+r_}, v{20+t}, v{SD+r_}')
    P(f"""
    v_add_f32_dpp v12, v12, v12 quad_perm:[1,0,3,2] {DPPM}
    v_add_f32_dpp v12, v12, v12 quad_perm:[2,3,0,1] {DPPM}
    v_mov_b32 v13, v12
    v_permlane16_swap_b32 v12, v13
    v_add_f32 v12, v12, v13
    s_mov_b64 s[62:63], exec
    s_mov_b64 exec, 0x11
    ds_write_b32 v23, v12 offset:{L_LS}
    s_mov_b64 exec, s[62:63]
    s_waitcnt lgkmcnt(1)
    """)
    for i in range(8):
        for j in range(4): P(f'v_and_b32 v{K0+4*i+j}, v{G+i}, v{MK+j}')
    GR = 112
    tag_fill(GR)
    P(f'v_mov_b32 v122, s6\nv_mov_b32 v123, s7')
    P('s_waitcnt vmcnt(0)')
    stamp(5)
    for i in range(8):
        c = '0' if i == 0 else f'v[{ACC}:{ACC+3}]'
        P(f'v_mfma_f32_16x16x32_bf16 v[{ACC}:{ACC+3}], v[{V0+4*i}:{V0+4*i+3}], v[{K0+4*i}:{K0+4*i+3}], {c}')
    P(f"""
    s_lshl_b32 s59, s53, 10
    v_lshlrev_b32 v16, 4, v1
    v_add_u32 v17, s59, v16
    ds_write_b128 v17, v[{ACC}:{ACC+3}] offset:{L_OSLOT}
    """)
    lds_add_rtn(C_O, 's60')
    ldone = P.lbl('Lkvdone')
    P(f"""
    s_cmp_lg_u32 s60, {nkv-1}
    s_cbranch_scc1 {ldone}
    """)
    P('v_lshlrev_b32 v18, 3, v1')
    for i in range(nkv):
        P(f'ds_read_b64 v[{K0+4*i}:{K0+4*i+1}], v18 offset:{L_OSLOT+1024*i}')
        P(f'ds_read_b64 v[{K0+4*i+2}:{K0+4*i+3}], v18 offset:{L_OSLOT+1024*i+512}')
    LS0 = 100
    for i in range(nkv): P(f'ds_read_b32 v{LS0+i}, v22 offset:{L_LS+8*i}')
    P(f"""
    s_lshl_b32 s59, s4, 4
    s_add_u32 s59, s59, s5
    s_mul_i32 s59, s59, {H3S}
    s_add_u32 s59, s59, {H3}
    s_waitcnt lgkmcnt(0)
    """)
    regs = list(range(nkv))
    while len(regs) > 1:
        nxt = []
        for a in range(0, len(regs) - 1, 2):
            x, y = regs[a], regs[a+1]
            for j in range(4): P(f'v_add_f32 v{K0+4*x+j}, v{K0+4*x+j}, v{K0+4*y+j}')
            P(f'v_add_f32 v{LS0+x}, v{LS0+x}, v{LS0+y}')
            nxt.append(x)
        if len(regs) % 2: nxt.append(regs[-1])
        regs = nxt
    make_granules(GR, K0)
    P(f"""
    v_mov_b32 v120, v{MX}
    v_mov_b32 v121, v{LS0}
    """)
    if cfg.h3_local:
        P(f"""
        s_add_u32 s65, s59, {H3L - H3}
        buffer_store_dwordx4 v[{GR}:{GR+3}], v16, s[44:47], s65 offen
        buffer_store_dwordx4 v[{GR+4}:{GR+7}], v16, s[44:47], s65 offen offset:1024
        s_mov_b64 exec, 0xff
        buffer_store_dwordx4 v[120:123], v16, s[44:47], s65 offen offset:2048
        s_mov_b64 exec, -1
        """)
    P(f"""
    buffer_store_dwordx4 v[{GR}:{GR+3}], v16, s[44:47], s59 offen sc1
    buffer_store_dwordx4 v[{GR+4}:{GR+7}], v16, s[44:47], s59 offen offset:1024 sc1
    s_mov_b64 exec, 0xff
    buffer_store_dwordx4 v[120:123], v16, s[44:47], s59 offen offset:2048 sc1
    s_mov_b64 exec, -1
    """)
    lds_add(FL_PUB)
    stamp(6)
    P(f'{ldone}:')
    if is_f:
        P(f"""
        s_cmp_lt_u32 s53, 5
        s_cbranch_scc1 L_down
        s_cmp_eq_u32 s53, 5
        s_cbranch_scc1 L_commF
        s_branch L_exit
        """)
    else:
        end_wave()

def pack_pair(G, ACC):
    P(f'v_mov_b32 v{G}, v{ACC}')
    P(f'v_mov_b32 v{G+1}, v{ACC+1}')
    P(f'v_mov_b32_dpp v{G}, v{ACC+2} row_shr:8 row_mask:0xf bank_mask:0xc')
    P(f'v_mov_b32_dpp v{G+1}, v{ACC+3} row_shr:8 row_mask:0xf bank_mask:0xc')

def store_addr():
    P(f"""
    v_and_b32 v12, 7, v2
    v_lshl_add_u32 v12, v3, 3, v12
    v_lshlrev_b32 v12, 5, v12
    v_lshrrev_b32 v6, 3, v2
    v_lshl_add_u32 v12, v6, 4, v12
    """)

def tag_fill1(G):
    P(f'v_mov_b32 v{G+2}, s6')
    P(f'v_mov_b32 v{G+3}, s7')

def store_block(sb, ACC, G):
    pack_pair(G, ACC)
    P(f"""
    s_lshl_b32 s60, {sb}, 10
    s_add_u32 s59, s59, s60
    buffer_store_dwordx4 v[{G}:{G+3}], v12, s[44:47], s59 offen sc1
    """)

def store_half(ACC, G):
    T = G + 4
    for j in range(4): P(f'v_mov_b32 v{T+j}, v{ACC+j}')
    for j in range(4): P(f'v_permlane32_swap_b32 v{ACC+j}, v{T+j}')
    for j in range(4): P(f'v_add_f32_dpp v{ACC+j}, v{T+j}, v{ACC+j} row_shl:8 {DPPM}')
    pack_pair(G, ACC)
    P(f"""
    s_add_u32 s59, s59, 4096
    s_mov_b64 s[62:63], exec
    s_mov_b64 exec, 0xffffffff
    buffer_store_dwordx4 v[{G}:{G+3}], v12, s[44:47], s59 offen sc1
    s_mov_b64 exec, s[62:63]
    """)

def down_role():
    W0, MK, XS, ACC, QA, QB, G = 32, 8, 64, 72, 76, 80, 84
    P('L_down:')
    role(8)
    lds_wait(FL_PUB, 1, sleep=1)
    srd(36, 24, 4608*1152)
    P(f"""
    s_mul_i32 s54, s4, 9
    s_add_u32 s54, s54, s5
    s_sub_u32 s54, s54, 7             ; phi
    s_mul_i32 s55, s54, {32*1152}
    s_cmp_eq_u32 s53, 4
    s_cbranch_scc1 L_down_half
    s_lshl_b32 s56, s53, 8
    s_add_u32 s55, s55, s56
    v_mul_u32_u24 v4, 1152, v3
    v_lshl_add_u32 v4, v2, 4, v4
    """)
    for e in range(8):
        P(f'buffer_load_dwordx4 v[{W0+4*e}:{W0+4*e+3}], v4, s[36:39], s55 offen nt')
        if e < 7: P(f's_add_u32 s55, s55, {4*1152}')
    P('v_lshlrev_b32 v5, 2, v3')
    P('s_mov_b32 s57, 16')
    P('s_branch L_down_go')
    P('L_down_half:')
    P(f"""
    s_add_u32 s55, s55, 1024
    v_lshrrev_b32 v6, 3, v2
    v_lshl_add_u32 v6, v6, 2, v3
    v_mul_u32_u24 v4, 1152, v6
    v_and_b32 v7, 7, v2
    v_lshl_add_u32 v4, v7, 4, v4
    v_lshlrev_b32 v5, 2, v6
    """)
    for t in range(4):
        P(f'buffer_load_dwordx4 v[{W0+4*t}:{W0+4*t+3}], v4, s[36:39], s55 offen nt')
        if t < 3: P(f's_add_u32 s55, s55, {8*1152}')
    P('s_mov_b32 s57, 32')
    P('L_down_go:')
    masks(MK)
    store_addr()
    tag_fill1(G)
    for e in range(8):
        P(f'v_mov_b32 v{104+e}, v5')
        if e < 7: P('v_add_u32 v5, s57, v5')
    P(f"""
    s_mul_i32 s59, s54, {PS}
    s_add_u32 s59, s59, {FP}
    v_and_b32 v6, 31, v1
    v_lshlrev_b32 v13, 2, v6
    """)
    P('s_barrier')
    P('s_barrier')
    stamp(7)
    P(f"""
    ds_read_b32 v16, v13 offset:{L_RED3}
    ds_read_b32 v17, v13 offset:{L_RED3+128}
    ds_read_b32 v18, v13 offset:{L_RED3+256}
    ds_read_b32 v19, v13 offset:{L_RED3+384}
    s_waitcnt lgkmcnt(0)
    v_add_f32 v16, v16, v17
    v_add_f32 v18, v18, v19
    """)
    rne_many([16, 18])
    k1 = f32hex(0.044715); k2 = f32hex(-2.0*math.sqrt(2.0/math.pi)*math.log2(math.e))
    P(f"""
    s_mov_b32 s60, {k1:#x}
    s_mov_b32 s61, {k2:#x}
    v_mul_f32 v17, v16, v16
    v_mul_f32 v17, v17, v16
    v_fma_f32 v17, v17, s60, v16
    v_mul_f32 v17, s61, v17
    v_exp_f32 v17, v17
    v_add_f32 v17, 1.0, v17
    v_rcp_f32 v17, v17
    v_mul_f32 v16, v16, v17
    """)
    rne('v16', 'v16')
    P('v_mul_f32 v16, v16, v18')
    P('v_cvt_pk_bf16_f32 v16, v16, v16')
    for e in range(8): P(f'ds_bpermute_b32 v{XS+e}, v{104+e}, v16')
    P('s_waitcnt vmcnt(0) lgkmcnt(0)')
    P(f"""
    s_cmp_eq_u32 s53, 4
    s_cbranch_scc1 L_down_half2
    """)
    diag_mm(ACC, [W0+4*e for e in range(8)], [f'v{XS+e}' for e in range(8)], MK, QA, QB)
    store_block('s53', ACC, G)
    stamp(6)
    end_wave()
    P('L_down_half2:')
    diag_mm(ACC, [W0+4*t for t in range(4)], [f'v{XS+t}' for t in range(4)], MK, QA, QB)
    store_half(ACC, G)
    stamp(6)
    end_wave()

def wo_role(suffix, nkv):
    P(f'L_wo{suffix}:')
    P('s_barrier')
    if cfg.order2 and suffix == 'Q' and cfg.q_order == 'wo_kv': lds_wait(C_G, 1, sleep=2)
    elif cfg.order2: lds_wait(C_KVI, nkv, sleep=2)
    elif suffix == 'M': lds_wait(C_B2, 6, sleep=2)
    elif cfg.q_wo_gate: lds_wait(C_G, 1, sleep=2)
    P('s_branch L_wo_common')

def wo_common():
    W0, MK, XS, G = 32, 8, 112, 16
    A0, A1, QA, QB = 24, 28, 0, 0
    P('L_wo_common:')
    role(4)
    srd(36, 16, 4096*1152)
    P(f"""
    s_sub_u32 s53, s3, 7              ; 0,1,2
    s_mov_b32 s54, s5                 ; a
    s_mul_i32 s55, s54, 9
    s_lshl_b32 s56, s4, 8
    """)
    def rowbase(dst, e):
        P(f"""
        s_add_u32 s57, s55, {e}
        s_bfe_u32 s58, s57, 0x10003
        s_lshl_b32 s58, s58, 7
        s_lshr_b32 s60, s57, 4
        s_lshl_b32 s60, s60, 5
        s_add_u32 s58, s58, s60
        s_and_b32 s60, s57, 7
        s_add_u32 s58, s58, s60
        s_add_u32 s58, s58, s56
        s_mul_i32 {dst}, s58, 1152
        """)
    def common_post():
        lds_add(C_WO)
        masks(MK)
        store_addr()
        tag_ready()
        P(f"""
        s_mul_i32 s59, s4, 7
        s_add_u32 s59, s59, s54
        s_mul_i32 s59, s59, {PS}
        s_add_u32 s59, s59, {XP}
        """)
    P(f"""
    s_cmp_eq_u32 s53, 2
    s_cbranch_scc1 L_wo_half
    s_lshl_b32 s65, s53, 9
    v_mul_u32_u24 v4, {8*1152}, v3
    v_lshl_add_u32 v4, v2, 4, v4
    """)
    for e in range(10):
        if e == 9:
            P(f"""
            s_cmp_lt_u32 s54, 6
            s_cbranch_scc1 L_wo_l9
            """)
        rowbase('s66', e)
        P('s_add_u32 s66, s66, s65')
        P(f'buffer_load_dwordx4 v[{W0+8*e}:{W0+8*e+3}], v4, s[36:39], s66 offen nt')
        P(f'buffer_load_dwordx4 v[{W0+8*e+4}:{W0+8*e+7}], v4, s[36:39], s66 offen offset:256 nt')
    P('L_wo_l9:')
    P('v_lshlrev_b32 v5, 2, v3')
    common_post()
    GA, GB = 16, 20
    tag_fill1(GA); tag_fill1(GB)
    stamp(5)
    P('s_barrier')
    stamp(6)
    XS2 = [112, 113, 114, 115, 116, 117, 118, 119, 13, 14]
    for e in range(10): P(f'ds_read_b32 v{XS2[e]}, v5 offset:{L_XA+16*e}')
    P('s_waitcnt vmcnt(0) lgkmcnt(0)')
    def mm(n):
        qs = ((60+0, ), )
        QAa, QBb = 0, 0
        def prep(e, q):
            for i in range(4): P(f'v_and_b32 v{q+i}, v{XS2[e]}, v{MK+i}')
        Q2 = (4, 4)
        for e in range(n):
            q = 4 if e == 0 else W0 + 8*(e-1)
            prep(e, q)
            c0 = '0' if e == 0 else f'v[{A0}:{A0+3}]'
            c1 = '0' if e == 0 else f'v[{A1}:{A1+3}]'
            P(f'v_mfma_f32_16x16x32_bf16 v[{A0}:{A0+3}], v[{W0+8*e}:{W0+8*e+3}], v[{q}:{q+3}], {c0}')
            P(f'v_mfma_f32_16x16x32_bf16 v[{A1}:{A1+3}], v[{W0+8*e+4}:{W0+8*e+7}], v[{q}:{q+3}], {c1}')
    P(f"""
    s_cmp_lt_u32 s54, 6
    s_cbranch_scc1 L_wo_m9
    """)
    mm(10)
    P('s_branch L_wo_st')
    P('L_wo_m9:')
    mm(9)
    P('L_wo_st:')
    pack_pair(GA, A0)
    pack_pair(GB, A1)
    P(f"""
    s_lshl_b32 s60, s53, 11
    s_add_u32 s59, s59, s60
    buffer_store_dwordx4 v[{GA}:{GA+3}], v12, s[44:47], s59 offen sc1
    buffer_store_dwordx4 v[{GB}:{GB+3}], v12, s[44:47], s59 offen offset:1024 sc1
    """)
    stamp(7)
    end_wave()
    P('L_wo_half:')
    P(f"""
    v_mul_u32_u24 v4, {8*1152}, v3
    v_and_b32 v6, 7, v2
    v_lshl_add_u32 v4, v6, 4, v4
    v_add_u32 v4, 1024, v4
    v_cmp_lt_u32 s[68:69], 7, v2
    """)
    for t in range(5):
        rowbase('s66', 2*t)
        rowbase('s67', 2*t+1)
        if t == 4:
            P(f"""
            s_cmp_lt_u32 s54, 6
            s_cselect_b32 s67, 0x40000000, s67
            """)
        P(f"""
        v_mov_b32 v6, s66
        v_mov_b32 v7, s67
        v_cndmask_b32 v6, v6, v7, s[68:69]
        v_add_u32 v6, v6, v4
        buffer_load_dwordx4 v[{W0+4*t}:{W0+4*t+3}], v6, s[36:39], 0 offen nt
        """)
    P(f"""
    v_lshrrev_b32 v5, 3, v2
    v_lshl_add_u32 v5, v5, 2, v3
    v_lshlrev_b32 v5, 2, v5
    """)
    common_post()
    GH = 96
    tag_fill1(GH)
    stamp(5)
    P('s_barrier')
    stamp(6)
    for t in range(5): P(f'ds_read_b32 v{112+t}, v5 offset:{L_XA+32*t}')
    P('s_waitcnt vmcnt(0) lgkmcnt(0)')
    diag_mm(72, [W0+4*t for t in range(5)], [f'v{112+t}' for t in range(5)], MK, 76, 80)
    store_half(72, GH)
    stamp(7)
    end_wave()

def q_fetch(nxt):
    l = P.lbl('Lqf'); l2 = P.lbl('Lqf'); l3 = P.lbl('Lqf')
    P(f"""
    s_cmp_gt_u32 s3, 4
    s_cbranch_scc1 {nxt}
    s_lshl_b32 s38, s4, 10
    s_lshl_b32 s39, s3, 8
    s_add_u32 s38, s38, s39
    s_add_u32 s38, s38, {QF-256}
    s_add_u32 s36, s34, s38
    s_addc_u32 s37, s35, 0
    s_mov_b32 s42, 0x40000
    """)
    if cfg.q_direct:
        P(f"""
        s_branch {l3}
        {l}:
        s_sleep {cfg.q_sleep}
        {l3}:
        s_load_dwordx2 s[40:41], s[36:37], 128 glc
        s_load_dwordx16 s[48:63], s[36:37], 0 glc
        s_load_dwordx16 s[64:79], s[36:37], 64 glc
        s_sub_u32 s42, s42, 1
        s_cbranch_scc1 {ABORT}
        s_waitcnt lgkmcnt(0)
        s_cmp_lg_u32 s41, s7
        s_cbranch_scc1 {l}
        s_add_u32 s43, s48, s7
        """)
        for i in range(49, 80): P(f's_add_u32 s43, s43, s{i}')
        P(f"""
        s_cmp_lg_u32 s43, s40
        s_cbranch_scc1 {l3}
        """)
    else:
        P(f"""
        s_branch {l3}
        {l}:
        s_sleep {cfg.q_sleep}
        {l3}:
        s_load_dwordx2 s[40:41], s[36:37], 128 glc
        s_sub_u32 s42, s42, 1
        s_cbranch_scc1 {ABORT}
        s_waitcnt lgkmcnt(0)
        s_cmp_lg_u32 s41, s7
        s_cbranch_scc1 {l}
        {l2}:
        s_load_dwordx16 s[48:63], s[36:37], 0 glc
        s_load_dwordx16 s[64:79], s[36:37], 64 glc
        s_sub_u32 s42, s42, 1
        s_cbranch_scc1 {ABORT}
        s_waitcnt lgkmcnt(0)
        s_add_u32 s43, s48, s7
        """)
        for i in range(49, 80): P(f's_add_u32 s43, s43, s{i}')
        P(f"""
        s_cmp_lg_u32 s43, s40
        s_cbranch_scc1 {l2}
        """)
    for i in range(32): P(f'v_writelane_b32 v20, s{48+i}, {i}')
    P(f"""
    v_and_b32 v21, 3, v1
    v_lshlrev_b32 v21, 2, v21
    v_bfe_u32 v22, v1, 2, 2
    v_add_u32 v21, v21, v22
    v_and_b32 v22, 16, v1
    v_add_u32 v21, v21, v22
    v_lshlrev_b32 v21, 2, v21
    s_lshl_b32 s38, s3, 7
    v_add_u32 v21, s38, v21
    s_mov_b64 exec, 0xffffffff
    ds_write_b32 v21, v20 offset:{L_Q-128}
    s_mov_b64 exec, -1
    """)
    srd(44, 34, 0x40000000)
    lds_add(FL_Q)

def ln_stats(regs, mean_b, rstd, t1, t2, maskfix=None):
    P(f'v_add_f32 {t1}, v{regs[0]}, v{regs[1]}')
    for r in regs[2:]: P(f'v_add_f32 {t1}, {t1}, v{r}')
    wave_sum(t1, t2)
    P(f's_mov_b32 s60, {f32hex(1.0/576.0):#x}')
    P(f'v_mul_f32 {t1}, s60, {t1}')
    first = True
    for r in regs:
        P(f'v_sub_f32 {t2}, v{r}, {t1}')
        if maskfix and r in maskfix[0]: P(f'v_cndmask_b32 {t2}, 0, {t2}, {maskfix[1]}')
        if first: P(f'v_mul_f32 {rstd}, {t2}, {t2}'); first = False
        else: P(f'v_fmac_f32 {rstd}, {t2}, {t2}')
    wave_sum(rstd, t2)
    P(f'v_mul_f32 {rstd}, s60, {rstd}')
    rne(rstd, rstd)
    P(f'v_add_f32 {rstd}, {f32hex(1e-5):#x}, {rstd}')
    rne(rstd, rstd)
    P(f'v_sqrt_f32 {rstd}, {rstd}')
    rne(rstd, rstd)
    P(f'v_rcp_f32 {rstd}, {rstd}')
    rne(mean_b, t1)

def fold_reduce(base, slot0):
    for i in range(6): P(f'ds_read_b128 v[{base+4*i}:{base+4*i+3}], v16 offset:{L_SLOT+1024*(slot0+i)}')
    P('s_waitcnt lgkmcnt(0)')
    for (x, y) in ((0, 1), (2, 3), (4, 5), (0, 2), (0, 4)):
        for jj in range(4): P(f'v_add_f32 v{base+4*x+jj}, v{base+4*x+jj}, v{base+4*y+jj}')
    T = base + 4
    for jj in range(4): P(f'v_mov_b32 v{T+jj}, v{base+jj}')
    for jj in range(4): P(f'v_permlane32_swap_b32 v{base+jj}, v{T+jj}')
    for jj in range(4): P(f'v_add_f32_dpp v{base+jj}, v{T+jj}, v{base+jj} row_shl:8 {DPPM}')

def silu(regs, tmps):
    P(f's_mov_b32 s60, {f32hex(-1.4426950408889634):#x}')
    for r in regs: P(f'v_lshlrev_b32 v{r}, 16, v{r}')
    for r, t in zip(regs, tmps): P(f'v_mul_f32 v{t}, s60, v{r}')
    for r, t in zip(regs, tmps): P(f'v_exp_f32 v{t}, v{t}')
    for r, t in zip(regs, tmps): P(f'v_add_f32 v{t}, 1.0, v{t}')
    for r, t in zip(regs, tmps): P(f'v_rcp_f32 v{t}, v{t}')
    for r, t in zip(regs, tmps): P(f'v_mul_f32 v{r}, v{r}, v{t}')
    for r, t in zip(regs, tmps): P(f'v_cvt_pk_bf16_f32 v{r}, v{r}, v{r}')

def wq_role():
    WB, MK, XS, ACC, QA, QB, XA = 56, 8, 104, 116, 120, 124, 32
    XSB = L_SLOT + 12*1024
    P('L_wq:')
    role(2)
    srd(36, 14, 576*8192)
    srd(40, 8, 1152)
    P(f"""
    s_sub_u32 s53, s3, 1              ; j
    s_sub_u32 s54, s5, 3              ; qi
    s_mul_i32 s57, s53, 96
    v_lshlrev_b32 v4, 1, v1
    """)
    for n in range(9): P(f'buffer_load_ushort v{XA+n}, v4, s[40:43], 0 offen offset:{128*n}')
    P(f"""
    v_and_b32 v6, 31, v1
    v_lshlrev_b32 v7, 1, v6
    s_lshl_b32 s58, s57, 1
    buffer_load_ushort v{XA+9}, v4, s[40:43], s58 offen
    buffer_load_ushort v{XA+10}, v7, s[40:43], s58 offen offset:128
    v_lshrrev_b32 v13, 3, v2
    v_lshl_add_u32 v13, v13, 2, v3
    v_lshlrev_b32 v5, 13, v13
    v_and_b32 v7, 7, v2
    v_lshl_add_u32 v5, v7, 4, v5
    s_lshl_b32 s58, s57, 13
    s_lshl_b32 s59, s4, 9
    s_add_u32 s58, s58, s59
    s_lshl_b32 s59, s54, 7
    s_add_u32 s58, s58, s59
    """)
    for t in range(12):
        P(f'buffer_load_dwordx4 v[{WB+4*t}:{WB+4*t+3}], v5, s[36:39], s58 offen nt')
        if t < 11: P(f's_add_u32 s58, s58, {8*8192}')
    stamp(1)
    P('s_barrier')
    P(f"""
    v_add_u32 v28, s57, v1
    v_lshlrev_b32 v28, 3, v28
    v_add_u32 v29, s57, v6
    v_lshlrev_b32 v29, 3, v29
    v_add_u32 v29, 512, v29
    v_lshlrev_b32 v31, 2, v13
    s_lshl_b32 s67, s53, 10
    v_add_u32 v31, s67, v31
    v_lshlrev_b32 v30, 2, v1
    v_add_u32 v30, s67, v30
    v_lshlrev_b32 v27, 2, v6
    v_add_u32 v27, s67, v27
    """)
    masks(MK)
    P('s_waitcnt vmcnt(12)')
    tag_ready()
    for n in range(11): P(f'v_lshlrev_b32 v{XA+n}, 16, v{XA+n}')
    ln_stats(list(range(XA, XA+9)), 'v16', 'v17', 'v18', 'v19')
    for n in (9, 10): P(f'v_sub_f32 v{XA+n}, v{XA+n}, v16')
    rne_many([XA+9, XA+10])
    for n in (9, 10): P(f'v_mul_f32 v{XA+n}, v{XA+n}, v17')
    rne_many([XA+9, XA+10])
    P(f"""
    v_mov_b32 v20, v{XA+9}
    v_mov_b32 v21, v{XA+10}
    s_mov_b32 s66, {MODP}
    s_mov_b32 s68, {MODP+9216}
    s_mov_b32 s69, {MODP+4608}
    s_mov_b32 s70, {MODP+9216+4608}
    """)
    G = 32
    sr = ['s66', 's68', 's69', 's70']
    loads = []
    for st_, va in enumerate(('v28', 'v29')):
        for i in range(4):
            r = G + 8*st_ + 2*i
            loads.append(f'buffer_load_dwordx2 v[{r}:{r+1}], {va}, s[44:47], {sr[i]} offen sc1')
    if cfg.wq_first:
        P('s_waitcnt vmcnt(0)')
        stamp(5)
    poll(loads, check_tags32([G+1+2*i for i in range(8)]))
    stamp(2)
    for st_ in range(2):
        b = G + 8*st_
        P(f'v_add_f32 v{b}, v{b}, v{b+2}')
        P(f'v_add_f32 v{b+4}, v{b+4}, v{b+6}')
    rne_many([G, G+4, G+8, G+12])
    for st_ in range(2): P(f'v_add_f32 v{G+8*st_+4}, 1.0, v{G+8*st_+4}')
    rne_many([G+4, G+12])
    for st_ in range(2): P(f'v_mul_f32 v{20+st_}, v{20+st_}, v{G+8*st_+4}')
    rne_many([20, 21])
    for st_ in range(2): P(f'v_add_f32 v{20+st_}, v{20+st_}, v{G+8*st_}')
    for st_ in range(2): P(f'v_cvt_pk_bf16_f32 v{20+st_}, v{20+st_}, v{20+st_}')
    P(f"""
    ds_write_b32 v30, v20 offset:{XSB}
    ds_write_b32 v27, v21 offset:{XSB+256}
    """)
    for t in range(12): P(f'ds_read_b32 v{XS+t}, v31 offset:{XSB+32*t}')
    P('s_waitcnt lgkmcnt(0)')
    stamp(3)
    diag_mm(ACC, [WB+4*t for t in range(12)], [f'v{XS+t}' for t in range(12)], MK, QA, QB)
    P(f"""
    s_lshl_b32 s59, s53, 10
    v_lshlrev_b32 v16, 4, v1
    v_add_u32 v19, s59, v16
    ds_write_b128 v19, v[{ACC}:{ACC+3}] offset:{L_SLOT}
    """)
    lds_add_rtn(C_RED, 's60')
    P(f"""
    s_cmp_lg_u32 s60, 5
    s_cbranch_scc1 L_wq_done
    """)
    fold_reduce(WB, 0)
    for r in range(4): P(f'v_mov_b32_dpp v{WB+4+r}, v{WB+r} quad_perm:[1,0,3,2] {DPPM}')
    for r in range(4): P(f'v_cvt_pk_bf16_f32 v{WB+r}, v{WB+r}, v{WB+4+r}')
    P(f"""
    v_add_u32 v{WB+4}, v{WB}, v{WB+1}
    v_add3_u32 v{WB+4}, v{WB+4}, v{WB+2}, v{WB+3}
    s_mov_b32 s60, 0x00550055
    s_mov_b32 s61, 0
    v_cndmask_b32 v{WB+4}, 0, v{WB+4}, s[60:61]
    v_add_u32_dpp v{WB+4}, v{WB+4}, v{WB+4} quad_perm:[2,3,0,1] {DPPM}
    v_add_u32_dpp v{WB+4}, v{WB+4}, v{WB+4} row_shl:4 {DPPM} bound_ctrl:0
    v_lshrrev_b32 v19, 1, v2
    v_lshl_add_u32 v19, v3, 2, v19
    v_lshlrev_b32 v19, 4, v19            ; (gq*4 + c/2)*16
    v_readlane_b32 s60, v{WB+4}, 0
    v_readlane_b32 s61, v{WB+4}, 16
    s_add_u32 s60, s60, s61
    s_add_u32 s60, s60, s7
    s_mov_b32 s61, 128
    v_writelane_b32 v{WB}, s60, 1
    v_writelane_b32 v{WB+1}, s7, 1
    v_writelane_b32 v19, s61, 1
    s_lshl_b32 s59, s4, 10
    s_lshl_b32 s60, s54, 8
    s_add_u32 s59, s59, s60
    s_add_u32 s59, s59, {QF}
    s_mov_b64 exec, 0x00550057
    buffer_store_dwordx4 v[{WB}:{WB+3}], v19, s[44:47], s59 offen sc1
    s_mov_b64 exec, -1
    """)
    lds_add(C_G)
    stamp(4)
    P('L_wq_done:')
    q_fetch('L_exit')
    end_wave()

def mod_role():
    WA, MK, XS, ACC, QA, QB = 32, 8, 104, 116, 120, 124
    XSB = L_SLOT + 12*1024
    P('L_mod:')
    role(3)
    P(f"""
    s_mov_b32 s54, s2
    s_cmp_ge_u32 s54, 36
    s_cbranch_scc1 L_mod_noA
    """)
    srd(36, 28, 576*6912)
    srd(40, 26, 1152)
    P(f"""
    s_sub_u32 s53, s3, 1              ; j
    v_lshlrev_b32 v4, 1, v1
    s_and_b32 s56, s54, 1             ; kh
    s_mul_i32 s57, s56, 288
    s_mul_i32 s58, s53, 48
    s_add_u32 s57, s57, s58
    s_lshl_b32 s58, s57, 1
    buffer_load_ushort v16, v4, s[40:43], s58 offen
    v_lshrrev_b32 v13, 3, v2
    v_lshl_add_u32 v13, v13, 2, v3
    v_mul_u32_u24 v5, 6912, v13
    v_and_b32 v7, 7, v2
    v_lshl_add_u32 v5, v7, 4, v5
    s_lshr_b32 s55, s54, 1            ; cbk
    s_mul_i32 s58, s57, 6912
    s_lshl_b32 s59, s55, 7
    s_add_u32 s58, s58, s59
    """)
    for t in range(6):
        P(f'buffer_load_dwordx4 v[{WA+4*t}:{WA+4*t+3}], v5, s[36:39], s58 offen nt')
        if t < 5: P(f's_add_u32 s58, s58, {8*6912}')
    P('s_barrier')
    P(f"""
    v_lshlrev_b32 v31, 2, v13
    s_lshl_b32 s67, s53, 10
    v_add_u32 v31, s67, v31
    v_lshlrev_b32 v30, 2, v1
    v_add_u32 v30, s67, v30
    s_mul_i32 s65, s56, 9216
    s_lshl_b32 s60, s55, 9
    s_add_u32 s65, s65, s60
    s_add_u32 s65, s65, {MODP}
    v_lshlrev_b32 v29, 5, v3
    v_add_u32 v29, v29, v2
    v_lshlrev_b32 v29, 3, v29
    """)
    masks(MK)
    tag_ready()
    for rr in range(4): P(f'v_mov_b32 v{61+2*rr}, s7')
    P('s_waitcnt vmcnt(6)')
    stamp(1)
    silu([16], [19])
    P(f'ds_write_b32 v30, v16 offset:{XSB}')
    for t in range(6): P(f'ds_read_b32 v{XS+t}, v31 offset:{XSB+32*t}')
    P('s_waitcnt vmcnt(0) lgkmcnt(0)')
    stamp(2)
    lds_add(C_G)
    diag_mm(ACC, [WA+4*t for t in range(6)], [f'v{XS+t}' for t in range(6)], MK, QA, QB)
    P(f"""
    s_lshl_b32 s59, s53, 10
    v_lshlrev_b32 v16, 4, v1
    v_add_u32 v19, s59, v16
    ds_write_b128 v19, v[{ACC}:{ACC+3}] offset:{L_SLOT}
    """)
    lds_add_rtn(C_RED, 's60')
    P(f"""
    s_cmp_lg_u32 s60, 5
    s_cbranch_scc1 L_mod_fin
    """)
    fold_reduce(WA, 0)
    for rr in range(4): P(f'v_mov_b32 v{60+2*rr}, v{WA+rr}')
    P('s_mov_b64 exec, 0x00ff00ff')
    for rr in range(4):
        P(f'buffer_store_dwordx2 v[{60+2*rr}:{61+2*rr}], v29, s[44:47], s65 offen offset:{64*rr} sc1')
    P('s_mov_b64 exec, -1')
    lds_add(C_H)
    stamp(3)
    P('s_branch L_mod_fin')
    P('L_mod_noA:')
    P('s_barrier')
    if cfg.b_on != 'M': lds_add(C_G)
    lds_add(C_H)
    tag_ready()
    P('L_mod_fin:')
    if cfg.b_on == 'M':
        lds_wait(C_H, 1, sleep=0)
        if cfg.order2:
            P(f"""
            s_cmp_lt_u32 s2, 12
            s_cbranch_scc1 L_mod_nob
            s_sub_u32 s53, s3, 1
            s_sub_u32 s65, s2, 36
            s_cmp_ge_u32 s2, 36
            s_cbranch_scc1 L_mod_bgo
            s_mov_b32 s65, s2
            """)
            if cfg.m_order == 'a_b_kv_wo':
                P('s_branch L_mod_bgo')
            P('s_mov_b32 s98, s65' if not cfg.hdbg else 's_mov_b32 s99, s65')
            q_fetch('L_mod_q2')
            P('L_mod_q2:')
            P('s_mov_b32 s65, s98' if not cfg.hdbg else 's_mov_b32 s65, s99')
            P('s_sub_u32 s53, s3, 1')
            P('s_mov_b32 s100, 1')
            lds_wait(C_WO, 3, sleep=2)
            P('s_branch L_mod_bgo2')
            P('L_mod_bgo:')
            P('s_mov_b32 s100, 0')
            P('L_mod_bgo2:')
        else:
            P(f"""
            s_cmp_lt_u32 s2, 12
            s_cbranch_scc1 L_mod_nob
            s_sub_u32 s65, s2, 12
            s_sub_u32 s53, s3, 1
            """)
        modb_body('M')
        if cfg.order2:
            P('s_cmp_lg_u32 s100, 0\ns_cbranch_scc1 L_exit')
        P('s_branch L_mod_q')
        P('L_mod_nob:')
        lds_add(C_B2)
        P('L_mod_q:')
    q_fetch('L_exit')
    end_wave()

def modb_body(cls):
    WB, MK, XS, ACC, QA, QB, G = 56, 8, 104, 116, 120, 124, 32
    done = 'L_exit' if cls == 'Q' else 'L_modb_done'
    srd(36, 28, 576*6912)
    srd(40, 26, 1152)
    P(f"""
    v_lshlrev_b32 v4, 1, v1
    s_mul_i32 s66, s53, 96
    s_lshl_b32 s59, s66, 1
    buffer_load_ushort v17, v4, s[40:43], s59 offen
    buffer_load_ushort v18, v4, s[40:43], s59 offen offset:128
    v_lshrrev_b32 v13, 3, v2
    v_lshl_add_u32 v13, v13, 2, v3
    v_mul_u32_u24 v5, 6912, v13
    v_and_b32 v7, 7, v2
    v_lshl_add_u32 v5, v7, 4, v5
    v_lshlrev_b32 v31, 2, v13
    s_lshl_b32 s67, s53, 9
    v_add_u32 v31, s67, v31
    v_lshlrev_b32 v30, 2, v1
    v_add_u32 v30, s67, v30
    s_mul_i32 s58, s66, 6912
    s_lshl_b32 s59, s65, 7
    s_add_u32 s58, s58, s59
    s_add_u32 s58, s58, 2304
    """)
    def wloads():
        for t in range(12):
            if cls == 'Q' and cfg.b_k and t >= cfg.b_k: P(f's_waitcnt vmcnt({cfg.b_k-1})')
            P(f'buffer_load_dwordx4 v[{WB+4*t}:{WB+4*t+3}], v5, s[36:39], s58 offen nt')
            if t < 11: P(f's_add_u32 s58, s58, {8*6912}')
    if cls == 'M':
        wloads()
        lds_add(C_B2)
        masks(MK)
        P('s_waitcnt vmcnt(12)')
    else:
        masks(MK)
        P('s_waitcnt vmcnt(0)')
        tag_ready()
    tag_fill(G)
    silu([17, 18], [19, 20])
    P(f"""
    ds_write_b32 v30, v17 offset:{L_XS}
    ds_write_b32 v30, v18 offset:{L_XS+256}
    """)
    for t in range(12): P(f'ds_read_b32 v{XS+t}, v31 offset:{L_XS+32*t}')
    if cls == 'Q':
        lds_wait(C_G, 1, sleep=2)
        stamp(1)
        wloads()
    P('s_waitcnt vmcnt(0) lgkmcnt(0)')
    diag_mm(ACC, [WB+4*t for t in range(12)], [f'v{XS+t}' for t in range(12)], MK, QA, QB)
    P(f"""
    s_lshl_b32 s59, s53, 10
    v_lshlrev_b32 v16, 4, v1
    v_add_u32 v19, s59, v16
    ds_write_b128 v19, v[{ACC}:{ACC+3}] offset:{L_SLOT+6*1024}
    """)
    lds_add_rtn(C_B, 's60')
    P(f"""
    s_cmp_lg_u32 s60, 5
    s_cbranch_scc1 {done}
    """)
    fold_reduce(WB, 6)
    rne_many([WB+jj for jj in range(4)])
    make_granules(G, WB)
    P(f"""
    s_lshl_b32 s59, s65, 9
    s_add_u32 s59, s59, {MODF}
    v_lshlrev_b32 v19, 3, v3
    v_add_u32 v19, v19, v2
    v_lshlrev_b32 v19, 5, v19
    s_mov_b64 exec, 0x00ff00ff
    buffer_store_dwordx4 v[{G}:{G+3}], v19, s[44:47], s59 offen sc1
    buffer_store_dwordx4 v[{G+4}:{G+7}], v19, s[44:47], s59 offen offset:16 sc1
    s_mov_b64 exec, -1
    """)
    stamp(4)
    if cls == 'Q': end_wave()
    else: P('L_modb_done:')

def modb_role():
    P('L_modb:')
    P('s_barrier')
    if cfg.b_on != 'Q':
        P('s_branch L_end')
        return
    P(f"""
    s_sub_u32 s65, s2, 48            ; b
    s_cmp_ge_u32 s65, 36
    s_cbranch_scc1 L_exit
    s_sub_u32 s53, s3, 7              ; j
    """)
    modb_body('Q')

def prefetch_code(sfx='', dst=16):
    if not cfg.prefetch_code: return
    P(f"""
    s_getpc_b64 s[52:53]
    L_pc{sfx}:
    s_sub_u32 s52, s52, L_pc{sfx}-{KN}
    s_subb_u32 s53, s53, 0
    v_lshlrev_b32 v4, 7, v1
    """)
    for i in range(CODE_PF):
        P(f'v_cmp_gt_u32 vcc, L_codeend-{KN}, v4')
        P('s_and_saveexec_b64 s[62:63], vcc')
        P(f'global_load_dword v{dst+i}, v4, s[52:53]')
        P('s_mov_b64 exec, s[62:63]')
        P('v_add_u32 v4, 0x2000, v4')

def reduce4(a, b, n_i, base):
    regs = list(range(n_i))
    while len(regs) > 1:
        nxt = []
        for k in range(0, len(regs) - 1, 2):
            x, y = regs[k], regs[k+1]
            for j in range(2): P(f'v_add_f32 v{base+4*x+j}, v{base+4*x+j}, v{base+4*y+j}')
            nxt.append(x)
        if len(regs) % 2: nxt.append(regs[-1])
        regs = nxt
    for d in ('row_ror:4', 'row_ror:8'):
        for j in range(2): P(f'v_add_f32_dpp v{base+j}, v{base+j}, v{base+j} {d} {DPPM}')
    xrow_multi('v_add_f32', [f'v{base+j}' for j in range(2)], [f'v{base+2+j}' for j in range(2)])

def commA_role():
    P('L_commA:')
    role(5)
    P('s_setprio 3')
    P('s_barrier')
    P(f"""
    s_mov_b32 s54, s5                 ; a
    s_mul_i32 s55, s4, 7
    s_add_u32 s55, s55, s54           ; rho
    v_and_b32 v112, 3, v1
    v_lshrrev_b32 v4, 1, v112           ; pi
    s_lshl_b32 s56, s55, 1
    v_add_u32 v4, s56, v4
    v_and_b32 v4, 7, v4
    s_lshr_b32 s56, s55, 2
    s_lshl_b32 s56, s56, 5
    v_add_u32 v4, s56, v4
    v_and_b32 v5, 1, v112               ; gamma
    v_lshl_add_u32 v4, v5, 4, v4
    v_lshlrev_b32 v113, 1, v4
    v_lshlrev_b32 v114, 4, v112
    """)
    srd(40, 8, 1152)
    P(f"""
    buffer_load_ushort v116, v113, s[40:43], 0 offen
    buffer_load_ushort v117, v113, s[40:43], 0 offen offset:16
    s_cmp_eq_u32 s54, 6
    s_cselect_b32 s57, 10, 9            ; E
    s_mul_i32 s56, s54, 9
    v_add_u32 v4, s56, v2               ; l_src = 9a + e
    v_mul_u32_u24 v6, {H3S}, v3
    v_lshl_add_u32 v5, v4, 5, v6
    v_bfe_u32 v4, v4, 3, 1              ; head
    v_lshl_add_u32 v4, v4, 6, v6
    v_add_u32 v4, 2048, v4
    s_mul_i32 s48, s4, {16*H3S}
    s_add_u32 s48, s48, {H3}
    s_add_u32 s49, s48, {4*H3S}
    s_add_u32 s50, s48, {8*H3S}
    s_add_u32 s51, s48, {12*H3S}
    v_lshrrev_b32 v115, 2, v1
    v_mul_u32_u24 v115, {PS}, v115
    v_add_u32 v115, v115, v114
    v_lshrrev_b32 v6, 2, v1
    v_mul_u32_u24 v118, {X2S}, v6
    v_add_u32 v118, v118, v114
    v_lshlrev_b32 v119, 4, v1
    """)
    tag_ready()
    P('v_mov_b32 v122, s6\nv_mov_b32 v123, s7')
    lds_wait(FL_PUB, 1, sleep=1)
    P(f"""
    v_lshlrev_b32 v116, 16, v116
    v_cmp_gt_u32 vcc, s57, v2
    s_mov_b32 s56, {LOG2E:#x}
    s_mov_b64 exec, vcc
    """)
    def h3_loads(B):
        o = []
        for i in range(4):
            b = B + 12*i
            o.append(f'buffer_load_dwordx4 v[{b}:{b+3}], v5, s[44:47], s{48+i} offen sc1')
            o.append(f'buffer_load_dwordx4 v[{b+4}:{b+7}], v5, s[44:47], s{48+i} offen offset:16 sc1')
            o.append(f'buffer_load_dwordx4 v[{b+8}:{b+11}], v4, s[44:47], s{48+i} offen sc1')
        return o
    def h3_check(B):
        bases = [B + 12*i + o for i in range(4) for o in (0, 4, 8)]
        check_g(bases[:6])()
        P('s_mov_b64 s[62:63], vcc')
        check_g(bases[6:])()
        P('s_or_b64 vcc, vcc, s[62:63]')
    def h3_post(B):
        M = [B+12*i+8 for i in range(4)]; L = [m+1 for m in M]; W = [m+2 for m in M]
        P(f"""
        v_max3_f32 v12, v{M[0]}, v{M[1]}, v{M[2]}
        v_max_f32 v12, v12, v{M[3]}
        """)
        xrow_multi('v_max_f32', ['v12'], ['v13'])
        for i in range(4): P(f'v_sub_f32 v{W[i]}, v{M[i]}, v12')
        for i in range(4): P(f'v_mul_f32 v{W[i]}, s56, v{W[i]}')
        for i in range(4): P(f'v_exp_f32 v{W[i]}, v{W[i]}')
        O = lambda i, j: B + 12*i + (j >> 1)*4 + (j & 1)
        P(f'v_mul_f32 v14, v{W[0]}, v{L[0]}')
        for j in range(4): P(f'v_mul_f32 v{8+j}, v{W[0]}, v{O(0,j)}')
        for i in range(1, 4):
            P(f'v_fmac_f32 v14, v{W[i]}, v{L[i]}')
            for j in range(4): P(f'v_fmac_f32 v{8+j}, v{W[i]}, v{O(i,j)}')
        xrow_multi('v_add_f32', ['v14', 'v8', 'v9', 'v10', 'v11'], [f'v{B+2}', f'v{B+3}', f'v{B+6}', f'v{B+7}', f'v{B+11}'])
        P('v_rcp_f32 v14, v14')
        for j in range(4): P(f'v_mul_f32 v{8+j}, v{8+j}, v14')
        for j in range(4): P(f'v_cvt_pk_bf16_f32 v{8+j}, v{8+j}, v{8+j}')
    if cfg.h3_local:
        l = P.lbl('Lhl'); ok = P.lbl('Lhl'); far = P.lbl('Lhl')
        for i in range(4): P(f's_add_u32 s{48+i}, s{48+i}, {H3L - H3}')
        P(f's_mov_b32 s64, {cfg.local_tries}')
        P(f'{l}:')
        for x in h3_loads(16): P(x)
        P('s_waitcnt vmcnt(0)')
        h3_check(16)
        P(f"""
        s_cbranch_vccz {ok}
        s_sub_u32 s64, s64, 1
        s_cbranch_scc0 {l}
        """)
        for i in range(4): P(f's_sub_u32 s{48+i}, s{48+i}, {H3L - H3}')
        poll(h3_loads(16), lambda: h3_check(16))
        P(f'{ok}:')
        if cfg.debug: P(f's_sub_u32 s82, {cfg.local_tries}, s64')
        h3_post(16)
    else:
        poll(h3_loads(16), lambda: h3_check(16))
        if cfg.debug: P('s_sub_u32 s82, 0x8000, s64')
        h3_post(16)
    stamp(4)
    P(f"""
    s_and_b32 exec_lo, exec_lo, 0xffff
    s_mov_b32 exec_hi, 0
    ds_write_b128 v119, v[8:11] offset:{L_XA}
    s_mov_b64 exec, -1
    s_cmp_ge_u32 s55, 72
    s_cselect_b32 s65, 1, 0
    s_lshl_b32 s56, s55, 6              ; rho*64
    s_add_u32 s48, s56, {XP}
    """)
    for i in range(1, 7): P(f's_add_u32 s{48+i}, s{47+i}, {16*PS}')
    P(f"""
    s_lshl_b32 s57, s55, 6
    s_add_u32 s58, s57, {MODF}
    v_lshlrev_b32 v117, 16, v117
    s_waitcnt lgkmcnt(0)
    s_barrier
    """)
    stamp(5)
    P(f"""
    s_cmp_lg_u32 s65, 0
    s_cbranch_scc1 L_exit
    """)
    def red_loads(n):
        def f(B):
            return [f'buffer_load_dwordx4 v[{B+4*n}:{B+4*n+3}], v114, s[44:47], s58 offen sc1'] + \
                   [f'buffer_load_dwordx4 v[{B+4*i}:{B+4*i+3}], v115, s[44:47], s{48+i} offen sc1' for i in range(n)]
        return f
    def red_check(n):
        def f(B):
            bases = [B+4*i for i in range(n+1)]
            if n + 1 <= 8: check_g(bases)()
            else:
                check_g(bases[:5])()
                P('s_mov_b64 s[62:63], vcc')
                check_g(bases[5:])()
                P('s_or_b64 vcc, vcc, s[62:63]')
        return f
    def xp_post(B):
        reduce4(0, 1, 7, B)
        rne_many([B, B+1])
        for j in range(2): P(f'v_mul_f32 v{B+j}, v{B+j}, v{B+28+j}')
        rne_many([B, B+1])
        for j in range(2): P(f'v_add_f32 v{120+j}, v{B+j}, v{116+j}')
        rne_many([120, 121])
    if cfg.pipe: poll2(red_loads(7), red_check(7), xp_post, 16, 48, 8)
    else:
        poll(red_loads(7)(16), lambda: red_check(7)(16))
        if cfg.debug: P('s_sub_u32 s84, 0x8000, s64')
        xp_post(16)
    P(f"""
    s_add_u32 s59, s57, {X2}
    s_mov_b64 exec, 0xffffffff
    buffer_store_dwordx4 v[120:123], v118, s[44:47], s59 offen sc1
    s_mov_b64 exec, -1
    """)
    stamp(6)
    P(f's_add_u32 s48, s56, {FP}')
    for i in range(1, 9): P(f's_add_u32 s{48+i}, s{47+i}, {16*PS}')
    P(f's_add_u32 s58, s57, {MODF+864*16}')
    srd(40, 30, 1152)
    def fp_post(B):
        reduce4(0, 1, 9, B)
        rne_many([B, B+1])
        for j in range(2): P(f'v_mul_f32 v{B+j}, v{B+j}, v{B+36+j}')
        rne_many([B, B+1])
        for j in range(2): P(f'v_add_f32 v{8+j}, v{B+j}, v{120+j}')
        for j in range(2): P(f'v_cvt_pk_bf16_f32 v{8+j}, v{8+j}, v{8+j}')
    if cfg.pipe: poll2(red_loads(9), red_check(9), fp_post, 24, 64, 10)
    else:
        poll(red_loads(9)(24), lambda: red_check(9)(24))
        if cfg.debug: P('s_sub_u32 s86, 0x8000, s64')
        fp_post(24)
    P(f"""
    s_mov_b64 exec, 0xf
    buffer_store_short v8, v113, s[40:43], 0 offen
    buffer_store_short v9, v113, s[40:43], 0 offen offset:16
    s_mov_b64 exec, -1
    """)
    stamp(7)
    P(f"""
    s_mul_i32 s55, s4, 7
    s_add_u32 s55, s55, s5
    s_cmp_lg_u32 s55, 0
    s_cbranch_scc1 L_exit
    v_mov_b32 v4, {EPOCH}
    v_mov_b32 v8, s6
    v_mov_b32 v9, s7
    s_mov_b64 exec, 1
    buffer_store_dwordx2 v[8:9], v4, s[44:47], 0 offen sc1
    s_mov_b64 exec, -1
    """)
    end_wave()

def commF_role():
    P('L_commF:')
    role(6)
    P('s_setprio 3')
    SB, CB, XA = 32, 52, 72
    P(f"""
    v_lshlrev_b32 v4, 4, v1             ; granule l
    v_and_b32 v5, 31, v1
    v_lshlrev_b32 v5, 4, v5
    s_mov_b32 s56, {MODF+288*16}
    s_mov_b32 s57, {MODF+576*16}
    s_add_u32 s58, s56, 4096
    s_add_u32 s59, s57, 4096
    s_and_b32 s52, s2, 7
    s_mul_i32 s52, s52, {X2S}
    s_add_u32 s52, s52, {X2}
    s_add_u32 s53, s52, 4096
    v_cmp_gt_u32 s[54:55], 32, v1
    """)
    lds_wait(FL_PUB, 1, sleep=1)
    def gl(base, sreg, sreg2):
        return [f'buffer_load_dwordx4 v[{base+4*n}:{base+4*n+3}], v4, s[44:47], {sreg} offen offset:{1024*n} sc1' for n in range(4)] + \
               [f'buffer_load_dwordx4 v[{base+16}:{base+19}], v5, s[44:47], {sreg2} offen sc1']
    def chk():
        check_g([SB+4*n for n in range(5)])()
        P('s_mov_b64 s[62:63], vcc')
        check_g([CB+4*n for n in range(5)])()
        P('s_or_b64 vcc, vcc, s[62:63]')
    poll(gl(SB, 's56', 's58') + gl(CB, 's57', 's59'), chk)
    cbv = [CB+4*n+j for n in range(5) for j in range(2)]
    sbv = [SB+4*n+j for n in range(5) for j in range(2)]
    xav = [XA+4*n+j for n in range(5) for j in range(2)]
    for r in cbv: P(f'v_add_f32 v{r}, 1.0, v{r}')
    rne_many(cbv)
    P('v_lshlrev_b32 v6, 2, v1')
    def x2_post(B):
        xv = [B+4*n+j for n in range(5) for j in range(2)]
        for r in xv[8:]: P(f'v_cndmask_b32 v{r}, 0, v{r}, s[54:55]')
        ln_stats(xv, 'v112', 'v113', 'v114', 'v115', maskfix=(xv[8:], 's[54:55]'))
        for r in xv: P(f'v_sub_f32 v{r}, v{r}, v112')
        rne_many(xv)
        for r in xv: P(f'v_mul_f32 v{r}, v{r}, v113')
        rne_many(xv)
        for r, c in zip(xv, cbv): P(f'v_mul_f32 v{r}, v{r}, v{c}')
        rne_many(xv)
        for r, c in zip(xv, sbv): P(f'v_add_f32 v{r}, v{r}, v{c}')
        for n in range(5): P(f'v_cvt_pk_bf16_f32 v{B+4*n}, v{B+4*n}, v{B+4*n+1}')
        for n in range(4): P(f'ds_write_b32 v6, v{B+4*n} offset:{L_XS+256*n}')
        P(f"""
        s_mov_b64 exec, 0xffffffff
        ds_write_b32 v6, v{B+16} offset:{L_XS+1024}
        s_mov_b64 exec, -1
        """)
    if cfg.pipe: poll2(lambda B: gl(B, 's52', 's53'), lambda B: check_g([B+4*n for n in range(5)])(), x2_post, 72, 92, 5)
    else:
        poll(gl(72, 's52', 's53'), check_g([72+4*n for n in range(5)])); x2_post(72)
    stamp(7)
    P("""
    s_waitcnt lgkmcnt(0)
    s_barrier
    """)
    end_wave()

def gu_role(nkv):
    RAW = 32
    NA = cfg.gu_early
    P('L_gu:')
    role(7)
    def setup():
        P(f"""
        s_sub_u32 s53, s3, 1              ; i
        s_lshr_b32 s54, s53, 1            ; matrix
        s_and_b32 s55, s53, 1             ; K half
        s_cmp_eq_u32 s54, 0
        s_cselect_b32 s36, s20, s22
        s_cselect_b32 s37, s21, s23
        s_mov_b32 s38, {576*9216}
        s_mov_b32 s39, 0x20000
        s_mul_i32 s56, s4, 9
        s_add_u32 s56, s56, s5
        s_sub_u32 s56, s56, 7             ; phi
        s_lshl_b32 s56, s56, 6
        s_mul_i32 s57, s55, {9*32*9216}
        s_add_u32 s56, s56, s57
        s_mov_b32 s58, 0x05040100
        s_mov_b32 s59, 0x07060302
        """)
    def loads(u, thr=True):
        for j in range(8):
            off = (32*u + 8*(j & 3) + (j >> 2)) * 9216
            P(f's_add_u32 s57, s56, {off}')
            if thr and cfg.gul and 8*(u-NA) + j >= cfg.gul: P(f's_waitcnt vmcnt({cfg.gul-1})')
            P(f'buffer_load_dword v{RAW+8*u+j}, v4, s[36:39], s57 offen nt')
    def perm(u):
        src = RAW + 8*u
        dst = src - 8
        for i in range(4):
            P(f'v_perm_b32 v{dst+i}, v{src+2*i+1}, v{src+2*i}, s58')
            P(f'v_perm_b32 v{dst+4+i}, v{src+2*i+1}, v{src+2*i}, s59')
    if cfg.pf_gu:
        P('s_cmp_lg_u32 s3, 1\ns_cbranch_scc1 L_gu_nopf')
        prefetch_code()
        P('L_gu_nopf:')
    setup()
    P(f"""
    v_mul_u32_u24 v4, {2*9216}, v3
    v_lshl_add_u32 v4, v2, 2, v4
    """)
    for u in range(NA):
        loads(u, thr=False)
        if u == 0: P('s_barrier')
    if NA == 0: P('s_barrier')
    lds_add(C_GA)
    tag_ready()
    q_fetch('L_gu2')
    P('L_gu2:')
    stamp(5)
    setup()
    P('s_waitcnt vmcnt(0)')
    for u in range(NA): perm(u)
    if cfg.gu_gate == 'pub': lds_wait(FL_PUB, 1, sleep=2)
    else: lds_wait(C_KVI, nkv, sleep=2)
    stamp(1)
    DEPTH = cfg.gu_depth
    for u in range(NA, 9):
        if cfg.gu_dyn and u > NA:
            l = P.lbl('Lgd')
            P(f"""
            v_mov_b32 v7, 0
            ds_read_b32 v6, v7 offset:{FL_PUB}
            s_waitcnt lgkmcnt(0)
            v_readfirstlane_b32 s60, v6
            s_cmp_lg_u32 s60, 0
            s_cbranch_scc1 {l}
            s_waitcnt vmcnt({cfg.gu_dyn})
            {l}:
            """)
        loads(u)
        if u - DEPTH >= NA:
            P(f's_waitcnt vmcnt({8*DEPTH})')
            perm(u - DEPTH)
    for u in range(max(NA, 9 - DEPTH), 9):
        P(f's_waitcnt vmcnt({8*(8-u)})')
        perm(u)
    stamp(2)
    P(f"""
    s_mul_i32 s57, s55, {9*64}
    v_lshlrev_b32 v5, 4, v3
    v_add_u32 v5, s57, v5
    s_lshl_b32 s57, s53, 7
    v_lshlrev_b32 v6, 3, v1
    v_add_u32 v6, s57, v6
    s_barrier
    """)
    stamp(3)
    AF = [96+4*u for u in range(8)] + [20]
    for u in range(9): P(f'ds_read_b128 v[{AF[u]}:{AF[u]+3}], v5 offset:{L_XS+64*u}')
    for u in range(9):
        P(f's_waitcnt lgkmcnt({8-u})')
        f0 = RAW - 8 + 8*u
        c0 = '0' if u == 0 else 'v[8:11]'
        c1 = '0' if u == 0 else 'v[12:15]'
        P(f'v_mfma_f32_16x16x32_bf16 v[8:11], v[{AF[u]}:{AF[u]+3}], v[{f0}:{f0+3}], {c0}')
        P(f'v_mfma_f32_16x16x32_bf16 v[12:15], v[{AF[u]}:{AF[u]+3}], v[{f0+4}:{f0+7}], {c1}')
    P(f"""
    v_mov_b32 v16, v8
    v_mov_b32 v17, v12
    s_mov_b64 exec, 0xffff
    ds_write_b64 v6, v[16:17] offset:{L_RED3}
    s_mov_b64 exec, -1
    s_waitcnt lgkmcnt(0)
    s_barrier
    """)
    stamp(4)
    end_wave()

def build():
    global CODE_PF
    CODE_PF = 4
    prologue()
    cF, cQ, cM = cfg.cF, cfg.cQ, cfg.cM
    assert 9*cF + 4*cQ + 3*cM == 256 and cF % 2 == 0 and cQ % 2 == 0 and cM % 2 == 0 and cF//2 >= 6 and cQ <= 12 and cM <= 12
    mod_role()
    wq_role()
    kv_role('L_kvF', cF//2, lambda: P(f's_sub_u32 s52, s5, 7\ns_mul_i32 s52, s52, {cF}\ns_add_u32 s52, s52, {3*cM+4*cQ}'), (C_GA, 4) if cfg.gu_early else None, True, cfg.kF)
    kv_role('L_kvM', cM//2, lambda: P(f's_mul_i32 s52, s5, {cM}'), ((C_B2, 6) if cfg.m_order == 'a_b_kv_wo' else ((C_H, 1) if cfg.order2 else (C_WO, 3))), False, cfg.kM)
    kv_role('L_kvQ', cQ//2, lambda: P(f's_sub_u32 s52, s5, 3\ns_mul_i32 s52, s52, {cQ}\ns_add_u32 s52, s52, {3*cM}'), ((C_WO, 3) if cfg.q_order == 'wo_kv' else (C_G, 1)), False, cfg.kQ)
    wo_role('Q', cQ//2)
    wo_role('M', cM//2)
    wo_common()
    commA_role()
    gu_role(cF//2)
    down_role()
    commF_role()

    P('L_abort:')
    P('s_mov_b64 exec, -1')
    P('L_exit:')
    if cfg.debug:
        P(f"""
        s_waitcnt lgkmcnt(0)
        s_lshl_b32 s60, s2, 4
        s_add_u32 s60, s60, s3
        s_lshl_b32 s60, s60, 6
        s_add_u32 s60, s60, {DBG}
        s_memrealtime s[96:97]
        s_waitcnt lgkmcnt(0)
        v_mov_b32 v8, s96
        """)
        for i in range(8): P(f'v_writelane_b32 v8, s{80+2*i}, {i}')
        P(f"""
        v_and_b32 v1, 63, v0
        v_lshlrev_b32 v7, 2, v1
        s_mov_b64 exec, 0x1ff
        buffer_store_dword v8, v7, s[44:47], s60 offen
        """)
    if cfg.hdbg:
        SL = {(3, 3): 3, (2, 2): 4, (2, 4): 5, (1, 3): 6, (1, 5): 7, (1, 6): 8, (5, 4): 9, (5, 6): 10, (6, 7): 11, (8, 6): 12, (7, 2): 13, (5, 7): 14, (6, 3): 6, (6, 5): 7, (6, 6): 8, (8, 3): 6, (8, 5): 7, (4, 7): 15}
        P("""
        s_waitcnt lgkmcnt(0)
        s_memrealtime s[96:97]
        s_mov_b32 s68, s32
        s_mov_b32 s69, s33
        s_mov_b32 s70, 256
        s_mov_b32 s71, 0x20000
        s_mov_b64 exec, 1
        s_waitcnt lgkmcnt(0)
        v_mov_b32 v8, s96
        v_mov_b32 v9, 4
        buffer_atomic_umax v8, v9, s[68:71], 0 offen sc1
        s_not_b32 s96, s80
        v_mov_b32 v8, s96
        v_mov_b32 v9, 0
        buffer_atomic_umax v8, v9, s[68:71], 0 offen sc1
        v_mov_b32 v8, s80
        v_mov_b32 v9, 8
        buffer_atomic_umax v8, v9, s[68:71], 0 offen sc1
        """)
        for r in range(1, 9):
            l = P.lbl('Lhd')
            P(f's_cmp_lg_u32 s98, {r}')
            P(f's_cbranch_scc1 {l}')
            for (rr, k), slot in SL.items():
                if rr == r:
                    P(f'v_mov_b32 v8, s{80+2*k}')
                    P(f'v_mov_b32 v9, {4*slot}')
                    P('buffer_atomic_umax v8, v9, s[68:71], 0 offen sc1')
            P(f'{l}:')
    P('L_end:')
    P('s_endpgm')
    P('L_codeend:')
    P.finalize()
    body = P.text()
    return (HEADER_COMMENT +
f"""; @launch grid=(256,1,1) block=(1024,1,1) lds={LDS_BYTES}
.amdgcn_target "amdgcn-amd-amdhsa--gfx950"
.text
.globl {KN}
.p2align 8
.type {KN},@function
{KN}:
{body}
.section .rodata,"a"
.p2align 6
.amdhsa_kernel {KN}
  .amdhsa_next_free_vgpr 128
  .amdhsa_next_free_sgpr 102
  .amdhsa_accum_offset 128
  .amdhsa_group_segment_fixed_size 0
  .amdhsa_kernarg_size 112
  .amdhsa_user_sgpr_count 2
  .amdhsa_user_sgpr_kernarg_segment_ptr 1
  .amdhsa_system_sgpr_workgroup_id_x 1
.end_amdhsa_kernel
""")

if __name__ == '__main__':
    import argparse
    ap = argparse.ArgumentParser()
    ap.add_argument('-o', default='k.s')
    ap.add_argument('--debug', action='store_true')
    ap.add_argument('--tiles', default='22,4,14')
    ap.add_argument('--set', nargs='*', default=[])
    a = ap.parse_args()
    cfg.debug = a.debug
    cfg.cF, cfg.cQ, cfg.cM = map(int, a.tiles.split(','))
    for kv in a.set:
        k, v = kv.split('=')
        old = getattr(cfg, k)
        setattr(cfg, k, type(old)(int(v)) if isinstance(old, (bool, int)) else v)
    open(a.o, 'w').write(build())
```

```python
import sys, math, struct
from dsl import Prog
from asmlib import HEADER_COMMENT, KN

class Cfg:
    cF, cQ, cM = 22, 4, 14
    debug = False
    prefetch_code = True
    kF, kQ, kM = '0', '0', '0'
    gu_depth = 4
    gul = 0
    gu_gate = 'pub'
    k_first = True
    pre_barrier = 1
    wo_k = 4
    b_k = 4
    q_sleep = 4
    poll_sleep = 0
    kvonly = False
    pf2 = 0
    pf_early = 16
    pf_gu = True
    h3_local = True
    local_tries = 200
    m_order = 'a_kv_wo_b'
    gu_dyn = 0
    q_order = 'kv_wo'
    order2 = True
    wq_first = False
    q_direct = True
    hdbg = False
    q_wo_gate = False
    q_wo_first = True
    stagger = 6
    pipe = True
    gu_early = 3
    b_on = 'M'
    m_gate_pub = False
cfg = Cfg()

EPOCH = 0x0
MODP = 0x1000
QF = 0x8000
MODF = 0x20000
X2 = 0x28000
X2S = 0x1400
H3 = 0x40000
H3S = 2560
XP = 0xE0000
FP = 0x160000
PS = 4608
H3L = 0x210000
DBG = 0x300000
FL_Q, C_KVI, C_MAX, C_O, C_RED, C_H, C_G, FL_PUB, C_K, C_B, C_GA, C_B2, C_WO = 0, 4, 8, 12, 16, 20, 24, 28, 32, 36, 40, 44, 48
L_ZERO = 0x100
L_Q = 0x200
L_MX = 0x400
L_LS = 0x480
L_XS = 0x500
L_RED3 = 0xA00
L_XA = 0x1100
L_SLOT = 0x1200
L_OSLOT = 0x1200 + 18*1024
LDS_BYTES = 0x1200 + 30*1024
LOG2E = 0x3FB8AA3B
SCALE = 0x3DB504F3
GOLD0, GOLD1 = 0x7F4A7C15, 0x9E3779B9
def f32hex(x): return struct.unpack('<I', struct.pack('<f', x))[0]

P = Prog()
ABORT = 'L_abort'
DPPM = 'row_mask:0xf bank_mask:0xf'

def stamp(i):
    if cfg.debug or cfg.hdbg: P(f's_memrealtime s[{80+2*i}:{81+2*i}]')

def role(n):
    if cfg.hdbg: P(f's_mov_b32 s98, {n}')

def srd(base, ptr, nbytes):
    P(f"""
    s_mov_b32 s{base}, s{ptr}
    s_mov_b32 s{base+1}, s{ptr+1}
    s_mov_b32 s{base+2}, {nbytes}
    s_mov_b32 s{base+3}, 0x20000
    """)

def tag_ready():
    P(f"""
    s_waitcnt lgkmcnt(0)
    s_add_u32 s6, s6, {GOLD0:#x}
    s_add_u32 s7, s7, {GOLD1:#x}
    """)

def lds_wait(off, target, sleep=1):
    l = P.lbl('Lw'); d = P.lbl('Ld')
    P(f"""
    v_mov_b32 v7, 0
    s_mov_b32 s61, 0x400000
    {l}:
    ds_read_b32 v6, v7 offset:{off}
    s_waitcnt lgkmcnt(0)
    v_readfirstlane_b32 s60, v6
    s_cmp_ge_u32 s60, {target}
    s_cbranch_scc1 {d}
    s_sub_u32 s61, s61, 1
    s_cbranch_scc1 {ABORT}
    """)
    if sleep: P(f's_sleep {sleep}')
    P(f"""
    s_branch {l}
    {d}:
    """)

def lds_add(off):
    P(f"""
    v_mov_b32 v7, 0
    v_mov_b32 v6, 1
    s_mov_b64 s[62:63], exec
    s_mov_b64 exec, 1
    ds_add_u32 v7, v6 offset:{off}
    s_mov_b64 exec, s[62:63]
    """)

def lds_add_rtn(off, sdst):
    P(f"""
    v_mov_b32 v7, 0
    v_mov_b32 v6, 1
    s_mov_b64 s[62:63], exec
    s_mov_b64 exec, 1
    ds_add_rtn_u32 v6, v7, v6 offset:{off}
    s_waitcnt lgkmcnt(0)
    v_readfirstlane_b32 {sdst}, v6
    s_mov_b64 exec, s[62:63]
    """)

def rne(dst, src):
    P(f'v_cvt_pk_bf16_f32 {dst}, {src}, {src}')
    P(f'v_lshlrev_b32 {dst}, 16, {dst}')

def rne_many(regs):
    for r in regs: P(f'v_cvt_pk_bf16_f32 v{r}, v{r}, v{r}')
    for r in regs: P(f'v_lshlrev_b32 v{r}, 16, v{r}')

def xrow_multi(op, vs, ts):
    for sw in ('v_permlane16_swap_b32', 'v_permlane32_swap_b32'):
        for v, t in zip(vs, ts): P(f'v_mov_b32 {t}, {v}')
        for v, t in zip(vs, ts): P(f'{sw} {v}, {t}')
        for v, t in zip(vs, ts): P(f'{op} {v}, {v}, {t}')

def wave_sum(v, t):
    for d in ('quad_perm:[1,0,3,2]', 'quad_perm:[2,3,0,1]', 'row_half_mirror', 'row_mirror'):
        P(f'v_add_f32_dpp {v}, {v}, {v} {d} {DPPM}')
    xrow_multi('v_add_f32', [v], [t])

def masks(base):
    P(f"""
    v_and_b32 v6, 1, v2
    v_lshlrev_b32 v6, 4, v6
    v_mov_b32 v7, 0xffff
    v_lshlrev_b32 v7, v6, v7
    v_bfe_u32 v6, v2, 1, 2
    """)
    for i in range(4):
        P(f'v_cmp_eq_u32 vcc, {i}, v6')
        P(f'v_cndmask_b32 v{base+i}, 0, v7, vcc')

def diag_mm(acc, wregs, xregs, mk, qa, qb):
    n = len(wregs)
    def prep(t):
        q = (qa, qb)[t & 1]
        for i in range(4): P(f'v_and_b32 v{q+i}, {xregs[t]}, v{mk+i}')
    prep(0)
    for t in range(n):
        if t + 1 < n: prep(t + 1)
        q = (qa, qb)[t & 1]
        c = '0' if t == 0 else f'v[{acc}:{acc+3}]'
        P(f'v_mfma_f32_16x16x32_bf16 v[{acc}:{acc+3}], v[{wregs[t]}:{wregs[t]+3}], v[{q}:{q+3}], {c}')

def poll(loads, check):
    l = P.lbl('Lp'); l2 = P.lbl('Lp')
    P('s_mov_b32 s64, 0x8000')
    if cfg.poll_sleep:
        P(f's_branch {l2}')
        P(f'{l}:')
        P(f's_sleep {cfg.poll_sleep}')
        P(f'{l2}:')
    else:
        P(f'{l}:')
    for x in loads: P(x)
    P('s_waitcnt vmcnt(0)')
    check()
    P(f"""
    s_sub_u32 s64, s64, 1
    s_cbranch_scc1 {ABORT}
    s_cbranch_vccnz {l}
    """)


def poll2(mk_loads, mk_check, post, baseA, baseB, nloads):
    la = P.lbl('Lq'); lb = P.lbl('Lq'); ga = P.lbl('Lq'); gb = P.lbl('Lq'); done = P.lbl('Lq')
    P('s_mov_b32 s64, 0x8000')
    for x in mk_loads(baseA): P(x)
    P(f's_sleep {cfg.stagger}')
    P(f'{la}:')
    for x in mk_loads(baseB): P(x)
    P(f's_waitcnt vmcnt({nloads})')
    mk_check(baseA)
    P(f"""
    s_cbranch_vccz {ga}
    s_sub_u32 s64, s64, 1
    s_cbranch_scc1 {ABORT}
    """)
    for x in mk_loads(baseA): P(x)
    P(f's_waitcnt vmcnt({nloads})')
    mk_check(baseB)
    P(f"""
    s_cbranch_vccz {gb}
    s_branch {la}
    """)
    P(f'{gb}:')
    post(baseB)
    P(f's_branch {done}')
    P(f'{ga}:')
    post(baseA)
    P(f'{done}:')

def check_g(bases):
    def f():
        n = len(bases)
        assert n <= 8 + 5
        prs = [66 + 2*i for i in range(7)] + [96, 98]
        assert n <= len(prs) + 1
        for i, b in enumerate(bases):
            dst = 'vcc' if i == n - 1 else f's[{prs[i]}:{prs[i]+1}]'
            P(f'v_cmp_ne_u64 {dst}, s[6:7], v[{b+2}:{b+3}]')
        for i in range(n - 1):
            P(f's_or_b64 vcc, vcc, s[{prs[i]}:{prs[i]+1}]')
    return f

def check_tags32(regs, t='v6', t2='v7'):
    def f():
        rs = list(regs)
        P(f'v_xor_b32 {t}, s7, v{rs[0]}')
        for r in rs[1:]:
            P(f'v_xor_b32 {t2}, s7, v{r}')
            P(f'v_or_b32 {t}, {t}, {t2}')
        P(f'v_cmp_ne_u32 vcc, 0, {t}')
    return f

def end_wave(): P('s_branch L_exit')

def make_granules(G, ACC):
    P(f'v_mov_b32 v{G}, v{ACC}')
    P(f'v_mov_b32 v{G+1}, v{ACC+1}')
    P(f'v_mov_b32 v{G+4}, v{ACC+2}')
    P(f'v_mov_b32 v{G+5}, v{ACC+3}')
def tag_fill(G):
    for o in (2, 6):
        P(f'v_mov_b32 v{G+o}, s6')
        P(f'v_mov_b32 v{G+o+1}, s7')

def prologue():
    P(f"""
    s_cmp_ge_u32 s2, 256
    s_cbranch_scc1 L_end
    s_load_dwordx16 s[8:23], s[0:1], 0
    s_load_dwordx8 s[24:31], s[0:1], 64
    s_load_dwordx4 s[32:35], s[0:1], 96
    """)
    if cfg.prefetch_code and cfg.pf_early:
        P(f"""
        s_cmp_ge_u32 s2, {cfg.pf_early}
        s_cbranch_scc1 L_nopf0
        v_lshrrev_b32 v4, 6, v0
        v_cmp_ne_u32 vcc, 10, v4
        s_cbranch_vccnz L_nopf0
        v_and_b32 v1, 63, v0
        """)
        prefetch_code('0', 124)
        P('L_nopf0:')
    if cfg.hdbg:
        for i in range(1, 8): P(f's_mov_b32 s{80+2*i}, 0')
        P('s_mov_b32 s98, 0')
    stamp(0)
    P(f"""
    v_lshrrev_b32 v4, 6, v0
    v_and_b32 v1, 63, v0
    v_and_b32 v2, 15, v1
    v_readfirstlane_b32 s3, v4
    v_lshrrev_b32 v3, 4, v1
    s_and_b32 s4, s2, 7
    s_lshl_b32 s4, s4, 1
    s_bfe_u32 s5, s2, 0x10003
    s_add_u32 s4, s4, s5
    s_lshr_b32 s5, s2, 4
    s_cmp_lg_u32 s3, 0
    s_cbranch_scc1 L_nozero
    v_lshlrev_b32 v4, 2, v1
    v_mov_b32 v5, 0
    ds_write_b32 v4, v5
    ds_write_b32 v4, v5 offset:256
    ds_write_b32 v4, v5 offset:{L_XA}
    L_nozero:
    s_waitcnt lgkmcnt(0)
    s_load_dwordx2 s[6:7], s[34:35], 0
    """)
    srd(44, 34, 0x40000000)
    nkF, nkQ, nkM = cfg.cF//2, cfg.cQ//2, cfg.cM//2
    if cfg.kvonly:
        P(f"""
        s_cmp_lt_u32 s5, 3
        s_cselect_b32 s60, {16-nkM}, {16-nkQ}
        s_cmp_ge_u32 s5, 7
        s_cselect_b32 s60, {16-nkF}, s60
        s_cmp_ge_u32 s3, s60
        s_cbranch_scc1 L_kvgo
        s_barrier
        s_branch L_end
        L_kvgo:
        """)
    P(f"""
    s_cmp_lt_u32 s5, 3
    s_cbranch_scc1 L_classM
    s_cmp_lt_u32 s5, 7
    s_cbranch_scc1 L_classQ
    s_cmp_eq_u32 s3, 0
    s_cbranch_scc1 L_kvF0
    s_cmp_le_u32 s3, 4
    s_cbranch_scc1 L_gu
    s_cmp_ge_u32 s3, {16-min(nkF, 11)}
    s_cbranch_scc1 L_kvF
    s_branch L_idle
    L_classQ:
    s_cmp_ge_u32 s3, {16-nkQ}
    s_cbranch_scc1 L_kvQ
    s_cmp_eq_u32 s3, 0
    s_cbranch_scc1 L_commA
    s_cmp_le_u32 s3, 6
    s_cbranch_scc1 L_wq
    s_cmp_le_u32 s3, 9
    s_cbranch_scc1 L_woQ
    s_branch L_idle
    L_classM:
    s_cmp_ge_u32 s3, {16-nkM}
    s_cbranch_scc1 L_kvM
    s_cmp_eq_u32 s3, 0
    s_cbranch_scc1 L_commA
    s_cmp_le_u32 s3, 6
    s_cbranch_scc1 L_mod
    s_cmp_le_u32 s3, 9
    s_cbranch_scc1 L_woM
    L_idle:
    s_barrier
    s_waitcnt vmcnt(0)
    s_branch L_end
    """)

def kv_role(name, nkv, tile_expr, gate, is_f, kinf='0'):
    K0, V0, QF_, SD, TT, ACC, MK = 32, 64, 96, 24, 28, 96, 8
    if is_f:
        P('L_kvF0:')
        if nkv == 12:
            P('s_mov_b32 s53, 11')
            P('s_branch L_kvFgo')
        else:
            P('s_branch L_idle')
        P(f'{name}:')
        P(f's_sub_u32 s53, s3, {16-min(nkv, 11)}')
        P('L_kvFgo:')
    else:
        P(f'{name}:')
        P(f's_sub_u32 s53, s3, {16-nkv}')
    role(1)
    tile_expr()
    P(f"""
    s_lshl_b32 s54, s53, 1
    s_add_u32 s52, s52, s54
    s_lshl_b32 s52, s52, 12
    s_lshl_b32 s54, s4, 24
    s_add_u32 s52, s52, s54
    s_add_u32 s52, s52, {61440*256}
    s_add_u32 s55, s52, 4096
    """)
    srd(36, 10, 0x10000000)
    srd(40, 12, 0x10000000)
    P(f"""
    v_and_b32 v4, 7, v1
    v_lshlrev_b32 v4, 8, v4
    v_lshrrev_b32 v5, 3, v1
    v_lshl_add_u32 v4, v5, 4, v4          ; K: (l&7)*256 + (l>>3)*16
    v_lshlrev_b32 v5, 10, v3
    v_lshl_add_u32 v5, v2, 4, v5          ; V: gq*1024 + m*16
    """)
    if cfg.kvonly: gate = None
    if gate:
        P('s_barrier')
        lds_wait(gate[0], gate[1], sleep=2)
    stamp(1)
    st = {'n': 0}
    lim = lambda i: int(kinf[min(i, len(kinf)-1)], 16)
    def issue(r, vo, srdr, sreg, off):
        n = st['n']
        if not gate and n == cfg.pre_barrier: P('s_barrier')
        k = lim(n)
        if k and n >= k: P(f's_waitcnt vmcnt({k-1})')
        P(f'buffer_load_dwordx4 v[{r}:{r+3}], {vo}, s[{srdr}:{srdr+3}], {sreg} offen offset:{off} nt')
        st['n'] += 1
    for u in range(4):
        for hh in range(2):
            issue(K0 + 4*(2*u+hh), 'v4', 36, 's52' if u < 2 else 's55', (u & 1)*2048 + hh*128)
    if cfg.k_first:
        lds_add(C_K)
        lds_wait(C_K, nkv, sleep=1)
    for t in range(2):
        for r_ in range(4):
            issue(V0 + 16*t + 4*r_, 'v5', 40, 's52' if t == 0 else 's55', 256*r_)
    lds_add(C_KVI)
    stamp(2)
    if cfg.kvonly:
        P('s_waitcnt vmcnt(8)'); stamp(4)
        P('s_waitcnt vmcnt(0)'); stamp(5)
        end_wave(); return
    masks(MK)
    P(f"""
    v_bfe_u32 v12, v2, 2, 1
    v_lshlrev_b32 v22, 2, v12
    v_lshlrev_b32 v12, 8, v12
    v_lshrrev_b32 v13, 3, v2
    v_lshl_add_u32 v13, v3, 1, v13        ; 2g + par
    v_lshl_add_u32 v12, v13, 4, v12
    v_add_u32 v12, {L_Q}, v12
    v_and_b32 v13, 3, v2
    v_mov_b32 v14, {L_ZERO}
    """)
    for u in range(4):
        P(f'v_cmp_eq_u32 vcc, {u}, v13')
        P(f'v_cndmask_b32 v{16+u}, v14, v12, vcc')
    P(f"""
    v_and_b32 v12, 1, v3
    v_lshlrev_b32 v12, 4, v12
    v_lshrrev_b32 v13, 3, v2
    v_lshl_add_u32 v12, v13, 2, v12
    v_lshrrev_b32 v13, 1, v3
    v_add_u32 v12, v12, v13
    v_lshlrev_b32 v20, 2, v12
    v_add_u32 v21, 8, v20
    """)
    tag_ready()
    lds_wait(FL_Q, 4, sleep=2)
    stamp(3)
    P('s_waitcnt vmcnt(16)')
    for u in range(4):
        for hh in range(2):
            r = QF_ + 4*(2*u+hh)
            P(f'ds_read_b128 v[{r}:{r+3}], v{16+u} offset:{128*hh}')
    P('s_waitcnt vmcnt(8)')
    stamp(4)
    for i in range(8):
        P(f's_waitcnt lgkmcnt({7-i})')
        c = '0' if i == 0 else f'v[{SD}:{SD+3}]'
        P(f'v_mfma_f32_16x16x32_bf16 v[{SD}:{SD+3}], v[{K0+4*i}:{K0+4*i+3}], v[{QF_+4*i}:{QF_+4*i+3}], {c}')
    for j in range(4): P(f'v_mov_b32 v{TT+j}, v{SD+j}')
    for j in range(4): P(f'v_permlane32_swap_b32 v{SD+j}, v{TT+j}')
    for j in range(4): P(f'v_add_f32_dpp v{SD+j}, v{TT+j}, v{SD+j} row_shl:8 {DPPM}')
    P(f's_mov_b32 s56, {SCALE:#x}')
    P(f's_mov_b32 s57, 0xffff0000')
    P(f's_mov_b32 s58, {LOG2E:#x}')
    for rep in range(2):
        for p in range(2): P(f'v_cvt_pk_bf16_f32 v{TT+p}, v{SD+2*p}, v{SD+2*p+1}')
        for p in range(2):
            P(f'v_lshlrev_b32 v{SD+2*p}, 16, v{TT+p}')
            P(f'v_and_b32 v{SD+2*p+1}, s57, v{TT+p}')
        if rep == 0:
            for i in range(4): P(f'v_mul_f32 v{SD+i}, s56, v{SD+i}')
    P(f"""
    v_max3_f32 v12, v{SD}, v{SD+1}, v{SD+2}
    v_max_f32 v12, v12, v{SD+3}
    v_max_f32_dpp v12, v12, v12 quad_perm:[1,0,3,2] {DPPM}
    v_max_f32_dpp v12, v12, v12 quad_perm:[2,3,0,1] {DPPM}
    v_mov_b32 v13, v12
    v_permlane16_swap_b32 v12, v13
    v_max_f32 v12, v12, v13
    s_lshl_b32 s59, s53, 3
    v_add_u32 v23, s59, v22
    s_mov_b64 s[62:63], exec
    s_mov_b64 exec, 0x11
    ds_write_b32 v23, v12 offset:{L_MX}
    s_mov_b64 exec, s[62:63]
    """)
    lds_add(C_MAX)
    lds_wait(C_MAX, nkv, sleep=0)
    for i in range(nkv): P(f'ds_read_b32 v{K0+i}, v22 offset:{L_MX+8*i}')
    P('s_waitcnt lgkmcnt(0)')
    MX = 15
    P(f'v_mov_b32 v{MX}, v{K0}')
    i = 1
    while i < nkv:
        if i + 1 < nkv: P(f'v_max3_f32 v{MX}, v{MX}, v{K0+i}, v{K0+i+1}'); i += 2
        else: P(f'v_max_f32 v{MX}, v{MX}, v{K0+i}'); i += 1
    P(f'v_mul_f32 v13, s58, v{MX}')
    for i in range(4): P(f'v_fma_f32 v{SD+i}, v{SD+i}, s58, -v13')
    for i in range(4): P(f'v_exp_f32 v{SD+i}, v{SD+i}')
    P(f"""
    v_add_f32 v12, v{SD}, v{SD+1}
    v_add_f32 v13, v{SD+2}, v{SD+3}
    """)
    for i in range(4): P(f'v_cvt_pk_bf16_f32 v{SD+i}, v{SD+i}, v{SD+i}')
    P('v_add_f32 v12, v12, v13')
    G = 104
    for t in range(2):
        for r_ in range(4): P(f'ds_bpermute_b32 v{G+4*t+r_}, v{20+t}, v{SD+r_}')
    P(f"""
    v_add_f32_dpp v12, v12, v12 quad_perm:[1,0,3,2] {DPPM}
    v_add_f32_dpp v12, v12, v12 quad_perm:[2,3,0,1] {DPPM}
    v_mov_b32 v13, v12
    v_permlane16_swap_b32 v12, v13
    v_add_f32 v12, v12, v13
    s_mov_b64 s[62:63], exec
    s_mov_b64 exec, 0x11
    ds_write_b32 v23, v12 offset:{L_LS}
    s_mov_b64 exec, s[62:63]
    s_waitcnt lgkmcnt(1)
    """)
    for i in range(8):
        for j in range(4): P(f'v_and_b32 v{K0+4*i+j}, v{G+i}, v{MK+j}')
    GR = 112
    tag_fill(GR)
    P(f'v_mov_b32 v122, s6\nv_mov_b32 v123, s7')
    P('s_waitcnt vmcnt(0)')
    stamp(5)
    for i in range(8):
        c = '0' if i == 0 else f'v[{ACC}:{ACC+3}]'
        P(f'v_mfma_f32_16x16x32_bf16 v[{ACC}:{ACC+3}], v[{V0+4*i}:{V0+4*i+3}], v[{K0+4*i}:{K0+4*i+3}], {c}')
    P(f"""
    s_lshl_b32 s59, s53, 10
    v_lshlrev_b32 v16, 4, v1
    v_add_u32 v17, s59, v16
    ds_write_b128 v17, v[{ACC}:{ACC+3}] offset:{L_OSLOT}
    """)
    lds_add_rtn(C_O, 's60')
    ldone = P.lbl('Lkvdone')
    P(f"""
    s_cmp_lg_u32 s60, {nkv-1}
    s_cbranch_scc1 {ldone}
    """)
    P('v_lshlrev_b32 v18, 3, v1')
    for i in range(nkv):
        P(f'ds_read_b64 v[{K0+4*i}:{K0+4*i+1}], v18 offset:{L_OSLOT+1024*i}')
        P(f'ds_read_b64 v[{K0+4*i+2}:{K0+4*i+3}], v18 offset:{L_OSLOT+1024*i+512}')
    LS0 = 100
    for i in range(nkv): P(f'ds_read_b32 v{LS0+i}, v22 offset:{L_LS+8*i}')
    P(f"""
    s_lshl_b32 s59, s4, 4
    s_add_u32 s59, s59, s5
    s_mul_i32 s59, s59, {H3S}
    s_add_u32 s59, s59, {H3}
    s_waitcnt lgkmcnt(0)
    """)
    regs = list(range(nkv))
    while len(regs) > 1:
        nxt = []
        for a in range(0, len(regs) - 1, 2):
            x, y = regs[a], regs[a+1]
            for j in range(4): P(f'v_add_f32 v{K0+4*x+j}, v{K0+4*x+j}, v{K0+4*y+j}')
            P(f'v_add_f32 v{LS0+x}, v{LS0+x}, v{LS0+y}')
            nxt.append(x)
        if len(regs) % 2: nxt.append(regs[-1])
        regs = nxt
    make_granules(GR, K0)
    P(f"""
    v_mov_b32 v120, v{MX}
    v_mov_b32 v121, v{LS0}
    """)
    if cfg.h3_local:
        P(f"""
        s_add_u32 s65, s59, {H3L - H3}
        buffer_store_dwordx4 v[{GR}:{GR+3}], v16, s[44:47], s65 offen
        buffer_store_dwordx4 v[{GR+4}:{GR+7}], v16, s[44:47], s65 offen offset:1024
        s_mov_b64 exec, 0xff
        buffer_store_dwordx4 v[120:123], v16, s[44:47], s65 offen offset:2048
        s_mov_b64 exec, -1
        """)
    P(f"""
    buffer_store_dwordx4 v[{GR}:{GR+3}], v16, s[44:47], s59 offen sc1
    buffer_store_dwordx4 v[{GR+4}:{GR+7}], v16, s[44:47], s59 offen offset:1024 sc1
    s_mov_b64 exec, 0xff
    buffer_store_dwordx4 v[120:123], v16, s[44:47], s59 offen offset:2048 sc1
    s_mov_b64 exec, -1
    """)
    lds_add(FL_PUB)
    stamp(6)
    P(f'{ldone}:')
    if is_f:
        P(f"""
        s_cmp_lt_u32 s53, 5
        s_cbranch_scc1 L_down
        s_cmp_eq_u32 s53, 5
        s_cbranch_scc1 L_commF
        s_branch L_exit
        """)
    else:
        end_wave()

def pack_pair(G, ACC):
    P(f'v_mov_b32 v{G}, v{ACC}')
    P(f'v_mov_b32 v{G+1}, v{ACC+1}')
    P(f'v_mov_b32_dpp v{G}, v{ACC+2} row_shr:8 row_mask:0xf bank_mask:0xc')
    P(f'v_mov_b32_dpp v{G+1}, v{ACC+3} row_shr:8 row_mask:0xf bank_mask:0xc')

def store_addr():
    P(f"""
    v_and_b32 v12, 7, v2
    v_lshl_add_u32 v12, v3, 3, v12
    v_lshlrev_b32 v12, 5, v12
    v_lshrrev_b32 v6, 3, v2
    v_lshl_add_u32 v12, v6, 4, v12
    """)

def tag_fill1(G):
    P(f'v_mov_b32 v{G+2}, s6')
    P(f'v_mov_b32 v{G+3}, s7')

def store_block(sb, ACC, G):
    pack_pair(G, ACC)
    P(f"""
    s_lshl_b32 s60, {sb}, 10
    s_add_u32 s59, s59, s60
    buffer_store_dwordx4 v[{G}:{G+3}], v12, s[44:47], s59 offen sc1
    """)

def store_half(ACC, G):
    T = G + 4
    for j in range(4): P(f'v_mov_b32 v{T+j}, v{ACC+j}')
    for j in range(4): P(f'v_permlane32_swap_b32 v{ACC+j}, v{T+j}')
    for j in range(4): P(f'v_add_f32_dpp v{ACC+j}, v{T+j}, v{ACC+j} row_shl:8 {DPPM}')
    pack_pair(G, ACC)
    P(f"""
    s_add_u32 s59, s59, 4096
    s_mov_b64 s[62:63], exec
    s_mov_b64 exec, 0xffffffff
    buffer_store_dwordx4 v[{G}:{G+3}], v12, s[44:47], s59 offen sc1
    s_mov_b64 exec, s[62:63]
    """)

def down_role():
    W0, MK, XS, ACC, QA, QB, G = 32, 8, 64, 72, 76, 80, 84
    P('L_down:')
    role(8)
    lds_wait(FL_PUB, 1, sleep=1)
    srd(36, 24, 4608*1152)
    P(f"""
    s_mul_i32 s54, s4, 9
    s_add_u32 s54, s54, s5
    s_sub_u32 s54, s54, 7             ; phi
    s_mul_i32 s55, s54, {32*1152}
    s_cmp_eq_u32 s53, 4
    s_cbranch_scc1 L_down_half
    s_lshl_b32 s56, s53, 8
    s_add_u32 s55, s55, s56
    v_mul_u32_u24 v4, 1152, v3
    v_lshl_add_u32 v4, v2, 4, v4
    """)
    for e in range(8):
        P(f'buffer_load_dwordx4 v[{W0+4*e}:{W0+4*e+3}], v4, s[36:39], s55 offen nt')
        if e < 7: P(f's_add_u32 s55, s55, {4*1152}')
    P('v_lshlrev_b32 v5, 2, v3')
    P('s_mov_b32 s57, 16')
    P('s_branch L_down_go')
    P('L_down_half:')
    P(f"""
    s_add_u32 s55, s55, 1024
    v_lshrrev_b32 v6, 3, v2
    v_lshl_add_u32 v6, v6, 2, v3
    v_mul_u32_u24 v4, 1152, v6
    v_and_b32 v7, 7, v2
    v_lshl_add_u32 v4, v7, 4, v4
    v_lshlrev_b32 v5, 2, v6
    """)
    for t in range(4):
        P(f'buffer_load_dwordx4 v[{W0+4*t}:{W0+4*t+3}], v4, s[36:39], s55 offen nt')
        if t < 3: P(f's_add_u32 s55, s55, {8*1152}')
    P('s_mov_b32 s57, 32')
    P('L_down_go:')
    masks(MK)
    store_addr()
    tag_fill1(G)
    for e in range(8):
        P(f'v_mov_b32 v{104+e}, v5')
        if e < 7: P('v_add_u32 v5, s57, v5')
    P(f"""
    s_mul_i32 s59, s54, {PS}
    s_add_u32 s59, s59, {FP}
    v_and_b32 v6, 31, v1
    v_lshlrev_b32 v13, 2, v6
    """)
    P('s_barrier')
    P('s_barrier')
    stamp(7)
    P(f"""
    ds_read_b32 v16, v13 offset:{L_RED3}
    ds_read_b32 v17, v13 offset:{L_RED3+128}
    ds_read_b32 v18, v13 offset:{L_RED3+256}
    ds_read_b32 v19, v13 offset:{L_RED3+384}
    s_waitcnt lgkmcnt(0)
    v_add_f32 v16, v16, v17
    v_add_f32 v18, v18, v19
    """)
    rne_many([16, 18])
    k1 = f32hex(0.044715); k2 = f32hex(-2.0*math.sqrt(2.0/math.pi)*math.log2(math.e))
    P(f"""
    s_mov_b32 s60, {k1:#x}
    s_mov_b32 s61, {k2:#x}
    v_mul_f32 v17, v16, v16
    v_mul_f32 v17, v17, v16
    v_fma_f32 v17, v17, s60, v16
    v_mul_f32 v17, s61, v17
    v_exp_f32 v17, v17
    v_add_f32 v17, 1.0, v17
    v_rcp_f32 v17, v17
    v_mul_f32 v16, v16, v17
    """)
    rne('v16', 'v16')
    P('v_mul_f32 v16, v16, v18')
    P('v_cvt_pk_bf16_f32 v16, v16, v16')
    for e in range(8): P(f'ds_bpermute_b32 v{XS+e}, v{104+e}, v16')
    P('s_waitcnt vmcnt(0) lgkmcnt(0)')
    P(f"""
    s_cmp_eq_u32 s53, 4
    s_cbranch_scc1 L_down_half2
    """)
    diag_mm(ACC, [W0+4*e for e in range(8)], [f'v{XS+e}' for e in range(8)], MK, QA, QB)
    store_block('s53', ACC, G)
    stamp(6)
    end_wave()
    P('L_down_half2:')
    diag_mm(ACC, [W0+4*t for t in range(4)], [f'v{XS+t}' for t in range(4)], MK, QA, QB)
    store_half(ACC, G)
    stamp(6)
    end_wave()

def wo_role(suffix, nkv):
    P(f'L_wo{suffix}:')
    P('s_barrier')
    if cfg.order2 and suffix == 'Q' and cfg.q_order == 'wo_kv': lds_wait(C_G, 1, sleep=2)
    elif cfg.order2: lds_wait(C_KVI, nkv, sleep=2)
    elif suffix == 'M': lds_wait(C_B2, 6, sleep=2)
    elif cfg.q_wo_gate: lds_wait(C_G, 1, sleep=2)
    P('s_branch L_wo_common')

def wo_common():
    W0, MK, XS, G = 32, 8, 112, 16
    A0, A1, QA, QB = 24, 28, 0, 0
    P('L_wo_common:')
    role(4)
    srd(36, 16, 4096*1152)
    P(f"""
    s_sub_u32 s53, s3, 7              ; 0,1,2
    s_mov_b32 s54, s5                 ; a
    s_mul_i32 s55, s54, 9
    s_lshl_b32 s56, s4, 8
    """)
    def rowbase(dst, e):
        P(f"""
        s_add_u32 s57, s55, {e}
        s_bfe_u32 s58, s57, 0x10003
        s_lshl_b32 s58, s58, 7
        s_lshr_b32 s60, s57, 4
        s_lshl_b32 s60, s60, 5
        s_add_u32 s58, s58, s60
        s_and_b32 s60, s57, 7
        s_add_u32 s58, s58, s60
        s_add_u32 s58, s58, s56
        s_mul_i32 {dst}, s58, 1152
        """)
    def common_post():
        lds_add(C_WO)
        masks(MK)
        store_addr()
        tag_ready()
        P(f"""
        s_mul_i32 s59, s4, 7
        s_add_u32 s59, s59, s54
        s_mul_i32 s59, s59, {PS}
        s_add_u32 s59, s59, {XP}
        """)
    P(f"""
    s_cmp_eq_u32 s53, 2
    s_cbranch_scc1 L_wo_half
    s_lshl_b32 s65, s53, 9
    v_mul_u32_u24 v4, {8*1152}, v3
    v_lshl_add_u32 v4, v2, 4, v4
    """)
    for e in range(10):
        if e == 9:
            P(f"""
            s_cmp_lt_u32 s54, 6
            s_cbranch_scc1 L_wo_l9
            """)
        rowbase('s66', e)
        P('s_add_u32 s66, s66, s65')
        P(f'buffer_load_dwordx4 v[{W0+8*e}:{W0+8*e+3}], v4, s[36:39], s66 offen nt')
        P(f'buffer_load_dwordx4 v[{W0+8*e+4}:{W0+8*e+7}], v4, s[36:39], s66 offen offset:256 nt')
    P('L_wo_l9:')
    P('v_lshlrev_b32 v5, 2, v3')
    common_post()
    GA, GB = 16, 20
    tag_fill1(GA); tag_fill1(GB)
    stamp(5)
    P('s_barrier')
    stamp(6)
    XS2 = [112, 113, 114, 115, 116, 117, 118, 119, 13, 14]
    for e in range(10): P(f'ds_read_b32 v{XS2[e]}, v5 offset:{L_XA+16*e}')
    P('s_waitcnt vmcnt(0) lgkmcnt(0)')
    def mm(n):
        qs = ((60+0, ), )
        QAa, QBb = 0, 0
        def prep(e, q):
            for i in range(4): P(f'v_and_b32 v{q+i}, v{XS2[e]}, v{MK+i}')
        Q2 = (4, 4)
        for e in range(n):
            q = 4 if e == 0 else W0 + 8*(e-1)
            prep(e, q)
            c0 = '0' if e == 0 else f'v[{A0}:{A0+3}]'
            c1 = '0' if e == 0 else f'v[{A1}:{A1+3}]'
            P(f'v_mfma_f32_16x16x32_bf16 v[{A0}:{A0+3}], v[{W0+8*e}:{W0+8*e+3}], v[{q}:{q+3}], {c0}')
            P(f'v_mfma_f32_16x16x32_bf16 v[{A1}:{A1+3}], v[{W0+8*e+4}:{W0+8*e+7}], v[{q}:{q+3}], {c1}')
    P(f"""
    s_cmp_lt_u32 s54, 6
    s_cbranch_scc1 L_wo_m9
    """)
    mm(10)
    P('s_branch L_wo_st')
    P('L_wo_m9:')
    mm(9)
    P('L_wo_st:')
    pack_pair(GA, A0)
    pack_pair(GB, A1)
    P(f"""
    s_lshl_b32 s60, s53, 11
    s_add_u32 s59, s59, s60
    buffer_store_dwordx4 v[{GA}:{GA+3}], v12, s[44:47], s59 offen sc1
    buffer_store_dwordx4 v[{GB}:{GB+3}], v12, s[44:47], s59 offen offset:1024 sc1
    """)
    stamp(7)
    end_wave()
    P('L_wo_half:')
    P(f"""
    v_mul_u32_u24 v4, {8*1152}, v3
    v_and_b32 v6, 7, v2
    v_lshl_add_u32 v4, v6, 4, v4
    v_add_u32 v4, 1024, v4
    v_cmp_lt_u32 s[68:69], 7, v2
    """)
    for t in range(5):
        rowbase('s66', 2*t)
        rowbase('s67', 2*t+1)
        if t == 4:
            P(f"""
            s_cmp_lt_u32 s54, 6
            s_cselect_b32 s67, 0x40000000, s67
            """)
        P(f"""
        v_mov_b32 v6, s66
        v_mov_b32 v7, s67
        v_cndmask_b32 v6, v6, v7, s[68:69]
        v_add_u32 v6, v6, v4
        buffer_load_dwordx4 v[{W0+4*t}:{W0+4*t+3}], v6, s[36:39], 0 offen nt
        """)
    P(f"""
    v_lshrrev_b32 v5, 3, v2
    v_lshl_add_u32 v5, v5, 2, v3
    v_lshlrev_b32 v5, 2, v5
    """)
    if cfg.pf2 & 2:
        P('v_mov_b32 v15, v5')
        prefetch_code('3', 100)
        P('v_mov_b32 v5, v15')
    common_post()
    GH = 96
    tag_fill1(GH)
    stamp(5)
    P('s_barrier')
    stamp(6)
    for t in range(5): P(f'ds_read_b32 v{112+t}, v5 offset:{L_XA+32*t}')
    P('s_waitcnt vmcnt(0) lgkmcnt(0)')
    diag_mm(72, [W0+4*t for t in range(5)], [f'v{112+t}' for t in range(5)], MK, 76, 80)
    store_half(72, GH)
    stamp(7)
    end_wave()

def q_fetch(nxt):
    l = P.lbl('Lqf'); l2 = P.lbl('Lqf'); l3 = P.lbl('Lqf')
    P(f"""
    s_cmp_gt_u32 s3, 4
    s_cbranch_scc1 {nxt}
    s_lshl_b32 s38, s4, 10
    s_lshl_b32 s39, s3, 8
    s_add_u32 s38, s38, s39
    s_add_u32 s38, s38, {QF-256}
    s_add_u32 s36, s34, s38
    s_addc_u32 s37, s35, 0
    s_mov_b32 s42, 0x40000
    """)
    if cfg.q_direct:
        P(f"""
        s_branch {l3}
        {l}:
        s_sleep {cfg.q_sleep}
        {l3}:
        s_load_dwordx2 s[40:41], s[36:37], 128 glc
        s_load_dwordx16 s[48:63], s[36:37], 0 glc
        s_load_dwordx16 s[64:79], s[36:37], 64 glc
        s_sub_u32 s42, s42, 1
        s_cbranch_scc1 {ABORT}
        s_waitcnt lgkmcnt(0)
        s_cmp_lg_u32 s41, s7
        s_cbranch_scc1 {l}
        s_add_u32 s43, s48, s7
        """)
        for i in range(49, 80): P(f's_add_u32 s43, s43, s{i}')
        P(f"""
        s_cmp_lg_u32 s43, s40
        s_cbranch_scc1 {l3}
        """)
    else:
        P(f"""
        s_branch {l3}
        {l}:
        s_sleep {cfg.q_sleep}
        {l3}:
        s_load_dwordx2 s[40:41], s[36:37], 128 glc
        s_sub_u32 s42, s42, 1
        s_cbranch_scc1 {ABORT}
        s_waitcnt lgkmcnt(0)
        s_cmp_lg_u32 s41, s7
        s_cbranch_scc1 {l}
        {l2}:
        s_load_dwordx16 s[48:63], s[36:37], 0 glc
        s_load_dwordx16 s[64:79], s[36:37], 64 glc
        s_sub_u32 s42, s42, 1
        s_cbranch_scc1 {ABORT}
        s_waitcnt lgkmcnt(0)
        s_add_u32 s43, s48, s7
        """)
        for i in range(49, 80): P(f's_add_u32 s43, s43, s{i}')
        P(f"""
        s_cmp_lg_u32 s43, s40
        s_cbranch_scc1 {l2}
        """)
    for i in range(32): P(f'v_writelane_b32 v20, s{48+i}, {i}')
    P(f"""
    v_and_b32 v21, 3, v1
    v_lshlrev_b32 v21, 2, v21
    v_bfe_u32 v22, v1, 2, 2
    v_add_u32 v21, v21, v22
    v_and_b32 v22, 16, v1
    v_add_u32 v21, v21, v22
    v_lshlrev_b32 v21, 2, v21
    s_lshl_b32 s38, s3, 7
    v_add_u32 v21, s38, v21
    s_mov_b64 exec, 0xffffffff
    ds_write_b32 v21, v20 offset:{L_Q-128}
    s_mov_b64 exec, -1
    """)
    srd(44, 34, 0x40000000)
    lds_add(FL_Q)

def ln_stats(regs, mean_b, rstd, t1, t2, maskfix=None):
    P(f'v_add_f32 {t1}, v{regs[0]}, v{regs[1]}')
    for r in regs[2:]: P(f'v_add_f32 {t1}, {t1}, v{r}')
    wave_sum(t1, t2)
    P(f's_mov_b32 s60, {f32hex(1.0/576.0):#x}')
    P(f'v_mul_f32 {t1}, s60, {t1}')
    first = True
    for r in regs:
        P(f'v_sub_f32 {t2}, v{r}, {t1}')
        if maskfix and r in maskfix[0]: P(f'v_cndmask_b32 {t2}, 0, {t2}, {maskfix[1]}')
        if first: P(f'v_mul_f32 {rstd}, {t2}, {t2}'); first = False
        else: P(f'v_fmac_f32 {rstd}, {t2}, {t2}')
    wave_sum(rstd, t2)
    P(f'v_mul_f32 {rstd}, s60, {rstd}')
    rne(rstd, rstd)
    P(f'v_add_f32 {rstd}, {f32hex(1e-5):#x}, {rstd}')
    rne(rstd, rstd)
    P(f'v_sqrt_f32 {rstd}, {rstd}')
    rne(rstd, rstd)
    P(f'v_rcp_f32 {rstd}, {rstd}')
    rne(mean_b, t1)

def fold_reduce(base, slot0):
    for i in range(6): P(f'ds_read_b128 v[{base+4*i}:{base+4*i+3}], v16 offset:{L_SLOT+1024*(slot0+i)}')
    P('s_waitcnt lgkmcnt(0)')
    for (x, y) in ((0, 1), (2, 3), (4, 5), (0, 2), (0, 4)):
        for jj in range(4): P(f'v_add_f32 v{base+4*x+jj}, v{base+4*x+jj}, v{base+4*y+jj}')
    T = base + 4
    for jj in range(4): P(f'v_mov_b32 v{T+jj}, v{base+jj}')
    for jj in range(4): P(f'v_permlane32_swap_b32 v{base+jj}, v{T+jj}')
    for jj in range(4): P(f'v_add_f32_dpp v{base+jj}, v{T+jj}, v{base+jj} row_shl:8 {DPPM}')

def silu(regs, tmps):
    P(f's_mov_b32 s60, {f32hex(-1.4426950408889634):#x}')
    for r in regs: P(f'v_lshlrev_b32 v{r}, 16, v{r}')
    for r, t in zip(regs, tmps): P(f'v_mul_f32 v{t}, s60, v{r}')
    for r, t in zip(regs, tmps): P(f'v_exp_f32 v{t}, v{t}')
    for r, t in zip(regs, tmps): P(f'v_add_f32 v{t}, 1.0, v{t}')
    for r, t in zip(regs, tmps): P(f'v_rcp_f32 v{t}, v{t}')
    for r, t in zip(regs, tmps): P(f'v_mul_f32 v{r}, v{r}, v{t}')
    for r, t in zip(regs, tmps): P(f'v_cvt_pk_bf16_f32 v{r}, v{r}, v{r}')

def wq_role():
    WB, MK, XS, ACC, QA, QB, XA = 56, 8, 104, 116, 120, 124, 32
    XSB = L_SLOT + 12*1024
    P('L_wq:')
    role(2)
    srd(36, 14, 576*8192)
    srd(40, 8, 1152)
    P(f"""
    s_sub_u32 s53, s3, 1              ; j
    s_sub_u32 s54, s5, 3              ; qi
    s_mul_i32 s57, s53, 96
    v_lshlrev_b32 v4, 1, v1
    """)
    for n in range(9): P(f'buffer_load_ushort v{XA+n}, v4, s[40:43], 0 offen offset:{128*n}')
    P(f"""
    v_and_b32 v6, 31, v1
    v_lshlrev_b32 v7, 1, v6
    s_lshl_b32 s58, s57, 1
    buffer_load_ushort v{XA+9}, v4, s[40:43], s58 offen
    buffer_load_ushort v{XA+10}, v7, s[40:43], s58 offen offset:128
    v_lshrrev_b32 v13, 3, v2
    v_lshl_add_u32 v13, v13, 2, v3
    v_lshlrev_b32 v5, 13, v13
    v_and_b32 v7, 7, v2
    v_lshl_add_u32 v5, v7, 4, v5
    s_lshl_b32 s58, s57, 13
    s_lshl_b32 s59, s4, 9
    s_add_u32 s58, s58, s59
    s_lshl_b32 s59, s54, 7
    s_add_u32 s58, s58, s59
    """)
    for t in range(12):
        P(f'buffer_load_dwordx4 v[{WB+4*t}:{WB+4*t+3}], v5, s[36:39], s58 offen nt')
        if t < 11: P(f's_add_u32 s58, s58, {8*8192}')
    stamp(1)
    P('s_barrier')
    P(f"""
    v_add_u32 v28, s57, v1
    v_lshlrev_b32 v28, 3, v28
    v_add_u32 v29, s57, v6
    v_lshlrev_b32 v29, 3, v29
    v_add_u32 v29, 512, v29
    v_lshlrev_b32 v31, 2, v13
    s_lshl_b32 s67, s53, 10
    v_add_u32 v31, s67, v31
    v_lshlrev_b32 v30, 2, v1
    v_add_u32 v30, s67, v30
    v_lshlrev_b32 v27, 2, v6
    v_add_u32 v27, s67, v27
    """)
    masks(MK)
    P('s_waitcnt vmcnt(12)')
    tag_ready()
    for n in range(11): P(f'v_lshlrev_b32 v{XA+n}, 16, v{XA+n}')
    ln_stats(list(range(XA, XA+9)), 'v16', 'v17', 'v18', 'v19')
    for n in (9, 10): P(f'v_sub_f32 v{XA+n}, v{XA+n}, v16')
    rne_many([XA+9, XA+10])
    for n in (9, 10): P(f'v_mul_f32 v{XA+n}, v{XA+n}, v17')
    rne_many([XA+9, XA+10])
    P(f"""
    v_mov_b32 v20, v{XA+9}
    v_mov_b32 v21, v{XA+10}
    s_mov_b32 s66, {MODP}
    s_mov_b32 s68, {MODP+9216}
    s_mov_b32 s69, {MODP+4608}
    s_mov_b32 s70, {MODP+9216+4608}
    """)
    G = 32
    sr = ['s66', 's68', 's69', 's70']
    loads = []
    for st_, va in enumerate(('v28', 'v29')):
        for i in range(4):
            r = G + 8*st_ + 2*i
            loads.append(f'buffer_load_dwordx2 v[{r}:{r+1}], {va}, s[44:47], {sr[i]} offen sc1')
    if cfg.wq_first:
        P('s_waitcnt vmcnt(0)')
        stamp(5)
    poll(loads, check_tags32([G+1+2*i for i in range(8)]))
    stamp(2)
    for st_ in range(2):
        b = G + 8*st_
        P(f'v_add_f32 v{b}, v{b}, v{b+2}')
        P(f'v_add_f32 v{b+4}, v{b+4}, v{b+6}')
    rne_many([G, G+4, G+8, G+12])
    for st_ in range(2): P(f'v_add_f32 v{G+8*st_+4}, 1.0, v{G+8*st_+4}')
    rne_many([G+4, G+12])
    for st_ in range(2): P(f'v_mul_f32 v{20+st_}, v{20+st_}, v{G+8*st_+4}')
    rne_many([20, 21])
    for st_ in range(2): P(f'v_add_f32 v{20+st_}, v{20+st_}, v{G+8*st_}')
    for st_ in range(2): P(f'v_cvt_pk_bf16_f32 v{20+st_}, v{20+st_}, v{20+st_}')
    P(f"""
    ds_write_b32 v30, v20 offset:{XSB}
    ds_write_b32 v27, v21 offset:{XSB+256}
    """)
    for t in range(12): P(f'ds_read_b32 v{XS+t}, v31 offset:{XSB+32*t}')
    P('s_waitcnt lgkmcnt(0)')
    stamp(3)
    diag_mm(ACC, [WB+4*t for t in range(12)], [f'v{XS+t}' for t in range(12)], MK, QA, QB)
    P(f"""
    s_lshl_b32 s59, s53, 10
    v_lshlrev_b32 v16, 4, v1
    v_add_u32 v19, s59, v16
    ds_write_b128 v19, v[{ACC}:{ACC+3}] offset:{L_SLOT}
    """)
    lds_add_rtn(C_RED, 's60')
    P(f"""
    s_cmp_lg_u32 s60, 5
    s_cbranch_scc1 L_wq_done
    """)
    fold_reduce(WB, 0)
    for r in range(4): P(f'v_mov_b32_dpp v{WB+4+r}, v{WB+r} quad_perm:[1,0,3,2] {DPPM}')
    for r in range(4): P(f'v_cvt_pk_bf16_f32 v{WB+r}, v{WB+r}, v{WB+4+r}')
    P(f"""
    v_add_u32 v{WB+4}, v{WB}, v{WB+1}
    v_add3_u32 v{WB+4}, v{WB+4}, v{WB+2}, v{WB+3}
    s_mov_b32 s60, 0x00550055
    s_mov_b32 s61, 0
    v_cndmask_b32 v{WB+4}, 0, v{WB+4}, s[60:61]
    v_add_u32_dpp v{WB+4}, v{WB+4}, v{WB+4} quad_perm:[2,3,0,1] {DPPM}
    v_add_u32_dpp v{WB+4}, v{WB+4}, v{WB+4} row_shl:4 {DPPM} bound_ctrl:0
    v_lshrrev_b32 v19, 1, v2
    v_lshl_add_u32 v19, v3, 2, v19
    v_lshlrev_b32 v19, 4, v19            ; (gq*4 + c/2)*16
    v_readlane_b32 s60, v{WB+4}, 0
    v_readlane_b32 s61, v{WB+4}, 16
    s_add_u32 s60, s60, s61
    s_add_u32 s60, s60, s7
    s_mov_b32 s61, 128
    v_writelane_b32 v{WB}, s60, 1
    v_writelane_b32 v{WB+1}, s7, 1
    v_writelane_b32 v19, s61, 1
    s_lshl_b32 s59, s4, 10
    s_lshl_b32 s60, s54, 8
    s_add_u32 s59, s59, s60
    s_add_u32 s59, s59, {QF}
    s_mov_b64 exec, 0x00550057
    buffer_store_dwordx4 v[{WB}:{WB+3}], v19, s[44:47], s59 offen sc1
    s_mov_b64 exec, -1
    """)
    lds_add(C_G)
    stamp(4)
    P('L_wq_done:')
    q_fetch('L_exit')
    end_wave()

def mod_role():
    WA, MK, XS, ACC, QA, QB = 32, 8, 104, 116, 120, 124
    XSB = L_SLOT + 12*1024
    P('L_mod:')
    role(3)
    P(f"""
    s_mov_b32 s54, s2
    s_cmp_ge_u32 s54, 36
    s_cbranch_scc1 L_mod_noA
    """)
    srd(36, 28, 576*6912)
    srd(40, 26, 1152)
    P(f"""
    s_sub_u32 s53, s3, 1              ; j
    v_lshlrev_b32 v4, 1, v1
    s_and_b32 s56, s54, 1             ; kh
    s_mul_i32 s57, s56, 288
    s_mul_i32 s58, s53, 48
    s_add_u32 s57, s57, s58
    s_lshl_b32 s58, s57, 1
    buffer_load_ushort v16, v4, s[40:43], s58 offen
    v_lshrrev_b32 v13, 3, v2
    v_lshl_add_u32 v13, v13, 2, v3
    v_mul_u32_u24 v5, 6912, v13
    v_and_b32 v7, 7, v2
    v_lshl_add_u32 v5, v7, 4, v5
    s_lshr_b32 s55, s54, 1            ; cbk
    s_mul_i32 s58, s57, 6912
    s_lshl_b32 s59, s55, 7
    s_add_u32 s58, s58, s59
    """)
    for t in range(6):
        P(f'buffer_load_dwordx4 v[{WA+4*t}:{WA+4*t+3}], v5, s[36:39], s58 offen nt')
        if t < 5: P(f's_add_u32 s58, s58, {8*6912}')
    P('s_barrier')
    P(f"""
    v_lshlrev_b32 v31, 2, v13
    s_lshl_b32 s67, s53, 10
    v_add_u32 v31, s67, v31
    v_lshlrev_b32 v30, 2, v1
    v_add_u32 v30, s67, v30
    s_mul_i32 s65, s56, 9216
    s_lshl_b32 s60, s55, 9
    s_add_u32 s65, s65, s60
    s_add_u32 s65, s65, {MODP}
    v_lshlrev_b32 v29, 5, v3
    v_add_u32 v29, v29, v2
    v_lshlrev_b32 v29, 3, v29
    """)
    masks(MK)
    tag_ready()
    for rr in range(4): P(f'v_mov_b32 v{61+2*rr}, s7')
    P('s_waitcnt vmcnt(6)')
    stamp(1)
    silu([16], [19])
    P(f'ds_write_b32 v30, v16 offset:{XSB}')
    for t in range(6): P(f'ds_read_b32 v{XS+t}, v31 offset:{XSB+32*t}')
    P('s_waitcnt vmcnt(0) lgkmcnt(0)')
    stamp(2)
    lds_add(C_G)
    diag_mm(ACC, [WA+4*t for t in range(6)], [f'v{XS+t}' for t in range(6)], MK, QA, QB)
    P(f"""
    s_lshl_b32 s59, s53, 10
    v_lshlrev_b32 v16, 4, v1
    v_add_u32 v19, s59, v16
    ds_write_b128 v19, v[{ACC}:{ACC+3}] offset:{L_SLOT}
    """)
    lds_add_rtn(C_RED, 's60')
    P(f"""
    s_cmp_lg_u32 s60, 5
    s_cbranch_scc1 L_mod_fin
    """)
    fold_reduce(WA, 0)
    for rr in range(4): P(f'v_mov_b32 v{60+2*rr}, v{WA+rr}')
    P('s_mov_b64 exec, 0x00ff00ff')
    for rr in range(4):
        P(f'buffer_store_dwordx2 v[{60+2*rr}:{61+2*rr}], v29, s[44:47], s65 offen offset:{64*rr} sc1')
    P('s_mov_b64 exec, -1')
    lds_add(C_H)
    stamp(3)
    P('s_branch L_mod_fin')
    P('L_mod_noA:')
    P('s_barrier')
    if cfg.b_on != 'M': lds_add(C_G)
    lds_add(C_H)
    tag_ready()
    P('L_mod_fin:')
    if cfg.b_on == 'M':
        lds_wait(C_H, 1, sleep=0)
        if cfg.order2:
            P(f"""
            s_cmp_lt_u32 s2, 12
            s_cbranch_scc1 L_mod_nob
            s_sub_u32 s53, s3, 1
            s_sub_u32 s65, s2, 36
            s_cmp_ge_u32 s2, 36
            s_cbranch_scc1 L_mod_bgo
            s_mov_b32 s65, s2
            """)
            if cfg.m_order == 'a_b_kv_wo':
                P('s_branch L_mod_bgo')
            P('s_mov_b32 s98, s65' if not cfg.hdbg else 's_mov_b32 s99, s65')
            q_fetch('L_mod_q2')
            P('L_mod_q2:')
            P('s_mov_b32 s65, s98' if not cfg.hdbg else 's_mov_b32 s65, s99')
            P('s_sub_u32 s53, s3, 1')
            P('s_mov_b32 s100, 1')
            lds_wait(C_WO, 3, sleep=2)
            P('s_branch L_mod_bgo2')
            P('L_mod_bgo:')
            P('s_mov_b32 s100, 0')
            P('L_mod_bgo2:')
        else:
            P(f"""
            s_cmp_lt_u32 s2, 12
            s_cbranch_scc1 L_mod_nob
            s_sub_u32 s65, s2, 12
            s_sub_u32 s53, s3, 1
            """)
        modb_body('M')
        if cfg.order2:
            P('s_cmp_lg_u32 s100, 0\ns_cbranch_scc1 L_exit')
        P('s_branch L_mod_q')
        P('L_mod_nob:')
        lds_add(C_B2)
        P('L_mod_q:')
    q_fetch('L_exit')
    end_wave()

def modb_body(cls):
    WB, MK, XS, ACC, QA, QB, G = 56, 8, 104, 116, 120, 124, 32
    done = 'L_exit' if cls == 'Q' else 'L_modb_done'
    srd(36, 28, 576*6912)
    srd(40, 26, 1152)
    P(f"""
    v_lshlrev_b32 v4, 1, v1
    s_mul_i32 s66, s53, 96
    s_lshl_b32 s59, s66, 1
    buffer_load_ushort v17, v4, s[40:43], s59 offen
    buffer_load_ushort v18, v4, s[40:43], s59 offen offset:128
    v_lshrrev_b32 v13, 3, v2
    v_lshl_add_u32 v13, v13, 2, v3
    v_mul_u32_u24 v5, 6912, v13
    v_and_b32 v7, 7, v2
    v_lshl_add_u32 v5, v7, 4, v5
    v_lshlrev_b32 v31, 2, v13
    s_lshl_b32 s67, s53, 9
    v_add_u32 v31, s67, v31
    v_lshlrev_b32 v30, 2, v1
    v_add_u32 v30, s67, v30
    s_mul_i32 s58, s66, 6912
    s_lshl_b32 s59, s65, 7
    s_add_u32 s58, s58, s59
    s_add_u32 s58, s58, 2304
    """)
    def wloads():
        for t in range(12):
            if cls == 'Q' and cfg.b_k and t >= cfg.b_k: P(f's_waitcnt vmcnt({cfg.b_k-1})')
            P(f'buffer_load_dwordx4 v[{WB+4*t}:{WB+4*t+3}], v5, s[36:39], s58 offen nt')
            if t < 11: P(f's_add_u32 s58, s58, {8*6912}')
    if cls == 'M':
        wloads()
        lds_add(C_B2)
        masks(MK)
        P('s_waitcnt vmcnt(12)')
    else:
        masks(MK)
        P('s_waitcnt vmcnt(0)')
        tag_ready()
    tag_fill(G)
    silu([17, 18], [19, 20])
    P(f"""
    ds_write_b32 v30, v17 offset:{L_XS}
    ds_write_b32 v30, v18 offset:{L_XS+256}
    """)
    for t in range(12): P(f'ds_read_b32 v{XS+t}, v31 offset:{L_XS+32*t}')
    if cls == 'Q':
        lds_wait(C_G, 1, sleep=2)
        stamp(1)
        wloads()
    P('s_waitcnt vmcnt(0) lgkmcnt(0)')
    diag_mm(ACC, [WB+4*t for t in range(12)], [f'v{XS+t}' for t in range(12)], MK, QA, QB)
    P(f"""
    s_lshl_b32 s59, s53, 10
    v_lshlrev_b32 v16, 4, v1
    v_add_u32 v19, s59, v16
    ds_write_b128 v19, v[{ACC}:{ACC+3}] offset:{L_SLOT+6*1024}
    """)
    lds_add_rtn(C_B, 's60')
    P(f"""
    s_cmp_lg_u32 s60, 5
    s_cbranch_scc1 {done}
    """)
    fold_reduce(WB, 6)
    rne_many([WB+jj for jj in range(4)])
    make_granules(G, WB)
    P(f"""
    s_lshl_b32 s59, s65, 9
    s_add_u32 s59, s59, {MODF}
    v_lshlrev_b32 v19, 3, v3
    v_add_u32 v19, v19, v2
    v_lshlrev_b32 v19, 5, v19
    s_mov_b64 exec, 0x00ff00ff
    buffer_store_dwordx4 v[{G}:{G+3}], v19, s[44:47], s59 offen sc1
    buffer_store_dwordx4 v[{G+4}:{G+7}], v19, s[44:47], s59 offen offset:16 sc1
    s_mov_b64 exec, -1
    """)
    stamp(4)
    if cls == 'Q': end_wave()
    else: P('L_modb_done:')

def modb_role():
    P('L_modb:')
    P('s_barrier')
    if cfg.b_on != 'Q':
        P('s_branch L_end')
        return
    P(f"""
    s_sub_u32 s65, s2, 48            ; b
    s_cmp_ge_u32 s65, 36
    s_cbranch_scc1 L_exit
    s_sub_u32 s53, s3, 7              ; j
    """)
    modb_body('Q')

def prefetch_code(sfx='', dst=16):
    if not cfg.prefetch_code: return
    P(f"""
    s_getpc_b64 s[52:53]
    L_pc{sfx}:
    s_sub_u32 s52, s52, L_pc{sfx}-{KN}
    s_subb_u32 s53, s53, 0
    v_lshlrev_b32 v4, 7, v1
    """)
    for i in range(CODE_PF):
        P(f'v_cmp_gt_u32 vcc, L_codeend-{KN}, v4')
        P('s_and_saveexec_b64 s[62:63], vcc')
        P(f'global_load_dword v{dst+i}, v4, s[52:53]')
        P('s_mov_b64 exec, s[62:63]')
        P('v_add_u32 v4, 0x2000, v4')

def reduce4(a, b, n_i, base):
    regs = list(range(n_i))
    while len(regs) > 1:
        nxt = []
        for k in range(0, len(regs) - 1, 2):
            x, y = regs[k], regs[k+1]
            for j in range(2): P(f'v_add_f32 v{base+4*x+j}, v{base+4*x+j}, v{base+4*y+j}')
            nxt.append(x)
        if len(regs) % 2: nxt.append(regs[-1])
        regs = nxt
    for d in ('row_ror:4', 'row_ror:8'):
        for j in range(2): P(f'v_add_f32_dpp v{base+j}, v{base+j}, v{base+j} {d} {DPPM}')
    xrow_multi('v_add_f32', [f'v{base+j}' for j in range(2)], [f'v{base+2+j}' for j in range(2)])

def commA_role():
    P('L_commA:')
    role(5)
    P('s_setprio 3')
    P('s_barrier')
    P(f"""
    s_mov_b32 s54, s5                 ; a
    s_mul_i32 s55, s4, 7
    s_add_u32 s55, s55, s54           ; rho
    v_and_b32 v112, 3, v1
    v_lshrrev_b32 v4, 1, v112           ; pi
    s_lshl_b32 s56, s55, 1
    v_add_u32 v4, s56, v4
    v_and_b32 v4, 7, v4
    s_lshr_b32 s56, s55, 2
    s_lshl_b32 s56, s56, 5
    v_add_u32 v4, s56, v4
    v_and_b32 v5, 1, v112               ; gamma
    v_lshl_add_u32 v4, v5, 4, v4
    v_lshlrev_b32 v113, 1, v4
    v_lshlrev_b32 v114, 4, v112
    """)
    srd(40, 8, 1152)
    P(f"""
    buffer_load_ushort v116, v113, s[40:43], 0 offen
    buffer_load_ushort v117, v113, s[40:43], 0 offen offset:16
    s_cmp_eq_u32 s54, 6
    s_cselect_b32 s57, 10, 9            ; E
    s_mul_i32 s56, s54, 9
    v_add_u32 v4, s56, v2               ; l_src = 9a + e
    v_mul_u32_u24 v6, {H3S}, v3
    v_lshl_add_u32 v5, v4, 5, v6
    v_bfe_u32 v4, v4, 3, 1              ; head
    v_lshl_add_u32 v4, v4, 6, v6
    v_add_u32 v4, 2048, v4
    s_mul_i32 s48, s4, {16*H3S}
    s_add_u32 s48, s48, {H3}
    s_add_u32 s49, s48, {4*H3S}
    s_add_u32 s50, s48, {8*H3S}
    s_add_u32 s51, s48, {12*H3S}
    v_lshrrev_b32 v115, 2, v1
    v_mul_u32_u24 v115, {PS}, v115
    v_add_u32 v115, v115, v114
    v_lshrrev_b32 v6, 2, v1
    v_mul_u32_u24 v118, {X2S}, v6
    v_add_u32 v118, v118, v114
    v_lshlrev_b32 v119, 4, v1
    """)
    tag_ready()
    P('v_mov_b32 v122, s6\nv_mov_b32 v123, s7')
    lds_wait(FL_PUB, 1, sleep=1)
    P(f"""
    v_lshlrev_b32 v116, 16, v116
    v_cmp_gt_u32 vcc, s57, v2
    s_mov_b32 s56, {LOG2E:#x}
    s_mov_b64 exec, vcc
    """)
    def h3_loads(B):
        o = []
        for i in range(4):
            b = B + 12*i
            o.append(f'buffer_load_dwordx4 v[{b}:{b+3}], v5, s[44:47], s{48+i} offen sc1')
            o.append(f'buffer_load_dwordx4 v[{b+4}:{b+7}], v5, s[44:47], s{48+i} offen offset:16 sc1')
            o.append(f'buffer_load_dwordx4 v[{b+8}:{b+11}], v4, s[44:47], s{48+i} offen sc1')
        return o
    def h3_check(B):
        bases = [B + 12*i + o for i in range(4) for o in (0, 4, 8)]
        check_g(bases[:6])()
        P('s_mov_b64 s[62:63], vcc')
        check_g(bases[6:])()
        P('s_or_b64 vcc, vcc, s[62:63]')
    def h3_post(B):
        M = [B+12*i+8 for i in range(4)]; L = [m+1 for m in M]; W = [m+2 for m in M]
        P(f"""
        v_max3_f32 v12, v{M[0]}, v{M[1]}, v{M[2]}
        v_max_f32 v12, v12, v{M[3]}
        """)
        xrow_multi('v_max_f32', ['v12'], ['v13'])
        for i in range(4): P(f'v_sub_f32 v{W[i]}, v{M[i]}, v12')
        for i in range(4): P(f'v_mul_f32 v{W[i]}, s56, v{W[i]}')
        for i in range(4): P(f'v_exp_f32 v{W[i]}, v{W[i]}')
        O = lambda i, j: B + 12*i + (j >> 1)*4 + (j & 1)
        P(f'v_mul_f32 v14, v{W[0]}, v{L[0]}')
        for j in range(4): P(f'v_mul_f32 v{8+j}, v{W[0]}, v{O(0,j)}')
        for i in range(1, 4):
            P(f'v_fmac_f32 v14, v{W[i]}, v{L[i]}')
            for j in range(4): P(f'v_fmac_f32 v{8+j}, v{W[i]}, v{O(i,j)}')
        xrow_multi('v_add_f32', ['v14', 'v8', 'v9', 'v10', 'v11'], [f'v{B+2}', f'v{B+3}', f'v{B+6}', f'v{B+7}', f'v{B+11}'])
        P('v_rcp_f32 v14, v14')
        for j in range(4): P(f'v_mul_f32 v{8+j}, v{8+j}, v14')
        for j in range(4): P(f'v_cvt_pk_bf16_f32 v{8+j}, v{8+j}, v{8+j}')
    if cfg.h3_local:
        l = P.lbl('Lhl'); ok = P.lbl('Lhl'); far = P.lbl('Lhl')
        for i in range(4): P(f's_add_u32 s{48+i}, s{48+i}, {H3L - H3}')
        P(f's_mov_b32 s64, {cfg.local_tries}')
        P(f'{l}:')
        for x in h3_loads(16): P(x)
        P('s_waitcnt vmcnt(0)')
        h3_check(16)
        P(f"""
        s_cbranch_vccz {ok}
        s_sub_u32 s64, s64, 1
        s_cbranch_scc0 {l}
        """)
        for i in range(4): P(f's_sub_u32 s{48+i}, s{48+i}, {H3L - H3}')
        poll(h3_loads(16), lambda: h3_check(16))
        P(f'{ok}:')
        if cfg.debug: P(f's_sub_u32 s82, {cfg.local_tries}, s64')
        h3_post(16)
    else:
        poll(h3_loads(16), lambda: h3_check(16))
        if cfg.debug: P('s_sub_u32 s82, 0x8000, s64')
        h3_post(16)
    stamp(4)
    P(f"""
    s_and_b32 exec_lo, exec_lo, 0xffff
    s_mov_b32 exec_hi, 0
    ds_write_b128 v119, v[8:11] offset:{L_XA}
    s_mov_b64 exec, -1
    s_cmp_ge_u32 s55, 72
    s_cselect_b32 s65, 1, 0
    s_lshl_b32 s56, s55, 6              ; rho*64
    s_add_u32 s48, s56, {XP}
    """)
    for i in range(1, 7): P(f's_add_u32 s{48+i}, s{47+i}, {16*PS}')
    P(f"""
    s_lshl_b32 s57, s55, 6
    s_add_u32 s58, s57, {MODF}
    v_lshlrev_b32 v117, 16, v117
    s_waitcnt lgkmcnt(0)
    s_barrier
    """)
    stamp(5)
    P(f"""
    s_cmp_lg_u32 s65, 0
    s_cbranch_scc1 L_exit
    """)
    def red_loads(n):
        def f(B):
            return [f'buffer_load_dwordx4 v[{B+4*n}:{B+4*n+3}], v114, s[44:47], s58 offen sc1'] + \
                   [f'buffer_load_dwordx4 v[{B+4*i}:{B+4*i+3}], v115, s[44:47], s{48+i} offen sc1' for i in range(n)]
        return f
    def red_check(n):
        def f(B):
            bases = [B+4*i for i in range(n+1)]
            if n + 1 <= 8: check_g(bases)()
            else:
                check_g(bases[:5])()
                P('s_mov_b64 s[62:63], vcc')
                check_g(bases[5:])()
                P('s_or_b64 vcc, vcc, s[62:63]')
        return f
    def xp_post(B):
        reduce4(0, 1, 7, B)
        rne_many([B, B+1])
        for j in range(2): P(f'v_mul_f32 v{B+j}, v{B+j}, v{B+28+j}')
        rne_many([B, B+1])
        for j in range(2): P(f'v_add_f32 v{120+j}, v{B+j}, v{116+j}')
        rne_many([120, 121])
    if cfg.pipe: poll2(red_loads(7), red_check(7), xp_post, 16, 48, 8)
    else:
        poll(red_loads(7)(16), lambda: red_check(7)(16))
        if cfg.debug: P('s_sub_u32 s84, 0x8000, s64')
        xp_post(16)
    P(f"""
    s_add_u32 s59, s57, {X2}
    s_mov_b64 exec, 0xffffffff
    buffer_store_dwordx4 v[120:123], v118, s[44:47], s59 offen sc1
    s_mov_b64 exec, -1
    """)
    stamp(6)
    P(f's_add_u32 s48, s56, {FP}')
    for i in range(1, 9): P(f's_add_u32 s{48+i}, s{47+i}, {16*PS}')
    P(f's_add_u32 s58, s57, {MODF+864*16}')
    srd(40, 30, 1152)
    def fp_post(B):
        reduce4(0, 1, 9, B)
        rne_many([B, B+1])
        for j in range(2): P(f'v_mul_f32 v{B+j}, v{B+j}, v{B+36+j}')
        rne_many([B, B+1])
        for j in range(2): P(f'v_add_f32 v{8+j}, v{B+j}, v{120+j}')
        for j in range(2): P(f'v_cvt_pk_bf16_f32 v{8+j}, v{8+j}, v{8+j}')
    if cfg.pipe: poll2(red_loads(9), red_check(9), fp_post, 24, 64, 10)
    else:
        poll(red_loads(9)(24), lambda: red_check(9)(24))
        if cfg.debug: P('s_sub_u32 s86, 0x8000, s64')
        fp_post(24)
    P(f"""
    s_mov_b64 exec, 0xf
    buffer_store_short v8, v113, s[40:43], 0 offen
    buffer_store_short v9, v113, s[40:43], 0 offen offset:16
    s_mov_b64 exec, -1
    """)
    stamp(7)
    P(f"""
    s_mul_i32 s55, s4, 7
    s_add_u32 s55, s55, s5
    s_cmp_lg_u32 s55, 0
    s_cbranch_scc1 L_exit
    v_mov_b32 v4, {EPOCH}
    v_mov_b32 v8, s6
    v_mov_b32 v9, s7
    s_mov_b64 exec, 1
    buffer_store_dwordx2 v[8:9], v4, s[44:47], 0 offen sc1
    s_mov_b64 exec, -1
    """)
    end_wave()

def commF_role():
    P('L_commF:')
    role(6)
    P('s_setprio 3')
    SB, CB, XA = 32, 52, 72
    P(f"""
    v_lshlrev_b32 v4, 4, v1             ; granule l
    v_and_b32 v5, 31, v1
    v_lshlrev_b32 v5, 4, v5
    s_mov_b32 s56, {MODF+288*16}
    s_mov_b32 s57, {MODF+576*16}
    s_add_u32 s58, s56, 4096
    s_add_u32 s59, s57, 4096
    s_and_b32 s52, s2, 7
    s_mul_i32 s52, s52, {X2S}
    s_add_u32 s52, s52, {X2}
    s_add_u32 s53, s52, 4096
    v_cmp_gt_u32 s[54:55], 32, v1
    """)
    lds_wait(FL_PUB, 1, sleep=1)
    def gl(base, sreg, sreg2):
        return [f'buffer_load_dwordx4 v[{base+4*n}:{base+4*n+3}], v4, s[44:47], {sreg} offen offset:{1024*n} sc1' for n in range(4)] + \
               [f'buffer_load_dwordx4 v[{base+16}:{base+19}], v5, s[44:47], {sreg2} offen sc1']
    def chk():
        check_g([SB+4*n for n in range(5)])()
        P('s_mov_b64 s[62:63], vcc')
        check_g([CB+4*n for n in range(5)])()
        P('s_or_b64 vcc, vcc, s[62:63]')
    poll(gl(SB, 's56', 's58') + gl(CB, 's57', 's59'), chk)
    cbv = [CB+4*n+j for n in range(5) for j in range(2)]
    sbv = [SB+4*n+j for n in range(5) for j in range(2)]
    xav = [XA+4*n+j for n in range(5) for j in range(2)]
    for r in cbv: P(f'v_add_f32 v{r}, 1.0, v{r}')
    rne_many(cbv)
    P('v_lshlrev_b32 v6, 2, v1')
    def x2_post(B):
        xv = [B+4*n+j for n in range(5) for j in range(2)]
        for r in xv[8:]: P(f'v_cndmask_b32 v{r}, 0, v{r}, s[54:55]')
        ln_stats(xv, 'v112', 'v113', 'v114', 'v115', maskfix=(xv[8:], 's[54:55]'))
        for r in xv: P(f'v_sub_f32 v{r}, v{r}, v112')
        rne_many(xv)
        for r in xv: P(f'v_mul_f32 v{r}, v{r}, v113')
        rne_many(xv)
        for r, c in zip(xv, cbv): P(f'v_mul_f32 v{r}, v{r}, v{c}')
        rne_many(xv)
        for r, c in zip(xv, sbv): P(f'v_add_f32 v{r}, v{r}, v{c}')
        for n in range(5): P(f'v_cvt_pk_bf16_f32 v{B+4*n}, v{B+4*n}, v{B+4*n+1}')
        for n in range(4): P(f'ds_write_b32 v6, v{B+4*n} offset:{L_XS+256*n}')
        P(f"""
        s_mov_b64 exec, 0xffffffff
        ds_write_b32 v6, v{B+16} offset:{L_XS+1024}
        s_mov_b64 exec, -1
        """)
    if cfg.pipe: poll2(lambda B: gl(B, 's52', 's53'), lambda B: check_g([B+4*n for n in range(5)])(), x2_post, 72, 92, 5)
    else:
        poll(gl(72, 's52', 's53'), check_g([72+4*n for n in range(5)])); x2_post(72)
    stamp(7)
    P("""
    s_waitcnt lgkmcnt(0)
    s_barrier
    """)
    end_wave()

def gu_role(nkv):
    RAW = 32
    NA = cfg.gu_early
    P('L_gu:')
    role(7)
    def setup():
        P(f"""
        s_sub_u32 s53, s3, 1              ; i
        s_lshr_b32 s54, s53, 1            ; matrix
        s_and_b32 s55, s53, 1             ; K half
        s_cmp_eq_u32 s54, 0
        s_cselect_b32 s36, s20, s22
        s_cselect_b32 s37, s21, s23
        s_mov_b32 s38, {576*9216}
        s_mov_b32 s39, 0x20000
        s_mul_i32 s56, s4, 9
        s_add_u32 s56, s56, s5
        s_sub_u32 s56, s56, 7             ; phi
        s_lshl_b32 s56, s56, 6
        s_mul_i32 s57, s55, {9*32*9216}
        s_add_u32 s56, s56, s57
        s_mov_b32 s58, 0x05040100
        s_mov_b32 s59, 0x07060302
        """)
    def loads(u, thr=True):
        for j in range(8):
            off = (32*u + 8*(j & 3) + (j >> 2)) * 9216
            P(f's_add_u32 s57, s56, {off}')
            if thr and cfg.gul and 8*(u-NA) + j >= cfg.gul: P(f's_waitcnt vmcnt({cfg.gul-1})')
            P(f'buffer_load_dword v{RAW+8*u+j}, v4, s[36:39], s57 offen nt')
    def perm(u):
        src = RAW + 8*u
        dst = src - 8
        for i in range(4):
            P(f'v_perm_b32 v{dst+i}, v{src+2*i+1}, v{src+2*i}, s58')
            P(f'v_perm_b32 v{dst+4+i}, v{src+2*i+1}, v{src+2*i}, s59')
    if cfg.pf_gu:
        P('s_cmp_lg_u32 s3, 1\ns_cbranch_scc1 L_gu_nopf')
        prefetch_code()
        P('L_gu_nopf:')
    setup()
    P(f"""
    v_mul_u32_u24 v4, {2*9216}, v3
    v_lshl_add_u32 v4, v2, 2, v4
    """)
    for u in range(NA):
        loads(u, thr=False)
        if u == 0: P('s_barrier')
    if NA == 0: P('s_barrier')
    lds_add(C_GA)
    tag_ready()
    q_fetch('L_gu2')
    P('L_gu2:')
    stamp(5)
    if cfg.pf2 & 1:
        P('s_cmp_lg_u32 s3, 2\ns_cbranch_scc1 L_gu_nopf2')
        prefetch_code('2', 16)
        P('s_waitcnt vmcnt(0)')
        P('L_gu_nopf2:')
        P(f'v_mul_u32_u24 v4, {2*9216}, v3\nv_lshl_add_u32 v4, v2, 2, v4')
    setup()
    P('s_waitcnt vmcnt(0)')
    for u in range(NA): perm(u)
    if cfg.gu_gate == 'pub': lds_wait(FL_PUB, 1, sleep=2)
    else: lds_wait(C_KVI, nkv, sleep=2)
    stamp(1)
    DEPTH = cfg.gu_depth
    for u in range(NA, 9):
        if cfg.gu_dyn and u > NA:
            l = P.lbl('Lgd')
            P(f"""
            v_mov_b32 v7, 0
            ds_read_b32 v6, v7 offset:{FL_PUB}
            s_waitcnt lgkmcnt(0)
            v_readfirstlane_b32 s60, v6
            s_cmp_lg_u32 s60, 0
            s_cbranch_scc1 {l}
            s_waitcnt vmcnt({cfg.gu_dyn})
            {l}:
            """)
        loads(u)
        if u - DEPTH >= NA:
            P(f's_waitcnt vmcnt({8*DEPTH})')
            perm(u - DEPTH)
    for u in range(max(NA, 9 - DEPTH), 9):
        P(f's_waitcnt vmcnt({8*(8-u)})')
        perm(u)
    stamp(2)
    P(f"""
    s_mul_i32 s57, s55, {9*64}
    v_lshlrev_b32 v5, 4, v3
    v_add_u32 v5, s57, v5
    s_lshl_b32 s57, s53, 7
    v_lshlrev_b32 v6, 3, v1
    v_add_u32 v6, s57, v6
    s_barrier
    """)
    stamp(3)
    AF = [96+4*u for u in range(8)] + [20]
    for u in range(9): P(f'ds_read_b128 v[{AF[u]}:{AF[u]+3}], v5 offset:{L_XS+64*u}')
    for u in range(9):
        P(f's_waitcnt lgkmcnt({8-u})')
        f0 = RAW - 8 + 8*u
        c0 = '0' if u == 0 else 'v[8:11]'
        c1 = '0' if u == 0 else 'v[12:15]'
        P(f'v_mfma_f32_16x16x32_bf16 v[8:11], v[{AF[u]}:{AF[u]+3}], v[{f0}:{f0+3}], {c0}')
        P(f'v_mfma_f32_16x16x32_bf16 v[12:15], v[{AF[u]}:{AF[u]+3}], v[{f0+4}:{f0+7}], {c1}')
    P(f"""
    v_mov_b32 v16, v8
    v_mov_b32 v17, v12
    s_mov_b64 exec, 0xffff
    ds_write_b64 v6, v[16:17] offset:{L_RED3}
    s_mov_b64 exec, -1
    s_waitcnt lgkmcnt(0)
    s_barrier
    """)
    stamp(4)
    end_wave()

def build():
    global CODE_PF
    CODE_PF = 4
    prologue()
    cF, cQ, cM = cfg.cF, cfg.cQ, cfg.cM
    assert 9*cF + 4*cQ + 3*cM == 256 and cF % 2 == 0 and cQ % 2 == 0 and cM % 2 == 0 and cF//2 >= 6 and cQ <= 12 and cM <= 12
    mod_role()
    wq_role()
    kv_role('L_kvF', cF//2, lambda: P(f's_sub_u32 s52, s5, 7\ns_mul_i32 s52, s52, {cF}\ns_add_u32 s52, s52, {3*cM+4*cQ}'), (C_GA, 4) if cfg.gu_early else None, True, cfg.kF)
    kv_role('L_kvM', cM//2, lambda: P(f's_mul_i32 s52, s5, {cM}'), ((C_B2, 6) if cfg.m_order == 'a_b_kv_wo' else ((C_H, 1) if cfg.order2 else (C_WO, 3))), False, cfg.kM)
    kv_role('L_kvQ', cQ//2, lambda: P(f's_sub_u32 s52, s5, 3\ns_mul_i32 s52, s52, {cQ}\ns_add_u32 s52, s52, {3*cM}'), ((C_WO, 3) if cfg.q_order == 'wo_kv' else (C_G, 1)), False, cfg.kQ)
    wo_role('Q', cQ//2)
    wo_role('M', cM//2)
    wo_common()
    commA_role()
    gu_role(cF//2)
    down_role()
    commF_role()

    P('L_abort:')
    P('s_mov_b64 exec, -1')
    P('L_exit:')
    if cfg.debug:
        P(f"""
        s_waitcnt lgkmcnt(0)
        s_lshl_b32 s60, s2, 4
        s_add_u32 s60, s60, s3
        s_lshl_b32 s60, s60, 6
        s_add_u32 s60, s60, {DBG}
        s_memrealtime s[96:97]
        s_waitcnt lgkmcnt(0)
        v_mov_b32 v8, s96
        """)
        for i in range(8): P(f'v_writelane_b32 v8, s{80+2*i}, {i}')
        P(f"""
        v_and_b32 v1, 63, v0
        v_lshlrev_b32 v7, 2, v1
        s_mov_b64 exec, 0x1ff
        buffer_store_dword v8, v7, s[44:47], s60 offen
        """)
    if cfg.hdbg:
        SL = {(3, 3): 3, (2, 2): 4, (2, 4): 5, (1, 3): 6, (1, 5): 7, (1, 6): 8, (5, 4): 9, (5, 6): 10, (6, 7): 11, (8, 6): 12, (7, 2): 13, (5, 7): 14, (6, 3): 6, (6, 5): 7, (6, 6): 8, (8, 3): 6, (8, 5): 7, (4, 7): 15}
        P("""
        s_waitcnt lgkmcnt(0)
        s_memrealtime s[96:97]
        s_mov_b32 s68, s32
        s_mov_b32 s69, s33
        s_mov_b32 s70, 256
        s_mov_b32 s71, 0x20000
        s_mov_b64 exec, 1
        s_waitcnt lgkmcnt(0)
        v_mov_b32 v8, s96
        v_mov_b32 v9, 4
        buffer_atomic_umax v8, v9, s[68:71], 0 offen sc1
        s_not_b32 s96, s80
        v_mov_b32 v8, s96
        v_mov_b32 v9, 0
        buffer_atomic_umax v8, v9, s[68:71], 0 offen sc1
        v_mov_b32 v8, s80
        v_mov_b32 v9, 8
        buffer_atomic_umax v8, v9, s[68:71], 0 offen sc1
        """)
        for r in range(1, 9):
            l = P.lbl('Lhd')
            P(f's_cmp_lg_u32 s98, {r}')
            P(f's_cbranch_scc1 {l}')
            for (rr, k), slot in SL.items():
                if rr == r:
                    P(f'v_mov_b32 v8, s{80+2*k}')
                    P(f'v_mov_b32 v9, {4*slot}')
                    P('buffer_atomic_umax v8, v9, s[68:71], 0 offen sc1')
            P(f'{l}:')
    P('L_end:')
    P('s_endpgm')
    P('L_codeend:')
    P.finalize()
    body = P.text()
    return (HEADER_COMMENT +
f"""; @launch grid=(256,1,1) block=(1024,1,1) lds={LDS_BYTES}
.amdgcn_target "amdgcn-amd-amdhsa--gfx950"
.text
.globl {KN}
.p2align 8
.type {KN},@function
{KN}:
{body}
.section .rodata,"a"
.p2align 6
.amdhsa_kernel {KN}
  .amdhsa_next_free_vgpr 128
  .amdhsa_next_free_sgpr 102
  .amdhsa_accum_offset 128
  .amdhsa_group_segment_fixed_size 0
  .amdhsa_kernarg_size 112
  .amdhsa_user_sgpr_count 2
  .amdhsa_user_sgpr_kernarg_segment_ptr 1
  .amdhsa_system_sgpr_workgroup_id_x 1
.end_amdhsa_kernel
""")

if __name__ == '__main__':
    import argparse
    ap = argparse.ArgumentParser()
    ap.add_argument('-o', default='k.s')
    ap.add_argument('--debug', action='store_true')
    ap.add_argument('--tiles', default='22,4,14')
    ap.add_argument('--set', nargs='*', default=[])
    a = ap.parse_args()
    cfg.debug = a.debug
    cfg.cF, cfg.cQ, cfg.cM = map(int, a.tiles.split(','))
    for kv in a.set:
        k, v = kv.split('=')
        old = getattr(cfg, k)
        setattr(cfg, k, type(old)(int(v)) if isinstance(old, (bool, int)) else v)
    open(a.o, 'w').write(build())
```

```python
import sys, math, struct
from dsl import Prog
from asmlib import HEADER_COMMENT, KN

class Cfg:
    cF, cQ, cM = 22, 4, 14
    debug = False
    prefetch_code = True
    kF, kQ, kM = '0', '0', '0'
    gu_depth = 4
    gul = 0
    gu_gate = 'pub'
    k_first = True
    pre_barrier = 1
    wo_k = 4
    b_k = 4
    q_sleep = 4
    poll_sleep = 0
    kvonly = False
    pf2 = 0
    pf_early = 16
    pf_gu = True
    h3_local = True
    local_tries = 200
    m_order = 'a_kv_wo_b'
    gu_dyn = 0
    q_order = 'kv_wo'
    order2 = True
    wq_first = False
    q_direct = True
    hdbg = False
    q_wo_gate = False
    q_wo_first = True
    stagger = 6
    pipe = True
    gu_early = 3
    b_on = 'M'
    m_gate_pub = False
cfg = Cfg()

EPOCH = 0x0
MODP = 0x1000
QF = 0x8000
MODF = 0x20000
X2 = 0x28000
X2S = 0x1400
H3 = 0x40000
H3S = 2560
XP = 0xE0000
FP = 0x160000
PS = 4608
H3L = 0x210000
GX = 0x2B0000
GXL = 0x2C0000
DBG = 0x300000
FL_Q, C_KVI, C_MAX, C_O, C_RED, C_H, C_G, FL_PUB, C_K, C_B, C_GA, C_B2, C_WO = 0, 4, 8, 12, 16, 20, 24, 28, 32, 36, 40, 44, 48
L_ZERO = 0x100
L_Q = 0x200
L_MX = 0x400
L_LS = 0x480
L_XS = 0x500
L_RED3 = 0xA00
L_XA = 0x1100
L_SLOT = 0x1200
L_OSLOT = 0x1200 + 18*1024
LDS_BYTES = 0x1200 + 30*1024
LOG2E = 0x3FB8AA3B
SCALE = 0x3DB504F3
GOLD0, GOLD1 = 0x7F4A7C15, 0x9E3779B9
def f32hex(x): return struct.unpack('<I', struct.pack('<f', x))[0]

P = Prog()
ABORT = 'L_abort'
DPPM = 'row_mask:0xf bank_mask:0xf'

def stamp(i):
    if cfg.debug or cfg.hdbg: P(f's_memrealtime s[{80+2*i}:{81+2*i}]')

def role(n):
    if cfg.hdbg: P(f's_mov_b32 s98, {n}')

def srd(base, ptr, nbytes):
    P(f"""
    s_mov_b32 s{base}, s{ptr}
    s_mov_b32 s{base+1}, s{ptr+1}
    s_mov_b32 s{base+2}, {nbytes}
    s_mov_b32 s{base+3}, 0x20000
    """)

def tag_ready():
    P(f"""
    s_waitcnt lgkmcnt(0)
    s_add_u32 s6, s6, {GOLD0:#x}
    s_add_u32 s7, s7, {GOLD1:#x}
    """)

def lds_wait(off, target, sleep=1):
    l = P.lbl('Lw'); d = P.lbl('Ld')
    P(f"""
    v_mov_b32 v7, 0
    s_mov_b32 s61, 0x400000
    {l}:
    ds_read_b32 v6, v7 offset:{off}
    s_waitcnt lgkmcnt(0)
    v_readfirstlane_b32 s60, v6
    s_cmp_ge_u32 s60, {target}
    s_cbranch_scc1 {d}
    s_sub_u32 s61, s61, 1
    s_cbranch_scc1 {ABORT}
    """)
    if sleep: P(f's_sleep {sleep}')
    P(f"""
    s_branch {l}
    {d}:
    """)

def lds_add(off):
    P(f"""
    v_mov_b32 v7, 0
    v_mov_b32 v6, 1
    s_mov_b64 s[62:63], exec
    s_mov_b64 exec, 1
    ds_add_u32 v7, v6 offset:{off}
    s_mov_b64 exec, s[62:63]
    """)

def lds_add_rtn(off, sdst):
    P(f"""
    v_mov_b32 v7, 0
    v_mov_b32 v6, 1
    s_mov_b64 s[62:63], exec
    s_mov_b64 exec, 1
    ds_add_rtn_u32 v6, v7, v6 offset:{off}
    s_waitcnt lgkmcnt(0)
    v_readfirstlane_b32 {sdst}, v6
    s_mov_b64 exec, s[62:63]
    """)

def rne(dst, src):
    P(f'v_cvt_pk_bf16_f32 {dst}, {src}, {src}')
    P(f'v_lshlrev_b32 {dst}, 16, {dst}')

def rne_many(regs):
    for r in regs: P(f'v_cvt_pk_bf16_f32 v{r}, v{r}, v{r}')
    for r in regs: P(f'v_lshlrev_b32 v{r}, 16, v{r}')

def xrow_multi(op, vs, ts):
    for sw in ('v_permlane16_swap_b32', 'v_permlane32_swap_b32'):
        for v, t in zip(vs, ts): P(f'v_mov_b32 {t}, {v}')
        for v, t in zip(vs, ts): P(f'{sw} {v}, {t}')
        for v, t in zip(vs, ts): P(f'{op} {v}, {v}, {t}')

def wave_sum(v, t):
    for d in ('quad_perm:[1,0,3,2]', 'quad_perm:[2,3,0,1]', 'row_half_mirror', 'row_mirror'):
        P(f'v_add_f32_dpp {v}, {v}, {v} {d} {DPPM}')
    xrow_multi('v_add_f32', [v], [t])

def masks(base):
    P(f"""
    v_and_b32 v6, 1, v2
    v_lshlrev_b32 v6, 4, v6
    v_mov_b32 v7, 0xffff
    v_lshlrev_b32 v7, v6, v7
    v_bfe_u32 v6, v2, 1, 2
    """)
    for i in range(4):
        P(f'v_cmp_eq_u32 vcc, {i}, v6')
        P(f'v_cndmask_b32 v{base+i}, 0, v7, vcc')

def diag_mm(acc, wregs, xregs, mk, qa, qb):
    n = len(wregs)
    def prep(t):
        q = (qa, qb)[t & 1]
        for i in range(4): P(f'v_and_b32 v{q+i}, {xregs[t]}, v{mk+i}')
    prep(0)
    for t in range(n):
        if t + 1 < n: prep(t + 1)
        q = (qa, qb)[t & 1]
        c = '0' if t == 0 else f'v[{acc}:{acc+3}]'
        P(f'v_mfma_f32_16x16x32_bf16 v[{acc}:{acc+3}], v[{wregs[t]}:{wregs[t]+3}], v[{q}:{q+3}], {c}')

def poll(loads, check):
    l = P.lbl('Lp'); l2 = P.lbl('Lp')
    P('s_mov_b32 s64, 0x8000')
    if cfg.poll_sleep:
        P(f's_branch {l2}')
        P(f'{l}:')
        P(f's_sleep {cfg.poll_sleep}')
        P(f'{l2}:')
    else:
        P(f'{l}:')
    for x in loads: P(x)
    P('s_waitcnt vmcnt(0)')
    check()
    P(f"""
    s_sub_u32 s64, s64, 1
    s_cbranch_scc1 {ABORT}
    s_cbranch_vccnz {l}
    """)


def poll2(mk_loads, mk_check, post, baseA, baseB, nloads):
    la = P.lbl('Lq'); lb = P.lbl('Lq'); ga = P.lbl('Lq'); gb = P.lbl('Lq'); done = P.lbl('Lq')
    P('s_mov_b32 s64, 0x8000')
    for x in mk_loads(baseA): P(x)
    P(f's_sleep {cfg.stagger}')
    P(f'{la}:')
    for x in mk_loads(baseB): P(x)
    P(f's_waitcnt vmcnt({nloads})')
    mk_check(baseA)
    P(f"""
    s_cbranch_vccz {ga}
    s_sub_u32 s64, s64, 1
    s_cbranch_scc1 {ABORT}
    """)
    for x in mk_loads(baseA): P(x)
    P(f's_waitcnt vmcnt({nloads})')
    mk_check(baseB)
    P(f"""
    s_cbranch_vccz {gb}
    s_branch {la}
    """)
    P(f'{gb}:')
    post(baseB)
    P(f's_branch {done}')
    P(f'{ga}:')
    post(baseA)
    P(f'{done}:')

def check_g(bases):
    def f():
        n = len(bases)
        assert n <= 8 + 5
        prs = [66 + 2*i for i in range(7)] + [96, 98]
        assert n <= len(prs) + 1
        for i, b in enumerate(bases):
            dst = 'vcc' if i == n - 1 else f's[{prs[i]}:{prs[i]+1}]'
            P(f'v_cmp_ne_u64 {dst}, s[6:7], v[{b+2}:{b+3}]')
        for i in range(n - 1):
            P(f's_or_b64 vcc, vcc, s[{prs[i]}:{prs[i]+1}]')
    return f

def check_tags32(regs, t='v6', t2='v7'):
    def f():
        rs = list(regs)
        P(f'v_xor_b32 {t}, s7, v{rs[0]}')
        for r in rs[1:]:
            P(f'v_xor_b32 {t2}, s7, v{r}')
            P(f'v_or_b32 {t}, {t}, {t2}')
        P(f'v_cmp_ne_u32 vcc, 0, {t}')
    return f

def end_wave(): P('s_branch L_exit')

def make_granules(G, ACC):
    P(f'v_mov_b32 v{G}, v{ACC}')
    P(f'v_mov_b32 v{G+1}, v{ACC+1}')
    P(f'v_mov_b32 v{G+4}, v{ACC+2}')
    P(f'v_mov_b32 v{G+5}, v{ACC+3}')
def tag_fill(G):
    for o in (2, 6):
        P(f'v_mov_b32 v{G+o}, s6')
        P(f'v_mov_b32 v{G+o+1}, s7')

def prologue():
    P(f"""
    s_cmp_ge_u32 s2, 256
    s_cbranch_scc1 L_end
    s_load_dwordx16 s[8:23], s[0:1], 0
    s_load_dwordx8 s[24:31], s[0:1], 64
    s_load_dwordx4 s[32:35], s[0:1], 96
    """)
    if cfg.prefetch_code and cfg.pf_early:
        P(f"""
        s_cmp_ge_u32 s2, {cfg.pf_early}
        s_cbranch_scc1 L_nopf0
        v_lshrrev_b32 v4, 6, v0
        v_cmp_ne_u32 vcc, 10, v4
        s_cbranch_vccnz L_nopf0
        v_and_b32 v1, 63, v0
        """)
        prefetch_code('0', 124)
        P('L_nopf0:')
    if cfg.hdbg:
        for i in range(1, 8): P(f's_mov_b32 s{80+2*i}, 0')
        P('s_mov_b32 s98, 0')
    stamp(0)
    P(f"""
    v_lshrrev_b32 v4, 6, v0
    v_and_b32 v1, 63, v0
    v_and_b32 v2, 15, v1
    v_readfirstlane_b32 s3, v4
    v_lshrrev_b32 v3, 4, v1
    s_and_b32 s4, s2, 7
    s_lshl_b32 s4, s4, 1
    s_bfe_u32 s5, s2, 0x10003
    s_add_u32 s4, s4, s5
    s_lshr_b32 s5, s2, 4
    s_cmp_lg_u32 s3, 0
    s_cbranch_scc1 L_nozero
    v_lshlrev_b32 v4, 2, v1
    v_mov_b32 v5, 0
    ds_write_b32 v4, v5
    ds_write_b32 v4, v5 offset:256
    ds_write_b32 v4, v5 offset:{L_XA}
    L_nozero:
    s_waitcnt lgkmcnt(0)
    s_load_dwordx2 s[6:7], s[34:35], 0
    """)
    srd(44, 34, 0x40000000)
    nkF, nkQ, nkM = cfg.cF//2, cfg.cQ//2, cfg.cM//2
    if cfg.kvonly:
        P(f"""
        s_cmp_lt_u32 s5, 3
        s_cselect_b32 s60, {16-nkM}, {16-nkQ}
        s_cmp_ge_u32 s5, 7
        s_cselect_b32 s60, {16-nkF}, s60
        s_cmp_ge_u32 s3, s60
        s_cbranch_scc1 L_kvgo
        s_barrier
        s_branch L_end
        L_kvgo:
        """)
    P(f"""
    s_cmp_lt_u32 s5, 3
    s_cbranch_scc1 L_classM
    s_cmp_lt_u32 s5, 7
    s_cbranch_scc1 L_classQ
    s_cmp_eq_u32 s3, 0
    s_cbranch_scc1 L_kvF0
    s_cmp_le_u32 s3, 4
    s_cbranch_scc1 L_gu
    s_cmp_ge_u32 s3, {16-min(nkF, 11)}
    s_cbranch_scc1 L_kvF
    s_branch L_idle
    L_classQ:
    s_cmp_ge_u32 s3, {16-nkQ}
    s_cbranch_scc1 L_kvQ
    s_cmp_eq_u32 s3, 0
    s_cbranch_scc1 L_commA
    s_cmp_le_u32 s3, 6
    s_cbranch_scc1 L_wq
    s_cmp_le_u32 s3, 9
    s_cbranch_scc1 L_woQ
    s_branch L_idle
    L_classM:
    s_cmp_ge_u32 s3, {16-nkM}
    s_cbranch_scc1 L_kvM
    s_cmp_eq_u32 s3, 0
    s_cbranch_scc1 L_commA
    s_cmp_le_u32 s3, 6
    s_cbranch_scc1 L_mod
    s_cmp_le_u32 s3, 9
    s_cbranch_scc1 L_woM
    L_idle:
    s_barrier
    s_waitcnt vmcnt(0)
    s_branch L_end
    """)

def kv_role(name, nkv, tile_expr, gate, is_f, kinf='0'):
    K0, V0, QF_, SD, TT, ACC, MK = 32, 64, 96, 24, 28, 96, 8
    if is_f:
        P('L_kvF0:')
        if nkv == 12:
            P('s_mov_b32 s53, 11')
            P('s_branch L_kvFgo')
        else:
            P('s_branch L_idle')
        P(f'{name}:')
        P(f's_sub_u32 s53, s3, {16-min(nkv, 11)}')
        P('L_kvFgo:')
    else:
        P(f'{name}:')
        P(f's_sub_u32 s53, s3, {16-nkv}')
    role(1)
    tile_expr()
    P(f"""
    s_lshl_b32 s54, s53, 1
    s_add_u32 s52, s52, s54
    s_lshl_b32 s52, s52, 12
    s_lshl_b32 s54, s4, 24
    s_add_u32 s52, s52, s54
    s_add_u32 s52, s52, {61440*256}
    s_add_u32 s55, s52, 4096
    """)
    srd(36, 10, 0x10000000)
    srd(40, 12, 0x10000000)
    P(f"""
    v_and_b32 v4, 7, v1
    v_lshlrev_b32 v4, 8, v4
    v_lshrrev_b32 v5, 3, v1
    v_lshl_add_u32 v4, v5, 4, v4          ; K: (l&7)*256 + (l>>3)*16
    v_lshlrev_b32 v5, 10, v3
    v_lshl_add_u32 v5, v2, 4, v5          ; V: gq*1024 + m*16
    """)
    if cfg.kvonly: gate = None
    if gate:
        P('s_barrier')
        lds_wait(gate[0], gate[1], sleep=2)
    stamp(1)
    st = {'n': 0}
    lim = lambda i: int(kinf[min(i, len(kinf)-1)], 16)
    def issue(r, vo, srdr, sreg, off):
        n = st['n']
        if not gate and n == cfg.pre_barrier: P('s_barrier')
        k = lim(n)
        if k and n >= k: P(f's_waitcnt vmcnt({k-1})')
        P(f'buffer_load_dwordx4 v[{r}:{r+3}], {vo}, s[{srdr}:{srdr+3}], {sreg} offen offset:{off} nt')
        st['n'] += 1
    for u in range(4):
        for hh in range(2):
            issue(K0 + 4*(2*u+hh), 'v4', 36, 's52' if u < 2 else 's55', (u & 1)*2048 + hh*128)
    if cfg.k_first:
        lds_add(C_K)
        lds_wait(C_K, nkv, sleep=1)
    for t in range(2):
        for r_ in range(4):
            issue(V0 + 16*t + 4*r_, 'v5', 40, 's52' if t == 0 else 's55', 256*r_)
    lds_add(C_KVI)
    stamp(2)
    if cfg.kvonly:
        P('s_waitcnt vmcnt(8)'); stamp(4)
        P('s_waitcnt vmcnt(0)'); stamp(5)
        end_wave(); return
    masks(MK)
    P(f"""
    v_bfe_u32 v12, v2, 2, 1
    v_lshlrev_b32 v22, 2, v12
    v_lshlrev_b32 v12, 8, v12
    v_lshrrev_b32 v13, 3, v2
    v_lshl_add_u32 v13, v3, 1, v13        ; 2g + par
    v_lshl_add_u32 v12, v13, 4, v12
    v_add_u32 v12, {L_Q}, v12
    v_and_b32 v13, 3, v2
    v_mov_b32 v14, {L_ZERO}
    """)
    for u in range(4):
        P(f'v_cmp_eq_u32 vcc, {u}, v13')
        P(f'v_cndmask_b32 v{16+u}, v14, v12, vcc')
    P(f"""
    v_and_b32 v12, 1, v3
    v_lshlrev_b32 v12, 4, v12
    v_lshrrev_b32 v13, 3, v2
    v_lshl_add_u32 v12, v13, 2, v12
    v_lshrrev_b32 v13, 1, v3
    v_add_u32 v12, v12, v13
    v_lshlrev_b32 v20, 2, v12
    v_add_u32 v21, 8, v20
    """)
    tag_ready()
    lds_wait(FL_Q, 4, sleep=2)
    stamp(3)
    P('s_waitcnt vmcnt(16)')
    for u in range(4):
        for hh in range(2):
            r = QF_ + 4*(2*u+hh)
            P(f'ds_read_b128 v[{r}:{r+3}], v{16+u} offset:{128*hh}')
    P('s_waitcnt vmcnt(8)')
    stamp(4)
    for i in range(8):
        P(f's_waitcnt lgkmcnt({7-i})')
        c = '0' if i == 0 else f'v[{SD}:{SD+3}]'
        P(f'v_mfma_f32_16x16x32_bf16 v[{SD}:{SD+3}], v[{K0+4*i}:{K0+4*i+3}], v[{QF_+4*i}:{QF_+4*i+3}], {c}')
    for j in range(4): P(f'v_mov_b32 v{TT+j}, v{SD+j}')
    for j in range(4): P(f'v_permlane32_swap_b32 v{SD+j}, v{TT+j}')
    for j in range(4): P(f'v_add_f32_dpp v{SD+j}, v{TT+j}, v{SD+j} row_shl:8 {DPPM}')
    P(f's_mov_b32 s56, {SCALE:#x}')
    P(f's_mov_b32 s57, 0xffff0000')
    P(f's_mov_b32 s58, {LOG2E:#x}')
    for rep in range(2):
        for p in range(2): P(f'v_cvt_pk_bf16_f32 v{TT+p}, v{SD+2*p}, v{SD+2*p+1}')
        for p in range(2):
            P(f'v_lshlrev_b32 v{SD+2*p}, 16, v{TT+p}')
            P(f'v_and_b32 v{SD+2*p+1}, s57, v{TT+p}')
        if rep == 0:
            for i in range(4): P(f'v_mul_f32 v{SD+i}, s56, v{SD+i}')
    P(f"""
    v_max3_f32 v12, v{SD}, v{SD+1}, v{SD+2}
    v_max_f32 v12, v12, v{SD+3}
    v_max_f32_dpp v12, v12, v12 quad_perm:[1,0,3,2] {DPPM}
    v_max_f32_dpp v12, v12, v12 quad_perm:[2,3,0,1] {DPPM}
    v_mov_b32 v13, v12
    v_permlane16_swap_b32 v12, v13
    v_max_f32 v12, v12, v13
    s_lshl_b32 s59, s53, 3
    v_add_u32 v23, s59, v22
    s_mov_b64 s[62:63], exec
    s_mov_b64 exec, 0x11
    ds_write_b32 v23, v12 offset:{L_MX}
    s_mov_b64 exec, s[62:63]
    """)
    lds_add(C_MAX)
    lds_wait(C_MAX, nkv, sleep=0)
    for i in range(nkv): P(f'ds_read_b32 v{K0+i}, v22 offset:{L_MX+8*i}')
    P('s_waitcnt lgkmcnt(0)')
    MX = 15
    P(f'v_mov_b32 v{MX}, v{K0}')
    i = 1
    while i < nkv:
        if i + 1 < nkv: P(f'v_max3_f32 v{MX}, v{MX}, v{K0+i}, v{K0+i+1}'); i += 2
        else: P(f'v_max_f32 v{MX}, v{MX}, v{K0+i}'); i += 1
    P(f'v_mul_f32 v13, s58, v{MX}')
    for i in range(4): P(f'v_fma_f32 v{SD+i}, v{SD+i}, s58, -v13')
    for i in range(4): P(f'v_exp_f32 v{SD+i}, v{SD+i}')
    P(f"""
    v_add_f32 v12, v{SD}, v{SD+1}
    v_add_f32 v13, v{SD+2}, v{SD+3}
    """)
    for i in range(4): P(f'v_cvt_pk_bf16_f32 v{SD+i}, v{SD+i}, v{SD+i}')
    P('v_add_f32 v12, v12, v13')
    G = 104
    for t in range(2):
        for r_ in range(4): P(f'ds_bpermute_b32 v{G+4*t+r_}, v{20+t}, v{SD+r_}')
    P(f"""
    v_add_f32_dpp v12, v12, v12 quad_perm:[1,0,3,2] {DPPM}
    v_add_f32_dpp v12, v12, v12 quad_perm:[2,3,0,1] {DPPM}
    v_mov_b32 v13, v12
    v_permlane16_swap_b32 v12, v13
    v_add_f32 v12, v12, v13
    s_mov_b64 s[62:63], exec
    s_mov_b64 exec, 0x11
    ds_write_b32 v23, v12 offset:{L_LS}
    s_mov_b64 exec, s[62:63]
    s_waitcnt lgkmcnt(1)
    """)
    for i in range(8):
        for j in range(4): P(f'v_and_b32 v{K0+4*i+j}, v{G+i}, v{MK+j}')
    GR = 112
    tag_fill(GR)
    P(f'v_mov_b32 v122, s6\nv_mov_b32 v123, s7')
    P('s_waitcnt vmcnt(0)')
    stamp(5)
    for i in range(8):
        c = '0' if i == 0 else f'v[{ACC}:{ACC+3}]'
        P(f'v_mfma_f32_16x16x32_bf16 v[{ACC}:{ACC+3}], v[{V0+4*i}:{V0+4*i+3}], v[{K0+4*i}:{K0+4*i+3}], {c}')
    P(f"""
    s_lshl_b32 s59, s53, 10
    v_lshlrev_b32 v16, 4, v1
    v_add_u32 v17, s59, v16
    ds_write_b128 v17, v[{ACC}:{ACC+3}] offset:{L_OSLOT}
    """)
    lds_add_rtn(C_O, 's60')
    ldone = P.lbl('Lkvdone')
    P(f"""
    s_cmp_lg_u32 s60, {nkv-1}
    s_cbranch_scc1 {ldone}
    """)
    P('v_lshlrev_b32 v18, 3, v1')
    for i in range(nkv):
        P(f'ds_read_b64 v[{K0+4*i}:{K0+4*i+1}], v18 offset:{L_OSLOT+1024*i}')
        P(f'ds_read_b64 v[{K0+4*i+2}:{K0+4*i+3}], v18 offset:{L_OSLOT+1024*i+512}')
    LS0 = 100
    for i in range(nkv): P(f'ds_read_b32 v{LS0+i}, v22 offset:{L_LS+8*i}')
    P(f"""
    s_lshl_b32 s59, s4, 4
    s_add_u32 s59, s59, s5
    s_mul_i32 s59, s59, {H3S}
    s_add_u32 s59, s59, {H3}
    s_waitcnt lgkmcnt(0)
    """)
    regs = list(range(nkv))
    while len(regs) > 1:
        nxt = []
        for a in range(0, len(regs) - 1, 2):
            x, y = regs[a], regs[a+1]
            for j in range(4): P(f'v_add_f32 v{K0+4*x+j}, v{K0+4*x+j}, v{K0+4*y+j}')
            P(f'v_add_f32 v{LS0+x}, v{LS0+x}, v{LS0+y}')
            nxt.append(x)
        if len(regs) % 2: nxt.append(regs[-1])
        regs = nxt
    make_granules(GR, K0)
    P(f"""
    v_mov_b32 v120, v{MX}
    v_mov_b32 v121, v{LS0}
    """)
    if cfg.h3_local:
        P(f"""
        s_add_u32 s65, s59, {H3L - H3}
        buffer_store_dwordx4 v[{GR}:{GR+3}], v16, s[44:47], s65 offen
        buffer_store_dwordx4 v[{GR+4}:{GR+7}], v16, s[44:47], s65 offen offset:1024
        s_mov_b64 exec, 0xff
        buffer_store_dwordx4 v[120:123], v16, s[44:47], s65 offen offset:2048
        s_mov_b64 exec, -1
        """)
    P(f"""
    buffer_store_dwordx4 v[{GR}:{GR+3}], v16, s[44:47], s59 offen sc1
    buffer_store_dwordx4 v[{GR+4}:{GR+7}], v16, s[44:47], s59 offen offset:1024 sc1
    s_mov_b64 exec, 0xff
    buffer_store_dwordx4 v[120:123], v16, s[44:47], s59 offen offset:2048 sc1
    s_mov_b64 exec, -1
    """)
    lds_add(FL_PUB)
    stamp(6)
    P(f'{ldone}:')
    if is_f:
        P(f"""
        s_cmp_lt_u32 s53, 5
        s_cbranch_scc1 L_down
        s_cmp_eq_u32 s53, 5
        s_cbranch_scc1 L_commF
        s_branch L_exit
        """)
    else:
        end_wave()

def pack_pair(G, ACC):
    P(f'v_mov_b32 v{G}, v{ACC}')
    P(f'v_mov_b32 v{G+1}, v{ACC+1}')
    P(f'v_mov_b32_dpp v{G}, v{ACC+2} row_shr:8 row_mask:0xf bank_mask:0xc')
    P(f'v_mov_b32_dpp v{G+1}, v{ACC+3} row_shr:8 row_mask:0xf bank_mask:0xc')

def store_addr():
    P(f"""
    v_and_b32 v12, 7, v2
    v_lshl_add_u32 v12, v3, 3, v12
    v_lshlrev_b32 v12, 5, v12
    v_lshrrev_b32 v6, 3, v2
    v_lshl_add_u32 v12, v6, 4, v12
    """)

def tag_fill1(G):
    P(f'v_mov_b32 v{G+2}, s6')
    P(f'v_mov_b32 v{G+3}, s7')

def store_block(sb, ACC, G):
    pack_pair(G, ACC)
    P(f"""
    s_lshl_b32 s60, {sb}, 10
    s_add_u32 s59, s59, s60
    buffer_store_dwordx4 v[{G}:{G+3}], v12, s[44:47], s59 offen sc1
    """)

def store_half(ACC, G):
    T = G + 4
    for j in range(4): P(f'v_mov_b32 v{T+j}, v{ACC+j}')
    for j in range(4): P(f'v_permlane32_swap_b32 v{ACC+j}, v{T+j}')
    for j in range(4): P(f'v_add_f32_dpp v{ACC+j}, v{T+j}, v{ACC+j} row_shl:8 {DPPM}')
    pack_pair(G, ACC)
    P(f"""
    s_add_u32 s59, s59, 4096
    s_mov_b64 s[62:63], exec
    s_mov_b64 exec, 0xffffffff
    buffer_store_dwordx4 v[{G}:{G+3}], v12, s[44:47], s59 offen sc1
    s_mov_b64 exec, s[62:63]
    """)

def down_role():
    W0, MK, XS, ACC, QA, QB, G = 32, 8, 64, 72, 76, 80, 84
    P('L_down:')
    role(8)
    lds_wait(FL_PUB, 1, sleep=1)
    srd(36, 24, 4608*1152)
    P(f"""
    s_mul_i32 s54, s4, 9
    s_add_u32 s54, s54, s5
    s_sub_u32 s54, s54, 7             ; phi
    s_and_b32 s55, s2, 7
    s_mul_i32 s55, s55, 9
    s_add_u32 s55, s55, s5
    s_sub_u32 s55, s55, 7             ; j
    s_lshl_b32 s55, s55, 1
    s_bfe_u32 s66, s2, 0x10003        ; type
    s_add_u32 s55, s55, s66           ; 2j + type
    s_mul_i32 s55, s55, {32*1152}
    s_cmp_eq_u32 s53, 4
    s_cbranch_scc1 L_down_half
    s_lshl_b32 s56, s53, 8
    s_add_u32 s55, s55, s56
    v_mul_u32_u24 v4, 1152, v3
    v_lshl_add_u32 v4, v2, 4, v4
    """)
    for e in range(8):
        P(f'buffer_load_dwordx4 v[{W0+4*e}:{W0+4*e+3}], v4, s[36:39], s55 offen nt')
        if e < 7: P(f's_add_u32 s55, s55, {4*1152}')
    P('v_lshlrev_b32 v5, 2, v3')
    P('s_mov_b32 s57, 16')
    P('s_branch L_down_go')
    P('L_down_half:')
    P(f"""
    s_add_u32 s55, s55, 1024
    v_lshrrev_b32 v6, 3, v2
    v_lshl_add_u32 v6, v6, 2, v3
    v_mul_u32_u24 v4, 1152, v6
    v_and_b32 v7, 7, v2
    v_lshl_add_u32 v4, v7, 4, v4
    v_lshlrev_b32 v5, 2, v6
    """)
    for t in range(4):
        P(f'buffer_load_dwordx4 v[{W0+4*t}:{W0+4*t+3}], v4, s[36:39], s55 offen nt')
        if t < 3: P(f's_add_u32 s55, s55, {8*1152}')
    P('s_mov_b32 s57, 32')
    P('L_down_go:')
    masks(MK)
    store_addr()
    tag_fill1(G)
    for e in range(8):
        P(f'v_mov_b32 v{104+e}, v5')
        if e < 7: P('v_add_u32 v5, s57, v5')
    P(f"""
    s_mul_i32 s59, s54, {PS}
    s_add_u32 s59, s59, {FP}
    v_and_b32 v6, 31, v1
    v_lshlrev_b32 v13, 2, v6
    s_lshl_b32 s67, s66, 7
    v_add_u32 v13, s67, v13
    v_lshrrev_b32 v14, 1, v6
    v_lshlrev_b32 v14, 4, v14
    v_and_b32 v15, 1, v1
    v_cmp_eq_u32 s[70:71], 1, v15
    s_xor_b32 s67, s4, 1
    s_mul_i32 s67, s67, 9
    s_add_u32 s67, s67, s5
    s_sub_u32 s67, s67, 7
    s_lshl_b32 s67, s67, 8
    s_add_u32 s68, s67, {GX}
    s_add_u32 s67, s67, {GXL}
    """)
    P('s_barrier')
    P('s_barrier')
    stamp(7)
    lp = P.lbl('Lx'); lok = P.lbl('Lx'); lg = P.lbl('Lx')
    P(f"""
    buffer_load_dwordx4 v[96:99], v14, s[44:47], s67 offen sc1
    ds_read_b32 v16, v13 offset:{L_RED3}
    ds_read_b32 v17, v13 offset:{L_RED3+256}
    ds_read_b32 v18, v13 offset:{L_RED3+512}
    ds_read_b32 v19, v13 offset:{L_RED3+768}
    s_mov_b32 s64, {cfg.local_tries}
    s_waitcnt lgkmcnt(0)
    v_add_f32 v16, v16, v17
    v_add_f32 v18, v18, v19
    v_add_f32 v16, v16, v18
    """)
    rne('v16', 'v16')
    P(f"""
    {lp}:
    s_waitcnt vmcnt(0)
    v_cmp_ne_u64 vcc, s[6:7], v[98:99]
    s_cbranch_vccz {lok}
    s_sub_u32 s64, s64, 1
    s_cbranch_scc1 {lg}
    buffer_load_dwordx4 v[96:99], v14, s[44:47], s67 offen sc1
    s_branch {lp}
    {lg}:
    s_mov_b32 s64, 0x8000
    {lg}b:
    buffer_load_dwordx4 v[96:99], v14, s[44:47], s68 offen sc1
    s_waitcnt vmcnt(0)
    v_cmp_ne_u64 vcc, s[6:7], v[98:99]
    s_cbranch_vccz {lok}
    s_sub_u32 s64, s64, 1
    s_cbranch_scc1 {ABORT}
    s_branch {lg}b
    {lok}:
    v_cndmask_b32 v18, v96, v97, s[70:71]
    s_cmp_eq_u32 s66, 0
    s_cbranch_scc1 {lok}g
    v_mov_b32 v17, v16
    v_mov_b32 v16, v18
    v_mov_b32 v18, v17
    {lok}g:
    """)
    k1 = f32hex(0.044715); k2 = f32hex(-2.0*math.sqrt(2.0/math.pi)*math.log2(math.e))
    P(f"""
    s_mov_b32 s60, {k1:#x}
    s_mov_b32 s61, {k2:#x}
    v_mul_f32 v17, v16, v16
    v_mul_f32 v17, v17, v16
    v_fma_f32 v17, v17, s60, v16
    v_mul_f32 v17, s61, v17
    v_exp_f32 v17, v17
    v_add_f32 v17, 1.0, v17
    v_rcp_f32 v17, v17
    v_mul_f32 v16, v16, v17
    """)
    rne('v16', 'v16')
    P('v_mul_f32 v16, v16, v18')
    P('v_cvt_pk_bf16_f32 v16, v16, v16')
    for e in range(8): P(f'ds_bpermute_b32 v{XS+e}, v{104+e}, v16')
    P('s_waitcnt vmcnt(0) lgkmcnt(0)')
    P(f"""
    s_cmp_eq_u32 s53, 4
    s_cbranch_scc1 L_down_half2
    """)
    diag_mm(ACC, [W0+4*e for e in range(8)], [f'v{XS+e}' for e in range(8)], MK, QA, QB)
    store_block('s53', ACC, G)
    stamp(6)
    end_wave()
    P('L_down_half2:')
    diag_mm(ACC, [W0+4*t for t in range(4)], [f'v{XS+t}' for t in range(4)], MK, QA, QB)
    store_half(ACC, G)
    stamp(6)
    end_wave()

def wo_role(suffix, nkv):
    P(f'L_wo{suffix}:')
    P('s_barrier')
    if suffix == 'M' and cfg.m_order == 'a_wo_b_kv': lds_wait(C_H, 1, sleep=1)
    elif cfg.order2 and suffix == 'Q' and cfg.q_order == 'wo_kv': lds_wait(C_G, 1, sleep=2)
    elif cfg.order2: lds_wait(C_KVI, nkv, sleep=2)
    elif suffix == 'M': lds_wait(C_B2, 6, sleep=2)
    elif cfg.q_wo_gate: lds_wait(C_G, 1, sleep=2)
    P('s_branch L_wo_common')

def wo_common():
    W0, MK, XS, G = 32, 8, 112, 16
    A0, A1, QA, QB = 24, 28, 0, 0
    P('L_wo_common:')
    role(4)
    srd(36, 16, 4096*1152)
    P(f"""
    s_sub_u32 s53, s3, 7              ; 0,1,2
    s_mov_b32 s54, s5                 ; a
    s_mul_i32 s55, s54, 9
    s_lshl_b32 s56, s4, 8
    """)
    def rowbase(dst, e):
        P(f"""
        s_add_u32 s57, s55, {e}
        s_bfe_u32 s58, s57, 0x10003
        s_lshl_b32 s58, s58, 7
        s_lshr_b32 s60, s57, 4
        s_lshl_b32 s60, s60, 5
        s_add_u32 s58, s58, s60
        s_and_b32 s60, s57, 7
        s_add_u32 s58, s58, s60
        s_add_u32 s58, s58, s56
        s_mul_i32 {dst}, s58, 1152
        """)
    def common_post():
        lds_add(C_WO)
        masks(MK)
        store_addr()
        tag_ready()
        P(f"""
        s_mul_i32 s59, s4, 7
        s_add_u32 s59, s59, s54
        s_mul_i32 s59, s59, {PS}
        s_add_u32 s59, s59, {XP}
        """)
    P(f"""
    s_cmp_eq_u32 s53, 2
    s_cbranch_scc1 L_wo_half
    s_lshl_b32 s65, s53, 9
    v_mul_u32_u24 v4, {8*1152}, v3
    v_lshl_add_u32 v4, v2, 4, v4
    """)
    for e in range(10):
        if e == 9:
            P(f"""
            s_cmp_lt_u32 s54, 6
            s_cbranch_scc1 L_wo_l9
            """)
        rowbase('s66', e)
        P('s_add_u32 s66, s66, s65')
        P(f'buffer_load_dwordx4 v[{W0+8*e}:{W0+8*e+3}], v4, s[36:39], s66 offen nt')
        P(f'buffer_load_dwordx4 v[{W0+8*e+4}:{W0+8*e+7}], v4, s[36:39], s66 offen offset:256 nt')
    P('L_wo_l9:')
    P('v_lshlrev_b32 v5, 2, v3')
    common_post()
    GA, GB = 16, 20
    tag_fill1(GA); tag_fill1(GB)
    stamp(5)
    P('s_barrier')
    stamp(6)
    XS2 = [112, 113, 114, 115, 116, 117, 118, 119, 13, 14]
    for e in range(10): P(f'ds_read_b32 v{XS2[e]}, v5 offset:{L_XA+16*e}')
    P('s_waitcnt vmcnt(0) lgkmcnt(0)')
    def mm(n):
        qs = ((60+0, ), )
        QAa, QBb = 0, 0
        def prep(e, q):
            for i in range(4): P(f'v_and_b32 v{q+i}, v{XS2[e]}, v{MK+i}')
        Q2 = (4, 4)
        for e in range(n):
            q = 4 if e == 0 else W0 + 8*(e-1)
            prep(e, q)
            c0 = '0' if e == 0 else f'v[{A0}:{A0+3}]'
            c1 = '0' if e == 0 else f'v[{A1}:{A1+3}]'
            P(f'v_mfma_f32_16x16x32_bf16 v[{A0}:{A0+3}], v[{W0+8*e}:{W0+8*e+3}], v[{q}:{q+3}], {c0}')
            P(f'v_mfma_f32_16x16x32_bf16 v[{A1}:{A1+3}], v[{W0+8*e+4}:{W0+8*e+7}], v[{q}:{q+3}], {c1}')
    P(f"""
    s_cmp_lt_u32 s54, 6
    s_cbranch_scc1 L_wo_m9
    """)
    mm(10)
    P('s_branch L_wo_st')
    P('L_wo_m9:')
    mm(9)
    P('L_wo_st:')
    pack_pair(GA, A0)
    pack_pair(GB, A1)
    P(f"""
    s_lshl_b32 s60, s53, 11
    s_add_u32 s59, s59, s60
    buffer_store_dwordx4 v[{GA}:{GA+3}], v12, s[44:47], s59 offen sc1
    buffer_store_dwordx4 v[{GB}:{GB+3}], v12, s[44:47], s59 offen offset:1024 sc1
    """)
    stamp(7)
    end_wave()
    P('L_wo_half:')
    P(f"""
    v_mul_u32_u24 v4, {8*1152}, v3
    v_and_b32 v6, 7, v2
    v_lshl_add_u32 v4, v6, 4, v4
    v_add_u32 v4, 1024, v4
    v_cmp_lt_u32 s[68:69], 7, v2
    """)
    for t in range(5):
        rowbase('s66', 2*t)
        rowbase('s67', 2*t+1)
        if t == 4:
            P(f"""
            s_cmp_lt_u32 s54, 6
            s_cselect_b32 s67, 0x40000000, s67
            """)
        P(f"""
        v_mov_b32 v6, s66
        v_mov_b32 v7, s67
        v_cndmask_b32 v6, v6, v7, s[68:69]
        v_add_u32 v6, v6, v4
        buffer_load_dwordx4 v[{W0+4*t}:{W0+4*t+3}], v6, s[36:39], 0 offen nt
        """)
    P(f"""
    v_lshrrev_b32 v5, 3, v2
    v_lshl_add_u32 v5, v5, 2, v3
    v_lshlrev_b32 v5, 2, v5
    """)
    if cfg.pf2 & 2:
        P('v_mov_b32 v15, v5')
        prefetch_code('3', 100)
        P('v_mov_b32 v5, v15')
    common_post()
    GH = 96
    tag_fill1(GH)
    stamp(5)
    P('s_barrier')
    stamp(6)
    for t in range(5): P(f'ds_read_b32 v{112+t}, v5 offset:{L_XA+32*t}')
    P('s_waitcnt vmcnt(0) lgkmcnt(0)')
    diag_mm(72, [W0+4*t for t in range(5)], [f'v{112+t}' for t in range(5)], MK, 76, 80)
    store_half(72, GH)
    stamp(7)
    end_wave()

def q_fetch(nxt):
    l = P.lbl('Lqf'); l2 = P.lbl('Lqf'); l3 = P.lbl('Lqf')
    P(f"""
    s_cmp_gt_u32 s3, 4
    s_cbranch_scc1 {nxt}
    s_lshl_b32 s38, s4, 10
    s_lshl_b32 s39, s3, 8
    s_add_u32 s38, s38, s39
    s_add_u32 s38, s38, {QF-256}
    s_add_u32 s36, s34, s38
    s_addc_u32 s37, s35, 0
    s_mov_b32 s42, 0x40000
    """)
    if cfg.q_direct:
        P(f"""
        s_branch {l3}
        {l}:
        s_sleep {cfg.q_sleep}
        {l3}:
        s_load_dwordx2 s[40:41], s[36:37], 128 glc
        s_load_dwordx16 s[48:63], s[36:37], 0 glc
        s_load_dwordx16 s[64:79], s[36:37], 64 glc
        s_sub_u32 s42, s42, 1
        s_cbranch_scc1 {ABORT}
        s_waitcnt lgkmcnt(0)
        s_cmp_lg_u32 s41, s7
        s_cbranch_scc1 {l}
        s_add_u32 s43, s48, s7
        """)
        for i in range(49, 80): P(f's_add_u32 s43, s43, s{i}')
        P(f"""
        s_cmp_lg_u32 s43, s40
        s_cbranch_scc1 {l3}
        """)
    else:
        P(f"""
        s_branch {l3}
        {l}:
        s_sleep {cfg.q_sleep}
        {l3}:
        s_load_dwordx2 s[40:41], s[36:37], 128 glc
        s_sub_u32 s42, s42, 1
        s_cbranch_scc1 {ABORT}
        s_waitcnt lgkmcnt(0)
        s_cmp_lg_u32 s41, s7
        s_cbranch_scc1 {l}
        {l2}:
        s_load_dwordx16 s[48:63], s[36:37], 0 glc
        s_load_dwordx16 s[64:79], s[36:37], 64 glc
        s_sub_u32 s42, s42, 1
        s_cbranch_scc1 {ABORT}
        s_waitcnt lgkmcnt(0)
        s_add_u32 s43, s48, s7
        """)
        for i in range(49, 80): P(f's_add_u32 s43, s43, s{i}')
        P(f"""
        s_cmp_lg_u32 s43, s40
        s_cbranch_scc1 {l2}
        """)
    for i in range(32): P(f'v_writelane_b32 v20, s{48+i}, {i}')
    P(f"""
    v_and_b32 v21, 3, v1
    v_lshlrev_b32 v21, 2, v21
    v_bfe_u32 v22, v1, 2, 2
    v_add_u32 v21, v21, v22
    v_and_b32 v22, 16, v1
    v_add_u32 v21, v21, v22
    v_lshlrev_b32 v21, 2, v21
    s_lshl_b32 s38, s3, 7
    v_add_u32 v21, s38, v21
    s_mov_b64 exec, 0xffffffff
    ds_write_b32 v21, v20 offset:{L_Q-128}
    s_mov_b64 exec, -1
    """)
    srd(44, 34, 0x40000000)
    lds_add(FL_Q)

def ln_stats(regs, mean_b, rstd, t1, t2, maskfix=None):
    P(f'v_add_f32 {t1}, v{regs[0]}, v{regs[1]}')
    for r in regs[2:]: P(f'v_add_f32 {t1}, {t1}, v{r}')
    wave_sum(t1, t2)
    P(f's_mov_b32 s60, {f32hex(1.0/576.0):#x}')
    P(f'v_mul_f32 {t1}, s60, {t1}')
    first = True
    for r in regs:
        P(f'v_sub_f32 {t2}, v{r}, {t1}')
        if maskfix and r in maskfix[0]: P(f'v_cndmask_b32 {t2}, 0, {t2}, {maskfix[1]}')
        if first: P(f'v_mul_f32 {rstd}, {t2}, {t2}'); first = False
        else: P(f'v_fmac_f32 {rstd}, {t2}, {t2}')
    wave_sum(rstd, t2)
    P(f'v_mul_f32 {rstd}, s60, {rstd}')
    rne(rstd, rstd)
    P(f'v_add_f32 {rstd}, {f32hex(1e-5):#x}, {rstd}')
    rne(rstd, rstd)
    P(f'v_sqrt_f32 {rstd}, {rstd}')
    rne(rstd, rstd)
    P(f'v_rcp_f32 {rstd}, {rstd}')
    rne(mean_b, t1)

def fold_reduce(base, slot0):
    for i in range(6): P(f'ds_read_b128 v[{base+4*i}:{base+4*i+3}], v16 offset:{L_SLOT+1024*(slot0+i)}')
    P('s_waitcnt lgkmcnt(0)')
    for (x, y) in ((0, 1), (2, 3), (4, 5), (0, 2), (0, 4)):
        for jj in range(4): P(f'v_add_f32 v{base+4*x+jj}, v{base+4*x+jj}, v{base+4*y+jj}')
    T = base + 4
    for jj in range(4): P(f'v_mov_b32 v{T+jj}, v{base+jj}')
    for jj in range(4): P(f'v_permlane32_swap_b32 v{base+jj}, v{T+jj}')
    for jj in range(4): P(f'v_add_f32_dpp v{base+jj}, v{T+jj}, v{base+jj} row_shl:8 {DPPM}')

def silu(regs, tmps):
    P(f's_mov_b32 s60, {f32hex(-1.4426950408889634):#x}')
    for r in regs: P(f'v_lshlrev_b32 v{r}, 16, v{r}')
    for r, t in zip(regs, tmps): P(f'v_mul_f32 v{t}, s60, v{r}')
    for r, t in zip(regs, tmps): P(f'v_exp_f32 v{t}, v{t}')
    for r, t in zip(regs, tmps): P(f'v_add_f32 v{t}, 1.0, v{t}')
    for r, t in zip(regs, tmps): P(f'v_rcp_f32 v{t}, v{t}')
    for r, t in zip(regs, tmps): P(f'v_mul_f32 v{r}, v{r}, v{t}')
    for r, t in zip(regs, tmps): P(f'v_cvt_pk_bf16_f32 v{r}, v{r}, v{r}')

def wq_role():
    WB, MK, XS, ACC, QA, QB, XA = 56, 8, 104, 116, 120, 124, 32
    XSB = L_SLOT + 12*1024
    P('L_wq:')
    role(2)
    srd(36, 14, 576*8192)
    srd(40, 8, 1152)
    P(f"""
    s_sub_u32 s53, s3, 1              ; j
    s_sub_u32 s54, s5, 3              ; qi
    s_mul_i32 s57, s53, 96
    v_lshlrev_b32 v4, 1, v1
    """)
    for n in range(9): P(f'buffer_load_ushort v{XA+n}, v4, s[40:43], 0 offen offset:{128*n}')
    P(f"""
    v_and_b32 v6, 31, v1
    v_lshlrev_b32 v7, 1, v6
    s_lshl_b32 s58, s57, 1
    buffer_load_ushort v{XA+9}, v4, s[40:43], s58 offen
    buffer_load_ushort v{XA+10}, v7, s[40:43], s58 offen offset:128
    v_lshrrev_b32 v13, 3, v2
    v_lshl_add_u32 v13, v13, 2, v3
    v_lshlrev_b32 v5, 13, v13
    v_and_b32 v7, 7, v2
    v_lshl_add_u32 v5, v7, 4, v5
    s_lshl_b32 s58, s57, 13
    s_lshl_b32 s59, s4, 9
    s_add_u32 s58, s58, s59
    s_lshl_b32 s59, s54, 7
    s_add_u32 s58, s58, s59
    """)
    for t in range(12):
        P(f'buffer_load_dwordx4 v[{WB+4*t}:{WB+4*t+3}], v5, s[36:39], s58 offen nt')
        if t < 11: P(f's_add_u32 s58, s58, {8*8192}')
    stamp(1)
    P('s_barrier')
    P(f"""
    v_add_u32 v28, s57, v1
    v_lshlrev_b32 v28, 3, v28
    v_add_u32 v29, s57, v6
    v_lshlrev_b32 v29, 3, v29
    v_add_u32 v29, 512, v29
    v_lshlrev_b32 v31, 2, v13
    s_lshl_b32 s67, s53, 10
    v_add_u32 v31, s67, v31
    v_lshlrev_b32 v30, 2, v1
    v_add_u32 v30, s67, v30
    v_lshlrev_b32 v27, 2, v6
    v_add_u32 v27, s67, v27
    """)
    masks(MK)
    P('s_waitcnt vmcnt(12)')
    tag_ready()
    for n in range(11): P(f'v_lshlrev_b32 v{XA+n}, 16, v{XA+n}')
    ln_stats(list(range(XA, XA+9)), 'v16', 'v17', 'v18', 'v19')
    for n in (9, 10): P(f'v_sub_f32 v{XA+n}, v{XA+n}, v16')
    rne_many([XA+9, XA+10])
    for n in (9, 10): P(f'v_mul_f32 v{XA+n}, v{XA+n}, v17')
    rne_many([XA+9, XA+10])
    P(f"""
    v_mov_b32 v20, v{XA+9}
    v_mov_b32 v21, v{XA+10}
    s_mov_b32 s66, {MODP}
    s_mov_b32 s68, {MODP+9216}
    s_mov_b32 s69, {MODP+4608}
    s_mov_b32 s70, {MODP+9216+4608}
    """)
    G = 32
    sr = ['s66', 's68', 's69', 's70']
    loads = []
    for st_, va in enumerate(('v28', 'v29')):
        for i in range(4):
            r = G + 8*st_ + 2*i
            loads.append(f'buffer_load_dwordx2 v[{r}:{r+1}], {va}, s[44:47], {sr[i]} offen sc1')
    if cfg.wq_first:
        P('s_waitcnt vmcnt(0)')
        stamp(5)
    poll(loads, check_tags32([G+1+2*i for i in range(8)]))
    stamp(2)
    for st_ in range(2):
        b = G + 8*st_
        P(f'v_add_f32 v{b}, v{b}, v{b+2}')
        P(f'v_add_f32 v{b+4}, v{b+4}, v{b+6}')
    rne_many([G, G+4, G+8, G+12])
    for st_ in range(2): P(f'v_add_f32 v{G+8*st_+4}, 1.0, v{G+8*st_+4}')
    rne_many([G+4, G+12])
    for st_ in range(2): P(f'v_mul_f32 v{20+st_}, v{20+st_}, v{G+8*st_+4}')
    rne_many([20, 21])
    for st_ in range(2): P(f'v_add_f32 v{20+st_}, v{20+st_}, v{G+8*st_}')
    for st_ in range(2): P(f'v_cvt_pk_bf16_f32 v{20+st_}, v{20+st_}, v{20+st_}')
    P(f"""
    ds_write_b32 v30, v20 offset:{XSB}
    ds_write_b32 v27, v21 offset:{XSB+256}
    """)
    for t in range(12): P(f'ds_read_b32 v{XS+t}, v31 offset:{XSB+32*t}')
    P('s_waitcnt lgkmcnt(0)')
    stamp(3)
    diag_mm(ACC, [WB+4*t for t in range(12)], [f'v{XS+t}' for t in range(12)], MK, QA, QB)
    P(f"""
    s_lshl_b32 s59, s53, 10
    v_lshlrev_b32 v16, 4, v1
    v_add_u32 v19, s59, v16
    ds_write_b128 v19, v[{ACC}:{ACC+3}] offset:{L_SLOT}
    """)
    lds_add_rtn(C_RED, 's60')
    P(f"""
    s_cmp_lg_u32 s60, 5
    s_cbranch_scc1 L_wq_done
    """)
    fold_reduce(WB, 0)
    for r in range(4): P(f'v_mov_b32_dpp v{WB+4+r}, v{WB+r} quad_perm:[1,0,3,2] {DPPM}')
    for r in range(4): P(f'v_cvt_pk_bf16_f32 v{WB+r}, v{WB+r}, v{WB+4+r}')
    P(f"""
    v_add_u32 v{WB+4}, v{WB}, v{WB+1}
    v_add3_u32 v{WB+4}, v{WB+4}, v{WB+2}, v{WB+3}
    s_mov_b32 s60, 0x00550055
    s_mov_b32 s61, 0
    v_cndmask_b32 v{WB+4}, 0, v{WB+4}, s[60:61]
    v_add_u32_dpp v{WB+4}, v{WB+4}, v{WB+4} quad_perm:[2,3,0,1] {DPPM}
    v_add_u32_dpp v{WB+4}, v{WB+4}, v{WB+4} row_shl:4 {DPPM} bound_ctrl:0
    v_lshrrev_b32 v19, 1, v2
    v_lshl_add_u32 v19, v3, 2, v19
    v_lshlrev_b32 v19, 4, v19            ; (gq*4 + c/2)*16
    v_readlane_b32 s60, v{WB+4}, 0
    v_readlane_b32 s61, v{WB+4}, 16
    s_add_u32 s60, s60, s61
    s_add_u32 s60, s60, s7
    s_mov_b32 s61, 128
    v_writelane_b32 v{WB}, s60, 1
    v_writelane_b32 v{WB+1}, s7, 1
    v_writelane_b32 v19, s61, 1
    s_lshl_b32 s59, s4, 10
    s_lshl_b32 s60, s54, 8
    s_add_u32 s59, s59, s60
    s_add_u32 s59, s59, {QF}
    s_mov_b64 exec, 0x00550057
    buffer_store_dwordx4 v[{WB}:{WB+3}], v19, s[44:47], s59 offen sc1
    s_mov_b64 exec, -1
    """)
    lds_add(C_G)
    stamp(4)
    P('L_wq_done:')
    q_fetch('L_exit')
    end_wave()

def mod_role():
    WA, MK, XS, ACC, QA, QB = 32, 8, 104, 116, 120, 124
    XSB = L_SLOT + 12*1024
    P('L_mod:')
    role(3)
    P(f"""
    s_mov_b32 s54, s2
    s_cmp_ge_u32 s54, 36
    s_cbranch_scc1 L_mod_noA
    """)
    srd(36, 28, 576*6912)
    srd(40, 26, 1152)
    P(f"""
    s_sub_u32 s53, s3, 1              ; j
    v_lshlrev_b32 v4, 1, v1
    s_and_b32 s56, s54, 1             ; kh
    s_mul_i32 s57, s56, 288
    s_mul_i32 s58, s53, 48
    s_add_u32 s57, s57, s58
    s_lshl_b32 s58, s57, 1
    buffer_load_ushort v16, v4, s[40:43], s58 offen
    v_lshrrev_b32 v13, 3, v2
    v_lshl_add_u32 v13, v13, 2, v3
    v_mul_u32_u24 v5, 6912, v13
    v_and_b32 v7, 7, v2
    v_lshl_add_u32 v5, v7, 4, v5
    s_lshr_b32 s55, s54, 1            ; cbk
    s_mul_i32 s58, s57, 6912
    s_lshl_b32 s59, s55, 7
    s_add_u32 s58, s58, s59
    """)
    for t in range(6):
        P(f'buffer_load_dwordx4 v[{WA+4*t}:{WA+4*t+3}], v5, s[36:39], s58 offen nt')
        if t < 5: P(f's_add_u32 s58, s58, {8*6912}')
    P('s_barrier')
    P(f"""
    v_lshlrev_b32 v31, 2, v13
    s_lshl_b32 s67, s53, 10
    v_add_u32 v31, s67, v31
    v_lshlrev_b32 v30, 2, v1
    v_add_u32 v30, s67, v30
    s_mul_i32 s65, s56, 9216
    s_lshl_b32 s60, s55, 9
    s_add_u32 s65, s65, s60
    s_add_u32 s65, s65, {MODP}
    v_lshlrev_b32 v29, 5, v3
    v_add_u32 v29, v29, v2
    v_lshlrev_b32 v29, 3, v29
    """)
    masks(MK)
    tag_ready()
    for rr in range(4): P(f'v_mov_b32 v{61+2*rr}, s7')
    P('s_waitcnt vmcnt(6)')
    stamp(1)
    silu([16], [19])
    P(f'ds_write_b32 v30, v16 offset:{XSB}')
    for t in range(6): P(f'ds_read_b32 v{XS+t}, v31 offset:{XSB+32*t}')
    P('s_waitcnt vmcnt(0) lgkmcnt(0)')
    stamp(2)
    lds_add(C_G)
    diag_mm(ACC, [WA+4*t for t in range(6)], [f'v{XS+t}' for t in range(6)], MK, QA, QB)
    P(f"""
    s_lshl_b32 s59, s53, 10
    v_lshlrev_b32 v16, 4, v1
    v_add_u32 v19, s59, v16
    ds_write_b128 v19, v[{ACC}:{ACC+3}] offset:{L_SLOT}
    """)
    lds_add_rtn(C_RED, 's60')
    P(f"""
    s_cmp_lg_u32 s60, 5
    s_cbranch_scc1 L_mod_fin
    """)
    fold_reduce(WA, 0)
    for rr in range(4): P(f'v_mov_b32 v{60+2*rr}, v{WA+rr}')
    P('s_mov_b64 exec, 0x00ff00ff')
    for rr in range(4):
        P(f'buffer_store_dwordx2 v[{60+2*rr}:{61+2*rr}], v29, s[44:47], s65 offen offset:{64*rr} sc1')
    P('s_mov_b64 exec, -1')
    lds_add(C_H)
    stamp(3)
    P('s_branch L_mod_fin')
    P('L_mod_noA:')
    P('s_barrier')
    if cfg.b_on != 'M': lds_add(C_G)
    lds_add(C_H)
    tag_ready()
    P('L_mod_fin:')
    if cfg.b_on == 'M':
        lds_wait(C_H, 1, sleep=0)
        if cfg.order2:
            P(f"""
            s_cmp_lt_u32 s2, 12
            s_cbranch_scc1 L_mod_nob
            s_sub_u32 s53, s3, 1
            s_sub_u32 s65, s2, 36
            s_cmp_ge_u32 s2, 36
            s_cbranch_scc1 L_mod_bgo
            s_mov_b32 s65, s2
            """)
            if cfg.m_order == 'a_wo_b_kv':
                lds_wait(C_WO, 3, sleep=1)
                P('s_branch L_mod_bgo')
            if cfg.m_order == 'a_b_kv_wo':
                P('s_branch L_mod_bgo')
            P('s_mov_b32 s98, s65' if not cfg.hdbg else 's_mov_b32 s99, s65')
            q_fetch('L_mod_q2')
            P('L_mod_q2:')
            P('s_mov_b32 s65, s98' if not cfg.hdbg else 's_mov_b32 s65, s99')
            P('s_sub_u32 s53, s3, 1')
            P('s_mov_b32 s100, 1')
            lds_wait(C_WO, 3, sleep=2)
            P('s_branch L_mod_bgo2')
            P('L_mod_bgo:')
            P('s_mov_b32 s100, 0')
            P('L_mod_bgo2:')
        else:
            P(f"""
            s_cmp_lt_u32 s2, 12
            s_cbranch_scc1 L_mod_nob
            s_sub_u32 s65, s2, 12
            s_sub_u32 s53, s3, 1
            """)
        modb_body('M')
        if cfg.order2:
            P('s_cmp_lg_u32 s100, 0\ns_cbranch_scc1 L_exit')
        P('s_branch L_mod_q')
        P('L_mod_nob:')
        lds_add(C_B2)
        P('L_mod_q:')
    q_fetch('L_exit')
    end_wave()

def modb_body(cls):
    WB, MK, XS, ACC, QA, QB, G = 56, 8, 104, 116, 120, 124, 32
    done = 'L_exit' if cls == 'Q' else 'L_modb_done'
    srd(36, 28, 576*6912)
    srd(40, 26, 1152)
    P(f"""
    v_lshlrev_b32 v4, 1, v1
    s_mul_i32 s66, s53, 96
    s_lshl_b32 s59, s66, 1
    buffer_load_ushort v17, v4, s[40:43], s59 offen
    buffer_load_ushort v18, v4, s[40:43], s59 offen offset:128
    v_lshrrev_b32 v13, 3, v2
    v_lshl_add_u32 v13, v13, 2, v3
    v_mul_u32_u24 v5, 6912, v13
    v_and_b32 v7, 7, v2
    v_lshl_add_u32 v5, v7, 4, v5
    v_lshlrev_b32 v31, 2, v13
    s_lshl_b32 s67, s53, 9
    v_add_u32 v31, s67, v31
    v_lshlrev_b32 v30, 2, v1
    v_add_u32 v30, s67, v30
    s_mul_i32 s58, s66, 6912
    s_lshl_b32 s59, s65, 7
    s_add_u32 s58, s58, s59
    s_add_u32 s58, s58, 2304
    """)
    def wloads():
        for t in range(12):
            if cls == 'Q' and cfg.b_k and t >= cfg.b_k: P(f's_waitcnt vmcnt({cfg.b_k-1})')
            P(f'buffer_load_dwordx4 v[{WB+4*t}:{WB+4*t+3}], v5, s[36:39], s58 offen nt')
            if t < 11: P(f's_add_u32 s58, s58, {8*6912}')
    if cls == 'M':
        wloads()
        lds_add(C_B2)
        masks(MK)
        P('s_waitcnt vmcnt(12)')
    else:
        masks(MK)
        P('s_waitcnt vmcnt(0)')
        tag_ready()
    tag_fill(G)
    silu([17, 18], [19, 20])
    P(f"""
    ds_write_b32 v30, v17 offset:{L_XS}
    ds_write_b32 v30, v18 offset:{L_XS+256}
    """)
    for t in range(12): P(f'ds_read_b32 v{XS+t}, v31 offset:{L_XS+32*t}')
    if cls == 'Q':
        lds_wait(C_G, 1, sleep=2)
        stamp(1)
        wloads()
    P('s_waitcnt vmcnt(0) lgkmcnt(0)')
    diag_mm(ACC, [WB+4*t for t in range(12)], [f'v{XS+t}' for t in range(12)], MK, QA, QB)
    P(f"""
    s_lshl_b32 s59, s53, 10
    v_lshlrev_b32 v16, 4, v1
    v_add_u32 v19, s59, v16
    ds_write_b128 v19, v[{ACC}:{ACC+3}] offset:{L_SLOT+6*1024}
    """)
    lds_add_rtn(C_B, 's60')
    P(f"""
    s_cmp_lg_u32 s60, 5
    s_cbranch_scc1 {done}
    """)
    fold_reduce(WB, 6)
    rne_many([WB+jj for jj in range(4)])
    make_granules(G, WB)
    P(f"""
    s_lshl_b32 s59, s65, 9
    s_add_u32 s59, s59, {MODF}
    v_lshlrev_b32 v19, 3, v3
    v_add_u32 v19, v19, v2
    v_lshlrev_b32 v19, 5, v19
    s_mov_b64 exec, 0x00ff00ff
    buffer_store_dwordx4 v[{G}:{G+3}], v19, s[44:47], s59 offen sc1
    buffer_store_dwordx4 v[{G+4}:{G+7}], v19, s[44:47], s59 offen offset:16 sc1
    s_mov_b64 exec, -1
    """)
    stamp(4)
    if cls == 'Q': end_wave()
    else: P('L_modb_done:')

def modb_role():
    P('L_modb:')
    P('s_barrier')
    if cfg.b_on != 'Q':
        P('s_branch L_end')
        return
    P(f"""
    s_sub_u32 s65, s2, 48            ; b
    s_cmp_ge_u32 s65, 36
    s_cbranch_scc1 L_exit
    s_sub_u32 s53, s3, 7              ; j
    """)
    modb_body('Q')

def prefetch_code(sfx='', dst=16):
    if not cfg.prefetch_code: return
    P(f"""
    s_getpc_b64 s[52:53]
    L_pc{sfx}:
    s_sub_u32 s52, s52, L_pc{sfx}-{KN}
    s_subb_u32 s53, s53, 0
    v_lshlrev_b32 v4, 7, v1
    """)
    for i in range(CODE_PF):
        P(f'v_cmp_gt_u32 vcc, L_codeend-{KN}, v4')
        P('s_and_saveexec_b64 s[62:63], vcc')
        P(f'global_load_dword v{dst+i}, v4, s[52:53]')
        P('s_mov_b64 exec, s[62:63]')
        P('v_add_u32 v4, 0x2000, v4')

def reduce4(a, b, n_i, base):
    regs = list(range(n_i))
    while len(regs) > 1:
        nxt = []
        for k in range(0, len(regs) - 1, 2):
            x, y = regs[k], regs[k+1]
            for j in range(2): P(f'v_add_f32 v{base+4*x+j}, v{base+4*x+j}, v{base+4*y+j}')
            nxt.append(x)
        if len(regs) % 2: nxt.append(regs[-1])
        regs = nxt
    for d in ('row_ror:4', 'row_ror:8'):
        for j in range(2): P(f'v_add_f32_dpp v{base+j}, v{base+j}, v{base+j} {d} {DPPM}')
    xrow_multi('v_add_f32', [f'v{base+j}' for j in range(2)], [f'v{base+2+j}' for j in range(2)])

def commA_role():
    P('L_commA:')
    role(5)
    P('s_setprio 3')
    P('s_barrier')
    P(f"""
    s_mov_b32 s54, s5                 ; a
    s_mul_i32 s55, s4, 7
    s_add_u32 s55, s55, s54           ; rho
    v_and_b32 v112, 3, v1
    v_lshrrev_b32 v4, 1, v112           ; pi
    s_lshl_b32 s56, s55, 1
    v_add_u32 v4, s56, v4
    v_and_b32 v4, 7, v4
    s_lshr_b32 s56, s55, 2
    s_lshl_b32 s56, s56, 5
    v_add_u32 v4, s56, v4
    v_and_b32 v5, 1, v112               ; gamma
    v_lshl_add_u32 v4, v5, 4, v4
    v_lshlrev_b32 v113, 1, v4
    v_lshlrev_b32 v114, 4, v112
    """)
    srd(40, 8, 1152)
    P(f"""
    buffer_load_ushort v116, v113, s[40:43], 0 offen
    buffer_load_ushort v117, v113, s[40:43], 0 offen offset:16
    s_cmp_eq_u32 s54, 6
    s_cselect_b32 s57, 10, 9            ; E
    s_mul_i32 s56, s54, 9
    v_add_u32 v4, s56, v2               ; l_src = 9a + e
    v_mul_u32_u24 v6, {H3S}, v3
    v_lshl_add_u32 v5, v4, 5, v6
    v_bfe_u32 v4, v4, 3, 1              ; head
    v_lshl_add_u32 v4, v4, 6, v6
    v_add_u32 v4, 2048, v4
    s_mul_i32 s48, s4, {16*H3S}
    s_add_u32 s48, s48, {H3}
    s_add_u32 s49, s48, {4*H3S}
    s_add_u32 s50, s48, {8*H3S}
    s_add_u32 s51, s48, {12*H3S}
    v_lshrrev_b32 v115, 2, v1
    v_mul_u32_u24 v115, {PS}, v115
    v_add_u32 v115, v115, v114
    v_lshrrev_b32 v6, 2, v1
    v_mul_u32_u24 v118, {X2S}, v6
    v_add_u32 v118, v118, v114
    v_lshlrev_b32 v119, 4, v1
    """)
    tag_ready()
    P('v_mov_b32 v122, s6\nv_mov_b32 v123, s7')
    lds_wait(FL_PUB, 1, sleep=1)
    P(f"""
    v_lshlrev_b32 v116, 16, v116
    v_cmp_gt_u32 vcc, s57, v2
    s_mov_b32 s56, {LOG2E:#x}
    s_mov_b64 exec, vcc
    """)
    def h3_loads(B):
        o = []
        for i in range(4):
            b = B + 12*i
            o.append(f'buffer_load_dwordx4 v[{b}:{b+3}], v5, s[44:47], s{48+i} offen sc1')
            o.append(f'buffer_load_dwordx4 v[{b+4}:{b+7}], v5, s[44:47], s{48+i} offen offset:16 sc1')
            o.append(f'buffer_load_dwordx4 v[{b+8}:{b+11}], v4, s[44:47], s{48+i} offen sc1')
        return o
    def h3_check(B):
        bases = [B + 12*i + o for i in range(4) for o in (0, 4, 8)]
        check_g(bases[:6])()
        P('s_mov_b64 s[62:63], vcc')
        check_g(bases[6:])()
        P('s_or_b64 vcc, vcc, s[62:63]')
    def h3_post(B):
        M = [B+12*i+8 for i in range(4)]; L = [m+1 for m in M]; W = [m+2 for m in M]
        P(f"""
        v_max3_f32 v12, v{M[0]}, v{M[1]}, v{M[2]}
        v_max_f32 v12, v12, v{M[3]}
        """)
        xrow_multi('v_max_f32', ['v12'], ['v13'])
        for i in range(4): P(f'v_sub_f32 v{W[i]}, v{M[i]}, v12')
        for i in range(4): P(f'v_mul_f32 v{W[i]}, s56, v{W[i]}')
        for i in range(4): P(f'v_exp_f32 v{W[i]}, v{W[i]}')
        O = lambda i, j: B + 12*i + (j >> 1)*4 + (j & 1)
        P(f'v_mul_f32 v14, v{W[0]}, v{L[0]}')
        for j in range(4): P(f'v_mul_f32 v{8+j}, v{W[0]}, v{O(0,j)}')
        for i in range(1, 4):
            P(f'v_fmac_f32 v14, v{W[i]}, v{L[i]}')
            for j in range(4): P(f'v_fmac_f32 v{8+j}, v{W[i]}, v{O(i,j)}')
        xrow_multi('v_add_f32', ['v14', 'v8', 'v9', 'v10', 'v11'], [f'v{B+2}', f'v{B+3}', f'v{B+6}', f'v{B+7}', f'v{B+11}'])
        P('v_rcp_f32 v14, v14')
        for j in range(4): P(f'v_mul_f32 v{8+j}, v{8+j}, v14')
        for j in range(4): P(f'v_cvt_pk_bf16_f32 v{8+j}, v{8+j}, v{8+j}')
    if cfg.h3_local:
        l = P.lbl('Lhl'); ok = P.lbl('Lhl'); far = P.lbl('Lhl')
        for i in range(4): P(f's_add_u32 s{48+i}, s{48+i}, {H3L - H3}')
        P(f's_mov_b32 s64, {cfg.local_tries}')
        P(f'{l}:')
        for x in h3_loads(16): P(x)
        P('s_waitcnt vmcnt(0)')
        h3_check(16)
        P(f"""
        s_cbranch_vccz {ok}
        s_sub_u32 s64, s64, 1
        s_cbranch_scc0 {l}
        """)
        for i in range(4): P(f's_sub_u32 s{48+i}, s{48+i}, {H3L - H3}')
        poll(h3_loads(16), lambda: h3_check(16))
        P(f'{ok}:')
        if cfg.debug: P(f's_sub_u32 s82, {cfg.local_tries}, s64')
        h3_post(16)
    else:
        poll(h3_loads(16), lambda: h3_check(16))
        if cfg.debug: P('s_sub_u32 s82, 0x8000, s64')
        h3_post(16)
    stamp(4)
    P(f"""
    s_and_b32 exec_lo, exec_lo, 0xffff
    s_mov_b32 exec_hi, 0
    ds_write_b128 v119, v[8:11] offset:{L_XA}
    s_mov_b64 exec, -1
    s_cmp_ge_u32 s55, 72
    s_cselect_b32 s65, 1, 0
    s_lshl_b32 s56, s55, 6              ; rho*64
    s_add_u32 s48, s56, {XP}
    """)
    for i in range(1, 7): P(f's_add_u32 s{48+i}, s{47+i}, {16*PS}')
    P(f"""
    s_lshl_b32 s57, s55, 6
    s_add_u32 s58, s57, {MODF}
    v_lshlrev_b32 v117, 16, v117
    s_waitcnt lgkmcnt(0)
    s_barrier
    """)
    stamp(5)
    P(f"""
    s_cmp_lg_u32 s65, 0
    s_cbranch_scc1 L_exit
    """)
    def red_loads(n):
        def f(B):
            return [f'buffer_load_dwordx4 v[{B+4*n}:{B+4*n+3}], v114, s[44:47], s58 offen sc1'] + \
                   [f'buffer_load_dwordx4 v[{B+4*i}:{B+4*i+3}], v115, s[44:47], s{48+i} offen sc1' for i in range(n)]
        return f
    def red_check(n):
        def f(B):
            bases = [B+4*i for i in range(n+1)]
            if n + 1 <= 8: check_g(bases)()
            else:
                check_g(bases[:5])()
                P('s_mov_b64 s[62:63], vcc')
                check_g(bases[5:])()
                P('s_or_b64 vcc, vcc, s[62:63]')
        return f
    def xp_post(B):
        reduce4(0, 1, 7, B)
        rne_many([B, B+1])
        for j in range(2): P(f'v_mul_f32 v{B+j}, v{B+j}, v{B+28+j}')
        rne_many([B, B+1])
        for j in range(2): P(f'v_add_f32 v{120+j}, v{B+j}, v{116+j}')
        rne_many([120, 121])
    if cfg.pipe: poll2(red_loads(7), red_check(7), xp_post, 16, 48, 8)
    else:
        poll(red_loads(7)(16), lambda: red_check(7)(16))
        if cfg.debug: P('s_sub_u32 s84, 0x8000, s64')
        xp_post(16)
    P(f"""
    s_add_u32 s59, s57, {X2}
    s_mov_b64 exec, 0xffffffff
    buffer_store_dwordx4 v[120:123], v118, s[44:47], s59 offen sc1
    s_mov_b64 exec, -1
    """)
    stamp(6)
    P(f's_add_u32 s48, s56, {FP}')
    for i in range(1, 9): P(f's_add_u32 s{48+i}, s{47+i}, {16*PS}')
    P(f's_add_u32 s58, s57, {MODF+864*16}')
    srd(40, 30, 1152)
    def fp_post(B):
        reduce4(0, 1, 9, B)
        rne_many([B, B+1])
        for j in range(2): P(f'v_mul_f32 v{B+j}, v{B+j}, v{B+36+j}')
        rne_many([B, B+1])
        for j in range(2): P(f'v_add_f32 v{8+j}, v{B+j}, v{120+j}')
        for j in range(2): P(f'v_cvt_pk_bf16_f32 v{8+j}, v{8+j}, v{8+j}')
    if cfg.pipe: poll2(red_loads(9), red_check(9), fp_post, 24, 64, 10)
    else:
        poll(red_loads(9)(24), lambda: red_check(9)(24))
        if cfg.debug: P('s_sub_u32 s86, 0x8000, s64')
        fp_post(24)
    P(f"""
    s_mov_b64 exec, 0xf
    buffer_store_short v8, v113, s[40:43], 0 offen
    buffer_store_short v9, v113, s[40:43], 0 offen offset:16
    s_mov_b64 exec, -1
    """)
    stamp(7)
    P(f"""
    s_mul_i32 s55, s4, 7
    s_add_u32 s55, s55, s5
    s_cmp_lg_u32 s55, 0
    s_cbranch_scc1 L_exit
    v_mov_b32 v4, {EPOCH}
    v_mov_b32 v8, s6
    v_mov_b32 v9, s7
    s_mov_b64 exec, 1
    buffer_store_dwordx2 v[8:9], v4, s[44:47], 0 offen sc1
    s_mov_b64 exec, -1
    """)
    end_wave()

def commF_role():
    P('L_commF:')
    role(6)
    P('s_setprio 3')
    SB, CB, XA = 32, 52, 72
    P(f"""
    v_lshlrev_b32 v4, 4, v1             ; granule l
    v_and_b32 v5, 31, v1
    v_lshlrev_b32 v5, 4, v5
    s_mov_b32 s56, {MODF+288*16}
    s_mov_b32 s57, {MODF+576*16}
    s_add_u32 s58, s56, 4096
    s_add_u32 s59, s57, 4096
    s_and_b32 s52, s2, 7
    s_mul_i32 s52, s52, {X2S}
    s_add_u32 s52, s52, {X2}
    s_add_u32 s53, s52, 4096
    v_cmp_gt_u32 s[54:55], 32, v1
    """)
    lds_wait(FL_PUB, 1, sleep=1)
    def gl(base, sreg, sreg2):
        return [f'buffer_load_dwordx4 v[{base+4*n}:{base+4*n+3}], v4, s[44:47], {sreg} offen offset:{1024*n} sc1' for n in range(4)] + \
               [f'buffer_load_dwordx4 v[{base+16}:{base+19}], v5, s[44:47], {sreg2} offen sc1']
    def chk():
        check_g([SB+4*n for n in range(5)])()
        P('s_mov_b64 s[62:63], vcc')
        check_g([CB+4*n for n in range(5)])()
        P('s_or_b64 vcc, vcc, s[62:63]')
    poll(gl(SB, 's56', 's58') + gl(CB, 's57', 's59'), chk)
    cbv = [CB+4*n+j for n in range(5) for j in range(2)]
    sbv = [SB+4*n+j for n in range(5) for j in range(2)]
    xav = [XA+4*n+j for n in range(5) for j in range(2)]
    for r in cbv: P(f'v_add_f32 v{r}, 1.0, v{r}')
    rne_many(cbv)
    P('v_lshlrev_b32 v6, 2, v1')
    def x2_post(B):
        xv = [B+4*n+j for n in range(5) for j in range(2)]
        for r in xv[8:]: P(f'v_cndmask_b32 v{r}, 0, v{r}, s[54:55]')
        ln_stats(xv, 'v112', 'v113', 'v114', 'v115', maskfix=(xv[8:], 's[54:55]'))
        for r in xv: P(f'v_sub_f32 v{r}, v{r}, v112')
        rne_many(xv)
        for r in xv: P(f'v_mul_f32 v{r}, v{r}, v113')
        rne_many(xv)
        for r, c in zip(xv, cbv): P(f'v_mul_f32 v{r}, v{r}, v{c}')
        rne_many(xv)
        for r, c in zip(xv, sbv): P(f'v_add_f32 v{r}, v{r}, v{c}')
        for n in range(5): P(f'v_cvt_pk_bf16_f32 v{B+4*n}, v{B+4*n}, v{B+4*n+1}')
        for n in range(4): P(f'ds_write_b32 v6, v{B+4*n} offset:{L_XS+256*n}')
        P(f"""
        s_mov_b64 exec, 0xffffffff
        ds_write_b32 v6, v{B+16} offset:{L_XS+1024}
        s_mov_b64 exec, -1
        """)
    if cfg.pipe: poll2(lambda B: gl(B, 's52', 's53'), lambda B: check_g([B+4*n for n in range(5)])(), x2_post, 72, 92, 5)
    else:
        poll(gl(72, 's52', 's53'), check_g([72+4*n for n in range(5)])); x2_post(72)
    stamp(7)
    P(f"""
    s_bfe_u32 s54, s2, 0x10003
    s_xor_b32 s55, s54, 1
    s_lshl_b32 s55, s55, 7
    v_and_b32 v8, 31, v1
    v_lshlrev_b32 v8, 2, v8
    v_add_u32 v8, s55, v8
    s_mul_i32 s56, s4, 9
    s_add_u32 s56, s56, s5
    s_sub_u32 s56, s56, 7             ; phi
    s_lshl_b32 s56, s56, 8
    s_add_u32 s57, s56, {GXL}
    s_add_u32 s56, s56, {GX}
    v_lshrrev_b32 v9, 1, v1
    v_lshlrev_b32 v9, 4, v9
    v_mov_b32 v18, s6
    v_mov_b32 v19, s7
    s_waitcnt lgkmcnt(0)
    s_barrier
    s_barrier
    ds_read_b32 v16, v8 offset:{L_RED3}
    ds_read_b32 v17, v8 offset:{L_RED3+256}
    ds_read_b32 v20, v8 offset:{L_RED3+512}
    ds_read_b32 v21, v8 offset:{L_RED3+768}
    s_waitcnt lgkmcnt(0)
    v_add_f32 v16, v16, v17
    v_add_f32 v20, v20, v21
    v_add_f32 v16, v16, v20
    """)
    rne('v16', 'v16')
    P(f"""
    v_mov_b32_dpp v17, v16 quad_perm:[1,0,3,2] {DPPM}
    s_mov_b64 exec, 0x55555555
    buffer_store_dwordx4 v[16:19], v9, s[44:47], s57 offen
    buffer_store_dwordx4 v[16:19], v9, s[44:47], s56 offen sc1
    s_mov_b64 exec, -1
    """)
    end_wave()

def gu_role(nkv):
    RAW = 32
    P('L_gu:')
    role(7)
    if cfg.pf_gu:
        P('s_cmp_lg_u32 s3, 1\ns_cbranch_scc1 L_gu_nopf')
        prefetch_code()
        P('L_gu_nopf:')
    P('s_barrier')
    tag_ready()
    q_fetch('L_gu2')
    P('L_gu2:')
    stamp(5)
    P(f"""
    s_sub_u32 s53, s3, 1              ; i
    s_bfe_u32 s54, s2, 0x10003        ; type
    s_cmp_eq_u32 s54, 0
    s_cselect_b32 s36, s20, s22
    s_cselect_b32 s37, s21, s23
    s_mov_b32 s38, {576*9216}
    s_mov_b32 s39, 0x20000
    s_and_b32 s56, s2, 7
    s_mul_i32 s56, s56, 9
    s_add_u32 s56, s56, s5
    s_sub_u32 s56, s56, 7             ; j
    s_lshl_b32 s56, s56, 7
    s_mul_i32 s55, s53, 5
    s_lshl_b32 s57, s53, 2
    s_add_u32 s57, s57, 2
    s_cmp_lt_u32 s53, 2
    s_cselect_b32 s55, s55, s57       ; t0
    s_mul_i32 s57, s55, {32*9216}
    s_add_u32 s56, s56, s57
    v_mul_u32_u24 v4, {2*9216}, v3
    v_lshl_add_u32 v4, v2, 3, v4
    s_mov_b32 s58, 0x05040100
    s_mov_b32 s59, 0x07060302
    s_lshl_b32 s57, s55, 6
    v_lshlrev_b32 v5, 4, v3
    v_add_u32 v5, s57, v5
    s_lshl_b32 s57, s53, 8
    v_lshlrev_b32 v13, 4, v2
    v_add_u32 v13, s57, v13
    """)
    if cfg.gu_gate == 'pub': lds_wait(FL_PUB, 1, sleep=2)
    else: lds_wait(C_KVI, nkv, sleep=2)
    stamp(1)
    def loads(u):
        for j in range(8):
            off = (32*u + 8*(j & 3) + (j >> 2)) * 9216
            P(f's_add_u32 s57, s56, {off}')
            r = RAW + 16*u + 2*j
            P(f'buffer_load_dwordx2 v[{r}:{r+1}], v4, s[36:39], s57 offen nt')
    def perm(u):
        src = RAW + 16*u
        dst = src - 16
        for i in range(4):
            a0, a1 = src + 4*i, src + 4*i + 2
            P(f'v_perm_b32 v{dst+i}, v{a1}, v{a0}, s58')
            P(f'v_perm_b32 v{dst+4+i}, v{a1}, v{a0}, s59')
            P(f'v_perm_b32 v{dst+8+i}, v{a1+1}, v{a0+1}, s58')
            P(f'v_perm_b32 v{dst+12+i}, v{a1+1}, v{a0+1}, s59')
    def body(n, sfx):
        for u in range(n):
            if cfg.gu_dyn and u > 0:
                l = P.lbl('Lgd')
                P(f"""
                v_mov_b32 v7, 0
                ds_read_b32 v6, v7 offset:{FL_PUB}
                s_waitcnt lgkmcnt(0)
                v_readfirstlane_b32 s60, v6
                s_cmp_lg_u32 s60, 0
                s_cbranch_scc1 {l}
                s_waitcnt vmcnt({cfg.gu_dyn})
                {l}:
                """)
            loads(u)
        for u in range(n):
            P(f's_waitcnt vmcnt({8*(n-1-u)})')
            perm(u)
        stamp(2)
        P('s_barrier')
        stamp(3)
        AF = [96 + 4*u for u in range(n)]
        D = [116, 120, 124, 8]
        for u in range(n): P(f'ds_read_b128 v[{AF[u]}:{AF[u]+3}], v5 offset:{L_XS+64*u}')
        for u in range(n):
            P(f's_waitcnt lgkmcnt({n-1-u})')
            f0 = RAW - 16 + 16*u
            for q in range(4):
                c = '0' if u == 0 else f'v[{D[q]}:{D[q]+3}]'
                P(f'v_mfma_f32_16x16x32_bf16 v[{D[q]}:{D[q]+3}], v[{AF[u]}:{AF[u]+3}], v[{f0+4*q}:{f0+4*q+3}], {c}')
        P(f"""
        v_mov_b32 v16, v{D[0]}
        v_mov_b32 v17, v{D[1]}
        v_mov_b32 v18, v{D[2]}
        v_mov_b32 v19, v{D[3]}
        s_mov_b64 exec, 0xffff
        ds_write_b128 v13, v[16:19] offset:{L_RED3}
        s_mov_b64 exec, -1
        s_waitcnt lgkmcnt(0)
        s_barrier
        """)
        stamp(4)
        end_wave()
    P('s_cmp_ge_u32 s53, 2\ns_cbranch_scc1 L_gu_n4')
    body(5, 'a')
    P('L_gu_n4:')
    body(4, 'b')

def build():
    global CODE_PF
    CODE_PF = 4
    prologue()
    cF, cQ, cM = cfg.cF, cfg.cQ, cfg.cM
    assert 9*cF + 4*cQ + 3*cM == 256 and cF % 2 == 0 and cQ % 2 == 0 and cM % 2 == 0 and cF//2 >= 6 and cQ <= 12 and cM <= 12
    mod_role()
    wq_role()
    kv_role('L_kvF', cF//2, lambda: P(f's_sub_u32 s52, s5, 7\ns_mul_i32 s52, s52, {cF}\ns_add_u32 s52, s52, {3*cM+4*cQ}'), (C_GA, 4) if 0 else None, True, cfg.kF)
    kv_role('L_kvM', cM//2, lambda: P(f's_mul_i32 s52, s5, {cM}'), ((C_B2, 6) if cfg.m_order in ('a_b_kv_wo', 'a_wo_b_kv') else ((C_H, 1) if cfg.order2 else (C_WO, 3))), False, cfg.kM)
    kv_role('L_kvQ', cQ//2, lambda: P(f's_sub_u32 s52, s5, 3\ns_mul_i32 s52, s52, {cQ}\ns_add_u32 s52, s52, {3*cM}'), ((C_WO, 3) if cfg.q_order == 'wo_kv' else (C_G, 1)), False, cfg.kQ)
    wo_role('Q', cQ//2)
    wo_role('M', cM//2)
    wo_common()
    commA_role()
    gu_role(cF//2)
    down_role()
    commF_role()

    P('L_abort:')
    P('s_mov_b64 exec, -1')
    P('L_exit:')
    if cfg.debug:
        P(f"""
        s_waitcnt lgkmcnt(0)
        s_lshl_b32 s60, s2, 4
        s_add_u32 s60, s60, s3
        s_lshl_b32 s60, s60, 6
        s_add_u32 s60, s60, {DBG}
        s_memrealtime s[96:97]
        s_waitcnt lgkmcnt(0)
        v_mov_b32 v8, s96
        """)
        for i in range(8): P(f'v_writelane_b32 v8, s{80+2*i}, {i}')
        P(f"""
        v_and_b32 v1, 63, v0
        v_lshlrev_b32 v7, 2, v1
        s_mov_b64 exec, 0x1ff
        buffer_store_dword v8, v7, s[44:47], s60 offen
        """)
    if cfg.hdbg:
        SL = {(3, 3): 3, (2, 2): 4, (2, 4): 5, (1, 3): 6, (1, 5): 7, (1, 6): 8, (5, 4): 9, (5, 6): 10, (6, 7): 11, (8, 6): 12, (7, 2): 13, (5, 7): 14, (6, 3): 6, (6, 5): 7, (6, 6): 8, (8, 3): 6, (8, 5): 7, (4, 7): 15}
        P("""
        s_waitcnt lgkmcnt(0)
        s_memrealtime s[96:97]
        s_mov_b32 s68, s32
        s_mov_b32 s69, s33
        s_mov_b32 s70, 256
        s_mov_b32 s71, 0x20000
        s_mov_b64 exec, 1
        s_waitcnt lgkmcnt(0)
        v_mov_b32 v8, s96
        v_mov_b32 v9, 4
        buffer_atomic_umax v8, v9, s[68:71], 0 offen sc1
        s_not_b32 s96, s80
        v_mov_b32 v8, s96
        v_mov_b32 v9, 0
        buffer_atomic_umax v8, v9, s[68:71], 0 offen sc1
        v_mov_b32 v8, s80
        v_mov_b32 v9, 8
        buffer_atomic_umax v8, v9, s[68:71], 0 offen sc1
        """)
        for r in range(1, 9):
            l = P.lbl('Lhd')
            P(f's_cmp_lg_u32 s98, {r}')
            P(f's_cbranch_scc1 {l}')
            for (rr, k), slot in SL.items():
                if rr == r:
                    P(f'v_mov_b32 v8, s{80+2*k}')
                    P(f'v_mov_b32 v9, {4*slot}')
                    P('buffer_atomic_umax v8, v9, s[68:71], 0 offen sc1')
            P(f'{l}:')
    P('L_end:')
    P('s_endpgm')
    P('L_codeend:')
    P.finalize()
    body = P.text()
    return (HEADER_COMMENT +
f"""; @launch grid=(256,1,1) block=(1024,1,1) lds={LDS_BYTES}
.amdgcn_target "amdgcn-amd-amdhsa--gfx950"
.text
.globl {KN}
.p2align 8
.type {KN},@function
{KN}:
{body}
.section .rodata,"a"
.p2align 6
.amdhsa_kernel {KN}
  .amdhsa_next_free_vgpr 128
  .amdhsa_next_free_sgpr 102
  .amdhsa_accum_offset 128
  .amdhsa_group_segment_fixed_size 0
  .amdhsa_kernarg_size 112
  .amdhsa_user_sgpr_count 2
  .amdhsa_user_sgpr_kernarg_segment_ptr 1
  .amdhsa_system_sgpr_workgroup_id_x 1
.end_amdhsa_kernel
""")

if __name__ == '__main__':
    import argparse
    ap = argparse.ArgumentParser()
    ap.add_argument('-o', default='k.s')
    ap.add_argument('--debug', action='store_true')
    ap.add_argument('--tiles', default='22,4,14')
    ap.add_argument('--set', nargs='*', default=[])
    a = ap.parse_args()
    cfg.debug = a.debug
    cfg.cF, cfg.cQ, cfg.cM = map(int, a.tiles.split(','))
    for kv in a.set:
        k, v = kv.split('=')
        old = getattr(cfg, k)
        setattr(cfg, k, type(old)(int(v)) if isinstance(old, (bool, int)) else v)
    open(a.o, 'w').write(build())
```

```python
import sys, math, struct
from dsl import Prog
from asmlib import HEADER_COMMENT, KN

class Cfg:
    cF, cQ, cM = 22, 4, 14
    debug = False
    prefetch_code = True
    kF, kQ, kM = '0', '0', '0'
    gu_depth = 4
    gul = 0
    gu_gate = 'pub'
    k_first = True
    pre_barrier = 1
    wo_k = 4
    b_k = 4
    q_sleep = 4
    poll_sleep = 0
    kvonly = False
    tlbw = 0
    pf2 = 0
    pf_early = 16
    pf_gu = True
    h3_local = True
    local_tries = 200
    m_order = 'a_kv_wo_b'
    gu_dyn = 0
    q_order = 'kv_wo'
    order2 = True
    wq_first = False
    q_direct = True
    hdbg = False
    q_wo_gate = False
    q_wo_first = True
    stagger = 6
    pipe = True
    gu_early = 3
    b_on = 'M'
    m_gate_pub = False
cfg = Cfg()

EPOCH = 0x0
MODP = 0x1000
QF = 0x8000
MODF = 0x20000
X2 = 0x28000
X2S = 0x1400
H3 = 0x40000
H3S = 2560
XP = 0xE0000
FP = 0x160000
PS = 4608
H3L = 0x210000
GX = 0x2B0000
GXL = 0x2C0000
DBG = 0x300000
FL_Q, C_KVI, C_MAX, C_O, C_RED, C_H, C_G, FL_PUB, C_K, C_B, C_GA, C_B2, C_WO = 0, 4, 8, 12, 16, 20, 24, 28, 32, 36, 40, 44, 48
L_ZERO = 0x100
L_Q = 0x200
L_MX = 0x400
L_LS = 0x480
L_XS = 0x500
L_RED3 = 0xA00
L_XA = 0x1100
L_SLOT = 0x1200
L_OSLOT = 0x1200 + 18*1024
LDS_BYTES = 0x1200 + 30*1024
LOG2E = 0x3FB8AA3B
SCALE = 0x3DB504F3
GOLD0, GOLD1 = 0x7F4A7C15, 0x9E3779B9
def f32hex(x): return struct.unpack('<I', struct.pack('<f', x))[0]

P = Prog()
ABORT = 'L_abort'
DPPM = 'row_mask:0xf bank_mask:0xf'

def stamp(i):
    if cfg.debug or cfg.hdbg: P(f's_memrealtime s[{80+2*i}:{81+2*i}]')

def role(n):
    if cfg.hdbg: P(f's_mov_b32 s98, {n}')

def srd(base, ptr, nbytes):
    P(f"""
    s_mov_b32 s{base}, s{ptr}
    s_mov_b32 s{base+1}, s{ptr+1}
    s_mov_b32 s{base+2}, {nbytes}
    s_mov_b32 s{base+3}, 0x20000
    """)

def tag_ready():
    P(f"""
    s_waitcnt lgkmcnt(0)
    s_add_u32 s6, s6, {GOLD0:#x}
    s_add_u32 s7, s7, {GOLD1:#x}
    """)

def lds_wait(off, target, sleep=1):
    l = P.lbl('Lw'); d = P.lbl('Ld')
    P(f"""
    v_mov_b32 v7, 0
    s_mov_b32 s61, 0x400000
    {l}:
    ds_read_b32 v6, v7 offset:{off}
    s_waitcnt lgkmcnt(0)
    v_readfirstlane_b32 s60, v6
    s_cmp_ge_u32 s60, {target}
    s_cbranch_scc1 {d}
    s_sub_u32 s61, s61, 1
    s_cbranch_scc1 {ABORT}
    """)
    if sleep: P(f's_sleep {sleep}')
    P(f"""
    s_branch {l}
    {d}:
    """)

def lds_add(off):
    P(f"""
    v_mov_b32 v7, 0
    v_mov_b32 v6, 1
    s_mov_b64 s[62:63], exec
    s_mov_b64 exec, 1
    ds_add_u32 v7, v6 offset:{off}
    s_mov_b64 exec, s[62:63]
    """)

def lds_add_rtn(off, sdst):
    P(f"""
    v_mov_b32 v7, 0
    v_mov_b32 v6, 1
    s_mov_b64 s[62:63], exec
    s_mov_b64 exec, 1
    ds_add_rtn_u32 v6, v7, v6 offset:{off}
    s_waitcnt lgkmcnt(0)
    v_readfirstlane_b32 {sdst}, v6
    s_mov_b64 exec, s[62:63]
    """)

def rne(dst, src):
    P(f'v_cvt_pk_bf16_f32 {dst}, {src}, {src}')
    P(f'v_lshlrev_b32 {dst}, 16, {dst}')

def rne_many(regs):
    for r in regs: P(f'v_cvt_pk_bf16_f32 v{r}, v{r}, v{r}')
    for r in regs: P(f'v_lshlrev_b32 v{r}, 16, v{r}')

def xrow_multi(op, vs, ts):
    for sw in ('v_permlane16_swap_b32', 'v_permlane32_swap_b32'):
        for v, t in zip(vs, ts): P(f'v_mov_b32 {t}, {v}')
        for v, t in zip(vs, ts): P(f'{sw} {v}, {t}')
        for v, t in zip(vs, ts): P(f'{op} {v}, {v}, {t}')

def wave_sum(v, t):
    for d in ('quad_perm:[1,0,3,2]', 'quad_perm:[2,3,0,1]', 'row_half_mirror', 'row_mirror'):
        P(f'v_add_f32_dpp {v}, {v}, {v} {d} {DPPM}')
    xrow_multi('v_add_f32', [v], [t])

def masks(base):
    P(f"""
    v_and_b32 v6, 1, v2
    v_lshlrev_b32 v6, 4, v6
    v_mov_b32 v7, 0xffff
    v_lshlrev_b32 v7, v6, v7
    v_bfe_u32 v6, v2, 1, 2
    """)
    for i in range(4):
        P(f'v_cmp_eq_u32 vcc, {i}, v6')
        P(f'v_cndmask_b32 v{base+i}, 0, v7, vcc')

def diag_mm(acc, wregs, xregs, mk, qa, qb):
    n = len(wregs)
    def prep(t):
        q = (qa, qb)[t & 1]
        for i in range(4): P(f'v_and_b32 v{q+i}, {xregs[t]}, v{mk+i}')
    prep(0)
    for t in range(n):
        if t + 1 < n: prep(t + 1)
        q = (qa, qb)[t & 1]
        c = '0' if t == 0 else f'v[{acc}:{acc+3}]'
        P(f'v_mfma_f32_16x16x32_bf16 v[{acc}:{acc+3}], v[{wregs[t]}:{wregs[t]+3}], v[{q}:{q+3}], {c}')

def poll(loads, check):
    l = P.lbl('Lp'); l2 = P.lbl('Lp')
    P('s_mov_b32 s64, 0x8000')
    if cfg.poll_sleep:
        P(f's_branch {l2}')
        P(f'{l}:')
        P(f's_sleep {cfg.poll_sleep}')
        P(f'{l2}:')
    else:
        P(f'{l}:')
    for x in loads: P(x)
    P('s_waitcnt vmcnt(0)')
    check()
    P(f"""
    s_sub_u32 s64, s64, 1
    s_cbranch_scc1 {ABORT}
    s_cbranch_vccnz {l}
    """)


def poll2(mk_loads, mk_check, post, baseA, baseB, nloads):
    la = P.lbl('Lq'); lb = P.lbl('Lq'); ga = P.lbl('Lq'); gb = P.lbl('Lq'); done = P.lbl('Lq')
    P('s_mov_b32 s64, 0x8000')
    for x in mk_loads(baseA): P(x)
    P(f's_sleep {cfg.stagger}')
    P(f'{la}:')
    for x in mk_loads(baseB): P(x)
    P(f's_waitcnt vmcnt({nloads})')
    mk_check(baseA)
    P(f"""
    s_cbranch_vccz {ga}
    s_sub_u32 s64, s64, 1
    s_cbranch_scc1 {ABORT}
    """)
    for x in mk_loads(baseA): P(x)
    P(f's_waitcnt vmcnt({nloads})')
    mk_check(baseB)
    P(f"""
    s_cbranch_vccz {gb}
    s_branch {la}
    """)
    P(f'{gb}:')
    post(baseB)
    P(f's_branch {done}')
    P(f'{ga}:')
    post(baseA)
    P(f'{done}:')

def check_g(bases):
    def f():
        n = len(bases)
        assert n <= 8 + 5
        prs = [66 + 2*i for i in range(7)] + [96, 98]
        assert n <= len(prs) + 1
        for i, b in enumerate(bases):
            dst = 'vcc' if i == n - 1 else f's[{prs[i]}:{prs[i]+1}]'
            P(f'v_cmp_ne_u64 {dst}, s[6:7], v[{b+2}:{b+3}]')
        for i in range(n - 1):
            P(f's_or_b64 vcc, vcc, s[{prs[i]}:{prs[i]+1}]')
    return f

def check_tags32(regs, t='v6', t2='v7'):
    def f():
        rs = list(regs)
        P(f'v_xor_b32 {t}, s7, v{rs[0]}')
        for r in rs[1:]:
            P(f'v_xor_b32 {t2}, s7, v{r}')
            P(f'v_or_b32 {t}, {t}, {t2}')
        P(f'v_cmp_ne_u32 vcc, 0, {t}')
    return f

def end_wave(): P('s_branch L_exit')

def make_granules(G, ACC):
    P(f'v_mov_b32 v{G}, v{ACC}')
    P(f'v_mov_b32 v{G+1}, v{ACC+1}')
    P(f'v_mov_b32 v{G+4}, v{ACC+2}')
    P(f'v_mov_b32 v{G+5}, v{ACC+3}')
def tag_fill(G):
    for o in (2, 6):
        P(f'v_mov_b32 v{G+o}, s6')
        P(f'v_mov_b32 v{G+o+1}, s7')

def prologue():
    P(f"""
    s_cmp_ge_u32 s2, 256
    s_cbranch_scc1 L_end
    s_load_dwordx16 s[8:23], s[0:1], 0
    s_load_dwordx8 s[24:31], s[0:1], 64
    s_load_dwordx4 s[32:35], s[0:1], 96
    """)
    if cfg.prefetch_code and cfg.pf_early:
        P(f"""
        s_cmp_ge_u32 s2, {cfg.pf_early}
        s_cbranch_scc1 L_nopf0
        v_lshrrev_b32 v4, 6, v0
        v_cmp_ne_u32 vcc, 10, v4
        s_cbranch_vccnz L_nopf0
        v_and_b32 v1, 63, v0
        """)
        prefetch_code('0', 124)
        P('L_nopf0:')
    if cfg.hdbg:
        for i in range(1, 8): P(f's_mov_b32 s{80+2*i}, 0')
        P('s_mov_b32 s98, 0')
    stamp(0)
    P(f"""
    v_lshrrev_b32 v4, 6, v0
    v_and_b32 v1, 63, v0
    v_and_b32 v2, 15, v1
    v_readfirstlane_b32 s3, v4
    v_lshrrev_b32 v3, 4, v1
    s_and_b32 s4, s2, 7
    s_lshl_b32 s4, s4, 1
    s_bfe_u32 s5, s2, 0x10003
    s_add_u32 s4, s4, s5
    s_lshr_b32 s5, s2, 4
    s_cmp_lg_u32 s3, 0
    s_cbranch_scc1 L_nozero
    v_lshlrev_b32 v4, 2, v1
    v_mov_b32 v5, 0
    ds_write_b32 v4, v5
    ds_write_b32 v4, v5 offset:256
    ds_write_b32 v4, v5 offset:{L_XA}
    L_nozero:
    s_waitcnt lgkmcnt(0)
    s_load_dwordx2 s[6:7], s[34:35], 0
    """)
    srd(44, 34, 0x40000000)
    nkF, nkQ, nkM = cfg.cF//2, cfg.cQ//2, cfg.cM//2
    if cfg.kvonly:
        P(f"""
        s_cmp_lt_u32 s5, 3
        s_cselect_b32 s60, {16-nkM}, {16-nkQ}
        s_cmp_ge_u32 s5, 7
        s_cselect_b32 s60, {16-nkF}, s60
        s_cmp_ge_u32 s3, s60
        s_cbranch_scc1 L_kvgo
        s_barrier
        s_branch L_end
        L_kvgo:
        """)
    P(f"""
    s_cmp_lt_u32 s5, 3
    s_cbranch_scc1 L_classM
    s_cmp_lt_u32 s5, 7
    s_cbranch_scc1 L_classQ
    s_cmp_eq_u32 s3, 0
    s_cbranch_scc1 L_kvF0
    s_cmp_le_u32 s3, 4
    s_cbranch_scc1 L_gu
    s_cmp_ge_u32 s3, {16-min(nkF, 11)}
    s_cbranch_scc1 L_kvF
    s_branch L_idle
    L_classQ:
    s_cmp_ge_u32 s3, {16-nkQ}
    s_cbranch_scc1 L_kvQ
    s_cmp_eq_u32 s3, 0
    s_cbranch_scc1 L_commA
    s_cmp_le_u32 s3, 6
    s_cbranch_scc1 L_wq
    s_cmp_le_u32 s3, 9
    s_cbranch_scc1 L_woQ
    s_branch L_idle
    L_classM:
    s_cmp_ge_u32 s3, {16-nkM}
    s_cbranch_scc1 L_kvM
    s_cmp_eq_u32 s3, 0
    s_cbranch_scc1 L_commA
    s_cmp_le_u32 s3, 6
    s_cbranch_scc1 L_mod
    s_cmp_le_u32 s3, 9
    s_cbranch_scc1 L_woM
    L_idle:
    """)
    if cfg.tlbw:
        P(f's_cmp_ge_u32 s2, {cfg.tlbw}\ns_cbranch_scc1 L_idle2\ns_cmp_lg_u32 s3, 10\ns_cbranch_scc1 L_idle2')
        tlb_warm()
        P('L_idle2:')
    P("""
    s_barrier
    s_waitcnt vmcnt(0)
    s_branch L_end
    """)

def kv_role(name, nkv, tile_expr, gate, is_f, kinf='0'):
    K0, V0, QF_, SD, TT, ACC, MK = 32, 64, 96, 24, 28, 96, 8
    if is_f:
        P('L_kvF0:')
        if nkv == 12:
            P('s_mov_b32 s53, 11')
            P('s_branch L_kvFgo')
        else:
            P('s_branch L_idle')
        P(f'{name}:')
        P(f's_sub_u32 s53, s3, {16-min(nkv, 11)}')
        P('L_kvFgo:')
    else:
        P(f'{name}:')
        P(f's_sub_u32 s53, s3, {16-nkv}')
    role(1)
    tile_expr()
    P(f"""
    s_lshl_b32 s54, s53, 1
    s_add_u32 s52, s52, s54
    s_lshl_b32 s52, s52, 12
    s_lshl_b32 s54, s4, 24
    s_add_u32 s52, s52, s54
    s_add_u32 s52, s52, {61440*256}
    s_add_u32 s55, s52, 4096
    """)
    srd(36, 10, 0x10000000)
    srd(40, 12, 0x10000000)
    P(f"""
    v_and_b32 v4, 7, v1
    v_lshlrev_b32 v4, 8, v4
    v_lshrrev_b32 v5, 3, v1
    v_lshl_add_u32 v4, v5, 4, v4          ; K: (l&7)*256 + (l>>3)*16
    v_lshlrev_b32 v5, 10, v3
    v_lshl_add_u32 v5, v2, 4, v5          ; V: gq*1024 + m*16
    """)
    if cfg.kvonly: gate = None
    if gate:
        P('s_barrier')
        lds_wait(gate[0], gate[1], sleep=2)
    stamp(1)
    st = {'n': 0}
    lim = lambda i: int(kinf[min(i, len(kinf)-1)], 16)
    def issue(r, vo, srdr, sreg, off):
        n = st['n']
        if not gate and n == cfg.pre_barrier: P('s_barrier')
        k = lim(n)
        if k and n >= k: P(f's_waitcnt vmcnt({k-1})')
        P(f'buffer_load_dwordx4 v[{r}:{r+3}], {vo}, s[{srdr}:{srdr+3}], {sreg} offen offset:{off} nt')
        st['n'] += 1
    for u in range(4):
        for hh in range(2):
            issue(K0 + 4*(2*u+hh), 'v4', 36, 's52' if u < 2 else 's55', (u & 1)*2048 + hh*128)
    if cfg.k_first:
        lds_add(C_K)
        lds_wait(C_K, nkv, sleep=1)
    for t in range(2):
        for r_ in range(4):
            issue(V0 + 16*t + 4*r_, 'v5', 40, 's52' if t == 0 else 's55', 256*r_)
    lds_add(C_KVI)
    stamp(2)
    if cfg.kvonly:
        P('s_waitcnt vmcnt(8)'); stamp(4)
        P('s_waitcnt vmcnt(0)'); stamp(5)
        end_wave(); return
    masks(MK)
    P(f"""
    v_bfe_u32 v12, v2, 2, 1
    v_lshlrev_b32 v22, 2, v12
    v_lshlrev_b32 v12, 8, v12
    v_lshrrev_b32 v13, 3, v2
    v_lshl_add_u32 v13, v3, 1, v13        ; 2g + par
    v_lshl_add_u32 v12, v13, 4, v12
    v_add_u32 v12, {L_Q}, v12
    v_and_b32 v13, 3, v2
    v_mov_b32 v14, {L_ZERO}
    """)
    for u in range(4):
        P(f'v_cmp_eq_u32 vcc, {u}, v13')
        P(f'v_cndmask_b32 v{16+u}, v14, v12, vcc')
    P(f"""
    v_and_b32 v12, 1, v3
    v_lshlrev_b32 v12, 4, v12
    v_lshrrev_b32 v13, 3, v2
    v_lshl_add_u32 v12, v13, 2, v12
    v_lshrrev_b32 v13, 1, v3
    v_add_u32 v12, v12, v13
    v_lshlrev_b32 v20, 2, v12
    v_add_u32 v21, 8, v20
    """)
    tag_ready()
    lds_wait(FL_Q, 4, sleep=2)
    stamp(3)
    P('s_waitcnt vmcnt(16)')
    for u in range(4):
        for hh in range(2):
            r = QF_ + 4*(2*u+hh)
            P(f'ds_read_b128 v[{r}:{r+3}], v{16+u} offset:{128*hh}')
    P('s_waitcnt vmcnt(8)')
    stamp(4)
    for i in range(8):
        P(f's_waitcnt lgkmcnt({7-i})')
        c = '0' if i == 0 else f'v[{SD}:{SD+3}]'
        P(f'v_mfma_f32_16x16x32_bf16 v[{SD}:{SD+3}], v[{K0+4*i}:{K0+4*i+3}], v[{QF_+4*i}:{QF_+4*i+3}], {c}')
    for j in range(4): P(f'v_mov_b32 v{TT+j}, v{SD+j}')
    for j in range(4): P(f'v_permlane32_swap_b32 v{SD+j}, v{TT+j}')
    for j in range(4): P(f'v_add_f32_dpp v{SD+j}, v{TT+j}, v{SD+j} row_shl:8 {DPPM}')
    P(f's_mov_b32 s56, {SCALE:#x}')
    P(f's_mov_b32 s57, 0xffff0000')
    P(f's_mov_b32 s58, {LOG2E:#x}')
    for rep in range(2):
        for p in range(2): P(f'v_cvt_pk_bf16_f32 v{TT+p}, v{SD+2*p}, v{SD+2*p+1}')
        for p in range(2):
            P(f'v_lshlrev_b32 v{SD+2*p}, 16, v{TT+p}')
            P(f'v_and_b32 v{SD+2*p+1}, s57, v{TT+p}')
        if rep == 0:
            for i in range(4): P(f'v_mul_f32 v{SD+i}, s56, v{SD+i}')
    P(f"""
    v_max3_f32 v12, v{SD}, v{SD+1}, v{SD+2}
    v_max_f32 v12, v12, v{SD+3}
    v_max_f32_dpp v12, v12, v12 quad_perm:[1,0,3,2] {DPPM}
    v_max_f32_dpp v12, v12, v12 quad_perm:[2,3,0,1] {DPPM}
    v_mov_b32 v13, v12
    v_permlane16_swap_b32 v12, v13
    v_max_f32 v12, v12, v13
    s_lshl_b32 s59, s53, 3
    v_add_u32 v23, s59, v22
    s_mov_b64 s[62:63], exec
    s_mov_b64 exec, 0x11
    ds_write_b32 v23, v12 offset:{L_MX}
    s_mov_b64 exec, s[62:63]
    """)
    lds_add(C_MAX)
    lds_wait(C_MAX, nkv, sleep=0)
    for i in range(nkv): P(f'ds_read_b32 v{K0+i}, v22 offset:{L_MX+8*i}')
    P('s_waitcnt lgkmcnt(0)')
    MX = 15
    P(f'v_mov_b32 v{MX}, v{K0}')
    i = 1
    while i < nkv:
        if i + 1 < nkv: P(f'v_max3_f32 v{MX}, v{MX}, v{K0+i}, v{K0+i+1}'); i += 2
        else: P(f'v_max_f32 v{MX}, v{MX}, v{K0+i}'); i += 1
    P(f'v_mul_f32 v13, s58, v{MX}')
    for i in range(4): P(f'v_fma_f32 v{SD+i}, v{SD+i}, s58, -v13')
    for i in range(4): P(f'v_exp_f32 v{SD+i}, v{SD+i}')
    P(f"""
    v_add_f32 v12, v{SD}, v{SD+1}
    v_add_f32 v13, v{SD+2}, v{SD+3}
    """)
    for i in range(4): P(f'v_cvt_pk_bf16_f32 v{SD+i}, v{SD+i}, v{SD+i}')
    P('v_add_f32 v12, v12, v13')
    G = 104
    for t in range(2):
        for r_ in range(4): P(f'ds_bpermute_b32 v{G+4*t+r_}, v{20+t}, v{SD+r_}')
    P(f"""
    v_add_f32_dpp v12, v12, v12 quad_perm:[1,0,3,2] {DPPM}
    v_add_f32_dpp v12, v12, v12 quad_perm:[2,3,0,1] {DPPM}
    v_mov_b32 v13, v12
    v_permlane16_swap_b32 v12, v13
    v_add_f32 v12, v12, v13
    s_mov_b64 s[62:63], exec
    s_mov_b64 exec, 0x11
    ds_write_b32 v23, v12 offset:{L_LS}
    s_mov_b64 exec, s[62:63]
    s_waitcnt lgkmcnt(1)
    """)
    for i in range(8):
        for j in range(4): P(f'v_and_b32 v{K0+4*i+j}, v{G+i}, v{MK+j}')
    GR = 112
    tag_fill(GR)
    P(f'v_mov_b32 v122, s6\nv_mov_b32 v123, s7')
    P('s_waitcnt vmcnt(0)')
    stamp(5)
    for i in range(8):
        c = '0' if i == 0 else f'v[{ACC}:{ACC+3}]'
        P(f'v_mfma_f32_16x16x32_bf16 v[{ACC}:{ACC+3}], v[{V0+4*i}:{V0+4*i+3}], v[{K0+4*i}:{K0+4*i+3}], {c}')
    P(f"""
    s_lshl_b32 s59, s53, 10
    v_lshlrev_b32 v16, 4, v1
    v_add_u32 v17, s59, v16
    ds_write_b128 v17, v[{ACC}:{ACC+3}] offset:{L_OSLOT}
    """)
    lds_add_rtn(C_O, 's60')
    ldone = P.lbl('Lkvdone')
    P(f"""
    s_cmp_lg_u32 s60, {nkv-1}
    s_cbranch_scc1 {ldone}
    """)
    P('v_lshlrev_b32 v18, 3, v1')
    for i in range(nkv):
        P(f'ds_read_b64 v[{K0+4*i}:{K0+4*i+1}], v18 offset:{L_OSLOT+1024*i}')
        P(f'ds_read_b64 v[{K0+4*i+2}:{K0+4*i+3}], v18 offset:{L_OSLOT+1024*i+512}')
    LS0 = 100
    for i in range(nkv): P(f'ds_read_b32 v{LS0+i}, v22 offset:{L_LS+8*i}')
    P(f"""
    s_lshl_b32 s59, s4, 4
    s_add_u32 s59, s59, s5
    s_mul_i32 s59, s59, {H3S}
    s_add_u32 s59, s59, {H3}
    s_waitcnt lgkmcnt(0)
    """)
    regs = list(range(nkv))
    while len(regs) > 1:
        nxt = []
        for a in range(0, len(regs) - 1, 2):
            x, y = regs[a], regs[a+1]
            for j in range(4): P(f'v_add_f32 v{K0+4*x+j}, v{K0+4*x+j}, v{K0+4*y+j}')
            P(f'v_add_f32 v{LS0+x}, v{LS0+x}, v{LS0+y}')
            nxt.append(x)
        if len(regs) % 2: nxt.append(regs[-1])
        regs = nxt
    make_granules(GR, K0)
    P(f"""
    v_mov_b32 v120, v{MX}
    v_mov_b32 v121, v{LS0}
    """)
    if cfg.h3_local:
        P(f"""
        s_add_u32 s65, s59, {H3L - H3}
        buffer_store_dwordx4 v[{GR}:{GR+3}], v16, s[44:47], s65 offen
        buffer_store_dwordx4 v[{GR+4}:{GR+7}], v16, s[44:47], s65 offen offset:1024
        s_mov_b64 exec, 0xff
        buffer_store_dwordx4 v[120:123], v16, s[44:47], s65 offen offset:2048
        s_mov_b64 exec, -1
        """)
    P(f"""
    buffer_store_dwordx4 v[{GR}:{GR+3}], v16, s[44:47], s59 offen sc1
    buffer_store_dwordx4 v[{GR+4}:{GR+7}], v16, s[44:47], s59 offen offset:1024 sc1
    s_mov_b64 exec, 0xff
    buffer_store_dwordx4 v[120:123], v16, s[44:47], s59 offen offset:2048 sc1
    s_mov_b64 exec, -1
    """)
    lds_add(FL_PUB)
    stamp(6)
    P(f'{ldone}:')
    if is_f:
        P(f"""
        s_cmp_lt_u32 s53, 5
        s_cbranch_scc1 L_down
        s_cmp_eq_u32 s53, 5
        s_cbranch_scc1 L_commF
        s_branch L_exit
        """)
    else:
        end_wave()

def pack_pair(G, ACC):
    P(f'v_mov_b32 v{G}, v{ACC}')
    P(f'v_mov_b32 v{G+1}, v{ACC+1}')
    P(f'v_mov_b32_dpp v{G}, v{ACC+2} row_shr:8 row_mask:0xf bank_mask:0xc')
    P(f'v_mov_b32_dpp v{G+1}, v{ACC+3} row_shr:8 row_mask:0xf bank_mask:0xc')

def store_addr():
    P(f"""
    v_and_b32 v12, 7, v2
    v_lshl_add_u32 v12, v3, 3, v12
    v_lshlrev_b32 v12, 5, v12
    v_lshrrev_b32 v6, 3, v2
    v_lshl_add_u32 v12, v6, 4, v12
    """)

def tag_fill1(G):
    P(f'v_mov_b32 v{G+2}, s6')
    P(f'v_mov_b32 v{G+3}, s7')

def store_block(sb, ACC, G):
    pack_pair(G, ACC)
    P(f"""
    s_lshl_b32 s60, {sb}, 10
    s_add_u32 s59, s59, s60
    buffer_store_dwordx4 v[{G}:{G+3}], v12, s[44:47], s59 offen sc1
    """)

def store_half(ACC, G):
    T = G + 4
    for j in range(4): P(f'v_mov_b32 v{T+j}, v{ACC+j}')
    for j in range(4): P(f'v_permlane32_swap_b32 v{ACC+j}, v{T+j}')
    for j in range(4): P(f'v_add_f32_dpp v{ACC+j}, v{T+j}, v{ACC+j} row_shl:8 {DPPM}')
    pack_pair(G, ACC)
    P(f"""
    s_add_u32 s59, s59, 4096
    s_mov_b64 s[62:63], exec
    s_mov_b64 exec, 0xffffffff
    buffer_store_dwordx4 v[{G}:{G+3}], v12, s[44:47], s59 offen sc1
    s_mov_b64 exec, s[62:63]
    """)

def down_role():
    W0, MK, XS, ACC, QA, QB, G = 32, 8, 64, 72, 76, 80, 84
    P('L_down:')
    role(8)
    lds_wait(FL_PUB, 1, sleep=1)
    srd(36, 24, 4608*1152)
    P(f"""
    s_mul_i32 s54, s4, 9
    s_add_u32 s54, s54, s5
    s_sub_u32 s54, s54, 7             ; phi
    s_and_b32 s55, s2, 7
    s_mul_i32 s55, s55, 9
    s_add_u32 s55, s55, s5
    s_sub_u32 s55, s55, 7             ; j
    s_lshl_b32 s55, s55, 1
    s_bfe_u32 s66, s2, 0x10003        ; type
    s_add_u32 s55, s55, s66           ; 2j + type
    s_mul_i32 s55, s55, {32*1152}
    s_cmp_eq_u32 s53, 4
    s_cbranch_scc1 L_down_half
    s_lshl_b32 s56, s53, 8
    s_add_u32 s55, s55, s56
    v_mul_u32_u24 v4, 1152, v3
    v_lshl_add_u32 v4, v2, 4, v4
    """)
    for e in range(8):
        P(f'buffer_load_dwordx4 v[{W0+4*e}:{W0+4*e+3}], v4, s[36:39], s55 offen nt')
        if e < 7: P(f's_add_u32 s55, s55, {4*1152}')
    P('v_lshlrev_b32 v5, 2, v3')
    P('s_mov_b32 s57, 16')
    P('s_branch L_down_go')
    P('L_down_half:')
    P(f"""
    s_add_u32 s55, s55, 1024
    v_lshrrev_b32 v6, 3, v2
    v_lshl_add_u32 v6, v6, 2, v3
    v_mul_u32_u24 v4, 1152, v6
    v_and_b32 v7, 7, v2
    v_lshl_add_u32 v4, v7, 4, v4
    v_lshlrev_b32 v5, 2, v6
    """)
    for t in range(4):
        P(f'buffer_load_dwordx4 v[{W0+4*t}:{W0+4*t+3}], v4, s[36:39], s55 offen nt')
        if t < 3: P(f's_add_u32 s55, s55, {8*1152}')
    P('s_mov_b32 s57, 32')
    P('L_down_go:')
    masks(MK)
    store_addr()
    tag_fill1(G)
    for e in range(8):
        P(f'v_mov_b32 v{104+e}, v5')
        if e < 7: P('v_add_u32 v5, s57, v5')
    P(f"""
    s_mul_i32 s59, s54, {PS}
    s_add_u32 s59, s59, {FP}
    v_and_b32 v6, 31, v1
    v_lshlrev_b32 v13, 2, v6
    s_lshl_b32 s67, s66, 7
    v_add_u32 v13, s67, v13
    v_lshrrev_b32 v14, 1, v6
    v_lshlrev_b32 v14, 4, v14
    v_and_b32 v15, 1, v1
    v_cmp_eq_u32 s[70:71], 1, v15
    s_xor_b32 s67, s4, 1
    s_mul_i32 s67, s67, 9
    s_add_u32 s67, s67, s5
    s_sub_u32 s67, s67, 7
    s_lshl_b32 s67, s67, 8
    s_add_u32 s68, s67, {GX}
    s_add_u32 s67, s67, {GXL}
    """)
    P('s_barrier')
    P('s_barrier')
    stamp(7)
    lp = P.lbl('Lx'); lok = P.lbl('Lx'); lg = P.lbl('Lx')
    P(f"""
    buffer_load_dwordx4 v[96:99], v14, s[44:47], s67 offen sc1
    ds_read_b32 v16, v13 offset:{L_RED3}
    ds_read_b32 v17, v13 offset:{L_RED3+256}
    ds_read_b32 v18, v13 offset:{L_RED3+512}
    ds_read_b32 v19, v13 offset:{L_RED3+768}
    s_mov_b32 s64, {cfg.local_tries}
    s_waitcnt lgkmcnt(0)
    v_add_f32 v16, v16, v17
    v_add_f32 v18, v18, v19
    v_add_f32 v16, v16, v18
    """)
    rne('v16', 'v16')
    P(f"""
    {lp}:
    s_waitcnt vmcnt(0)
    v_cmp_ne_u64 vcc, s[6:7], v[98:99]
    s_cbranch_vccz {lok}
    s_sub_u32 s64, s64, 1
    s_cbranch_scc1 {lg}
    buffer_load_dwordx4 v[96:99], v14, s[44:47], s67 offen sc1
    s_branch {lp}
    {lg}:
    s_mov_b32 s64, 0x8000
    {lg}b:
    buffer_load_dwordx4 v[96:99], v14, s[44:47], s68 offen sc1
    s_waitcnt vmcnt(0)
    v_cmp_ne_u64 vcc, s[6:7], v[98:99]
    s_cbranch_vccz {lok}
    s_sub_u32 s64, s64, 1
    s_cbranch_scc1 {ABORT}
    s_branch {lg}b
    {lok}:
    v_cndmask_b32 v18, v96, v97, s[70:71]
    s_cmp_eq_u32 s66, 0
    s_cbranch_scc1 {lok}g
    v_mov_b32 v17, v16
    v_mov_b32 v16, v18
    v_mov_b32 v18, v17
    {lok}g:
    """)
    k1 = f32hex(0.044715); k2 = f32hex(-2.0*math.sqrt(2.0/math.pi)*math.log2(math.e))
    P(f"""
    s_mov_b32 s60, {k1:#x}
    s_mov_b32 s61, {k2:#x}
    v_mul_f32 v17, v16, v16
    v_mul_f32 v17, v17, v16
    v_fma_f32 v17, v17, s60, v16
    v_mul_f32 v17, s61, v17
    v_exp_f32 v17, v17
    v_add_f32 v17, 1.0, v17
    v_rcp_f32 v17, v17
    v_mul_f32 v16, v16, v17
    """)
    rne('v16', 'v16')
    P('v_mul_f32 v16, v16, v18')
    P('v_cvt_pk_bf16_f32 v16, v16, v16')
    for e in range(8): P(f'ds_bpermute_b32 v{XS+e}, v{104+e}, v16')
    P('s_waitcnt vmcnt(0) lgkmcnt(0)')
    P(f"""
    s_cmp_eq_u32 s53, 4
    s_cbranch_scc1 L_down_half2
    """)
    diag_mm(ACC, [W0+4*e for e in range(8)], [f'v{XS+e}' for e in range(8)], MK, QA, QB)
    store_block('s53', ACC, G)
    stamp(6)
    end_wave()
    P('L_down_half2:')
    diag_mm(ACC, [W0+4*t for t in range(4)], [f'v{XS+t}' for t in range(4)], MK, QA, QB)
    store_half(ACC, G)
    stamp(6)
    end_wave()

def wo_role(suffix, nkv):
    P(f'L_wo{suffix}:')
    P('s_barrier')
    if suffix == 'M' and cfg.m_order == 'a_wo_b_kv': lds_wait(C_H, 1, sleep=1)
    elif cfg.order2 and suffix == 'Q' and cfg.q_order == 'wo_kv': lds_wait(C_G, 1, sleep=2)
    elif cfg.order2: lds_wait(C_KVI, nkv, sleep=2)
    elif suffix == 'M': lds_wait(C_B2, 6, sleep=2)
    elif cfg.q_wo_gate: lds_wait(C_G, 1, sleep=2)
    P('s_branch L_wo_common')

def wo_common():
    W0, MK, XS, G = 32, 8, 112, 16
    A0, A1, QA, QB = 24, 28, 0, 0
    P('L_wo_common:')
    role(4)
    srd(36, 16, 4096*1152)
    P(f"""
    s_sub_u32 s53, s3, 7              ; 0,1,2
    s_mov_b32 s54, s5                 ; a
    s_mul_i32 s55, s54, 9
    s_lshl_b32 s56, s4, 8
    """)
    def rowbase(dst, e):
        P(f"""
        s_add_u32 s57, s55, {e}
        s_bfe_u32 s58, s57, 0x10003
        s_lshl_b32 s58, s58, 7
        s_lshr_b32 s60, s57, 4
        s_lshl_b32 s60, s60, 5
        s_add_u32 s58, s58, s60
        s_and_b32 s60, s57, 7
        s_add_u32 s58, s58, s60
        s_add_u32 s58, s58, s56
        s_mul_i32 {dst}, s58, 1152
        """)
    def common_post():
        lds_add(C_WO)
        masks(MK)
        store_addr()
        tag_ready()
        P(f"""
        s_mul_i32 s59, s4, 7
        s_add_u32 s59, s59, s54
        s_mul_i32 s59, s59, {PS}
        s_add_u32 s59, s59, {XP}
        """)
    P(f"""
    s_cmp_eq_u32 s53, 2
    s_cbranch_scc1 L_wo_half
    s_lshl_b32 s65, s53, 9
    v_mul_u32_u24 v4, {8*1152}, v3
    v_lshl_add_u32 v4, v2, 4, v4
    """)
    for e in range(10):
        if e == 9:
            P(f"""
            s_cmp_lt_u32 s54, 6
            s_cbranch_scc1 L_wo_l9
            """)
        rowbase('s66', e)
        P('s_add_u32 s66, s66, s65')
        P(f'buffer_load_dwordx4 v[{W0+8*e}:{W0+8*e+3}], v4, s[36:39], s66 offen nt')
        P(f'buffer_load_dwordx4 v[{W0+8*e+4}:{W0+8*e+7}], v4, s[36:39], s66 offen offset:256 nt')
    P('L_wo_l9:')
    P('v_lshlrev_b32 v5, 2, v3')
    common_post()
    GA, GB = 16, 20
    tag_fill1(GA); tag_fill1(GB)
    stamp(5)
    P('s_barrier')
    stamp(6)
    XS2 = [112, 113, 114, 115, 116, 117, 118, 119, 13, 14]
    for e in range(10): P(f'ds_read_b32 v{XS2[e]}, v5 offset:{L_XA+16*e}')
    P('s_waitcnt vmcnt(0) lgkmcnt(0)')
    def mm(n):
        qs = ((60+0, ), )
        QAa, QBb = 0, 0
        def prep(e, q):
            for i in range(4): P(f'v_and_b32 v{q+i}, v{XS2[e]}, v{MK+i}')
        Q2 = (4, 4)
        for e in range(n):
            q = 4 if e == 0 else W0 + 8*(e-1)
            prep(e, q)
            c0 = '0' if e == 0 else f'v[{A0}:{A0+3}]'
            c1 = '0' if e == 0 else f'v[{A1}:{A1+3}]'
            P(f'v_mfma_f32_16x16x32_bf16 v[{A0}:{A0+3}], v[{W0+8*e}:{W0+8*e+3}], v[{q}:{q+3}], {c0}')
            P(f'v_mfma_f32_16x16x32_bf16 v[{A1}:{A1+3}], v[{W0+8*e+4}:{W0+8*e+7}], v[{q}:{q+3}], {c1}')
    P(f"""
    s_cmp_lt_u32 s54, 6
    s_cbranch_scc1 L_wo_m9
    """)
    mm(10)
    P('s_branch L_wo_st')
    P('L_wo_m9:')
    mm(9)
    P('L_wo_st:')
    pack_pair(GA, A0)
    pack_pair(GB, A1)
    P(f"""
    s_lshl_b32 s60, s53, 11
    s_add_u32 s59, s59, s60
    buffer_store_dwordx4 v[{GA}:{GA+3}], v12, s[44:47], s59 offen sc1
    buffer_store_dwordx4 v[{GB}:{GB+3}], v12, s[44:47], s59 offen offset:1024 sc1
    """)
    stamp(7)
    end_wave()
    P('L_wo_half:')
    P(f"""
    v_mul_u32_u24 v4, {8*1152}, v3
    v_and_b32 v6, 7, v2
    v_lshl_add_u32 v4, v6, 4, v4
    v_add_u32 v4, 1024, v4
    v_cmp_lt_u32 s[68:69], 7, v2
    """)
    for t in range(5):
        rowbase('s66', 2*t)
        rowbase('s67', 2*t+1)
        if t == 4:
            P(f"""
            s_cmp_lt_u32 s54, 6
            s_cselect_b32 s67, 0x40000000, s67
            """)
        P(f"""
        v_mov_b32 v6, s66
        v_mov_b32 v7, s67
        v_cndmask_b32 v6, v6, v7, s[68:69]
        v_add_u32 v6, v6, v4
        buffer_load_dwordx4 v[{W0+4*t}:{W0+4*t+3}], v6, s[36:39], 0 offen nt
        """)
    P(f"""
    v_lshrrev_b32 v5, 3, v2
    v_lshl_add_u32 v5, v5, 2, v3
    v_lshlrev_b32 v5, 2, v5
    """)
    if cfg.pf2 & 2:
        P('v_mov_b32 v15, v5')
        prefetch_code('3', 100)
        P('v_mov_b32 v5, v15')
    common_post()
    GH = 96
    tag_fill1(GH)
    stamp(5)
    P('s_barrier')
    stamp(6)
    for t in range(5): P(f'ds_read_b32 v{112+t}, v5 offset:{L_XA+32*t}')
    P('s_waitcnt vmcnt(0) lgkmcnt(0)')
    diag_mm(72, [W0+4*t for t in range(5)], [f'v{112+t}' for t in range(5)], MK, 76, 80)
    store_half(72, GH)
    stamp(7)
    end_wave()

def q_fetch(nxt):
    l = P.lbl('Lqf'); l2 = P.lbl('Lqf'); l3 = P.lbl('Lqf')
    P(f"""
    s_cmp_gt_u32 s3, 4
    s_cbranch_scc1 {nxt}
    s_lshl_b32 s38, s4, 10
    s_lshl_b32 s39, s3, 8
    s_add_u32 s38, s38, s39
    s_add_u32 s38, s38, {QF-256}
    s_add_u32 s36, s34, s38
    s_addc_u32 s37, s35, 0
    s_mov_b32 s42, 0x40000
    """)
    if cfg.q_direct:
        P(f"""
        s_branch {l3}
        {l}:
        s_sleep {cfg.q_sleep}
        {l3}:
        s_load_dwordx2 s[40:41], s[36:37], 128 glc
        s_load_dwordx16 s[48:63], s[36:37], 0 glc
        s_load_dwordx16 s[64:79], s[36:37], 64 glc
        s_sub_u32 s42, s42, 1
        s_cbranch_scc1 {ABORT}
        s_waitcnt lgkmcnt(0)
        s_cmp_lg_u32 s41, s7
        s_cbranch_scc1 {l}
        s_add_u32 s43, s48, s7
        """)
        for i in range(49, 80): P(f's_add_u32 s43, s43, s{i}')
        P(f"""
        s_cmp_lg_u32 s43, s40
        s_cbranch_scc1 {l3}
        """)
    else:
        P(f"""
        s_branch {l3}
        {l}:
        s_sleep {cfg.q_sleep}
        {l3}:
        s_load_dwordx2 s[40:41], s[36:37], 128 glc
        s_sub_u32 s42, s42, 1
        s_cbranch_scc1 {ABORT}
        s_waitcnt lgkmcnt(0)
        s_cmp_lg_u32 s41, s7
        s_cbranch_scc1 {l}
        {l2}:
        s_load_dwordx16 s[48:63], s[36:37], 0 glc
        s_load_dwordx16 s[64:79], s[36:37], 64 glc
        s_sub_u32 s42, s42, 1
        s_cbranch_scc1 {ABORT}
        s_waitcnt lgkmcnt(0)
        s_add_u32 s43, s48, s7
        """)
        for i in range(49, 80): P(f's_add_u32 s43, s43, s{i}')
        P(f"""
        s_cmp_lg_u32 s43, s40
        s_cbranch_scc1 {l2}
        """)
    for i in range(32): P(f'v_writelane_b32 v20, s{48+i}, {i}')
    P(f"""
    v_and_b32 v21, 3, v1
    v_lshlrev_b32 v21, 2, v21
    v_bfe_u32 v22, v1, 2, 2
    v_add_u32 v21, v21, v22
    v_and_b32 v22, 16, v1
    v_add_u32 v21, v21, v22
    v_lshlrev_b32 v21, 2, v21
    s_lshl_b32 s38, s3, 7
    v_add_u32 v21, s38, v21
    s_mov_b64 exec, 0xffffffff
    ds_write_b32 v21, v20 offset:{L_Q-128}
    s_mov_b64 exec, -1
    """)
    srd(44, 34, 0x40000000)
    lds_add(FL_Q)

def ln_stats(regs, mean_b, rstd, t1, t2, maskfix=None):
    P(f'v_add_f32 {t1}, v{regs[0]}, v{regs[1]}')
    for r in regs[2:]: P(f'v_add_f32 {t1}, {t1}, v{r}')
    wave_sum(t1, t2)
    P(f's_mov_b32 s60, {f32hex(1.0/576.0):#x}')
    P(f'v_mul_f32 {t1}, s60, {t1}')
    first = True
    for r in regs:
        P(f'v_sub_f32 {t2}, v{r}, {t1}')
        if maskfix and r in maskfix[0]: P(f'v_cndmask_b32 {t2}, 0, {t2}, {maskfix[1]}')
        if first: P(f'v_mul_f32 {rstd}, {t2}, {t2}'); first = False
        else: P(f'v_fmac_f32 {rstd}, {t2}, {t2}')
    wave_sum(rstd, t2)
    P(f'v_mul_f32 {rstd}, s60, {rstd}')
    rne(rstd, rstd)
    P(f'v_add_f32 {rstd}, {f32hex(1e-5):#x}, {rstd}')
    rne(rstd, rstd)
    P(f'v_sqrt_f32 {rstd}, {rstd}')
    rne(rstd, rstd)
    P(f'v_rcp_f32 {rstd}, {rstd}')
    rne(mean_b, t1)

def fold_reduce(base, slot0):
    for i in range(6): P(f'ds_read_b128 v[{base+4*i}:{base+4*i+3}], v16 offset:{L_SLOT+1024*(slot0+i)}')
    P('s_waitcnt lgkmcnt(0)')
    for (x, y) in ((0, 1), (2, 3), (4, 5), (0, 2), (0, 4)):
        for jj in range(4): P(f'v_add_f32 v{base+4*x+jj}, v{base+4*x+jj}, v{base+4*y+jj}')
    T = base + 4
    for jj in range(4): P(f'v_mov_b32 v{T+jj}, v{base+jj}')
    for jj in range(4): P(f'v_permlane32_swap_b32 v{base+jj}, v{T+jj}')
    for jj in range(4): P(f'v_add_f32_dpp v{base+jj}, v{T+jj}, v{base+jj} row_shl:8 {DPPM}')

def silu(regs, tmps):
    P(f's_mov_b32 s60, {f32hex(-1.4426950408889634):#x}')
    for r in regs: P(f'v_lshlrev_b32 v{r}, 16, v{r}')
    for r, t in zip(regs, tmps): P(f'v_mul_f32 v{t}, s60, v{r}')
    for r, t in zip(regs, tmps): P(f'v_exp_f32 v{t}, v{t}')
    for r, t in zip(regs, tmps): P(f'v_add_f32 v{t}, 1.0, v{t}')
    for r, t in zip(regs, tmps): P(f'v_rcp_f32 v{t}, v{t}')
    for r, t in zip(regs, tmps): P(f'v_mul_f32 v{r}, v{r}, v{t}')
    for r, t in zip(regs, tmps): P(f'v_cvt_pk_bf16_f32 v{r}, v{r}, v{r}')

def wq_role():
    WB, MK, XS, ACC, QA, QB, XA = 56, 8, 104, 116, 120, 124, 32
    XSB = L_SLOT + 12*1024
    P('L_wq:')
    role(2)
    srd(36, 14, 576*8192)
    srd(40, 8, 1152)
    P(f"""
    s_sub_u32 s53, s3, 1              ; j
    s_sub_u32 s54, s5, 3              ; qi
    s_mul_i32 s57, s53, 96
    v_lshlrev_b32 v4, 1, v1
    """)
    for n in range(9): P(f'buffer_load_ushort v{XA+n}, v4, s[40:43], 0 offen offset:{128*n}')
    P(f"""
    v_and_b32 v6, 31, v1
    v_lshlrev_b32 v7, 1, v6
    s_lshl_b32 s58, s57, 1
    buffer_load_ushort v{XA+9}, v4, s[40:43], s58 offen
    buffer_load_ushort v{XA+10}, v7, s[40:43], s58 offen offset:128
    v_lshrrev_b32 v13, 3, v2
    v_lshl_add_u32 v13, v13, 2, v3
    v_lshlrev_b32 v5, 13, v13
    v_and_b32 v7, 7, v2
    v_lshl_add_u32 v5, v7, 4, v5
    s_lshl_b32 s58, s57, 13
    s_lshl_b32 s59, s4, 9
    s_add_u32 s58, s58, s59
    s_lshl_b32 s59, s54, 7
    s_add_u32 s58, s58, s59
    """)
    for t in range(12):
        P(f'buffer_load_dwordx4 v[{WB+4*t}:{WB+4*t+3}], v5, s[36:39], s58 offen nt')
        if t < 11: P(f's_add_u32 s58, s58, {8*8192}')
    stamp(1)
    P('s_barrier')
    P(f"""
    v_add_u32 v28, s57, v1
    v_lshlrev_b32 v28, 3, v28
    v_add_u32 v29, s57, v6
    v_lshlrev_b32 v29, 3, v29
    v_add_u32 v29, 512, v29
    v_lshlrev_b32 v31, 2, v13
    s_lshl_b32 s67, s53, 10
    v_add_u32 v31, s67, v31
    v_lshlrev_b32 v30, 2, v1
    v_add_u32 v30, s67, v30
    v_lshlrev_b32 v27, 2, v6
    v_add_u32 v27, s67, v27
    """)
    masks(MK)
    P('s_waitcnt vmcnt(12)')
    tag_ready()
    for n in range(11): P(f'v_lshlrev_b32 v{XA+n}, 16, v{XA+n}')
    ln_stats(list(range(XA, XA+9)), 'v16', 'v17', 'v18', 'v19')
    for n in (9, 10): P(f'v_sub_f32 v{XA+n}, v{XA+n}, v16')
    rne_many([XA+9, XA+10])
    for n in (9, 10): P(f'v_mul_f32 v{XA+n}, v{XA+n}, v17')
    rne_many([XA+9, XA+10])
    P(f"""
    v_mov_b32 v20, v{XA+9}
    v_mov_b32 v21, v{XA+10}
    s_mov_b32 s66, {MODP}
    s_mov_b32 s68, {MODP+9216}
    s_mov_b32 s69, {MODP+4608}
    s_mov_b32 s70, {MODP+9216+4608}
    """)
    G = 32
    sr = ['s66', 's68', 's69', 's70']
    loads = []
    for st_, va in enumerate(('v28', 'v29')):
        for i in range(4):
            r = G + 8*st_ + 2*i
            loads.append(f'buffer_load_dwordx2 v[{r}:{r+1}], {va}, s[44:47], {sr[i]} offen sc1')
    if cfg.wq_first:
        P('s_waitcnt vmcnt(0)')
        stamp(5)
    poll(loads, check_tags32([G+1+2*i for i in range(8)]))
    stamp(2)
    for st_ in range(2):
        b = G + 8*st_
        P(f'v_add_f32 v{b}, v{b}, v{b+2}')
        P(f'v_add_f32 v{b+4}, v{b+4}, v{b+6}')
    rne_many([G, G+4, G+8, G+12])
    for st_ in range(2): P(f'v_add_f32 v{G+8*st_+4}, 1.0, v{G+8*st_+4}')
    rne_many([G+4, G+12])
    for st_ in range(2): P(f'v_mul_f32 v{20+st_}, v{20+st_}, v{G+8*st_+4}')
    rne_many([20, 21])
    for st_ in range(2): P(f'v_add_f32 v{20+st_}, v{20+st_}, v{G+8*st_}')
    for st_ in range(2): P(f'v_cvt_pk_bf16_f32 v{20+st_}, v{20+st_}, v{20+st_}')
    P(f"""
    ds_write_b32 v30, v20 offset:{XSB}
    ds_write_b32 v27, v21 offset:{XSB+256}
    """)
    for t in range(12): P(f'ds_read_b32 v{XS+t}, v31 offset:{XSB+32*t}')
    P('s_waitcnt lgkmcnt(0)')
    stamp(3)
    diag_mm(ACC, [WB+4*t for t in range(12)], [f'v{XS+t}' for t in range(12)], MK, QA, QB)
    P(f"""
    s_lshl_b32 s59, s53, 10
    v_lshlrev_b32 v16, 4, v1
    v_add_u32 v19, s59, v16
    ds_write_b128 v19, v[{ACC}:{ACC+3}] offset:{L_SLOT}
    """)
    lds_add_rtn(C_RED, 's60')
    P(f"""
    s_cmp_lg_u32 s60, 5
    s_cbranch_scc1 L_wq_done
    """)
    fold_reduce(WB, 0)
    for r in range(4): P(f'v_mov_b32_dpp v{WB+4+r}, v{WB+r} quad_perm:[1,0,3,2] {DPPM}')
    for r in range(4): P(f'v_cvt_pk_bf16_f32 v{WB+r}, v{WB+r}, v{WB+4+r}')
    P(f"""
    v_add_u32 v{WB+4}, v{WB}, v{WB+1}
    v_add3_u32 v{WB+4}, v{WB+4}, v{WB+2}, v{WB+3}
    s_mov_b32 s60, 0x00550055
    s_mov_b32 s61, 0
    v_cndmask_b32 v{WB+4}, 0, v{WB+4}, s[60:61]
    v_add_u32_dpp v{WB+4}, v{WB+4}, v{WB+4} quad_perm:[2,3,0,1] {DPPM}
    v_add_u32_dpp v{WB+4}, v{WB+4}, v{WB+4} row_shl:4 {DPPM} bound_ctrl:0
    v_lshrrev_b32 v19, 1, v2
    v_lshl_add_u32 v19, v3, 2, v19
    v_lshlrev_b32 v19, 4, v19            ; (gq*4 + c/2)*16
    v_readlane_b32 s60, v{WB+4}, 0
    v_readlane_b32 s61, v{WB+4}, 16
    s_add_u32 s60, s60, s61
    s_add_u32 s60, s60, s7
    s_mov_b32 s61, 128
    v_writelane_b32 v{WB}, s60, 1
    v_writelane_b32 v{WB+1}, s7, 1
    v_writelane_b32 v19, s61, 1
    s_lshl_b32 s59, s4, 10
    s_lshl_b32 s60, s54, 8
    s_add_u32 s59, s59, s60
    s_add_u32 s59, s59, {QF}
    s_mov_b64 exec, 0x00550057
    buffer_store_dwordx4 v[{WB}:{WB+3}], v19, s[44:47], s59 offen sc1
    s_mov_b64 exec, -1
    """)
    lds_add(C_G)
    stamp(4)
    P('L_wq_done:')
    q_fetch('L_exit')
    end_wave()

def mod_role():
    WA, MK, XS, ACC, QA, QB = 32, 8, 104, 116, 120, 124
    XSB = L_SLOT + 12*1024
    P('L_mod:')
    role(3)
    P(f"""
    s_mov_b32 s54, s2
    s_cmp_ge_u32 s54, 36
    s_cbranch_scc1 L_mod_noA
    """)
    srd(36, 28, 576*6912)
    srd(40, 26, 1152)
    P(f"""
    s_sub_u32 s53, s3, 1              ; j
    v_lshlrev_b32 v4, 1, v1
    s_and_b32 s56, s54, 1             ; kh
    s_mul_i32 s57, s56, 288
    s_mul_i32 s58, s53, 48
    s_add_u32 s57, s57, s58
    s_lshl_b32 s58, s57, 1
    buffer_load_ushort v16, v4, s[40:43], s58 offen
    v_lshrrev_b32 v13, 3, v2
    v_lshl_add_u32 v13, v13, 2, v3
    v_mul_u32_u24 v5, 6912, v13
    v_and_b32 v7, 7, v2
    v_lshl_add_u32 v5, v7, 4, v5
    s_lshr_b32 s55, s54, 1            ; cbk
    s_mul_i32 s58, s57, 6912
    s_lshl_b32 s59, s55, 7
    s_add_u32 s58, s58, s59
    """)
    for t in range(6):
        P(f'buffer_load_dwordx4 v[{WA+4*t}:{WA+4*t+3}], v5, s[36:39], s58 offen nt')
        if t < 5: P(f's_add_u32 s58, s58, {8*6912}')
    P('s_barrier')
    P(f"""
    v_lshlrev_b32 v31, 2, v13
    s_lshl_b32 s67, s53, 10
    v_add_u32 v31, s67, v31
    v_lshlrev_b32 v30, 2, v1
    v_add_u32 v30, s67, v30
    s_mul_i32 s65, s56, 9216
    s_lshl_b32 s60, s55, 9
    s_add_u32 s65, s65, s60
    s_add_u32 s65, s65, {MODP}
    v_lshlrev_b32 v29, 5, v3
    v_add_u32 v29, v29, v2
    v_lshlrev_b32 v29, 3, v29
    """)
    masks(MK)
    tag_ready()
    for rr in range(4): P(f'v_mov_b32 v{61+2*rr}, s7')
    P('s_waitcnt vmcnt(6)')
    stamp(1)
    silu([16], [19])
    P(f'ds_write_b32 v30, v16 offset:{XSB}')
    for t in range(6): P(f'ds_read_b32 v{XS+t}, v31 offset:{XSB+32*t}')
    P('s_waitcnt vmcnt(0) lgkmcnt(0)')
    stamp(2)
    lds_add(C_G)
    diag_mm(ACC, [WA+4*t for t in range(6)], [f'v{XS+t}' for t in range(6)], MK, QA, QB)
    P(f"""
    s_lshl_b32 s59, s53, 10
    v_lshlrev_b32 v16, 4, v1
    v_add_u32 v19, s59, v16
    ds_write_b128 v19, v[{ACC}:{ACC+3}] offset:{L_SLOT}
    """)
    lds_add_rtn(C_RED, 's60')
    P(f"""
    s_cmp_lg_u32 s60, 5
    s_cbranch_scc1 L_mod_fin
    """)
    fold_reduce(WA, 0)
    for rr in range(4): P(f'v_mov_b32 v{60+2*rr}, v{WA+rr}')
    P('s_mov_b64 exec, 0x00ff00ff')
    for rr in range(4):
        P(f'buffer_store_dwordx2 v[{60+2*rr}:{61+2*rr}], v29, s[44:47], s65 offen offset:{64*rr} sc1')
    P('s_mov_b64 exec, -1')
    lds_add(C_H)
    stamp(3)
    P('s_branch L_mod_fin')
    P('L_mod_noA:')
    P('s_barrier')
    if cfg.b_on != 'M': lds_add(C_G)
    lds_add(C_H)
    tag_ready()
    P('L_mod_fin:')
    if cfg.b_on == 'M':
        lds_wait(C_H, 1, sleep=0)
        if cfg.order2:
            P(f"""
            s_cmp_lt_u32 s2, 12
            s_cbranch_scc1 L_mod_nob
            s_sub_u32 s53, s3, 1
            s_sub_u32 s65, s2, 36
            s_cmp_ge_u32 s2, 36
            s_cbranch_scc1 L_mod_bgo
            s_mov_b32 s65, s2
            """)
            if cfg.m_order == 'a_wo_b_kv':
                lds_wait(C_WO, 3, sleep=1)
                P('s_branch L_mod_bgo')
            if cfg.m_order == 'a_b_kv_wo':
                P('s_branch L_mod_bgo')
            P('s_mov_b32 s98, s65' if not cfg.hdbg else 's_mov_b32 s99, s65')
            q_fetch('L_mod_q2')
            P('L_mod_q2:')
            P('s_mov_b32 s65, s98' if not cfg.hdbg else 's_mov_b32 s65, s99')
            P('s_sub_u32 s53, s3, 1')
            P('s_mov_b32 s100, 1')
            lds_wait(C_WO, 3, sleep=2)
            P('s_branch L_mod_bgo2')
            P('L_mod_bgo:')
            P('s_mov_b32 s100, 0')
            P('L_mod_bgo2:')
        else:
            P(f"""
            s_cmp_lt_u32 s2, 12
            s_cbranch_scc1 L_mod_nob
            s_sub_u32 s65, s2, 12
            s_sub_u32 s53, s3, 1
            """)
        modb_body('M')
        if cfg.order2:
            P('s_cmp_lg_u32 s100, 0\ns_cbranch_scc1 L_exit')
        P('s_branch L_mod_q')
        P('L_mod_nob:')
        lds_add(C_B2)
        P('L_mod_q:')
    q_fetch('L_exit')
    end_wave()

def modb_body(cls):
    WB, MK, XS, ACC, QA, QB, G = 56, 8, 104, 116, 120, 124, 32
    done = 'L_exit' if cls == 'Q' else 'L_modb_done'
    srd(36, 28, 576*6912)
    srd(40, 26, 1152)
    P(f"""
    v_lshlrev_b32 v4, 1, v1
    s_mul_i32 s66, s53, 96
    s_lshl_b32 s59, s66, 1
    buffer_load_ushort v17, v4, s[40:43], s59 offen
    buffer_load_ushort v18, v4, s[40:43], s59 offen offset:128
    v_lshrrev_b32 v13, 3, v2
    v_lshl_add_u32 v13, v13, 2, v3
    v_mul_u32_u24 v5, 6912, v13
    v_and_b32 v7, 7, v2
    v_lshl_add_u32 v5, v7, 4, v5
    v_lshlrev_b32 v31, 2, v13
    s_lshl_b32 s67, s53, 9
    v_add_u32 v31, s67, v31
    v_lshlrev_b32 v30, 2, v1
    v_add_u32 v30, s67, v30
    s_mul_i32 s58, s66, 6912
    s_lshl_b32 s59, s65, 7
    s_add_u32 s58, s58, s59
    s_add_u32 s58, s58, 2304
    """)
    def wloads():
        for t in range(12):
            if cls == 'Q' and cfg.b_k and t >= cfg.b_k: P(f's_waitcnt vmcnt({cfg.b_k-1})')
            P(f'buffer_load_dwordx4 v[{WB+4*t}:{WB+4*t+3}], v5, s[36:39], s58 offen nt')
            if t < 11: P(f's_add_u32 s58, s58, {8*6912}')
    if cls == 'M':
        wloads()
        lds_add(C_B2)
        masks(MK)
        P('s_waitcnt vmcnt(12)')
    else:
        masks(MK)
        P('s_waitcnt vmcnt(0)')
        tag_ready()
    tag_fill(G)
    silu([17, 18], [19, 20])
    P(f"""
    ds_write_b32 v30, v17 offset:{L_XS}
    ds_write_b32 v30, v18 offset:{L_XS+256}
    """)
    for t in range(12): P(f'ds_read_b32 v{XS+t}, v31 offset:{L_XS+32*t}')
    if cls == 'Q':
        lds_wait(C_G, 1, sleep=2)
        stamp(1)
        wloads()
    P('s_waitcnt vmcnt(0) lgkmcnt(0)')
    diag_mm(ACC, [WB+4*t for t in range(12)], [f'v{XS+t}' for t in range(12)], MK, QA, QB)
    P(f"""
    s_lshl_b32 s59, s53, 10
    v_lshlrev_b32 v16, 4, v1
    v_add_u32 v19, s59, v16
    ds_write_b128 v19, v[{ACC}:{ACC+3}] offset:{L_SLOT+6*1024}
    """)
    lds_add_rtn(C_B, 's60')
    P(f"""
    s_cmp_lg_u32 s60, 5
    s_cbranch_scc1 {done}
    """)
    fold_reduce(WB, 6)
    rne_many([WB+jj for jj in range(4)])
    make_granules(G, WB)
    P(f"""
    s_lshl_b32 s59, s65, 9
    s_add_u32 s59, s59, {MODF}
    v_lshlrev_b32 v19, 3, v3
    v_add_u32 v19, v19, v2
    v_lshlrev_b32 v19, 5, v19
    s_mov_b64 exec, 0x00ff00ff
    buffer_store_dwordx4 v[{G}:{G+3}], v19, s[44:47], s59 offen sc1
    buffer_store_dwordx4 v[{G+4}:{G+7}], v19, s[44:47], s59 offen offset:16 sc1
    s_mov_b64 exec, -1
    """)
    stamp(4)
    if cls == 'Q': end_wave()
    else: P('L_modb_done:')

def modb_role():
    P('L_modb:')
    P('s_barrier')
    if cfg.b_on != 'Q':
        P('s_branch L_end')
        return
    P(f"""
    s_sub_u32 s65, s2, 48            ; b
    s_cmp_ge_u32 s65, 36
    s_cbranch_scc1 L_exit
    s_sub_u32 s53, s3, 7              ; j
    """)
    modb_body('Q')

def prefetch_code(sfx='', dst=16):
    if not cfg.prefetch_code: return
    P(f"""
    s_getpc_b64 s[52:53]
    L_pc{sfx}:
    s_sub_u32 s52, s52, L_pc{sfx}-{KN}
    s_subb_u32 s53, s53, 0
    v_lshlrev_b32 v4, 7, v1
    """)
    for i in range(CODE_PF):
        P(f'v_cmp_gt_u32 vcc, L_codeend-{KN}, v4')
        P('s_and_saveexec_b64 s[62:63], vcc')
        P(f'global_load_dword v{dst+i}, v4, s[52:53]')
        P('s_mov_b64 exec, s[62:63]')
        P('v_add_u32 v4, 0x2000, v4')


def tlb_warm(dst=100):
    pages = []
    for ptr, size in ((16, 4096*1152), (24, 4608*1152), (20, 576*9216), (22, 576*9216)):
        for off in range(0, size + (2 << 20) - 1, 2 << 20):
            pages.append((ptr, min(off, size - 4)))
    pages += [(34, 0), (34, 0x200000), (34, 0x2C0000), (30, 0), (28, 0), (28, 576*6912-4), (14, 0), (14, 2<<20), (14, 576*8192-4)]
    a, b = dst, dst + 1
    P(f'v_mov_b32 v{a}, s34\nv_mov_b32 v{b}, s35')
    for i, (ptr, off) in enumerate(pages):
        P(f's_add_u32 s52, s{ptr}, {off}')
        P(f's_addc_u32 s53, s{ptr+1}, 0')
        P(f'v_writelane_b32 v{a}, s52, {i}')
        P(f'v_writelane_b32 v{b}, s53, {i}')
    P(f'global_load_dword v{dst+2}, v[{a}:{b}], off')

def reduce4(a, b, n_i, base):
    regs = list(range(n_i))
    while len(regs) > 1:
        nxt = []
        for k in range(0, len(regs) - 1, 2):
            x, y = regs[k], regs[k+1]
            for j in range(2): P(f'v_add_f32 v{base+4*x+j}, v{base+4*x+j}, v{base+4*y+j}')
            nxt.append(x)
        if len(regs) % 2: nxt.append(regs[-1])
        regs = nxt
    for d in ('row_ror:4', 'row_ror:8'):
        for j in range(2): P(f'v_add_f32_dpp v{base+j}, v{base+j}, v{base+j} {d} {DPPM}')
    xrow_multi('v_add_f32', [f'v{base+j}' for j in range(2)], [f'v{base+2+j}' for j in range(2)])

def commA_role():
    P('L_commA:')
    role(5)
    P('s_setprio 3')
    P('s_barrier')
    P(f"""
    s_mov_b32 s54, s5                 ; a
    s_mul_i32 s55, s4, 7
    s_add_u32 s55, s55, s54           ; rho
    v_and_b32 v112, 3, v1
    v_lshrrev_b32 v4, 1, v112           ; pi
    s_lshl_b32 s56, s55, 1
    v_add_u32 v4, s56, v4
    v_and_b32 v4, 7, v4
    s_lshr_b32 s56, s55, 2
    s_lshl_b32 s56, s56, 5
    v_add_u32 v4, s56, v4
    v_and_b32 v5, 1, v112               ; gamma
    v_lshl_add_u32 v4, v5, 4, v4
    v_lshlrev_b32 v113, 1, v4
    v_lshlrev_b32 v114, 4, v112
    """)
    srd(40, 8, 1152)
    P(f"""
    buffer_load_ushort v116, v113, s[40:43], 0 offen
    buffer_load_ushort v117, v113, s[40:43], 0 offen offset:16
    s_cmp_eq_u32 s54, 6
    s_cselect_b32 s57, 10, 9            ; E
    s_mul_i32 s56, s54, 9
    v_add_u32 v4, s56, v2               ; l_src = 9a + e
    v_mul_u32_u24 v6, {H3S}, v3
    v_lshl_add_u32 v5, v4, 5, v6
    v_bfe_u32 v4, v4, 3, 1              ; head
    v_lshl_add_u32 v4, v4, 6, v6
    v_add_u32 v4, 2048, v4
    s_mul_i32 s48, s4, {16*H3S}
    s_add_u32 s48, s48, {H3}
    s_add_u32 s49, s48, {4*H3S}
    s_add_u32 s50, s48, {8*H3S}
    s_add_u32 s51, s48, {12*H3S}
    v_lshrrev_b32 v115, 2, v1
    v_mul_u32_u24 v115, {PS}, v115
    v_add_u32 v115, v115, v114
    v_lshrrev_b32 v6, 2, v1
    v_mul_u32_u24 v118, {X2S}, v6
    v_add_u32 v118, v118, v114
    v_lshlrev_b32 v119, 4, v1
    """)
    tag_ready()
    P('v_mov_b32 v122, s6\nv_mov_b32 v123, s7')
    lds_wait(FL_PUB, 1, sleep=1)
    P(f"""
    v_lshlrev_b32 v116, 16, v116
    v_cmp_gt_u32 vcc, s57, v2
    s_mov_b32 s56, {LOG2E:#x}
    s_mov_b64 exec, vcc
    """)
    def h3_loads(B):
        o = []
        for i in range(4):
            b = B + 12*i
            o.append(f'buffer_load_dwordx4 v[{b}:{b+3}], v5, s[44:47], s{48+i} offen sc1')
            o.append(f'buffer_load_dwordx4 v[{b+4}:{b+7}], v5, s[44:47], s{48+i} offen offset:16 sc1')
            o.append(f'buffer_load_dwordx4 v[{b+8}:{b+11}], v4, s[44:47], s{48+i} offen sc1')
        return o
    def h3_check(B):
        bases = [B + 12*i + o for i in range(4) for o in (0, 4, 8)]
        check_g(bases[:6])()
        P('s_mov_b64 s[62:63], vcc')
        check_g(bases[6:])()
        P('s_or_b64 vcc, vcc, s[62:63]')
    def h3_post(B):
        M = [B+12*i+8 for i in range(4)]; L = [m+1 for m in M]; W = [m+2 for m in M]
        P(f"""
        v_max3_f32 v12, v{M[0]}, v{M[1]}, v{M[2]}
        v_max_f32 v12, v12, v{M[3]}
        """)
        xrow_multi('v_max_f32', ['v12'], ['v13'])
        for i in range(4): P(f'v_sub_f32 v{W[i]}, v{M[i]}, v12')
        for i in range(4): P(f'v_mul_f32 v{W[i]}, s56, v{W[i]}')
        for i in range(4): P(f'v_exp_f32 v{W[i]}, v{W[i]}')
        O = lambda i, j: B + 12*i + (j >> 1)*4 + (j & 1)
        P(f'v_mul_f32 v14, v{W[0]}, v{L[0]}')
        for j in range(4): P(f'v_mul_f32 v{8+j}, v{W[0]}, v{O(0,j)}')
        for i in range(1, 4):
            P(f'v_fmac_f32 v14, v{W[i]}, v{L[i]}')
            for j in range(4): P(f'v_fmac_f32 v{8+j}, v{W[i]}, v{O(i,j)}')
        xrow_multi('v_add_f32', ['v14', 'v8', 'v9', 'v10', 'v11'], [f'v{B+2}', f'v{B+3}', f'v{B+6}', f'v{B+7}', f'v{B+11}'])
        P('v_rcp_f32 v14, v14')
        for j in range(4): P(f'v_mul_f32 v{8+j}, v{8+j}, v14')
        for j in range(4): P(f'v_cvt_pk_bf16_f32 v{8+j}, v{8+j}, v{8+j}')
    if cfg.h3_local:
        l = P.lbl('Lhl'); ok = P.lbl('Lhl'); far = P.lbl('Lhl')
        for i in range(4): P(f's_add_u32 s{48+i}, s{48+i}, {H3L - H3}')
        P(f's_mov_b32 s64, {cfg.local_tries}')
        P(f'{l}:')
        for x in h3_loads(16): P(x)
        P('s_waitcnt vmcnt(0)')
        h3_check(16)
        P(f"""
        s_cbranch_vccz {ok}
        s_sub_u32 s64, s64, 1
        s_cbranch_scc0 {l}
        """)
        for i in range(4): P(f's_sub_u32 s{48+i}, s{48+i}, {H3L - H3}')
        poll(h3_loads(16), lambda: h3_check(16))
        P(f'{ok}:')
        if cfg.debug: P(f's_sub_u32 s82, {cfg.local_tries}, s64')
        h3_post(16)
    else:
        poll(h3_loads(16), lambda: h3_check(16))
        if cfg.debug: P('s_sub_u32 s82, 0x8000, s64')
        h3_post(16)
    stamp(4)
    P(f"""
    s_and_b32 exec_lo, exec_lo, 0xffff
    s_mov_b32 exec_hi, 0
    ds_write_b128 v119, v[8:11] offset:{L_XA}
    s_mov_b64 exec, -1
    s_cmp_ge_u32 s55, 72
    s_cselect_b32 s65, 1, 0
    s_lshl_b32 s56, s55, 6              ; rho*64
    s_add_u32 s48, s56, {XP}
    """)
    for i in range(1, 7): P(f's_add_u32 s{48+i}, s{47+i}, {16*PS}')
    P(f"""
    s_lshl_b32 s57, s55, 6
    s_add_u32 s58, s57, {MODF}
    v_lshlrev_b32 v117, 16, v117
    s_waitcnt lgkmcnt(0)
    s_barrier
    """)
    stamp(5)
    P(f"""
    s_cmp_lg_u32 s65, 0
    s_cbranch_scc1 L_exit
    """)
    def red_loads(n):
        def f(B):
            return [f'buffer_load_dwordx4 v[{B+4*n}:{B+4*n+3}], v114, s[44:47], s58 offen sc1'] + \
                   [f'buffer_load_dwordx4 v[{B+4*i}:{B+4*i+3}], v115, s[44:47], s{48+i} offen sc1' for i in range(n)]
        return f
    def red_check(n):
        def f(B):
            bases = [B+4*i for i in range(n+1)]
            if n + 1 <= 8: check_g(bases)()
            else:
                check_g(bases[:5])()
                P('s_mov_b64 s[62:63], vcc')
                check_g(bases[5:])()
                P('s_or_b64 vcc, vcc, s[62:63]')
        return f
    def xp_post(B):
        reduce4(0, 1, 7, B)
        rne_many([B, B+1])
        for j in range(2): P(f'v_mul_f32 v{B+j}, v{B+j}, v{B+28+j}')
        rne_many([B, B+1])
        for j in range(2): P(f'v_add_f32 v{120+j}, v{B+j}, v{116+j}')
        rne_many([120, 121])
    if cfg.pipe: poll2(red_loads(7), red_check(7), xp_post, 16, 48, 8)
    else:
        poll(red_loads(7)(16), lambda: red_check(7)(16))
        if cfg.debug: P('s_sub_u32 s84, 0x8000, s64')
        xp_post(16)
    P(f"""
    s_add_u32 s59, s57, {X2}
    s_mov_b64 exec, 0xffffffff
    buffer_store_dwordx4 v[120:123], v118, s[44:47], s59 offen sc1
    s_mov_b64 exec, -1
    """)
    stamp(6)
    P(f's_add_u32 s48, s56, {FP}')
    for i in range(1, 9): P(f's_add_u32 s{48+i}, s{47+i}, {16*PS}')
    P(f's_add_u32 s58, s57, {MODF+864*16}')
    srd(40, 30, 1152)
    def fp_post(B):
        reduce4(0, 1, 9, B)
        rne_many([B, B+1])
        for j in range(2): P(f'v_mul_f32 v{B+j}, v{B+j}, v{B+36+j}')
        rne_many([B, B+1])
        for j in range(2): P(f'v_add_f32 v{8+j}, v{B+j}, v{120+j}')
        for j in range(2): P(f'v_cvt_pk_bf16_f32 v{8+j}, v{8+j}, v{8+j}')
    if cfg.pipe: poll2(red_loads(9), red_check(9), fp_post, 24, 64, 10)
    else:
        poll(red_loads(9)(24), lambda: red_check(9)(24))
        if cfg.debug: P('s_sub_u32 s86, 0x8000, s64')
        fp_post(24)
    P(f"""
    s_mov_b64 exec, 0xf
    buffer_store_short v8, v113, s[40:43], 0 offen
    buffer_store_short v9, v113, s[40:43], 0 offen offset:16
    s_mov_b64 exec, -1
    """)
    stamp(7)
    P(f"""
    s_mul_i32 s55, s4, 7
    s_add_u32 s55, s55, s5
    s_cmp_lg_u32 s55, 0
    s_cbranch_scc1 L_exit
    v_mov_b32 v4, {EPOCH}
    v_mov_b32 v8, s6
    v_mov_b32 v9, s7
    s_mov_b64 exec, 1
    buffer_store_dwordx2 v[8:9], v4, s[44:47], 0 offen sc1
    s_mov_b64 exec, -1
    """)
    end_wave()

def commF_role():
    P('L_commF:')
    role(6)
    P('s_setprio 3')
    SB, CB, XA = 32, 52, 72
    P(f"""
    v_lshlrev_b32 v4, 4, v1             ; granule l
    v_and_b32 v5, 31, v1
    v_lshlrev_b32 v5, 4, v5
    s_mov_b32 s56, {MODF+288*16}
    s_mov_b32 s57, {MODF+576*16}
    s_add_u32 s58, s56, 4096
    s_add_u32 s59, s57, 4096
    s_and_b32 s52, s2, 7
    s_mul_i32 s52, s52, {X2S}
    s_add_u32 s52, s52, {X2}
    s_add_u32 s53, s52, 4096
    v_cmp_gt_u32 s[54:55], 32, v1
    """)
    lds_wait(FL_PUB, 1, sleep=1)
    def gl(base, sreg, sreg2):
        return [f'buffer_load_dwordx4 v[{base+4*n}:{base+4*n+3}], v4, s[44:47], {sreg} offen offset:{1024*n} sc1' for n in range(4)] + \
               [f'buffer_load_dwordx4 v[{base+16}:{base+19}], v5, s[44:47], {sreg2} offen sc1']
    def chk():
        check_g([SB+4*n for n in range(5)])()
        P('s_mov_b64 s[62:63], vcc')
        check_g([CB+4*n for n in range(5)])()
        P('s_or_b64 vcc, vcc, s[62:63]')
    poll(gl(SB, 's56', 's58') + gl(CB, 's57', 's59'), chk)
    cbv = [CB+4*n+j for n in range(5) for j in range(2)]
    sbv = [SB+4*n+j for n in range(5) for j in range(2)]
    xav = [XA+4*n+j for n in range(5) for j in range(2)]
    for r in cbv: P(f'v_add_f32 v{r}, 1.0, v{r}')
    rne_many(cbv)
    P('v_lshlrev_b32 v6, 2, v1')
    def x2_post(B):
        xv = [B+4*n+j for n in range(5) for j in range(2)]
        for r in xv[8:]: P(f'v_cndmask_b32 v{r}, 0, v{r}, s[54:55]')
        ln_stats(xv, 'v112', 'v113', 'v114', 'v115', maskfix=(xv[8:], 's[54:55]'))
        for r in xv: P(f'v_sub_f32 v{r}, v{r}, v112')
        rne_many(xv)
        for r in xv: P(f'v_mul_f32 v{r}, v{r}, v113')
        rne_many(xv)
        for r, c in zip(xv, cbv): P(f'v_mul_f32 v{r}, v{r}, v{c}')
        rne_many(xv)
        for r, c in zip(xv, sbv): P(f'v_add_f32 v{r}, v{r}, v{c}')
        for n in range(5): P(f'v_cvt_pk_bf16_f32 v{B+4*n}, v{B+4*n}, v{B+4*n+1}')
        for n in range(4): P(f'ds_write_b32 v6, v{B+4*n} offset:{L_XS+256*n}')
        P(f"""
        s_mov_b64 exec, 0xffffffff
        ds_write_b32 v6, v{B+16} offset:{L_XS+1024}
        s_mov_b64 exec, -1
        """)
    if cfg.pipe: poll2(lambda B: gl(B, 's52', 's53'), lambda B: check_g([B+4*n for n in range(5)])(), x2_post, 72, 92, 5)
    else:
        poll(gl(72, 's52', 's53'), check_g([72+4*n for n in range(5)])); x2_post(72)
    stamp(7)
    P(f"""
    s_bfe_u32 s54, s2, 0x10003
    s_xor_b32 s55, s54, 1
    s_lshl_b32 s55, s55, 7
    v_and_b32 v8, 31, v1
    v_lshlrev_b32 v8, 2, v8
    v_add_u32 v8, s55, v8
    s_mul_i32 s56, s4, 9
    s_add_u32 s56, s56, s5
    s_sub_u32 s56, s56, 7             ; phi
    s_lshl_b32 s56, s56, 8
    s_add_u32 s57, s56, {GXL}
    s_add_u32 s56, s56, {GX}
    v_lshrrev_b32 v9, 1, v1
    v_lshlrev_b32 v9, 4, v9
    v_mov_b32 v18, s6
    v_mov_b32 v19, s7
    s_waitcnt lgkmcnt(0)
    s_barrier
    s_barrier
    ds_read_b32 v16, v8 offset:{L_RED3}
    ds_read_b32 v17, v8 offset:{L_RED3+256}
    ds_read_b32 v20, v8 offset:{L_RED3+512}
    ds_read_b32 v21, v8 offset:{L_RED3+768}
    s_waitcnt lgkmcnt(0)
    v_add_f32 v16, v16, v17
    v_add_f32 v20, v20, v21
    v_add_f32 v16, v16, v20
    """)
    rne('v16', 'v16')
    P(f"""
    v_mov_b32_dpp v17, v16 quad_perm:[1,0,3,2] {DPPM}
    s_mov_b64 exec, 0x55555555
    buffer_store_dwordx4 v[16:19], v9, s[44:47], s57 offen
    buffer_store_dwordx4 v[16:19], v9, s[44:47], s56 offen sc1
    s_mov_b64 exec, -1
    """)
    end_wave()

def gu_role(nkv):
    RAW = 32
    P('L_gu:')
    role(7)
    if cfg.pf_gu:
        P('s_cmp_lg_u32 s3, 1\ns_cbranch_scc1 L_gu_nopf')
        prefetch_code()
        P('L_gu_nopf:')
    P('s_barrier')
    tag_ready()
    q_fetch('L_gu2')
    P('L_gu2:')
    stamp(5)
    P(f"""
    s_sub_u32 s53, s3, 1              ; i
    s_bfe_u32 s54, s2, 0x10003        ; type
    s_cmp_eq_u32 s54, 0
    s_cselect_b32 s36, s20, s22
    s_cselect_b32 s37, s21, s23
    s_mov_b32 s38, {576*9216}
    s_mov_b32 s39, 0x20000
    s_and_b32 s56, s2, 7
    s_mul_i32 s56, s56, 9
    s_add_u32 s56, s56, s5
    s_sub_u32 s56, s56, 7             ; j
    s_lshl_b32 s56, s56, 7
    s_mul_i32 s55, s53, 5
    s_lshl_b32 s57, s53, 2
    s_add_u32 s57, s57, 2
    s_cmp_lt_u32 s53, 2
    s_cselect_b32 s55, s55, s57       ; t0
    s_mul_i32 s57, s55, {32*9216}
    s_add_u32 s56, s56, s57
    v_mul_u32_u24 v4, {2*9216}, v3
    v_lshl_add_u32 v4, v2, 3, v4
    s_mov_b32 s58, 0x05040100
    s_mov_b32 s59, 0x07060302
    s_lshl_b32 s57, s55, 6
    v_lshlrev_b32 v5, 4, v3
    v_add_u32 v5, s57, v5
    s_lshl_b32 s57, s53, 8
    v_lshlrev_b32 v13, 4, v2
    v_add_u32 v13, s57, v13
    """)
    if cfg.gu_gate == 'pub': lds_wait(FL_PUB, 1, sleep=2)
    else: lds_wait(C_KVI, nkv, sleep=2)
    stamp(1)
    def loads(u):
        for j in range(8):
            off = (32*u + 8*(j & 3) + (j >> 2)) * 9216
            P(f's_add_u32 s57, s56, {off}')
            r = RAW + 16*u + 2*j
            P(f'buffer_load_dwordx2 v[{r}:{r+1}], v4, s[36:39], s57 offen nt')
    def perm(u):
        src = RAW + 16*u
        dst = src - 16
        for i in range(4):
            a0, a1 = src + 4*i, src + 4*i + 2
            P(f'v_perm_b32 v{dst+i}, v{a1}, v{a0}, s58')
            P(f'v_perm_b32 v{dst+4+i}, v{a1}, v{a0}, s59')
            P(f'v_perm_b32 v{dst+8+i}, v{a1+1}, v{a0+1}, s58')
            P(f'v_perm_b32 v{dst+12+i}, v{a1+1}, v{a0+1}, s59')
    def body(n, sfx):
        for u in range(n):
            if cfg.gu_dyn and u > 0:
                l = P.lbl('Lgd')
                P(f"""
                v_mov_b32 v7, 0
                ds_read_b32 v6, v7 offset:{FL_PUB}
                s_waitcnt lgkmcnt(0)
                v_readfirstlane_b32 s60, v6
                s_cmp_lg_u32 s60, 0
                s_cbranch_scc1 {l}
                s_waitcnt vmcnt({cfg.gu_dyn})
                {l}:
                """)
            loads(u)
        for u in range(n):
            P(f's_waitcnt vmcnt({8*(n-1-u)})')
            perm(u)
        stamp(2)
        P('s_barrier')
        stamp(3)
        AF = [96 + 4*u for u in range(n)]
        D = [116, 120, 124, 8]
        for u in range(n): P(f'ds_read_b128 v[{AF[u]}:{AF[u]+3}], v5 offset:{L_XS+64*u}')
        for u in range(n):
            P(f's_waitcnt lgkmcnt({n-1-u})')
            f0 = RAW - 16 + 16*u
            for q in range(4):
                c = '0' if u == 0 else f'v[{D[q]}:{D[q]+3}]'
                P(f'v_mfma_f32_16x16x32_bf16 v[{D[q]}:{D[q]+3}], v[{AF[u]}:{AF[u]+3}], v[{f0+4*q}:{f0+4*q+3}], {c}')
        P(f"""
        v_mov_b32 v16, v{D[0]}
        v_mov_b32 v17, v{D[1]}
        v_mov_b32 v18, v{D[2]}
        v_mov_b32 v19, v{D[3]}
        s_mov_b64 exec, 0xffff
        ds_write_b128 v13, v[16:19] offset:{L_RED3}
        s_mov_b64 exec, -1
        s_waitcnt lgkmcnt(0)
        s_barrier
        """)
        stamp(4)
        end_wave()
    P('s_cmp_ge_u32 s53, 2\ns_cbranch_scc1 L_gu_n4')
    body(5, 'a')
    P('L_gu_n4:')
    body(4, 'b')

def build():
    global CODE_PF
    CODE_PF = 4
    prologue()
    cF, cQ, cM = cfg.cF, cfg.cQ, cfg.cM
    assert 9*cF + 4*cQ + 3*cM == 256 and cF % 2 == 0 and cQ % 2 == 0 and cM % 2 == 0 and cF//2 >= 6 and cQ <= 12 and cM <= 12
    mod_role()
    wq_role()
    kv_role('L_kvF', cF//2, lambda: P(f's_sub_u32 s52, s5, 7\ns_mul_i32 s52, s52, {cF}\ns_add_u32 s52, s52, {3*cM+4*cQ}'), (C_GA, 4) if 0 else None, True, cfg.kF)
    kv_role('L_kvM', cM//2, lambda: P(f's_mul_i32 s52, s5, {cM}'), ((C_B2, 6) if cfg.m_order in ('a_b_kv_wo', 'a_wo_b_kv') else ((C_H, 1) if cfg.order2 else (C_WO, 3))), False, cfg.kM)
    kv_role('L_kvQ', cQ//2, lambda: P(f's_sub_u32 s52, s5, 3\ns_mul_i32 s52, s52, {cQ}\ns_add_u32 s52, s52, {3*cM}'), ((C_WO, 3) if cfg.q_order == 'wo_kv' else (C_G, 1)), False, cfg.kQ)
    wo_role('Q', cQ//2)
    wo_role('M', cM//2)
    wo_common()
    commA_role()
    gu_role(cF//2)
    down_role()
    commF_role()

    P('L_abort:')
    P('s_mov_b64 exec, -1')
    P('L_exit:')
    if cfg.debug:
        P(f"""
        s_waitcnt lgkmcnt(0)
        s_lshl_b32 s60, s2, 4
        s_add_u32 s60, s60, s3
        s_lshl_b32 s60, s60, 6
        s_add_u32 s60, s60, {DBG}
        s_memrealtime s[96:97]
        s_waitcnt lgkmcnt(0)
        v_mov_b32 v8, s96
        """)
        for i in range(8): P(f'v_writelane_b32 v8, s{80+2*i}, {i}')
        P(f"""
        v_and_b32 v1, 63, v0
        v_lshlrev_b32 v7, 2, v1
        s_mov_b64 exec, 0x1ff
        buffer_store_dword v8, v7, s[44:47], s60 offen
        """)
    if cfg.hdbg:
        SL = {(3, 3): 3, (2, 2): 4, (2, 4): 5, (1, 3): 6, (1, 5): 7, (1, 6): 8, (5, 4): 9, (5, 6): 10, (6, 7): 11, (8, 6): 12, (7, 2): 13, (5, 7): 14, (6, 3): 6, (6, 5): 7, (6, 6): 8, (8, 3): 6, (8, 5): 7, (4, 7): 15}
        P("""
        s_waitcnt lgkmcnt(0)
        s_memrealtime s[96:97]
        s_mov_b32 s68, s32
        s_mov_b32 s69, s33
        s_mov_b32 s70, 256
        s_mov_b32 s71, 0x20000
        s_mov_b64 exec, 1
        s_waitcnt lgkmcnt(0)
        v_mov_b32 v8, s96
        v_mov_b32 v9, 4
        buffer_atomic_umax v8, v9, s[68:71], 0 offen sc1
        s_not_b32 s96, s80
        v_mov_b32 v8, s96
        v_mov_b32 v9, 0
        buffer_atomic_umax v8, v9, s[68:71], 0 offen sc1
        v_mov_b32 v8, s80
        v_mov_b32 v9, 8
        buffer_atomic_umax v8, v9, s[68:71], 0 offen sc1
        """)
        for r in range(1, 9):
            l = P.lbl('Lhd')
            P(f's_cmp_lg_u32 s98, {r}')
            P(f's_cbranch_scc1 {l}')
            for (rr, k), slot in SL.items():
                if rr == r:
                    P(f'v_mov_b32 v8, s{80+2*k}')
                    P(f'v_mov_b32 v9, {4*slot}')
                    P('buffer_atomic_umax v8, v9, s[68:71], 0 offen sc1')
            P(f'{l}:')
    P('L_end:')
    P('s_endpgm')
    P('L_codeend:')
    P.finalize()
    body = P.text()
    return (HEADER_COMMENT +
f"""; @launch grid=(256,1,1) block=(1024,1,1) lds={LDS_BYTES}
.amdgcn_target "amdgcn-amd-amdhsa--gfx950"
.text
.globl {KN}
.p2align 8
.type {KN},@function
{KN}:
{body}
.section .rodata,"a"
.p2align 6
.amdhsa_kernel {KN}
  .amdhsa_next_free_vgpr 128
  .amdhsa_next_free_sgpr 102
  .amdhsa_accum_offset 128
  .amdhsa_group_segment_fixed_size 0
  .amdhsa_kernarg_size 112
  .amdhsa_user_sgpr_count 2
  .amdhsa_user_sgpr_kernarg_segment_ptr 1
  .amdhsa_system_sgpr_workgroup_id_x 1
.end_amdhsa_kernel
""")

if __name__ == '__main__':
    import argparse
    ap = argparse.ArgumentParser()
    ap.add_argument('-o', default='k.s')
    ap.add_argument('--debug', action='store_true')
    ap.add_argument('--tiles', default='22,4,14')
    ap.add_argument('--set', nargs='*', default=[])
    a = ap.parse_args()
    cfg.debug = a.debug
    cfg.cF, cfg.cQ, cfg.cM = map(int, a.tiles.split(','))
    for kv in a.set:
        k, v = kv.split('=')
        old = getattr(cfg, k)
        setattr(cfg, k, type(old)(int(v)) if isinstance(old, (bool, int)) else v)
    open(a.o, 'w').write(build())
```

```python
import sys, math, struct
from dsl import Prog
from asmlib import HEADER_COMMENT, KN

class Cfg:
    cF, cQ, cM = 22, 4, 14
    debug = False
    prefetch_code = True
    kF, kQ, kM = '0', '0', '0'
    gu_depth = 4
    gul = 0
    gu_gate = 'pub'
    k_first = True
    pre_barrier = 1
    wo_k = 4
    b_k = 4
    q_sleep = 4
    poll_sleep = 0
    kvonly = False
    pf2 = 0
    pf_early = 16
    pf_gu = True
    h3_local = True
    local_tries = 200
    m_order = 'a_kv_wo_b'
    gu_dyn = 0
    q_order = 'kv_wo'
    order2 = True
    wq_first = False
    q_direct = True
    hdbg = False
    q_wo_gate = False
    q_wo_first = True
    stagger = 6
    pipe = True
    gu_early = 3
    b_on = 'M'
    m_gate_pub = False
cfg = Cfg()

EPOCH = 0x0
MODP = 0x1000
QF = 0x8000
MODF = 0x20000
X2 = 0x28000
X2S = 0x1400
H3 = 0x40000
H3S = 2560
XP = 0xE0000
FP = 0x160000
PS = 4608
H3L = 0x210000
DBG = 0x300000
FL_Q, C_KVI, C_MAX, C_O, C_RED, C_H, C_G, FL_PUB, C_K, C_B, C_GA, C_B2, C_WO = 0, 4, 8, 12, 16, 20, 24, 28, 32, 36, 40, 44, 48
L_ZERO = 0x100
L_Q = 0x200
L_MX = 0x400
L_LS = 0x480
L_XS = 0x500
L_RED3 = 0xA00
L_XA = 0x1100
L_SLOT = 0x1200
L_OSLOT = 0x1200 + 18*1024
LDS_BYTES = 0x1200 + 30*1024
LOG2E = 0x3FB8AA3B
SCALE = 0x3DB504F3
GOLD0, GOLD1 = 0x7F4A7C15, 0x9E3779B9
def f32hex(x): return struct.unpack('<I', struct.pack('<f', x))[0]

P = Prog()
ABORT = 'L_abort'
DPPM = 'row_mask:0xf bank_mask:0xf'

def stamp(i):
    if cfg.debug or cfg.hdbg: P(f's_memrealtime s[{80+2*i}:{81+2*i}]')

def role(n):
    if cfg.hdbg: P(f's_mov_b32 s98, {n}')

def srd(base, ptr, nbytes):
    P(f"""
    s_mov_b32 s{base}, s{ptr}
    s_mov_b32 s{base+1}, s{ptr+1}
    s_mov_b32 s{base+2}, {nbytes}
    s_mov_b32 s{base+3}, 0x20000
    """)

def tag_ready():
    P(f"""
    s_waitcnt lgkmcnt(0)
    s_add_u32 s6, s6, {GOLD0:#x}
    s_add_u32 s7, s7, {GOLD1:#x}
    """)

def lds_wait(off, target, sleep=1):
    l = P.lbl('Lw'); d = P.lbl('Ld')
    P(f"""
    v_mov_b32 v7, 0
    s_mov_b32 s61, 0x400000
    {l}:
    ds_read_b32 v6, v7 offset:{off}
    s_waitcnt lgkmcnt(0)
    v_readfirstlane_b32 s60, v6
    s_cmp_ge_u32 s60, {target}
    s_cbranch_scc1 {d}
    s_sub_u32 s61, s61, 1
    s_cbranch_scc1 {ABORT}
    """)
    if sleep: P(f's_sleep {sleep}')
    P(f"""
    s_branch {l}
    {d}:
    """)

def lds_add(off):
    P(f"""
    v_mov_b32 v7, 0
    v_mov_b32 v6, 1
    s_mov_b64 s[62:63], exec
    s_mov_b64 exec, 1
    ds_add_u32 v7, v6 offset:{off}
    s_mov_b64 exec, s[62:63]
    """)

def lds_add_rtn(off, sdst):
    P(f"""
    v_mov_b32 v7, 0
    v_mov_b32 v6, 1
    s_mov_b64 s[62:63], exec
    s_mov_b64 exec, 1
    ds_add_rtn_u32 v6, v7, v6 offset:{off}
    s_waitcnt lgkmcnt(0)
    v_readfirstlane_b32 {sdst}, v6
    s_mov_b64 exec, s[62:63]
    """)

def rne(dst, src):
    P(f'v_cvt_pk_bf16_f32 {dst}, {src}, {src}')
    P(f'v_lshlrev_b32 {dst}, 16, {dst}')

def rne_many(regs):
    for r in regs: P(f'v_cvt_pk_bf16_f32 v{r}, v{r}, v{r}')
    for r in regs: P(f'v_lshlrev_b32 v{r}, 16, v{r}')

def xrow_multi(op, vs, ts):
    for sw in ('v_permlane16_swap_b32', 'v_permlane32_swap_b32'):
        for v, t in zip(vs, ts): P(f'v_mov_b32 {t}, {v}')
        for v, t in zip(vs, ts): P(f'{sw} {v}, {t}')
        for v, t in zip(vs, ts): P(f'{op} {v}, {v}, {t}')

def wave_sum(v, t):
    for d in ('quad_perm:[1,0,3,2]', 'quad_perm:[2,3,0,1]', 'row_half_mirror', 'row_mirror'):
        P(f'v_add_f32_dpp {v}, {v}, {v} {d} {DPPM}')
    xrow_multi('v_add_f32', [v], [t])

def masks(base):
    P(f"""
    v_and_b32 v6, 1, v2
    v_lshlrev_b32 v6, 4, v6
    v_mov_b32 v7, 0xffff
    v_lshlrev_b32 v7, v6, v7
    v_bfe_u32 v6, v2, 1, 2
    """)
    for i in range(4):
        P(f'v_cmp_eq_u32 vcc, {i}, v6')
        P(f'v_cndmask_b32 v{base+i}, 0, v7, vcc')

def diag_mm(acc, wregs, xregs, mk, qa, qb):
    n = len(wregs)
    def prep(t):
        q = (qa, qb)[t & 1]
        for i in range(4): P(f'v_and_b32 v{q+i}, {xregs[t]}, v{mk+i}')
    prep(0)
    for t in range(n):
        if t + 1 < n: prep(t + 1)
        q = (qa, qb)[t & 1]
        c = '0' if t == 0 else f'v[{acc}:{acc+3}]'
        P(f'v_mfma_f32_16x16x32_bf16 v[{acc}:{acc+3}], v[{wregs[t]}:{wregs[t]+3}], v[{q}:{q+3}], {c}')

def poll(loads, check):
    l = P.lbl('Lp'); l2 = P.lbl('Lp')
    P('s_mov_b32 s64, 0x8000')
    if cfg.poll_sleep:
        P(f's_branch {l2}')
        P(f'{l}:')
        P(f's_sleep {cfg.poll_sleep}')
        P(f'{l2}:')
    else:
        P(f'{l}:')
    for x in loads: P(x)
    P('s_waitcnt vmcnt(0)')
    check()
    P(f"""
    s_sub_u32 s64, s64, 1
    s_cbranch_scc1 {ABORT}
    s_cbranch_vccnz {l}
    """)


def poll2(mk_loads, mk_check, post, baseA, baseB, nloads):
    la = P.lbl('Lq'); lb = P.lbl('Lq'); ga = P.lbl('Lq'); gb = P.lbl('Lq'); done = P.lbl('Lq')
    P('s_mov_b32 s64, 0x8000')
    for x in mk_loads(baseA): P(x)
    P(f's_sleep {cfg.stagger}')
    P(f'{la}:')
    for x in mk_loads(baseB): P(x)
    P(f's_waitcnt vmcnt({nloads})')
    mk_check(baseA)
    P(f"""
    s_cbranch_vccz {ga}
    s_sub_u32 s64, s64, 1
    s_cbranch_scc1 {ABORT}
    """)
    for x in mk_loads(baseA): P(x)
    P(f's_waitcnt vmcnt({nloads})')
    mk_check(baseB)
    P(f"""
    s_cbranch_vccz {gb}
    s_branch {la}
    """)
    P(f'{gb}:')
    post(baseB)
    P(f's_branch {done}')
    P(f'{ga}:')
    post(baseA)
    P(f'{done}:')

def check_g(bases):
    def f():
        n = len(bases)
        assert n <= 8 + 5
        prs = [66 + 2*i for i in range(7)] + [96, 98]
        assert n <= len(prs) + 1
        for i, b in enumerate(bases):
            dst = 'vcc' if i == n - 1 else f's[{prs[i]}:{prs[i]+1}]'
            P(f'v_cmp_ne_u64 {dst}, s[6:7], v[{b+2}:{b+3}]')
        for i in range(n - 1):
            P(f's_or_b64 vcc, vcc, s[{prs[i]}:{prs[i]+1}]')
    return f

def check_tags32(regs, t='v6', t2='v7'):
    def f():
        rs = list(regs)
        P(f'v_xor_b32 {t}, s7, v{rs[0]}')
        for r in rs[1:]:
            P(f'v_xor_b32 {t2}, s7, v{r}')
            P(f'v_or_b32 {t}, {t}, {t2}')
        P(f'v_cmp_ne_u32 vcc, 0, {t}')
    return f

def end_wave(): P('s_branch L_exit')

def make_granules(G, ACC):
    P(f'v_mov_b32 v{G}, v{ACC}')
    P(f'v_mov_b32 v{G+1}, v{ACC+1}')
    P(f'v_mov_b32 v{G+4}, v{ACC+2}')
    P(f'v_mov_b32 v{G+5}, v{ACC+3}')
def tag_fill(G):
    for o in (2, 6):
        P(f'v_mov_b32 v{G+o}, s6')
        P(f'v_mov_b32 v{G+o+1}, s7')

def prologue():
    P(f"""
    s_cmp_ge_u32 s2, 256
    s_cbranch_scc1 L_end
    s_load_dwordx16 s[8:23], s[0:1], 0
    s_load_dwordx8 s[24:31], s[0:1], 64
    s_load_dwordx4 s[32:35], s[0:1], 96
    """)
    if cfg.prefetch_code and cfg.pf_early:
        P(f"""
        s_cmp_ge_u32 s2, {cfg.pf_early}
        s_cbranch_scc1 L_nopf0
        v_lshrrev_b32 v4, 6, v0
        v_cmp_ne_u32 vcc, 10, v4
        s_cbranch_vccnz L_nopf0
        v_and_b32 v1, 63, v0
        """)
        prefetch_code('0', 124)
        P('L_nopf0:')
    if cfg.hdbg:
        for i in range(1, 8): P(f's_mov_b32 s{80+2*i}, 0')
        P('s_mov_b32 s98, 0')
    stamp(0)
    P(f"""
    v_lshrrev_b32 v4, 6, v0
    v_and_b32 v1, 63, v0
    v_and_b32 v2, 15, v1
    v_readfirstlane_b32 s3, v4
    v_lshrrev_b32 v3, 4, v1
    s_and_b32 s4, s2, 7
    s_lshl_b32 s4, s4, 1
    s_bfe_u32 s5, s2, 0x10003
    s_add_u32 s4, s4, s5
    s_lshr_b32 s5, s2, 4
    s_cmp_lg_u32 s3, 0
    s_cbranch_scc1 L_nozero
    v_lshlrev_b32 v4, 2, v1
    v_mov_b32 v5, 0
    ds_write_b32 v4, v5
    ds_write_b32 v4, v5 offset:256
    ds_write_b32 v4, v5 offset:{L_XA}
    L_nozero:
    s_waitcnt lgkmcnt(0)
    s_load_dwordx2 s[6:7], s[34:35], 0
    """)
    srd(44, 34, 0x40000000)
    nkF, nkQ, nkM = cfg.cF//2, cfg.cQ//2, cfg.cM//2
    if cfg.kvonly:
        P(f"""
        s_cmp_lt_u32 s5, 3
        s_cselect_b32 s60, {16-nkM}, {16-nkQ}
        s_cmp_ge_u32 s5, 7
        s_cselect_b32 s60, {16-nkF}, s60
        s_cmp_ge_u32 s3, s60
        s_cbranch_scc1 L_kvgo
        s_barrier
        s_branch L_end
        L_kvgo:
        """)
    P(f"""
    s_cmp_lt_u32 s5, 3
    s_cbranch_scc1 L_classM
    s_cmp_lt_u32 s5, 7
    s_cbranch_scc1 L_classQ
    s_cmp_eq_u32 s3, 0
    s_cbranch_scc1 L_kvF0
    s_cmp_le_u32 s3, 4
    s_cbranch_scc1 L_gu
    s_cmp_ge_u32 s3, {16-min(nkF, 11)}
    s_cbranch_scc1 L_kvF
    s_branch L_idle
    L_classQ:
    s_cmp_ge_u32 s3, {16-nkQ}
    s_cbranch_scc1 L_kvQ
    s_cmp_eq_u32 s3, 0
    s_cbranch_scc1 L_commA
    s_cmp_le_u32 s3, 6
    s_cbranch_scc1 L_wq
    s_cmp_le_u32 s3, 9
    s_cbranch_scc1 L_woQ
    s_branch L_idle
    L_classM:
    s_cmp_ge_u32 s3, {16-nkM}
    s_cbranch_scc1 L_kvM
    s_cmp_eq_u32 s3, 0
    s_cbranch_scc1 L_commA
    s_cmp_le_u32 s3, 6
    s_cbranch_scc1 L_mod
    s_cmp_le_u32 s3, 9
    s_cbranch_scc1 L_woM
    L_idle:
    s_barrier
    s_waitcnt vmcnt(0)
    s_branch L_end
    """)

def kv_role(name, nkv, tile_expr, gate, is_f, kinf='0'):
    K0, V0, QF_, SD, TT, ACC, MK = 32, 64, 96, 24, 28, 96, 8
    if is_f:
        P('L_kvF0:')
        if nkv == 12:
            P('s_mov_b32 s53, 11')
            P('s_branch L_kvFgo')
        else:
            P('s_branch L_idle')
        P(f'{name}:')
        P(f's_sub_u32 s53, s3, {16-min(nkv, 11)}')
        P('L_kvFgo:')
    else:
        P(f'{name}:')
        P(f's_sub_u32 s53, s3, {16-nkv}')
    role(1)
    tile_expr()
    P(f"""
    s_lshl_b32 s54, s53, 1
    s_add_u32 s52, s52, s54
    s_lshl_b32 s52, s52, 12
    s_lshl_b32 s54, s4, 24
    s_add_u32 s52, s52, s54
    s_add_u32 s52, s52, {61440*256}
    s_add_u32 s55, s52, 4096
    """)
    srd(36, 10, 0x10000000)
    srd(40, 12, 0x10000000)
    P(f"""
    v_and_b32 v4, 7, v1
    v_lshlrev_b32 v4, 8, v4
    v_lshrrev_b32 v5, 3, v1
    v_lshl_add_u32 v4, v5, 4, v4          ; K: (l&7)*256 + (l>>3)*16
    v_lshlrev_b32 v5, 10, v3
    v_lshl_add_u32 v5, v2, 4, v5          ; V: gq*1024 + m*16
    """)
    if cfg.kvonly: gate = None
    if gate:
        P('s_barrier')
        lds_wait(gate[0], gate[1], sleep=2)
    stamp(1)
    st = {'n': 0}
    lim = lambda i: int(kinf[min(i, len(kinf)-1)], 16)
    def issue(r, vo, srdr, sreg, off):
        n = st['n']
        if not gate and n == cfg.pre_barrier: P('s_barrier')
        k = lim(n)
        if k and n >= k: P(f's_waitcnt vmcnt({k-1})')
        P(f'buffer_load_dwordx4 v[{r}:{r+3}], {vo}, s[{srdr}:{srdr+3}], {sreg} offen offset:{off} nt')
        st['n'] += 1
    for u in range(4):
        for hh in range(2):
            issue(K0 + 4*(2*u+hh), 'v4', 36, 's52' if u < 2 else 's55', (u & 1)*2048 + hh*128)
    if cfg.k_first:
        lds_add(C_K)
        lds_wait(C_K, nkv, sleep=1)
    for t in range(2):
        for r_ in range(4):
            issue(V0 + 16*t + 4*r_, 'v5', 40, 's52' if t == 0 else 's55', 256*r_)
    lds_add(C_KVI)
    stamp(2)
    if cfg.kvonly:
        P('s_waitcnt vmcnt(8)'); stamp(4)
        P('s_waitcnt vmcnt(0)'); stamp(5)
        end_wave(); return
    masks(MK)
    P(f"""
    v_bfe_u32 v12, v2, 2, 1
    v_lshlrev_b32 v22, 2, v12
    v_lshlrev_b32 v12, 8, v12
    v_lshrrev_b32 v13, 3, v2
    v_lshl_add_u32 v13, v3, 1, v13        ; 2g + par
    v_lshl_add_u32 v12, v13, 4, v12
    v_add_u32 v12, {L_Q}, v12
    v_and_b32 v13, 3, v2
    v_mov_b32 v14, {L_ZERO}
    """)
    for u in range(4):
        P(f'v_cmp_eq_u32 vcc, {u}, v13')
        P(f'v_cndmask_b32 v{16+u}, v14, v12, vcc')
    P(f"""
    v_and_b32 v12, 1, v3
    v_lshlrev_b32 v12, 4, v12
    v_lshrrev_b32 v13, 3, v2
    v_lshl_add_u32 v12, v13, 2, v12
    v_lshrrev_b32 v13, 1, v3
    v_add_u32 v12, v12, v13
    v_lshlrev_b32 v20, 2, v12
    v_add_u32 v21, 8, v20
    """)
    tag_ready()
    lds_wait(FL_Q, 4, sleep=2)
    stamp(3)
    P('s_waitcnt vmcnt(16)')
    for u in range(4):
        for hh in range(2):
            r = QF_ + 4*(2*u+hh)
            P(f'ds_read_b128 v[{r}:{r+3}], v{16+u} offset:{128*hh}')
    P('s_waitcnt vmcnt(8)')
    stamp(4)
    for i in range(8):
        P(f's_waitcnt lgkmcnt({7-i})')
        c = '0' if i == 0 else f'v[{SD}:{SD+3}]'
        P(f'v_mfma_f32_16x16x32_bf16 v[{SD}:{SD+3}], v[{K0+4*i}:{K0+4*i+3}], v[{QF_+4*i}:{QF_+4*i+3}], {c}')
    for j in range(4): P(f'v_mov_b32 v{TT+j}, v{SD+j}')
    for j in range(4): P(f'v_permlane32_swap_b32 v{SD+j}, v{TT+j}')
    for j in range(4): P(f'v_add_f32_dpp v{SD+j}, v{TT+j}, v{SD+j} row_shl:8 {DPPM}')
    P(f's_mov_b32 s56, {SCALE:#x}')
    P(f's_mov_b32 s57, 0xffff0000')
    P(f's_mov_b32 s58, {LOG2E:#x}')
    for rep in range(2):
        for p in range(2): P(f'v_cvt_pk_bf16_f32 v{TT+p}, v{SD+2*p}, v{SD+2*p+1}')
        for p in range(2):
            P(f'v_lshlrev_b32 v{SD+2*p}, 16, v{TT+p}')
            P(f'v_and_b32 v{SD+2*p+1}, s57, v{TT+p}')
        if rep == 0:
            for i in range(4): P(f'v_mul_f32 v{SD+i}, s56, v{SD+i}')
    P(f"""
    v_max3_f32 v12, v{SD}, v{SD+1}, v{SD+2}
    v_max_f32 v12, v12, v{SD+3}
    v_max_f32_dpp v12, v12, v12 quad_perm:[1,0,3,2] {DPPM}
    v_max_f32_dpp v12, v12, v12 quad_perm:[2,3,0,1] {DPPM}
    v_mov_b32 v13, v12
    v_permlane16_swap_b32 v12, v13
    v_max_f32 v12, v12, v13
    s_lshl_b32 s59, s53, 3
    v_add_u32 v23, s59, v22
    s_mov_b64 s[62:63], exec
    s_mov_b64 exec, 0x11
    ds_write_b32 v23, v12 offset:{L_MX}
    s_mov_b64 exec, s[62:63]
    """)
    lds_add(C_MAX)
    lds_wait(C_MAX, nkv, sleep=0)
    for i in range(nkv): P(f'ds_read_b32 v{K0+i}, v22 offset:{L_MX+8*i}')
    P('s_waitcnt lgkmcnt(0)')
    MX = 15
    P(f'v_mov_b32 v{MX}, v{K0}')
    i = 1
    while i < nkv:
        if i + 1 < nkv: P(f'v_max3_f32 v{MX}, v{MX}, v{K0+i}, v{K0+i+1}'); i += 2
        else: P(f'v_max_f32 v{MX}, v{MX}, v{K0+i}'); i += 1
    P(f'v_mul_f32 v13, s58, v{MX}')
    for i in range(4): P(f'v_fma_f32 v{SD+i}, v{SD+i}, s58, -v13')
    for i in range(4): P(f'v_exp_f32 v{SD+i}, v{SD+i}')
    P(f"""
    v_add_f32 v12, v{SD}, v{SD+1}
    v_add_f32 v13, v{SD+2}, v{SD+3}
    """)
    for i in range(4): P(f'v_cvt_pk_bf16_f32 v{SD+i}, v{SD+i}, v{SD+i}')
    P('v_add_f32 v12, v12, v13')
    G = 104
    for t in range(2):
        for r_ in range(4): P(f'ds_bpermute_b32 v{G+4*t+r_}, v{20+t}, v{SD+r_}')
    P(f"""
    v_add_f32_dpp v12, v12, v12 quad_perm:[1,0,3,2] {DPPM}
    v_add_f32_dpp v12, v12, v12 quad_perm:[2,3,0,1] {DPPM}
    v_mov_b32 v13, v12
    v_permlane16_swap_b32 v12, v13
    v_add_f32 v12, v12, v13
    s_mov_b64 s[62:63], exec
    s_mov_b64 exec, 0x11
    ds_write_b32 v23, v12 offset:{L_LS}
    s_mov_b64 exec, s[62:63]
    s_waitcnt lgkmcnt(1)
    """)
    for i in range(8):
        for j in range(4): P(f'v_and_b32 v{K0+4*i+j}, v{G+i}, v{MK+j}')
    GR = 112
    tag_fill(GR)
    P(f'v_mov_b32 v122, s6\nv_mov_b32 v123, s7')
    P('s_waitcnt vmcnt(0)')
    stamp(5)
    for i in range(8):
        c = '0' if i == 0 else f'v[{ACC}:{ACC+3}]'
        P(f'v_mfma_f32_16x16x32_bf16 v[{ACC}:{ACC+3}], v[{V0+4*i}:{V0+4*i+3}], v[{K0+4*i}:{K0+4*i+3}], {c}')
    P(f"""
    s_lshl_b32 s59, s53, 10
    v_lshlrev_b32 v16, 4, v1
    v_add_u32 v17, s59, v16
    ds_write_b128 v17, v[{ACC}:{ACC+3}] offset:{L_OSLOT}
    """)
    lds_add_rtn(C_O, 's60')
    ldone = P.lbl('Lkvdone')
    P(f"""
    s_cmp_lg_u32 s60, {nkv-1}
    s_cbranch_scc1 {ldone}
    """)
    P('v_lshlrev_b32 v18, 3, v1')
    for i in range(nkv):
        P(f'ds_read_b64 v[{K0+4*i}:{K0+4*i+1}], v18 offset:{L_OSLOT+1024*i}')
        P(f'ds_read_b64 v[{K0+4*i+2}:{K0+4*i+3}], v18 offset:{L_OSLOT+1024*i+512}')
    LS0 = 100
    for i in range(nkv): P(f'ds_read_b32 v{LS0+i}, v22 offset:{L_LS+8*i}')
    P(f"""
    s_lshl_b32 s59, s4, 4
    s_add_u32 s59, s59, s5
    s_mul_i32 s59, s59, {H3S}
    s_add_u32 s59, s59, {H3}
    s_waitcnt lgkmcnt(0)
    """)
    regs = list(range(nkv))
    while len(regs) > 1:
        nxt = []
        for a in range(0, len(regs) - 1, 2):
            x, y = regs[a], regs[a+1]
            for j in range(4): P(f'v_add_f32 v{K0+4*x+j}, v{K0+4*x+j}, v{K0+4*y+j}')
            P(f'v_add_f32 v{LS0+x}, v{LS0+x}, v{LS0+y}')
            nxt.append(x)
        if len(regs) % 2: nxt.append(regs[-1])
        regs = nxt
    make_granules(GR, K0)
    P(f"""
    v_mov_b32 v120, v{MX}
    v_mov_b32 v121, v{LS0}
    """)
    if cfg.h3_local:
        P(f"""
        s_add_u32 s65, s59, {H3L - H3}
        buffer_store_dwordx4 v[{GR}:{GR+3}], v16, s[44:47], s65 offen
        buffer_store_dwordx4 v[{GR+4}:{GR+7}], v16, s[44:47], s65 offen offset:1024
        s_mov_b64 exec, 0xff
        buffer_store_dwordx4 v[120:123], v16, s[44:47], s65 offen offset:2048
        s_mov_b64 exec, -1
        """)
    P(f"""
    buffer_store_dwordx4 v[{GR}:{GR+3}], v16, s[44:47], s59 offen sc1
    buffer_store_dwordx4 v[{GR+4}:{GR+7}], v16, s[44:47], s59 offen offset:1024 sc1
    s_mov_b64 exec, 0xff
    buffer_store_dwordx4 v[120:123], v16, s[44:47], s59 offen offset:2048 sc1
    s_mov_b64 exec, -1
    """)
    lds_add(FL_PUB)
    stamp(6)
    P(f'{ldone}:')
    if is_f:
        P(f"""
        s_cmp_lt_u32 s53, 5
        s_cbranch_scc1 L_down
        s_cmp_eq_u32 s53, 5
        s_cbranch_scc1 L_commF
        s_branch L_exit
        """)
    else:
        end_wave()

def pack_pair(G, ACC):
    P(f'v_mov_b32 v{G}, v{ACC}')
    P(f'v_mov_b32 v{G+1}, v{ACC+1}')
    P(f'v_mov_b32_dpp v{G}, v{ACC+2} row_shr:8 row_mask:0xf bank_mask:0xc')
    P(f'v_mov_b32_dpp v{G+1}, v{ACC+3} row_shr:8 row_mask:0xf bank_mask:0xc')

def store_addr():
    P(f"""
    v_and_b32 v12, 7, v2
    v_lshl_add_u32 v12, v3, 3, v12
    v_lshlrev_b32 v12, 5, v12
    v_lshrrev_b32 v6, 3, v2
    v_lshl_add_u32 v12, v6, 4, v12
    """)

def tag_fill1(G):
    P(f'v_mov_b32 v{G+2}, s6')
    P(f'v_mov_b32 v{G+3}, s7')

def store_block(sb, ACC, G):
    pack_pair(G, ACC)
    P(f"""
    s_lshl_b32 s60, {sb}, 10
    s_add_u32 s59, s59, s60
    buffer_store_dwordx4 v[{G}:{G+3}], v12, s[44:47], s59 offen sc1
    """)

def store_half(ACC, G):
    T = G + 4
    for j in range(4): P(f'v_mov_b32 v{T+j}, v{ACC+j}')
    for j in range(4): P(f'v_permlane32_swap_b32 v{ACC+j}, v{T+j}')
    for j in range(4): P(f'v_add_f32_dpp v{ACC+j}, v{T+j}, v{ACC+j} row_shl:8 {DPPM}')
    pack_pair(G, ACC)
    P(f"""
    s_add_u32 s59, s59, 4096
    s_mov_b64 s[62:63], exec
    s_mov_b64 exec, 0xffffffff
    buffer_store_dwordx4 v[{G}:{G+3}], v12, s[44:47], s59 offen sc1
    s_mov_b64 exec, s[62:63]
    """)

def down_role():
    W0, MK, XS, ACC, QA, QB, G = 32, 8, 64, 72, 76, 80, 84
    P('L_down:')
    role(8)
    lds_wait(FL_PUB, 1, sleep=1)
    srd(36, 24, 4608*1152)
    P(f"""
    s_mul_i32 s54, s4, 9
    s_add_u32 s54, s54, s5
    s_sub_u32 s54, s54, 7             ; phi
    s_mul_i32 s55, s54, {32*1152}
    s_cmp_eq_u32 s53, 4
    s_cbranch_scc1 L_down_half
    s_lshl_b32 s56, s53, 8
    s_add_u32 s55, s55, s56
    v_mul_u32_u24 v4, 1152, v3
    v_lshl_add_u32 v4, v2, 4, v4
    """)
    for e in range(8):
        P(f'buffer_load_dwordx4 v[{W0+4*e}:{W0+4*e+3}], v4, s[36:39], s55 offen nt')
        if e < 7: P(f's_add_u32 s55, s55, {4*1152}')
    P('v_lshlrev_b32 v5, 2, v3')
    P('s_mov_b32 s57, 16')
    P('s_branch L_down_go')
    P('L_down_half:')
    P(f"""
    s_add_u32 s55, s55, 1024
    v_lshrrev_b32 v6, 3, v2
    v_lshl_add_u32 v6, v6, 2, v3
    v_mul_u32_u24 v4, 1152, v6
    v_and_b32 v7, 7, v2
    v_lshl_add_u32 v4, v7, 4, v4
    v_lshlrev_b32 v5, 2, v6
    """)
    for t in range(4):
        P(f'buffer_load_dwordx4 v[{W0+4*t}:{W0+4*t+3}], v4, s[36:39], s55 offen nt')
        if t < 3: P(f's_add_u32 s55, s55, {8*1152}')
    P('s_mov_b32 s57, 32')
    P('L_down_go:')
    masks(MK)
    store_addr()
    tag_fill1(G)
    for e in range(8):
        P(f'v_mov_b32 v{104+e}, v5')
        if e < 7: P('v_add_u32 v5, s57, v5')
    P(f"""
    s_mul_i32 s59, s54, {PS}
    s_add_u32 s59, s59, {FP}
    v_and_b32 v6, 31, v1
    v_lshlrev_b32 v13, 2, v6
    """)
    P('s_barrier')
    P('s_barrier')
    stamp(7)
    P(f"""
    ds_read_b32 v16, v13 offset:{L_RED3}
    ds_read_b32 v17, v13 offset:{L_RED3+128}
    ds_read_b32 v18, v13 offset:{L_RED3+256}
    ds_read_b32 v19, v13 offset:{L_RED3+384}
    s_waitcnt lgkmcnt(0)
    v_add_f32 v16, v16, v17
    v_add_f32 v18, v18, v19
    """)
    rne_many([16, 18])
    k1 = f32hex(0.044715); k2 = f32hex(-2.0*math.sqrt(2.0/math.pi)*math.log2(math.e))
    P(f"""
    s_mov_b32 s60, {k1:#x}
    s_mov_b32 s61, {k2:#x}
    v_mul_f32 v17, v16, v16
    v_mul_f32 v17, v17, v16
    v_fma_f32 v17, v17, s60, v16
    v_mul_f32 v17, s61, v17
    v_exp_f32 v17, v17
    v_add_f32 v17, 1.0, v17
    v_rcp_f32 v17, v17
    v_mul_f32 v16, v16, v17
    """)
    rne('v16', 'v16')
    P('v_mul_f32 v16, v16, v18')
    P('v_cvt_pk_bf16_f32 v16, v16, v16')
    for e in range(8): P(f'ds_bpermute_b32 v{XS+e}, v{104+e}, v16')
    P('s_waitcnt vmcnt(0) lgkmcnt(0)')
    P(f"""
    s_cmp_eq_u32 s53, 4
    s_cbranch_scc1 L_down_half2
    """)
    diag_mm(ACC, [W0+4*e for e in range(8)], [f'v{XS+e}' for e in range(8)], MK, QA, QB)
    store_block('s53', ACC, G)
    stamp(6)
    end_wave()
    P('L_down_half2:')
    diag_mm(ACC, [W0+4*t for t in range(4)], [f'v{XS+t}' for t in range(4)], MK, QA, QB)
    store_half(ACC, G)
    stamp(6)
    end_wave()

def wo_role(suffix, nkv):
    P(f'L_wo{suffix}:')
    P('s_barrier')
    if cfg.order2 and suffix == 'Q' and cfg.q_order == 'wo_kv': lds_wait(C_G, 1, sleep=2)
    elif cfg.order2: lds_wait(C_KVI, nkv, sleep=2)
    elif suffix == 'M': lds_wait(C_B2, 6, sleep=2)
    elif cfg.q_wo_gate: lds_wait(C_G, 1, sleep=2)
    P('s_branch L_wo_common')

def wo_common():
    W0, MK, XS, G = 32, 8, 112, 16
    A0, A1, QA, QB = 24, 28, 0, 0
    P('L_wo_common:')
    role(4)
    srd(36, 16, 4096*1152)
    P(f"""
    s_sub_u32 s53, s3, 7              ; 0,1,2
    s_mov_b32 s54, s5                 ; a
    s_mul_i32 s55, s54, 9
    s_lshl_b32 s56, s4, 8
    """)
    def rowbase(dst, e):
        P(f"""
        s_add_u32 s57, s55, {e}
        s_bfe_u32 s58, s57, 0x10003
        s_lshl_b32 s58, s58, 7
        s_lshr_b32 s60, s57, 4
        s_lshl_b32 s60, s60, 5
        s_add_u32 s58, s58, s60
        s_and_b32 s60, s57, 7
        s_add_u32 s58, s58, s60
        s_add_u32 s58, s58, s56
        s_mul_i32 {dst}, s58, 1152
        """)
    def common_post():
        lds_add(C_WO)
        masks(MK)
        store_addr()
        tag_ready()
        P(f"""
        s_mul_i32 s59, s4, 7
        s_add_u32 s59, s59, s54
        s_mul_i32 s59, s59, {PS}
        s_add_u32 s59, s59, {XP}
        """)
    P(f"""
    s_cmp_eq_u32 s53, 2
    s_cbranch_scc1 L_wo_half
    s_lshl_b32 s65, s53, 9
    v_mul_u32_u24 v4, {8*1152}, v3
    v_lshl_add_u32 v4, v2, 4, v4
    """)
    for e in range(10):
        if e == 9:
            P(f"""
            s_cmp_lt_u32 s54, 6
            s_cbranch_scc1 L_wo_l9
            """)
        rowbase('s66', e)
        P('s_add_u32 s66, s66, s65')
        P(f'buffer_load_dwordx4 v[{W0+8*e}:{W0+8*e+3}], v4, s[36:39], s66 offen nt')
        P(f'buffer_load_dwordx4 v[{W0+8*e+4}:{W0+8*e+7}], v4, s[36:39], s66 offen offset:256 nt')
    P('L_wo_l9:')
    P('v_lshlrev_b32 v5, 2, v3')
    common_post()
    GA, GB = 16, 20
    tag_fill1(GA); tag_fill1(GB)
    stamp(5)
    P('s_barrier')
    stamp(6)
    XS2 = [112, 113, 114, 115, 116, 117, 118, 119, 13, 14]
    for e in range(10): P(f'ds_read_b32 v{XS2[e]}, v5 offset:{L_XA+16*e}')
    P('s_waitcnt vmcnt(0) lgkmcnt(0)')
    def mm(n):
        qs = ((60+0, ), )
        QAa, QBb = 0, 0
        def prep(e, q):
            for i in range(4): P(f'v_and_b32 v{q+i}, v{XS2[e]}, v{MK+i}')
        Q2 = (4, 4)
        for e in range(n):
            q = 4 if e == 0 else W0 + 8*(e-1)
            prep(e, q)
            c0 = '0' if e == 0 else f'v[{A0}:{A0+3}]'
            c1 = '0' if e == 0 else f'v[{A1}:{A1+3}]'
            P(f'v_mfma_f32_16x16x32_bf16 v[{A0}:{A0+3}], v[{W0+8*e}:{W0+8*e+3}], v[{q}:{q+3}], {c0}')
            P(f'v_mfma_f32_16x16x32_bf16 v[{A1}:{A1+3}], v[{W0+8*e+4}:{W0+8*e+7}], v[{q}:{q+3}], {c1}')
    P(f"""
    s_cmp_lt_u32 s54, 6
    s_cbranch_scc1 L_wo_m9
    """)
    mm(10)
    P('s_branch L_wo_st')
    P('L_wo_m9:')
    mm(9)
    P('L_wo_st:')
    pack_pair(GA, A0)
    pack_pair(GB, A1)
    P(f"""
    s_lshl_b32 s60, s53, 11
    s_add_u32 s59, s59, s60
    buffer_store_dwordx4 v[{GA}:{GA+3}], v12, s[44:47], s59 offen sc1
    buffer_store_dwordx4 v[{GB}:{GB+3}], v12, s[44:47], s59 offen offset:1024 sc1
    """)
    stamp(7)
    end_wave()
    P('L_wo_half:')
    P(f"""
    v_mul_u32_u24 v4, {8*1152}, v3
    v_and_b32 v6, 7, v2
    v_lshl_add_u32 v4, v6, 4, v4
    v_add_u32 v4, 1024, v4
    v_cmp_lt_u32 s[68:69], 7, v2
    """)
    for t in range(5):
        rowbase('s66', 2*t)
        rowbase('s67', 2*t+1)
        if t == 4:
            P(f"""
            s_cmp_lt_u32 s54, 6
            s_cselect_b32 s67, 0x40000000, s67
            """)
        P(f"""
        v_mov_b32 v6, s66
        v_mov_b32 v7, s67
        v_cndmask_b32 v6, v6, v7, s[68:69]
        v_add_u32 v6, v6, v4
        buffer_load_dwordx4 v[{W0+4*t}:{W0+4*t+3}], v6, s[36:39], 0 offen nt
        """)
    P(f"""
    v_lshrrev_b32 v5, 3, v2
    v_lshl_add_u32 v5, v5, 2, v3
    v_lshlrev_b32 v5, 2, v5
    """)
    if cfg.pf2 & 2:
        P('v_mov_b32 v15, v5')
        prefetch_code('3', 100)
        P('v_mov_b32 v5, v15')
    common_post()
    GH = 96
    tag_fill1(GH)
    stamp(5)
    P('s_barrier')
    stamp(6)
    for t in range(5): P(f'ds_read_b32 v{112+t}, v5 offset:{L_XA+32*t}')
    P('s_waitcnt vmcnt(0) lgkmcnt(0)')
    diag_mm(72, [W0+4*t for t in range(5)], [f'v{112+t}' for t in range(5)], MK, 76, 80)
    store_half(72, GH)
    stamp(7)
    end_wave()

def q_fetch(nxt):
    l = P.lbl('Lqf'); l2 = P.lbl('Lqf'); l3 = P.lbl('Lqf')
    P(f"""
    s_cmp_gt_u32 s3, 4
    s_cbranch_scc1 {nxt}
    s_lshl_b32 s38, s4, 10
    s_lshl_b32 s39, s3, 8
    s_add_u32 s38, s38, s39
    s_add_u32 s38, s38, {QF-256}
    s_add_u32 s36, s34, s38
    s_addc_u32 s37, s35, 0
    s_mov_b32 s42, 0x40000
    """)
    if cfg.q_direct:
        P(f"""
        s_branch {l3}
        {l}:
        s_sleep {cfg.q_sleep}
        {l3}:
        s_load_dwordx2 s[40:41], s[36:37], 128 glc
        s_load_dwordx16 s[48:63], s[36:37], 0 glc
        s_load_dwordx16 s[64:79], s[36:37], 64 glc
        s_sub_u32 s42, s42, 1
        s_cbranch_scc1 {ABORT}
        s_waitcnt lgkmcnt(0)
        s_cmp_lg_u32 s41, s7
        s_cbranch_scc1 {l}
        s_add_u32 s43, s48, s7
        """)
        for i in range(49, 80): P(f's_add_u32 s43, s43, s{i}')
        P(f"""
        s_cmp_lg_u32 s43, s40
        s_cbranch_scc1 {l3}
        """)
    else:
        P(f"""
        s_branch {l3}
        {l}:
        s_sleep {cfg.q_sleep}
        {l3}:
        s_load_dwordx2 s[40:41], s[36:37], 128 glc
        s_sub_u32 s42, s42, 1
        s_cbranch_scc1 {ABORT}
        s_waitcnt lgkmcnt(0)
        s_cmp_lg_u32 s41, s7
        s_cbranch_scc1 {l}
        {l2}:
        s_load_dwordx16 s[48:63], s[36:37], 0 glc
        s_load_dwordx16 s[64:79], s[36:37], 64 glc
        s_sub_u32 s42, s42, 1
        s_cbranch_scc1 {ABORT}
        s_waitcnt lgkmcnt(0)
        s_add_u32 s43, s48, s7
        """)
        for i in range(49, 80): P(f's_add_u32 s43, s43, s{i}')
        P(f"""
        s_cmp_lg_u32 s43, s40
        s_cbranch_scc1 {l2}
        """)
    for i in range(32): P(f'v_writelane_b32 v20, s{48+i}, {i}')
    P(f"""
    v_and_b32 v21, 3, v1
    v_lshlrev_b32 v21, 2, v21
    v_bfe_u32 v22, v1, 2, 2
    v_add_u32 v21, v21, v22
    v_and_b32 v22, 16, v1
    v_add_u32 v21, v21, v22
    v_lshlrev_b32 v21, 2, v21
    s_lshl_b32 s38, s3, 7
    v_add_u32 v21, s38, v21
    s_mov_b64 exec, 0xffffffff
    ds_write_b32 v21, v20 offset:{L_Q-128}
    s_mov_b64 exec, -1
    """)
    srd(44, 34, 0x40000000)
    lds_add(FL_Q)

def ln_stats(regs, mean_b, rstd, t1, t2, maskfix=None):
    P(f'v_add_f32 {t1}, v{regs[0]}, v{regs[1]}')
    for r in regs[2:]: P(f'v_add_f32 {t1}, {t1}, v{r}')
    wave_sum(t1, t2)
    P(f's_mov_b32 s60, {f32hex(1.0/576.0):#x}')
    P(f'v_mul_f32 {t1}, s60, {t1}')
    first = True
    for r in regs:
        P(f'v_sub_f32 {t2}, v{r}, {t1}')
        if maskfix and r in maskfix[0]: P(f'v_cndmask_b32 {t2}, 0, {t2}, {maskfix[1]}')
        if first: P(f'v_mul_f32 {rstd}, {t2}, {t2}'); first = False
        else: P(f'v_fmac_f32 {rstd}, {t2}, {t2}')
    wave_sum(rstd, t2)
    P(f'v_mul_f32 {rstd}, s60, {rstd}')
    rne(rstd, rstd)
    P(f'v_add_f32 {rstd}, {f32hex(1e-5):#x}, {rstd}')
    rne(rstd, rstd)
    P(f'v_sqrt_f32 {rstd}, {rstd}')
    rne(rstd, rstd)
    P(f'v_rcp_f32 {rstd}, {rstd}')
    rne(mean_b, t1)

def fold_reduce(base, slot0):
    for i in range(6): P(f'ds_read_b128 v[{base+4*i}:{base+4*i+3}], v16 offset:{L_SLOT+1024*(slot0+i)}')
    P('s_waitcnt lgkmcnt(0)')
    for (x, y) in ((0, 1), (2, 3), (4, 5), (0, 2), (0, 4)):
        for jj in range(4): P(f'v_add_f32 v{base+4*x+jj}, v{base+4*x+jj}, v{base+4*y+jj}')
    T = base + 4
    for jj in range(4): P(f'v_mov_b32 v{T+jj}, v{base+jj}')
    for jj in range(4): P(f'v_permlane32_swap_b32 v{base+jj}, v{T+jj}')
    for jj in range(4): P(f'v_add_f32_dpp v{base+jj}, v{T+jj}, v{base+jj} row_shl:8 {DPPM}')

def silu(regs, tmps):
    P(f's_mov_b32 s60, {f32hex(-1.4426950408889634):#x}')
    for r in regs: P(f'v_lshlrev_b32 v{r}, 16, v{r}')
    for r, t in zip(regs, tmps): P(f'v_mul_f32 v{t}, s60, v{r}')
    for r, t in zip(regs, tmps): P(f'v_exp_f32 v{t}, v{t}')
    for r, t in zip(regs, tmps): P(f'v_add_f32 v{t}, 1.0, v{t}')
    for r, t in zip(regs, tmps): P(f'v_rcp_f32 v{t}, v{t}')
    for r, t in zip(regs, tmps): P(f'v_mul_f32 v{r}, v{r}, v{t}')
    for r, t in zip(regs, tmps): P(f'v_cvt_pk_bf16_f32 v{r}, v{r}, v{r}')

def wq_role():
    WB, MK, XS, ACC, QA, QB, XA = 56, 8, 104, 116, 120, 124, 32
    XSB = L_SLOT + 12*1024
    P('L_wq:')
    role(2)
    srd(36, 14, 576*8192)
    srd(40, 8, 1152)
    P(f"""
    s_sub_u32 s53, s3, 1              ; j
    s_sub_u32 s54, s5, 3              ; qi
    s_mul_i32 s57, s53, 96
    v_lshlrev_b32 v4, 1, v1
    """)
    for n in range(9): P(f'buffer_load_ushort v{XA+n}, v4, s[40:43], 0 offen offset:{128*n}')
    P(f"""
    v_and_b32 v6, 31, v1
    v_lshlrev_b32 v7, 1, v6
    s_lshl_b32 s58, s57, 1
    buffer_load_ushort v{XA+9}, v4, s[40:43], s58 offen
    buffer_load_ushort v{XA+10}, v7, s[40:43], s58 offen offset:128
    v_lshrrev_b32 v13, 3, v2
    v_lshl_add_u32 v13, v13, 2, v3
    v_lshlrev_b32 v5, 13, v13
    v_and_b32 v7, 7, v2
    v_lshl_add_u32 v5, v7, 4, v5
    s_lshl_b32 s58, s57, 13
    s_lshl_b32 s59, s4, 9
    s_add_u32 s58, s58, s59
    s_lshl_b32 s59, s54, 7
    s_add_u32 s58, s58, s59
    """)
    for t in range(12):
        P(f'buffer_load_dwordx4 v[{WB+4*t}:{WB+4*t+3}], v5, s[36:39], s58 offen nt')
        if t < 11: P(f's_add_u32 s58, s58, {8*8192}')
    stamp(1)
    P('s_barrier')
    P(f"""
    v_add_u32 v28, s57, v1
    v_lshlrev_b32 v28, 3, v28
    v_add_u32 v29, s57, v6
    v_lshlrev_b32 v29, 3, v29
    v_add_u32 v29, 512, v29
    v_lshlrev_b32 v31, 2, v13
    s_lshl_b32 s67, s53, 10
    v_add_u32 v31, s67, v31
    v_lshlrev_b32 v30, 2, v1
    v_add_u32 v30, s67, v30
    v_lshlrev_b32 v27, 2, v6
    v_add_u32 v27, s67, v27
    """)
    masks(MK)
    P('s_waitcnt vmcnt(12)')
    tag_ready()
    for n in range(11): P(f'v_lshlrev_b32 v{XA+n}, 16, v{XA+n}')
    ln_stats(list(range(XA, XA+9)), 'v16', 'v17', 'v18', 'v19')
    for n in (9, 10): P(f'v_sub_f32 v{XA+n}, v{XA+n}, v16')
    rne_many([XA+9, XA+10])
    for n in (9, 10): P(f'v_mul_f32 v{XA+n}, v{XA+n}, v17')
    rne_many([XA+9, XA+10])
    P(f"""
    v_mov_b32 v20, v{XA+9}
    v_mov_b32 v21, v{XA+10}
    s_mov_b32 s66, {MODP}
    s_mov_b32 s68, {MODP+9216}
    s_mov_b32 s69, {MODP+4608}
    s_mov_b32 s70, {MODP+9216+4608}
    """)
    G = 32
    sr = ['s66', 's68', 's69', 's70']
    loads = []
    for st_, va in enumerate(('v28', 'v29')):
        for i in range(4):
            r = G + 8*st_ + 2*i
            loads.append(f'buffer_load_dwordx2 v[{r}:{r+1}], {va}, s[44:47], {sr[i]} offen sc1')
    if cfg.wq_first:
        P('s_waitcnt vmcnt(0)')
        stamp(5)
    poll(loads, check_tags32([G+1+2*i for i in range(8)]))
    stamp(2)
    for st_ in range(2):
        b = G + 8*st_
        P(f'v_add_f32 v{b}, v{b}, v{b+2}')
        P(f'v_add_f32 v{b+4}, v{b+4}, v{b+6}')
    rne_many([G, G+4, G+8, G+12])
    for st_ in range(2): P(f'v_add_f32 v{G+8*st_+4}, 1.0, v{G+8*st_+4}')
    rne_many([G+4, G+12])
    for st_ in range(2): P(f'v_mul_f32 v{20+st_}, v{20+st_}, v{G+8*st_+4}')
    rne_many([20, 21])
    for st_ in range(2): P(f'v_add_f32 v{20+st_}, v{20+st_}, v{G+8*st_}')
    for st_ in range(2): P(f'v_cvt_pk_bf16_f32 v{20+st_}, v{20+st_}, v{20+st_}')
    P(f"""
    ds_write_b32 v30, v20 offset:{XSB}
    ds_write_b32 v27, v21 offset:{XSB+256}
    """)
    for t in range(12): P(f'ds_read_b32 v{XS+t}, v31 offset:{XSB+32*t}')
    P('s_waitcnt lgkmcnt(0)')
    stamp(3)
    diag_mm(ACC, [WB+4*t for t in range(12)], [f'v{XS+t}' for t in range(12)], MK, QA, QB)
    P(f"""
    s_lshl_b32 s59, s53, 10
    v_lshlrev_b32 v16, 4, v1
    v_add_u32 v19, s59, v16
    ds_write_b128 v19, v[{ACC}:{ACC+3}] offset:{L_SLOT}
    """)
    lds_add_rtn(C_RED, 's60')
    P(f"""
    s_cmp_lg_u32 s60, 5
    s_cbranch_scc1 L_wq_done
    """)
    fold_reduce(WB, 0)
    for r in range(4): P(f'v_mov_b32_dpp v{WB+4+r}, v{WB+r} quad_perm:[1,0,3,2] {DPPM}')
    for r in range(4): P(f'v_cvt_pk_bf16_f32 v{WB+r}, v{WB+r}, v{WB+4+r}')
    P(f"""
    v_add_u32 v{WB+4}, v{WB}, v{WB+1}
    v_add3_u32 v{WB+4}, v{WB+4}, v{WB+2}, v{WB+3}
    s_mov_b32 s60, 0x00550055
    s_mov_b32 s61, 0
    v_cndmask_b32 v{WB+4}, 0, v{WB+4}, s[60:61]
    v_add_u32_dpp v{WB+4}, v{WB+4}, v{WB+4} quad_perm:[2,3,0,1] {DPPM}
    v_add_u32_dpp v{WB+4}, v{WB+4}, v{WB+4} row_shl:4 {DPPM} bound_ctrl:0
    v_lshrrev_b32 v19, 1, v2
    v_lshl_add_u32 v19, v3, 2, v19
    v_lshlrev_b32 v19, 4, v19            ; (gq*4 + c/2)*16
    v_readlane_b32 s60, v{WB+4}, 0
    v_readlane_b32 s61, v{WB+4}, 16
    s_add_u32 s60, s60, s61
    s_add_u32 s60, s60, s7
    s_mov_b32 s61, 128
    v_writelane_b32 v{WB}, s60, 1
    v_writelane_b32 v{WB+1}, s7, 1
    v_writelane_b32 v19, s61, 1
    s_lshl_b32 s59, s4, 10
    s_lshl_b32 s60, s54, 8
    s_add_u32 s59, s59, s60
    s_add_u32 s59, s59, {QF}
    s_mov_b64 exec, 0x00550057
    buffer_store_dwordx4 v[{WB}:{WB+3}], v19, s[44:47], s59 offen sc1
    s_mov_b64 exec, -1
    """)
    lds_add(C_G)
    stamp(4)
    P('L_wq_done:')
    q_fetch('L_exit')
    end_wave()

def mod_role():
    WA, MK, XS, ACC, QA, QB = 32, 8, 104, 116, 120, 124
    XSB = L_SLOT + 12*1024
    P('L_mod:')
    role(3)
    P(f"""
    s_mov_b32 s54, s2
    s_cmp_ge_u32 s54, 36
    s_cbranch_scc1 L_mod_noA
    """)
    srd(36, 28, 576*6912)
    srd(40, 26, 1152)
    P(f"""
    s_sub_u32 s53, s3, 1              ; j
    v_lshlrev_b32 v4, 1, v1
    s_and_b32 s56, s54, 1             ; kh
    s_mul_i32 s57, s56, 288
    s_mul_i32 s58, s53, 48
    s_add_u32 s57, s57, s58
    s_lshl_b32 s58, s57, 1
    buffer_load_ushort v16, v4, s[40:43], s58 offen
    v_lshrrev_b32 v13, 3, v2
    v_lshl_add_u32 v13, v13, 2, v3
    v_mul_u32_u24 v5, 6912, v13
    v_and_b32 v7, 7, v2
    v_lshl_add_u32 v5, v7, 4, v5
    s_lshr_b32 s55, s54, 1            ; cbk
    s_mul_i32 s58, s57, 6912
    s_lshl_b32 s59, s55, 7
    s_add_u32 s58, s58, s59
    """)
    for t in range(6):
        P(f'buffer_load_dwordx4 v[{WA+4*t}:{WA+4*t+3}], v5, s[36:39], s58 offen nt')
        if t < 5: P(f's_add_u32 s58, s58, {8*6912}')
    P('s_barrier')
    P(f"""
    v_lshlrev_b32 v31, 2, v13
    s_lshl_b32 s67, s53, 10
    v_add_u32 v31, s67, v31
    v_lshlrev_b32 v30, 2, v1
    v_add_u32 v30, s67, v30
    s_mul_i32 s65, s56, 9216
    s_lshl_b32 s60, s55, 9
    s_add_u32 s65, s65, s60
    s_add_u32 s65, s65, {MODP}
    v_lshlrev_b32 v29, 5, v3
    v_add_u32 v29, v29, v2
    v_lshlrev_b32 v29, 3, v29
    """)
    masks(MK)
    tag_ready()
    for rr in range(4): P(f'v_mov_b32 v{61+2*rr}, s7')
    P('s_waitcnt vmcnt(6)')
    stamp(1)
    silu([16], [19])
    P(f'ds_write_b32 v30, v16 offset:{XSB}')
    for t in range(6): P(f'ds_read_b32 v{XS+t}, v31 offset:{XSB+32*t}')
    P('s_waitcnt vmcnt(0) lgkmcnt(0)')
    stamp(2)
    lds_add(C_G)
    diag_mm(ACC, [WA+4*t for t in range(6)], [f'v{XS+t}' for t in range(6)], MK, QA, QB)
    P(f"""
    s_lshl_b32 s59, s53, 10
    v_lshlrev_b32 v16, 4, v1
    v_add_u32 v19, s59, v16
    ds_write_b128 v19, v[{ACC}:{ACC+3}] offset:{L_SLOT}
    """)
    lds_add_rtn(C_RED, 's60')
    P(f"""
    s_cmp_lg_u32 s60, 5
    s_cbranch_scc1 L_mod_fin
    """)
    fold_reduce(WA, 0)
    for rr in range(4): P(f'v_mov_b32 v{60+2*rr}, v{WA+rr}')
    P('s_mov_b64 exec, 0x00ff00ff')
    for rr in range(4):
        P(f'buffer_store_dwordx2 v[{60+2*rr}:{61+2*rr}], v29, s[44:47], s65 offen offset:{64*rr} sc1')
    P('s_mov_b64 exec, -1')
    lds_add(C_H)
    stamp(3)
    P('s_branch L_mod_fin')
    P('L_mod_noA:')
    P('s_barrier')
    if cfg.b_on != 'M': lds_add(C_G)
    lds_add(C_H)
    tag_ready()
    P('L_mod_fin:')
    if cfg.b_on == 'M':
        lds_wait(C_H, 1, sleep=0)
        if cfg.order2:
            P(f"""
            s_cmp_lt_u32 s2, 12
            s_cbranch_scc1 L_mod_nob
            s_sub_u32 s53, s3, 1
            s_sub_u32 s65, s2, 36
            s_cmp_ge_u32 s2, 36
            s_cbranch_scc1 L_mod_bgo
            s_mov_b32 s65, s2
            """)
            if cfg.m_order == 'a_b_kv_wo':
                P('s_branch L_mod_bgo')
            P('s_mov_b32 s98, s65' if not cfg.hdbg else 's_mov_b32 s99, s65')
            q_fetch('L_mod_q2')
            P('L_mod_q2:')
            P('s_mov_b32 s65, s98' if not cfg.hdbg else 's_mov_b32 s65, s99')
            P('s_sub_u32 s53, s3, 1')
            P('s_mov_b32 s100, 1')
            lds_wait(C_WO, 3, sleep=2)
            P('s_branch L_mod_bgo2')
            P('L_mod_bgo:')
            P('s_mov_b32 s100, 0')
            P('L_mod_bgo2:')
        else:
            P(f"""
            s_cmp_lt_u32 s2, 12
            s_cbranch_scc1 L_mod_nob
            s_sub_u32 s65, s2, 12
            s_sub_u32 s53, s3, 1
            """)
        modb_body('M')
        if cfg.order2:
            P('s_cmp_lg_u32 s100, 0\ns_cbranch_scc1 L_exit')
        P('s_branch L_mod_q')
        P('L_mod_nob:')
        lds_add(C_B2)
        P('L_mod_q:')
    q_fetch('L_exit')
    end_wave()

def modb_body(cls):
    WB, MK, XS, ACC, QA, QB, G = 56, 8, 104, 116, 120, 124, 32
    done = 'L_exit' if cls == 'Q' else 'L_modb_done'
    srd(36, 28, 576*6912)
    srd(40, 26, 1152)
    P(f"""
    v_lshlrev_b32 v4, 1, v1
    s_mul_i32 s66, s53, 96
    s_lshl_b32 s59, s66, 1
    buffer_load_ushort v17, v4, s[40:43], s59 offen
    buffer_load_ushort v18, v4, s[40:43], s59 offen offset:128
    v_lshrrev_b32 v13, 3, v2
    v_lshl_add_u32 v13, v13, 2, v3
    v_mul_u32_u24 v5, 6912, v13
    v_and_b32 v7, 7, v2
    v_lshl_add_u32 v5, v7, 4, v5
    v_lshlrev_b32 v31, 2, v13
    s_lshl_b32 s67, s53, 9
    v_add_u32 v31, s67, v31
    v_lshlrev_b32 v30, 2, v1
    v_add_u32 v30, s67, v30
    s_mul_i32 s58, s66, 6912
    s_lshl_b32 s59, s65, 7
    s_add_u32 s58, s58, s59
    s_add_u32 s58, s58, 2304
    """)
    def wloads():
        for t in range(12):
            if cls == 'Q' and cfg.b_k and t >= cfg.b_k: P(f's_waitcnt vmcnt({cfg.b_k-1})')
            P(f'buffer_load_dwordx4 v[{WB+4*t}:{WB+4*t+3}], v5, s[36:39], s58 offen nt')
            if t < 11: P(f's_add_u32 s58, s58, {8*6912}')
    if cls == 'M':
        wloads()
        lds_add(C_B2)
        masks(MK)
        P('s_waitcnt vmcnt(12)')
    else:
        masks(MK)
        P('s_waitcnt vmcnt(0)')
        tag_ready()
    tag_fill(G)
    silu([17, 18], [19, 20])
    P(f"""
    ds_write_b32 v30, v17 offset:{L_XS}
    ds_write_b32 v30, v18 offset:{L_XS+256}
    """)
    for t in range(12): P(f'ds_read_b32 v{XS+t}, v31 offset:{L_XS+32*t}')
    if cls == 'Q':
        lds_wait(C_G, 1, sleep=2)
        stamp(1)
        wloads()
    P('s_waitcnt vmcnt(0) lgkmcnt(0)')
    diag_mm(ACC, [WB+4*t for t in range(12)], [f'v{XS+t}' for t in range(12)], MK, QA, QB)
    P(f"""
    s_lshl_b32 s59, s53, 10
    v_lshlrev_b32 v16, 4, v1
    v_add_u32 v19, s59, v16
    ds_write_b128 v19, v[{ACC}:{ACC+3}] offset:{L_SLOT+6*1024}
    """)
    lds_add_rtn(C_B, 's60')
    P(f"""
    s_cmp_lg_u32 s60, 5
    s_cbranch_scc1 {done}
    """)
    fold_reduce(WB, 6)
    rne_many([WB+jj for jj in range(4)])
    make_granules(G, WB)
    P(f"""
    s_lshl_b32 s59, s65, 9
    s_add_u32 s59, s59, {MODF}
    v_lshlrev_b32 v19, 3, v3
    v_add_u32 v19, v19, v2
    v_lshlrev_b32 v19, 5, v19
    s_mov_b64 exec, 0x00ff00ff
    buffer_store_dwordx4 v[{G}:{G+3}], v19, s[44:47], s59 offen sc1
    buffer_store_dwordx4 v[{G+4}:{G+7}], v19, s[44:47], s59 offen offset:16 sc1
    s_mov_b64 exec, -1
    """)
    stamp(4)
    if cls == 'Q': end_wave()
    else: P('L_modb_done:')

def modb_role():
    P('L_modb:')
    P('s_barrier')
    if cfg.b_on != 'Q':
        P('s_branch L_end')
        return
    P(f"""
    s_sub_u32 s65, s2, 48            ; b
    s_cmp_ge_u32 s65, 36
    s_cbranch_scc1 L_exit
    s_sub_u32 s53, s3, 7              ; j
    """)
    modb_body('Q')

def prefetch_code(sfx='', dst=16):
    if not cfg.prefetch_code: return
    P(f"""
    s_getpc_b64 s[52:53]
    L_pc{sfx}:
    s_sub_u32 s52, s52, L_pc{sfx}-{KN}
    s_subb_u32 s53, s53, 0
    v_lshlrev_b32 v4, 7, v1
    """)
    for i in range(CODE_PF):
        P(f'v_cmp_gt_u32 vcc, L_codeend-{KN}, v4')
        P('s_and_saveexec_b64 s[62:63], vcc')
        P(f'global_load_dword v{dst+i}, v4, s[52:53]')
        P('s_mov_b64 exec, s[62:63]')
        P('v_add_u32 v4, 0x2000, v4')

def reduce4(a, b, n_i, base):
    regs = list(range(n_i))
    while len(regs) > 1:
        nxt = []
        for k in range(0, len(regs) - 1, 2):
            x, y = regs[k], regs[k+1]
            for j in range(2): P(f'v_add_f32 v{base+4*x+j}, v{base+4*x+j}, v{base+4*y+j}')
            nxt.append(x)
        if len(regs) % 2: nxt.append(regs[-1])
        regs = nxt
    for d in ('row_ror:4', 'row_ror:8'):
        for j in range(2): P(f'v_add_f32_dpp v{base+j}, v{base+j}, v{base+j} {d} {DPPM}')
    xrow_multi('v_add_f32', [f'v{base+j}' for j in range(2)], [f'v{base+2+j}' for j in range(2)])

def commA_role():
    P('L_commA:')
    role(5)
    P('s_setprio 3')
    P('s_barrier')
    P(f"""
    s_mov_b32 s54, s5                 ; a
    s_mul_i32 s55, s4, 7
    s_add_u32 s55, s55, s54           ; rho
    v_and_b32 v112, 3, v1
    v_lshrrev_b32 v4, 1, v112           ; pi
    s_lshl_b32 s56, s55, 1
    v_add_u32 v4, s56, v4
    v_and_b32 v4, 7, v4
    s_lshr_b32 s56, s55, 2
    s_lshl_b32 s56, s56, 5
    v_add_u32 v4, s56, v4
    v_and_b32 v5, 1, v112               ; gamma
    v_lshl_add_u32 v4, v5, 4, v4
    v_lshlrev_b32 v113, 1, v4
    v_lshlrev_b32 v114, 4, v112
    """)
    srd(40, 8, 1152)
    P(f"""
    buffer_load_ushort v116, v113, s[40:43], 0 offen
    buffer_load_ushort v117, v113, s[40:43], 0 offen offset:16
    s_cmp_eq_u32 s54, 6
    s_cselect_b32 s57, 10, 9            ; E
    s_mul_i32 s56, s54, 9
    v_add_u32 v4, s56, v2               ; l_src = 9a + e
    v_mul_u32_u24 v6, {H3S}, v3
    v_lshl_add_u32 v5, v4, 5, v6
    v_bfe_u32 v4, v4, 3, 1              ; head
    v_lshl_add_u32 v4, v4, 6, v6
    v_add_u32 v4, 2048, v4
    s_mul_i32 s48, s4, {16*H3S}
    s_add_u32 s48, s48, {H3}
    s_add_u32 s49, s48, {4*H3S}
    s_add_u32 s50, s48, {8*H3S}
    s_add_u32 s51, s48, {12*H3S}
    v_lshrrev_b32 v115, 2, v1
    v_mul_u32_u24 v115, {PS}, v115
    v_add_u32 v115, v115, v114
    v_lshrrev_b32 v6, 2, v1
    v_mul_u32_u24 v118, {X2S}, v6
    v_add_u32 v118, v118, v114
    v_lshlrev_b32 v119, 4, v1
    """)
    tag_ready()
    P('v_mov_b32 v122, s6\nv_mov_b32 v123, s7')
    lds_wait(FL_PUB, 1, sleep=1)
    P(f"""
    v_lshlrev_b32 v116, 16, v116
    v_cmp_gt_u32 vcc, s57, v2
    s_mov_b32 s56, {LOG2E:#x}
    s_mov_b64 exec, vcc
    """)
    def h3_loads(B):
        o = []
        for i in range(4):
            b = B + 12*i
            o.append(f'buffer_load_dwordx4 v[{b}:{b+3}], v5, s[44:47], s{48+i} offen sc1')
            o.append(f'buffer_load_dwordx4 v[{b+4}:{b+7}], v5, s[44:47], s{48+i} offen offset:16 sc1')
            o.append(f'buffer_load_dwordx4 v[{b+8}:{b+11}], v4, s[44:47], s{48+i} offen sc1')
        return o
    def h3_check(B):
        bases = [B + 12*i + o for i in range(4) for o in (0, 4, 8)]
        check_g(bases[:6])()
        P('s_mov_b64 s[62:63], vcc')
        check_g(bases[6:])()
        P('s_or_b64 vcc, vcc, s[62:63]')
    def h3_post(B):
        M = [B+12*i+8 for i in range(4)]; L = [m+1 for m in M]; W = [m+2 for m in M]
        P(f"""
        v_max3_f32 v12, v{M[0]}, v{M[1]}, v{M[2]}
        v_max_f32 v12, v12, v{M[3]}
        """)
        xrow_multi('v_max_f32', ['v12'], ['v13'])
        for i in range(4): P(f'v_sub_f32 v{W[i]}, v{M[i]}, v12')
        for i in range(4): P(f'v_mul_f32 v{W[i]}, s56, v{W[i]}')
        for i in range(4): P(f'v_exp_f32 v{W[i]}, v{W[i]}')
        O = lambda i, j: B + 12*i + (j >> 1)*4 + (j & 1)
        P(f'v_mul_f32 v14, v{W[0]}, v{L[0]}')
        for j in range(4): P(f'v_mul_f32 v{8+j}, v{W[0]}, v{O(0,j)}')
        for i in range(1, 4):
            P(f'v_fmac_f32 v14, v{W[i]}, v{L[i]}')
            for j in range(4): P(f'v_fmac_f32 v{8+j}, v{W[i]}, v{O(i,j)}')
        xrow_multi('v_add_f32', ['v14', 'v8', 'v9', 'v10', 'v11'], [f'v{B+2}', f'v{B+3}', f'v{B+6}', f'v{B+7}', f'v{B+11}'])
        P('v_rcp_f32 v14, v14')
        for j in range(4): P(f'v_mul_f32 v{8+j}, v{8+j}, v14')
        for j in range(4): P(f'v_cvt_pk_bf16_f32 v{8+j}, v{8+j}, v{8+j}')
    if cfg.h3_local:
        l = P.lbl('Lhl'); ok = P.lbl('Lhl'); far = P.lbl('Lhl')
        for i in range(4): P(f's_add_u32 s{48+i}, s{48+i}, {H3L - H3}')
        P(f's_mov_b32 s64, {cfg.local_tries}')
        P(f'{l}:')
        for x in h3_loads(16): P(x)
        P('s_waitcnt vmcnt(0)')
        h3_check(16)
        P(f"""
        s_cbranch_vccz {ok}
        s_sub_u32 s64, s64, 1
        s_cbranch_scc0 {l}
        """)
        for i in range(4): P(f's_sub_u32 s{48+i}, s{48+i}, {H3L - H3}')
        poll(h3_loads(16), lambda: h3_check(16))
        P(f'{ok}:')
        if cfg.debug: P(f's_sub_u32 s82, {cfg.local_tries}, s64')
        h3_post(16)
    else:
        poll(h3_loads(16), lambda: h3_check(16))
        if cfg.debug: P('s_sub_u32 s82, 0x8000, s64')
        h3_post(16)
    stamp(4)
    P(f"""
    s_and_b32 exec_lo, exec_lo, 0xffff
    s_mov_b32 exec_hi, 0
    ds_write_b128 v119, v[8:11] offset:{L_XA}
    s_mov_b64 exec, -1
    s_cmp_ge_u32 s55, 72
    s_cselect_b32 s65, 1, 0
    s_lshl_b32 s56, s55, 6              ; rho*64
    s_add_u32 s48, s56, {XP}
    """)
    for i in range(1, 7): P(f's_add_u32 s{48+i}, s{47+i}, {16*PS}')
    P(f"""
    s_lshl_b32 s57, s55, 6
    s_add_u32 s58, s57, {MODF}
    v_lshlrev_b32 v117, 16, v117
    s_waitcnt lgkmcnt(0)
    s_barrier
    """)
    stamp(5)
    P(f"""
    s_cmp_lg_u32 s65, 0
    s_cbranch_scc1 L_exit
    """)
    def red_loads(n):
        def f(B):
            return [f'buffer_load_dwordx4 v[{B+4*n}:{B+4*n+3}], v114, s[44:47], s58 offen sc1'] + \
                   [f'buffer_load_dwordx4 v[{B+4*i}:{B+4*i+3}], v115, s[44:47], s{48+i} offen sc1' for i in range(n)]
        return f
    def red_check(n):
        def f(B):
            bases = [B+4*i for i in range(n+1)]
            if n + 1 <= 8: check_g(bases)()
            else:
                check_g(bases[:5])()
                P('s_mov_b64 s[62:63], vcc')
                check_g(bases[5:])()
                P('s_or_b64 vcc, vcc, s[62:63]')
        return f
    def xp_post(B):
        reduce4(0, 1, 7, B)
        rne_many([B, B+1])
        for j in range(2): P(f'v_mul_f32 v{B+j}, v{B+j}, v{B+28+j}')
        rne_many([B, B+1])
        for j in range(2): P(f'v_add_f32 v{120+j}, v{B+j}, v{116+j}')
        rne_many([120, 121])
    if cfg.pipe: poll2(red_loads(7), red_check(7), xp_post, 16, 48, 8)
    else:
        poll(red_loads(7)(16), lambda: red_check(7)(16))
        if cfg.debug: P('s_sub_u32 s84, 0x8000, s64')
        xp_post(16)
    P(f"""
    s_add_u32 s59, s57, {X2}
    s_mov_b64 exec, 0xffffffff
    buffer_store_dwordx4 v[120:123], v118, s[44:47], s59 offen sc1
    s_mov_b64 exec, -1
    """)
    stamp(6)
    P(f's_add_u32 s48, s56, {FP}')
    for i in range(1, 9): P(f's_add_u32 s{48+i}, s{47+i}, {16*PS}')
    P(f's_add_u32 s58, s57, {MODF+864*16}')
    srd(40, 30, 1152)
    def fp_post(B):
        reduce4(0, 1, 9, B)
        rne_many([B, B+1])
        for j in range(2): P(f'v_mul_f32 v{B+j}, v{B+j}, v{B+36+j}')
        rne_many([B, B+1])
        for j in range(2): P(f'v_add_f32 v{8+j}, v{B+j}, v{120+j}')
        for j in range(2): P(f'v_cvt_pk_bf16_f32 v{8+j}, v{8+j}, v{8+j}')
    if cfg.pipe: poll2(red_loads(9), red_check(9), fp_post, 24, 64, 10)
    else:
        poll(red_loads(9)(24), lambda: red_check(9)(24))
        if cfg.debug: P('s_sub_u32 s86, 0x8000, s64')
        fp_post(24)
    P(f"""
    s_mov_b64 exec, 0xf
    buffer_store_short v8, v113, s[40:43], 0 offen
    buffer_store_short v9, v113, s[40:43], 0 offen offset:16
    s_mov_b64 exec, -1
    """)
    stamp(7)
    P(f"""
    s_mul_i32 s55, s4, 7
    s_add_u32 s55, s55, s5
    s_cmp_lg_u32 s55, 0
    s_cbranch_scc1 L_exit
    v_mov_b32 v4, {EPOCH}
    v_mov_b32 v8, s6
    v_mov_b32 v9, s7
    s_mov_b64 exec, 1
    buffer_store_dwordx2 v[8:9], v4, s[44:47], 0 offen sc1
    s_mov_b64 exec, -1
    """)
    end_wave()

def commF_role():
    P('L_commF:')
    role(6)
    P('s_setprio 3')
    SB, CB, XA = 32, 52, 72
    P(f"""
    v_lshlrev_b32 v4, 4, v1             ; granule l
    v_and_b32 v5, 31, v1
    v_lshlrev_b32 v5, 4, v5
    s_mov_b32 s56, {MODF+288*16}
    s_mov_b32 s57, {MODF+576*16}
    s_add_u32 s58, s56, 4096
    s_add_u32 s59, s57, 4096
    s_and_b32 s52, s2, 7
    s_mul_i32 s52, s52, {X2S}
    s_add_u32 s52, s52, {X2}
    s_add_u32 s53, s52, 4096
    v_cmp_gt_u32 s[54:55], 32, v1
    """)
    lds_wait(FL_PUB, 1, sleep=1)
    def gl(base, sreg, sreg2):
        return [f'buffer_load_dwordx4 v[{base+4*n}:{base+4*n+3}], v4, s[44:47], {sreg} offen offset:{1024*n} sc1' for n in range(4)] + \
               [f'buffer_load_dwordx4 v[{base+16}:{base+19}], v5, s[44:47], {sreg2} offen sc1']
    def chk():
        check_g([SB+4*n for n in range(5)])()
        P('s_mov_b64 s[62:63], vcc')
        check_g([CB+4*n for n in range(5)])()
        P('s_or_b64 vcc, vcc, s[62:63]')
    poll(gl(SB, 's56', 's58') + gl(CB, 's57', 's59'), chk)
    cbv = [CB+4*n+j for n in range(5) for j in range(2)]
    sbv = [SB+4*n+j for n in range(5) for j in range(2)]
    xav = [XA+4*n+j for n in range(5) for j in range(2)]
    for r in cbv: P(f'v_add_f32 v{r}, 1.0, v{r}')
    rne_many(cbv)
    P('v_lshlrev_b32 v6, 2, v1')
    def x2_post(B):
        prs = [B+4*n for n in range(5)]
        xv = [p+j for p in prs for j in range(2)]
        for r in xv[8:]: P(f'v_cndmask_b32 v{r}, 0, v{r}, s[54:55]')
        P(f'v_pk_add_f32 v[112:113], v[{prs[0]}:{prs[0]+1}], v[{prs[1]}:{prs[1]+1}]')
        P(f'v_pk_add_f32 v[114:115], v[{prs[2]}:{prs[2]+1}], v[{prs[3]}:{prs[3]+1}]')
        P(f'v_pk_add_f32 v[112:113], v[112:113], v[{prs[4]}:{prs[4]+1}]')
        P(f'v_pk_add_f32 v[112:113], v[112:113], v[114:115]')
        P('v_add_f32 v112, v112, v113')
        wave_sum('v112', 'v113')
        P(f's_mov_b32 s60, {f32hex(1.0/576.0):#x}')
        P('v_mul_f32 v112, s60, v112')
        P('v_mov_b32 v113, v112')
        for p in prs: P(f'v_pk_add_f32 v[{p+2}:{p+3}], v[{p}:{p+1}], v[112:113] neg_lo:[0,1] neg_hi:[0,1]')
        for j in range(2): P(f'v_cndmask_b32 v{prs[4]+2+j}, 0, v{prs[4]+2+j}, s[54:55]')
        P(f'v_pk_mul_f32 v[114:115], v[{prs[0]+2}:{prs[0]+3}], v[{prs[0]+2}:{prs[0]+3}]')
        for p in prs[1:]: P(f'v_pk_fma_f32 v[114:115], v[{p+2}:{p+3}], v[{p+2}:{p+3}], v[114:115]')
        P('v_add_f32 v114, v114, v115')
        wave_sum('v114', 'v115')
        P('v_mul_f32 v114, s60, v114')
        rne('v114', 'v114')
        P(f'v_add_f32 v114, {f32hex(1e-5):#x}, v114')
        rne('v114', 'v114')
        P('v_sqrt_f32 v114, v114')
        rne('v114', 'v114')
        P('v_rcp_f32 v114, v114')
        rne('v112', 'v112')
        P('v_mov_b32 v113, v112\nv_mov_b32 v115, v114\ns_mov_b32 s61, 0xffff0000')
        def rne2():
            for p in prs: P(f'v_cvt_pk_bf16_f32 v{p+2}, v{p}, v{p+1}')
            for p in prs:
                P(f'v_lshlrev_b32 v{p}, 16, v{p+2}')
                P(f'v_and_b32 v{p+1}, s61, v{p+2}')
        for p in prs: P(f'v_pk_add_f32 v[{p}:{p+1}], v[{p}:{p+1}], v[112:113] neg_lo:[0,1] neg_hi:[0,1]')
        rne2()
        for p in prs: P(f'v_pk_mul_f32 v[{p}:{p+1}], v[{p}:{p+1}], v[114:115]')
        rne2()
        for n, p in enumerate(prs): P(f'v_pk_mul_f32 v[{p}:{p+1}], v[{p}:{p+1}], v[{CB+4*n}:{CB+4*n+1}]')
        rne2()
        for n, p in enumerate(prs): P(f'v_pk_add_f32 v[{p}:{p+1}], v[{p}:{p+1}], v[{SB+4*n}:{SB+4*n+1}]')
        for n in range(5): P(f'v_cvt_pk_bf16_f32 v{B+4*n}, v{B+4*n}, v{B+4*n+1}')
        for n in range(4): P(f'ds_write_b32 v6, v{B+4*n} offset:{L_XS+256*n}')
        P(f"""
        s_mov_b64 exec, 0xffffffff
        ds_write_b32 v6, v{B+16} offset:{L_XS+1024}
        s_mov_b64 exec, -1
        """)
    if cfg.pipe: poll2(lambda B: gl(B, 's52', 's53'), lambda B: check_g([B+4*n for n in range(5)])(), x2_post, 72, 92, 5)
    else:
        poll(gl(72, 's52', 's53'), check_g([72+4*n for n in range(5)])); x2_post(72)
    stamp(7)
    P("""
    s_waitcnt lgkmcnt(0)
    s_barrier
    """)
    end_wave()

def gu_role(nkv):
    RAW = 32
    NA = cfg.gu_early
    P('L_gu:')
    role(7)
    def setup():
        P(f"""
        s_sub_u32 s53, s3, 1              ; i
        s_lshr_b32 s54, s53, 1            ; matrix
        s_and_b32 s55, s53, 1             ; K half
        s_cmp_eq_u32 s54, 0
        s_cselect_b32 s36, s20, s22
        s_cselect_b32 s37, s21, s23
        s_mov_b32 s38, {576*9216}
        s_mov_b32 s39, 0x20000
        s_mul_i32 s56, s4, 9
        s_add_u32 s56, s56, s5
        s_sub_u32 s56, s56, 7             ; phi
        s_lshl_b32 s56, s56, 6
        s_mul_i32 s57, s55, {9*32*9216}
        s_add_u32 s56, s56, s57
        s_mov_b32 s58, 0x05040100
        s_mov_b32 s59, 0x07060302
        """)
    def loads(u, thr=True):
        for j in range(8):
            off = (32*u + 8*(j & 3) + (j >> 2)) * 9216
            P(f's_add_u32 s57, s56, {off}')
            if thr and cfg.gul and 8*(u-NA) + j >= cfg.gul: P(f's_waitcnt vmcnt({cfg.gul-1})')
            P(f'buffer_load_dword v{RAW+8*u+j}, v4, s[36:39], s57 offen nt')
    def perm(u):
        src = RAW + 8*u
        dst = src - 8
        for i in range(4):
            P(f'v_perm_b32 v{dst+i}, v{src+2*i+1}, v{src+2*i}, s58')
            P(f'v_perm_b32 v{dst+4+i}, v{src+2*i+1}, v{src+2*i}, s59')
    if cfg.pf_gu:
        P('s_cmp_lg_u32 s3, 1\ns_cbranch_scc1 L_gu_nopf')
        prefetch_code()
        P('L_gu_nopf:')
    setup()
    P(f"""
    v_mul_u32_u24 v4, {2*9216}, v3
    v_lshl_add_u32 v4, v2, 2, v4
    """)
    for u in range(NA):
        loads(u, thr=False)
        if u == 0: P('s_barrier')
    if NA == 0: P('s_barrier')
    lds_add(C_GA)
    tag_ready()
    q_fetch('L_gu2')
    P('L_gu2:')
    stamp(5)
    if cfg.pf2 & 1:
        P('s_cmp_lg_u32 s3, 2\ns_cbranch_scc1 L_gu_nopf2')
        prefetch_code('2', 16)
        P('s_waitcnt vmcnt(0)')
        P('L_gu_nopf2:')
        P(f'v_mul_u32_u24 v4, {2*9216}, v3\nv_lshl_add_u32 v4, v2, 2, v4')
    setup()
    P('s_waitcnt vmcnt(0)')
    for u in range(NA): perm(u)
    if cfg.gu_gate == 'pub': lds_wait(FL_PUB, 1, sleep=2)
    else: lds_wait(C_KVI, nkv, sleep=2)
    stamp(1)
    DEPTH = cfg.gu_depth
    for u in range(NA, 9):
        if cfg.gu_dyn and u > NA:
            l = P.lbl('Lgd')
            P(f"""
            v_mov_b32 v7, 0
            ds_read_b32 v6, v7 offset:{FL_PUB}
            s_waitcnt lgkmcnt(0)
            v_readfirstlane_b32 s60, v6
            s_cmp_lg_u32 s60, 0
            s_cbranch_scc1 {l}
            s_waitcnt vmcnt({cfg.gu_dyn})
            {l}:
            """)
        loads(u)
        if u - DEPTH >= NA:
            P(f's_waitcnt vmcnt({8*DEPTH})')
            perm(u - DEPTH)
    for u in range(max(NA, 9 - DEPTH), 9):
        P(f's_waitcnt vmcnt({8*(8-u)})')
        perm(u)
    stamp(2)
    P(f"""
    s_mul_i32 s57, s55, {9*64}
    v_lshlrev_b32 v5, 4, v3
    v_add_u32 v5, s57, v5
    s_lshl_b32 s57, s53, 7
    v_lshlrev_b32 v6, 3, v1
    v_add_u32 v6, s57, v6
    s_barrier
    """)
    stamp(3)
    AF = [96+4*u for u in range(8)] + [20]
    for u in range(9): P(f'ds_read_b128 v[{AF[u]}:{AF[u]+3}], v5 offset:{L_XS+64*u}')
    for u in range(9):
        P(f's_waitcnt lgkmcnt({8-u})')
        f0 = RAW - 8 + 8*u
        c0 = '0' if u == 0 else 'v[8:11]'
        c1 = '0' if u == 0 else 'v[12:15]'
        P(f'v_mfma_f32_16x16x32_bf16 v[8:11], v[{AF[u]}:{AF[u]+3}], v[{f0}:{f0+3}], {c0}')
        P(f'v_mfma_f32_16x16x32_bf16 v[12:15], v[{AF[u]}:{AF[u]+3}], v[{f0+4}:{f0+7}], {c1}')
    P(f"""
    v_mov_b32 v16, v8
    v_mov_b32 v17, v12
    s_mov_b64 exec, 0xffff
    ds_write_b64 v6, v[16:17] offset:{L_RED3}
    s_mov_b64 exec, -1
    s_waitcnt lgkmcnt(0)
    s_barrier
    """)
    stamp(4)
    end_wave()

def build():
    global CODE_PF
    CODE_PF = 4
    prologue()
    cF, cQ, cM = cfg.cF, cfg.cQ, cfg.cM
    assert 9*cF + 4*cQ + 3*cM == 256 and cF % 2 == 0 and cQ % 2 == 0 and cM % 2 == 0 and cF//2 >= 6 and cQ <= 12 and cM <= 12
    mod_role()
    wq_role()
    kv_role('L_kvF', cF//2, lambda: P(f's_sub_u32 s52, s5, 7\ns_mul_i32 s52, s52, {cF}\ns_add_u32 s52, s52, {3*cM+4*cQ}'), (C_GA, 4) if cfg.gu_early else None, True, cfg.kF)
    kv_role('L_kvM', cM//2, lambda: P(f's_mul_i32 s52, s5, {cM}'), ((C_B2, 6) if cfg.m_order == 'a_b_kv_wo' else ((C_H, 1) if cfg.order2 else (C_WO, 3))), False, cfg.kM)
    kv_role('L_kvQ', cQ//2, lambda: P(f's_sub_u32 s52, s5, 3\ns_mul_i32 s52, s52, {cQ}\ns_add_u32 s52, s52, {3*cM}'), ((C_WO, 3) if cfg.q_order == 'wo_kv' else (C_G, 1)), False, cfg.kQ)
    wo_role('Q', cQ//2)
    wo_role('M', cM//2)
    wo_common()
    commA_role()
    gu_role(cF//2)
    down_role()
    commF_role()

    P('L_abort:')
    P('s_mov_b64 exec, -1')
    P('L_exit:')
    if cfg.debug:
        P(f"""
        s_waitcnt lgkmcnt(0)
        s_lshl_b32 s60, s2, 4
        s_add_u32 s60, s60, s3
        s_lshl_b32 s60, s60, 6
        s_add_u32 s60, s60, {DBG}
        s_memrealtime s[96:97]
        s_waitcnt lgkmcnt(0)
        v_mov_b32 v8, s96
        """)
        for i in range(8): P(f'v_writelane_b32 v8, s{80+2*i}, {i}')
        P(f"""
        v_and_b32 v1, 63, v0
        v_lshlrev_b32 v7, 2, v1
        s_mov_b64 exec, 0x1ff
        buffer_store_dword v8, v7, s[44:47], s60 offen
        """)
    if cfg.hdbg:
        SL = {(3, 3): 3, (2, 2): 4, (2, 4): 5, (1, 3): 6, (1, 5): 7, (1, 6): 8, (5, 4): 9, (5, 6): 10, (6, 7): 11, (8, 6): 12, (7, 2): 13, (5, 7): 14, (6, 3): 6, (6, 5): 7, (6, 6): 8, (8, 3): 6, (8, 5): 7, (4, 7): 15}
        P("""
        s_waitcnt lgkmcnt(0)
        s_memrealtime s[96:97]
        s_mov_b32 s68, s32
        s_mov_b32 s69, s33
        s_mov_b32 s70, 256
        s_mov_b32 s71, 0x20000
        s_mov_b64 exec, 1
        s_waitcnt lgkmcnt(0)
        v_mov_b32 v8, s96
        v_mov_b32 v9, 4
        buffer_atomic_umax v8, v9, s[68:71], 0 offen sc1
        s_not_b32 s96, s80
        v_mov_b32 v8, s96
        v_mov_b32 v9, 0
        buffer_atomic_umax v8, v9, s[68:71], 0 offen sc1
        v_mov_b32 v8, s80
        v_mov_b32 v9, 8
        buffer_atomic_umax v8, v9, s[68:71], 0 offen sc1
        """)
        for r in range(1, 9):
            l = P.lbl('Lhd')
            P(f's_cmp_lg_u32 s98, {r}')
            P(f's_cbranch_scc1 {l}')
            for (rr, k), slot in SL.items():
                if rr == r:
                    P(f'v_mov_b32 v8, s{80+2*k}')
                    P(f'v_mov_b32 v9, {4*slot}')
                    P('buffer_atomic_umax v8, v9, s[68:71], 0 offen sc1')
            P(f'{l}:')
    P('L_end:')
    P('s_endpgm')
    P('L_codeend:')
    P.finalize()
    body = P.text()
    return (HEADER_COMMENT +
f"""; @launch grid=(256,1,1) block=(1024,1,1) lds={LDS_BYTES}
.amdgcn_target "amdgcn-amd-amdhsa--gfx950"
.text
.globl {KN}
.p2align 8
.type {KN},@function
{KN}:
{body}
.section .rodata,"a"
.p2align 6
.amdhsa_kernel {KN}
  .amdhsa_next_free_vgpr 128
  .amdhsa_next_free_sgpr 102
  .amdhsa_accum_offset 128
  .amdhsa_group_segment_fixed_size 0
  .amdhsa_kernarg_size 112
  .amdhsa_user_sgpr_count 2
  .amdhsa_user_sgpr_kernarg_segment_ptr 1
  .amdhsa_system_sgpr_workgroup_id_x 1
.end_amdhsa_kernel
""")

if __name__ == '__main__':
    import argparse
    ap = argparse.ArgumentParser()
    ap.add_argument('-o', default='k.s')
    ap.add_argument('--debug', action='store_true')
    ap.add_argument('--tiles', default='22,4,14')
    ap.add_argument('--set', nargs='*', default=[])
    a = ap.parse_args()
    cfg.debug = a.debug
    cfg.cF, cfg.cQ, cfg.cM = map(int, a.tiles.split(','))
    for kv in a.set:
        k, v = kv.split('=')
        old = getattr(cfg, k)
        setattr(cfg, k, type(old)(int(v)) if isinstance(old, (bool, int)) else v)
    open(a.o, 'w').write(build())
```

```python
import sys, math, struct
from dsl import Prog
from asmlib import HEADER_COMMENT, KN

class Cfg:
    cF, cQ, cM = 22, 4, 14
    debug = False
    prefetch_code = True
    kF, kQ, kM = '0', '0', '0'
    gu_depth = 4
    gul = 0
    gu_gate = 'pub'
    k_first = True
    pre_barrier = 1
    wo_k = 4
    b_k = 4
    q_sleep = 4
    poll_sleep = 0
    kvonly = False
    modp_prog = True
    pf2 = 0
    pf_early = 16
    pf_gu = True
    h3_local = True
    local_tries = 200
    m_order = 'a_kv_wo_b'
    gu_dyn = 0
    q_order = 'kv_wo'
    order2 = True
    wq_first = False
    q_direct = True
    hdbg = False
    q_wo_gate = False
    q_wo_first = True
    stagger = 6
    pipe = True
    gu_early = 3
    b_on = 'M'
    m_gate_pub = False
cfg = Cfg()

EPOCH = 0x0
MODP = 0x1000
QF = 0x8000
MODF = 0x20000
X2 = 0x28000
X2S = 0x1400
H3 = 0x40000
H3S = 2560
XP = 0xE0000
FP = 0x160000
PS = 4608
H3L = 0x210000
DBG = 0x300000
FL_Q, C_KVI, C_MAX, C_O, C_RED, C_H, C_G, FL_PUB, C_K, C_B, C_GA, C_B2, C_WO = 0, 4, 8, 12, 16, 20, 24, 28, 32, 36, 40, 44, 48
L_ZERO = 0x100
L_Q = 0x200
L_MX = 0x400
L_LS = 0x480
L_XS = 0x500
L_RED3 = 0xA00
L_XA = 0x1100
L_SLOT = 0x1200
L_OSLOT = 0x1200 + 18*1024
LDS_BYTES = 0x1200 + 30*1024
LOG2E = 0x3FB8AA3B
SCALE = 0x3DB504F3
GOLD0, GOLD1 = 0x7F4A7C15, 0x9E3779B9
def f32hex(x): return struct.unpack('<I', struct.pack('<f', x))[0]

P = Prog()
ABORT = 'L_abort'
DPPM = 'row_mask:0xf bank_mask:0xf'

def stamp(i):
    if cfg.debug or cfg.hdbg: P(f's_memrealtime s[{80+2*i}:{81+2*i}]')

def role(n):
    if cfg.hdbg: P(f's_mov_b32 s98, {n}')

def srd(base, ptr, nbytes):
    P(f"""
    s_mov_b32 s{base}, s{ptr}
    s_mov_b32 s{base+1}, s{ptr+1}
    s_mov_b32 s{base+2}, {nbytes}
    s_mov_b32 s{base+3}, 0x20000
    """)

def tag_ready():
    P(f"""
    s_waitcnt lgkmcnt(0)
    s_add_u32 s6, s6, {GOLD0:#x}
    s_add_u32 s7, s7, {GOLD1:#x}
    """)

def lds_wait(off, target, sleep=1):
    l = P.lbl('Lw'); d = P.lbl('Ld')
    P(f"""
    v_mov_b32 v7, 0
    s_mov_b32 s61, 0x400000
    {l}:
    ds_read_b32 v6, v7 offset:{off}
    s_waitcnt lgkmcnt(0)
    v_readfirstlane_b32 s60, v6
    s_cmp_ge_u32 s60, {target}
    s_cbranch_scc1 {d}
    s_sub_u32 s61, s61, 1
    s_cbranch_scc1 {ABORT}
    """)
    if sleep: P(f's_sleep {sleep}')
    P(f"""
    s_branch {l}
    {d}:
    """)

def lds_add(off):
    P(f"""
    v_mov_b32 v7, 0
    v_mov_b32 v6, 1
    s_mov_b64 s[62:63], exec
    s_mov_b64 exec, 1
    ds_add_u32 v7, v6 offset:{off}
    s_mov_b64 exec, s[62:63]
    """)

def lds_add_rtn(off, sdst):
    P(f"""
    v_mov_b32 v7, 0
    v_mov_b32 v6, 1
    s_mov_b64 s[62:63], exec
    s_mov_b64 exec, 1
    ds_add_rtn_u32 v6, v7, v6 offset:{off}
    s_waitcnt lgkmcnt(0)
    v_readfirstlane_b32 {sdst}, v6
    s_mov_b64 exec, s[62:63]
    """)

def rne(dst, src):
    P(f'v_cvt_pk_bf16_f32 {dst}, {src}, {src}')
    P(f'v_lshlrev_b32 {dst}, 16, {dst}')

def rne_many(regs):
    for r in regs: P(f'v_cvt_pk_bf16_f32 v{r}, v{r}, v{r}')
    for r in regs: P(f'v_lshlrev_b32 v{r}, 16, v{r}')

def xrow_multi(op, vs, ts):
    for sw in ('v_permlane16_swap_b32', 'v_permlane32_swap_b32'):
        for v, t in zip(vs, ts): P(f'v_mov_b32 {t}, {v}')
        for v, t in zip(vs, ts): P(f'{sw} {v}, {t}')
        for v, t in zip(vs, ts): P(f'{op} {v}, {v}, {t}')

def wave_sum(v, t):
    for d in ('quad_perm:[1,0,3,2]', 'quad_perm:[2,3,0,1]', 'row_half_mirror', 'row_mirror'):
        P(f'v_add_f32_dpp {v}, {v}, {v} {d} {DPPM}')
    xrow_multi('v_add_f32', [v], [t])

def masks(base):
    P(f"""
    v_and_b32 v6, 1, v2
    v_lshlrev_b32 v6, 4, v6
    v_mov_b32 v7, 0xffff
    v_lshlrev_b32 v7, v6, v7
    v_bfe_u32 v6, v2, 1, 2
    """)
    for i in range(4):
        P(f'v_cmp_eq_u32 vcc, {i}, v6')
        P(f'v_cndmask_b32 v{base+i}, 0, v7, vcc')

def diag_mm(acc, wregs, xregs, mk, qa, qb):
    n = len(wregs)
    def prep(t):
        q = (qa, qb)[t & 1]
        for i in range(4): P(f'v_and_b32 v{q+i}, {xregs[t]}, v{mk+i}')
    prep(0)
    for t in range(n):
        if t + 1 < n: prep(t + 1)
        q = (qa, qb)[t & 1]
        c = '0' if t == 0 else f'v[{acc}:{acc+3}]'
        P(f'v_mfma_f32_16x16x32_bf16 v[{acc}:{acc+3}], v[{wregs[t]}:{wregs[t]+3}], v[{q}:{q+3}], {c}')

def poll(loads, check):
    l = P.lbl('Lp'); l2 = P.lbl('Lp')
    P('s_mov_b32 s64, 0x8000')
    if cfg.poll_sleep:
        P(f's_branch {l2}')
        P(f'{l}:')
        P(f's_sleep {cfg.poll_sleep}')
        P(f'{l2}:')
    else:
        P(f'{l}:')
    for x in loads: P(x)
    P('s_waitcnt vmcnt(0)')
    check()
    P(f"""
    s_sub_u32 s64, s64, 1
    s_cbranch_scc1 {ABORT}
    s_cbranch_vccnz {l}
    """)


def poll2(mk_loads, mk_check, post, baseA, baseB, nloads):
    la = P.lbl('Lq'); lb = P.lbl('Lq'); ga = P.lbl('Lq'); gb = P.lbl('Lq'); done = P.lbl('Lq')
    P('s_mov_b32 s64, 0x8000')
    for x in mk_loads(baseA): P(x)
    P(f's_sleep {cfg.stagger}')
    P(f'{la}:')
    for x in mk_loads(baseB): P(x)
    P(f's_waitcnt vmcnt({nloads})')
    mk_check(baseA)
    P(f"""
    s_cbranch_vccz {ga}
    s_sub_u32 s64, s64, 1
    s_cbranch_scc1 {ABORT}
    """)
    for x in mk_loads(baseA): P(x)
    P(f's_waitcnt vmcnt({nloads})')
    mk_check(baseB)
    P(f"""
    s_cbranch_vccz {gb}
    s_branch {la}
    """)
    P(f'{gb}:')
    post(baseB)
    P(f's_branch {done}')
    P(f'{ga}:')
    post(baseA)
    P(f'{done}:')

def check_g(bases):
    def f():
        n = len(bases)
        assert n <= 8 + 5
        prs = [66 + 2*i for i in range(7)] + [96, 98]
        assert n <= len(prs) + 1
        for i, b in enumerate(bases):
            dst = 'vcc' if i == n - 1 else f's[{prs[i]}:{prs[i]+1}]'
            P(f'v_cmp_ne_u64 {dst}, s[6:7], v[{b+2}:{b+3}]')
        for i in range(n - 1):
            P(f's_or_b64 vcc, vcc, s[{prs[i]}:{prs[i]+1}]')
    return f

def check_tags32(regs, t='v6', t2='v7'):
    def f():
        rs = list(regs)
        P(f'v_xor_b32 {t}, s7, v{rs[0]}')
        for r in rs[1:]:
            P(f'v_xor_b32 {t2}, s7, v{r}')
            P(f'v_or_b32 {t}, {t}, {t2}')
        P(f'v_cmp_ne_u32 vcc, 0, {t}')
    return f

def end_wave(): P('s_branch L_exit')

def make_granules(G, ACC):
    P(f'v_mov_b32 v{G}, v{ACC}')
    P(f'v_mov_b32 v{G+1}, v{ACC+1}')
    P(f'v_mov_b32 v{G+4}, v{ACC+2}')
    P(f'v_mov_b32 v{G+5}, v{ACC+3}')
def tag_fill(G):
    for o in (2, 6):
        P(f'v_mov_b32 v{G+o}, s6')
        P(f'v_mov_b32 v{G+o+1}, s7')

def prologue():
    P(f"""
    s_cmp_ge_u32 s2, 256
    s_cbranch_scc1 L_end
    s_load_dwordx16 s[8:23], s[0:1], 0
    s_load_dwordx8 s[24:31], s[0:1], 64
    s_load_dwordx4 s[32:35], s[0:1], 96
    """)
    if cfg.prefetch_code and cfg.pf_early:
        P(f"""
        s_cmp_ge_u32 s2, {cfg.pf_early}
        s_cbranch_scc1 L_nopf0
        v_lshrrev_b32 v4, 6, v0
        v_cmp_ne_u32 vcc, 10, v4
        s_cbranch_vccnz L_nopf0
        v_and_b32 v1, 63, v0
        """)
        prefetch_code('0', 124)
        P('L_nopf0:')
    if cfg.hdbg:
        for i in range(1, 8): P(f's_mov_b32 s{80+2*i}, 0')
        P('s_mov_b32 s98, 0')
    stamp(0)
    P(f"""
    v_lshrrev_b32 v4, 6, v0
    v_and_b32 v1, 63, v0
    v_and_b32 v2, 15, v1
    v_readfirstlane_b32 s3, v4
    v_lshrrev_b32 v3, 4, v1
    s_and_b32 s4, s2, 7
    s_lshl_b32 s4, s4, 1
    s_bfe_u32 s5, s2, 0x10003
    s_add_u32 s4, s4, s5
    s_lshr_b32 s5, s2, 4
    s_cmp_lg_u32 s3, 0
    s_cbranch_scc1 L_nozero
    v_lshlrev_b32 v4, 2, v1
    v_mov_b32 v5, 0
    ds_write_b32 v4, v5
    ds_write_b32 v4, v5 offset:256
    ds_write_b32 v4, v5 offset:{L_XA}
    L_nozero:
    s_waitcnt lgkmcnt(0)
    s_load_dwordx2 s[6:7], s[34:35], 0
    """)
    srd(44, 34, 0x40000000)
    nkF, nkQ, nkM = cfg.cF//2, cfg.cQ//2, cfg.cM//2
    if cfg.kvonly:
        P(f"""
        s_cmp_lt_u32 s5, 3
        s_cselect_b32 s60, {16-nkM}, {16-nkQ}
        s_cmp_ge_u32 s5, 7
        s_cselect_b32 s60, {16-nkF}, s60
        s_cmp_ge_u32 s3, s60
        s_cbranch_scc1 L_kvgo
        s_barrier
        s_branch L_end
        L_kvgo:
        """)
    P(f"""
    s_cmp_lt_u32 s5, 3
    s_cbranch_scc1 L_classM
    s_cmp_lt_u32 s5, 7
    s_cbranch_scc1 L_classQ
    s_cmp_eq_u32 s3, 0
    s_cbranch_scc1 L_kvF0
    s_cmp_le_u32 s3, 4
    s_cbranch_scc1 L_gu
    s_cmp_ge_u32 s3, {16-min(nkF, 11)}
    s_cbranch_scc1 L_kvF
    s_branch L_idle
    L_classQ:
    s_cmp_ge_u32 s3, {16-nkQ}
    s_cbranch_scc1 L_kvQ
    s_cmp_eq_u32 s3, 0
    s_cbranch_scc1 L_commA
    s_cmp_le_u32 s3, 6
    s_cbranch_scc1 L_wq
    s_cmp_le_u32 s3, 9
    s_cbranch_scc1 L_woQ
    s_branch L_idle
    L_classM:
    s_cmp_ge_u32 s3, {16-nkM}
    s_cbranch_scc1 L_kvM
    s_cmp_eq_u32 s3, 0
    s_cbranch_scc1 L_commA
    s_cmp_le_u32 s3, 6
    s_cbranch_scc1 L_mod
    s_cmp_le_u32 s3, 9
    s_cbranch_scc1 L_woM
    L_idle:
    s_barrier
    s_waitcnt vmcnt(0)
    s_branch L_end
    """)

def kv_role(name, nkv, tile_expr, gate, is_f, kinf='0'):
    K0, V0, QF_, SD, TT, ACC, MK = 32, 64, 96, 24, 28, 96, 8
    if is_f:
        P('L_kvF0:')
        if nkv == 12:
            P('s_mov_b32 s53, 11')
            P('s_branch L_kvFgo')
        else:
            P('s_branch L_idle')
        P(f'{name}:')
        P(f's_sub_u32 s53, s3, {16-min(nkv, 11)}')
        P('L_kvFgo:')
    else:
        P(f'{name}:')
        P(f's_sub_u32 s53, s3, {16-nkv}')
    role(1)
    tile_expr()
    P(f"""
    s_lshl_b32 s54, s53, 1
    s_add_u32 s52, s52, s54
    s_lshl_b32 s52, s52, 12
    s_lshl_b32 s54, s4, 24
    s_add_u32 s52, s52, s54
    s_add_u32 s52, s52, {61440*256}
    s_add_u32 s55, s52, 4096
    """)
    srd(36, 10, 0x10000000)
    srd(40, 12, 0x10000000)
    P(f"""
    v_and_b32 v4, 7, v1
    v_lshlrev_b32 v4, 8, v4
    v_lshrrev_b32 v5, 3, v1
    v_lshl_add_u32 v4, v5, 4, v4          ; K: (l&7)*256 + (l>>3)*16
    v_lshlrev_b32 v5, 10, v3
    v_lshl_add_u32 v5, v2, 4, v5          ; V: gq*1024 + m*16
    """)
    if cfg.kvonly: gate = None
    if gate:
        P('s_barrier')
        lds_wait(gate[0], gate[1], sleep=2)
    stamp(1)
    st = {'n': 0}
    lim = lambda i: int(kinf[min(i, len(kinf)-1)], 16)
    def issue(r, vo, srdr, sreg, off):
        n = st['n']
        if not gate and n == cfg.pre_barrier: P('s_barrier')
        k = lim(n)
        if k and n >= k: P(f's_waitcnt vmcnt({k-1})')
        P(f'buffer_load_dwordx4 v[{r}:{r+3}], {vo}, s[{srdr}:{srdr+3}], {sreg} offen offset:{off} nt')
        st['n'] += 1
    for u in range(4):
        for hh in range(2):
            issue(K0 + 4*(2*u+hh), 'v4', 36, 's52' if u < 2 else 's55', (u & 1)*2048 + hh*128)
    if cfg.k_first:
        lds_add(C_K)
        lds_wait(C_K, nkv, sleep=1)
    for t in range(2):
        for r_ in range(4):
            issue(V0 + 16*t + 4*r_, 'v5', 40, 's52' if t == 0 else 's55', 256*r_)
    lds_add(C_KVI)
    stamp(2)
    if cfg.kvonly:
        P('s_waitcnt vmcnt(8)'); stamp(4)
        P('s_waitcnt vmcnt(0)'); stamp(5)
        end_wave(); return
    masks(MK)
    P(f"""
    v_bfe_u32 v12, v2, 2, 1
    v_lshlrev_b32 v22, 2, v12
    v_lshlrev_b32 v12, 8, v12
    v_lshrrev_b32 v13, 3, v2
    v_lshl_add_u32 v13, v3, 1, v13        ; 2g + par
    v_lshl_add_u32 v12, v13, 4, v12
    v_add_u32 v12, {L_Q}, v12
    v_and_b32 v13, 3, v2
    v_mov_b32 v14, {L_ZERO}
    """)
    for u in range(4):
        P(f'v_cmp_eq_u32 vcc, {u}, v13')
        P(f'v_cndmask_b32 v{16+u}, v14, v12, vcc')
    P(f"""
    v_and_b32 v12, 1, v3
    v_lshlrev_b32 v12, 4, v12
    v_lshrrev_b32 v13, 3, v2
    v_lshl_add_u32 v12, v13, 2, v12
    v_lshrrev_b32 v13, 1, v3
    v_add_u32 v12, v12, v13
    v_lshlrev_b32 v20, 2, v12
    v_add_u32 v21, 8, v20
    """)
    tag_ready()
    lds_wait(FL_Q, 4, sleep=2)
    stamp(3)
    P('s_waitcnt vmcnt(16)')
    for u in range(4):
        for hh in range(2):
            r = QF_ + 4*(2*u+hh)
            P(f'ds_read_b128 v[{r}:{r+3}], v{16+u} offset:{128*hh}')
    P('s_waitcnt vmcnt(8)')
    stamp(4)
    for i in range(8):
        P(f's_waitcnt lgkmcnt({7-i})')
        c = '0' if i == 0 else f'v[{SD}:{SD+3}]'
        P(f'v_mfma_f32_16x16x32_bf16 v[{SD}:{SD+3}], v[{K0+4*i}:{K0+4*i+3}], v[{QF_+4*i}:{QF_+4*i+3}], {c}')
    for j in range(4): P(f'v_mov_b32 v{TT+j}, v{SD+j}')
    for j in range(4): P(f'v_permlane32_swap_b32 v{SD+j}, v{TT+j}')
    for j in range(4): P(f'v_add_f32_dpp v{SD+j}, v{TT+j}, v{SD+j} row_shl:8 {DPPM}')
    P(f's_mov_b32 s56, {SCALE:#x}')
    P(f's_mov_b32 s57, 0xffff0000')
    P(f's_mov_b32 s58, {LOG2E:#x}')
    for rep in range(2):
        for p in range(2): P(f'v_cvt_pk_bf16_f32 v{TT+p}, v{SD+2*p}, v{SD+2*p+1}')
        for p in range(2):
            P(f'v_lshlrev_b32 v{SD+2*p}, 16, v{TT+p}')
            P(f'v_and_b32 v{SD+2*p+1}, s57, v{TT+p}')
        if rep == 0:
            for i in range(4): P(f'v_mul_f32 v{SD+i}, s56, v{SD+i}')
    P(f"""
    v_max3_f32 v12, v{SD}, v{SD+1}, v{SD+2}
    v_max_f32 v12, v12, v{SD+3}
    v_max_f32_dpp v12, v12, v12 quad_perm:[1,0,3,2] {DPPM}
    v_max_f32_dpp v12, v12, v12 quad_perm:[2,3,0,1] {DPPM}
    v_mov_b32 v13, v12
    v_permlane16_swap_b32 v12, v13
    v_max_f32 v12, v12, v13
    s_lshl_b32 s59, s53, 3
    v_add_u32 v23, s59, v22
    s_mov_b64 s[62:63], exec
    s_mov_b64 exec, 0x11
    ds_write_b32 v23, v12 offset:{L_MX}
    s_mov_b64 exec, s[62:63]
    """)
    lds_add(C_MAX)
    lds_wait(C_MAX, nkv, sleep=0)
    for i in range(nkv): P(f'ds_read_b32 v{K0+i}, v22 offset:{L_MX+8*i}')
    P('s_waitcnt lgkmcnt(0)')
    MX = 15
    P(f'v_mov_b32 v{MX}, v{K0}')
    i = 1
    while i < nkv:
        if i + 1 < nkv: P(f'v_max3_f32 v{MX}, v{MX}, v{K0+i}, v{K0+i+1}'); i += 2
        else: P(f'v_max_f32 v{MX}, v{MX}, v{K0+i}'); i += 1
    P(f'v_mul_f32 v13, s58, v{MX}')
    for i in range(4): P(f'v_fma_f32 v{SD+i}, v{SD+i}, s58, -v13')
    for i in range(4): P(f'v_exp_f32 v{SD+i}, v{SD+i}')
    P(f"""
    v_add_f32 v12, v{SD}, v{SD+1}
    v_add_f32 v13, v{SD+2}, v{SD+3}
    """)
    for i in range(4): P(f'v_cvt_pk_bf16_f32 v{SD+i}, v{SD+i}, v{SD+i}')
    P('v_add_f32 v12, v12, v13')
    G = 104
    for t in range(2):
        for r_ in range(4): P(f'ds_bpermute_b32 v{G+4*t+r_}, v{20+t}, v{SD+r_}')
    P(f"""
    v_add_f32_dpp v12, v12, v12 quad_perm:[1,0,3,2] {DPPM}
    v_add_f32_dpp v12, v12, v12 quad_perm:[2,3,0,1] {DPPM}
    v_mov_b32 v13, v12
    v_permlane16_swap_b32 v12, v13
    v_add_f32 v12, v12, v13
    s_mov_b64 s[62:63], exec
    s_mov_b64 exec, 0x11
    ds_write_b32 v23, v12 offset:{L_LS}
    s_mov_b64 exec, s[62:63]
    s_waitcnt lgkmcnt(1)
    """)
    for i in range(8):
        for j in range(4): P(f'v_and_b32 v{K0+4*i+j}, v{G+i}, v{MK+j}')
    GR = 112
    tag_fill(GR)
    P(f'v_mov_b32 v122, s6\nv_mov_b32 v123, s7')
    P('s_waitcnt vmcnt(0)')
    stamp(5)
    for i in range(8):
        c = '0' if i == 0 else f'v[{ACC}:{ACC+3}]'
        P(f'v_mfma_f32_16x16x32_bf16 v[{ACC}:{ACC+3}], v[{V0+4*i}:{V0+4*i+3}], v[{K0+4*i}:{K0+4*i+3}], {c}')
    P(f"""
    s_lshl_b32 s59, s53, 10
    v_lshlrev_b32 v16, 4, v1
    v_add_u32 v17, s59, v16
    ds_write_b128 v17, v[{ACC}:{ACC+3}] offset:{L_OSLOT}
    """)
    lds_add_rtn(C_O, 's60')
    ldone = P.lbl('Lkvdone')
    P(f"""
    s_cmp_lg_u32 s60, {nkv-1}
    s_cbranch_scc1 {ldone}
    """)
    P('v_lshlrev_b32 v18, 3, v1')
    for i in range(nkv):
        P(f'ds_read_b64 v[{K0+4*i}:{K0+4*i+1}], v18 offset:{L_OSLOT+1024*i}')
        P(f'ds_read_b64 v[{K0+4*i+2}:{K0+4*i+3}], v18 offset:{L_OSLOT+1024*i+512}')
    LS0 = 100
    for i in range(nkv): P(f'ds_read_b32 v{LS0+i}, v22 offset:{L_LS+8*i}')
    P(f"""
    s_lshl_b32 s59, s4, 4
    s_add_u32 s59, s59, s5
    s_mul_i32 s59, s59, {H3S}
    s_add_u32 s59, s59, {H3}
    s_waitcnt lgkmcnt(0)
    """)
    regs = list(range(nkv))
    while len(regs) > 1:
        nxt = []
        for a in range(0, len(regs) - 1, 2):
            x, y = regs[a], regs[a+1]
            for j in range(4): P(f'v_add_f32 v{K0+4*x+j}, v{K0+4*x+j}, v{K0+4*y+j}')
            P(f'v_add_f32 v{LS0+x}, v{LS0+x}, v{LS0+y}')
            nxt.append(x)
        if len(regs) % 2: nxt.append(regs[-1])
        regs = nxt
    make_granules(GR, K0)
    P(f"""
    v_mov_b32 v120, v{MX}
    v_mov_b32 v121, v{LS0}
    """)
    if cfg.h3_local:
        P(f"""
        s_add_u32 s65, s59, {H3L - H3}
        buffer_store_dwordx4 v[{GR}:{GR+3}], v16, s[44:47], s65 offen
        buffer_store_dwordx4 v[{GR+4}:{GR+7}], v16, s[44:47], s65 offen offset:1024
        s_mov_b64 exec, 0xff
        buffer_store_dwordx4 v[120:123], v16, s[44:47], s65 offen offset:2048
        s_mov_b64 exec, -1
        """)
    P(f"""
    buffer_store_dwordx4 v[{GR}:{GR+3}], v16, s[44:47], s59 offen sc1
    buffer_store_dwordx4 v[{GR+4}:{GR+7}], v16, s[44:47], s59 offen offset:1024 sc1
    s_mov_b64 exec, 0xff
    buffer_store_dwordx4 v[120:123], v16, s[44:47], s59 offen offset:2048 sc1
    s_mov_b64 exec, -1
    """)
    lds_add(FL_PUB)
    stamp(6)
    P(f'{ldone}:')
    if is_f:
        P(f"""
        s_cmp_lt_u32 s53, 5
        s_cbranch_scc1 L_down
        s_cmp_eq_u32 s53, 5
        s_cbranch_scc1 L_commF
        s_branch L_exit
        """)
    else:
        end_wave()

def pack_pair(G, ACC):
    P(f'v_mov_b32 v{G}, v{ACC}')
    P(f'v_mov_b32 v{G+1}, v{ACC+1}')
    P(f'v_mov_b32_dpp v{G}, v{ACC+2} row_shr:8 row_mask:0xf bank_mask:0xc')
    P(f'v_mov_b32_dpp v{G+1}, v{ACC+3} row_shr:8 row_mask:0xf bank_mask:0xc')

def store_addr():
    P(f"""
    v_and_b32 v12, 7, v2
    v_lshl_add_u32 v12, v3, 3, v12
    v_lshlrev_b32 v12, 5, v12
    v_lshrrev_b32 v6, 3, v2
    v_lshl_add_u32 v12, v6, 4, v12
    """)

def tag_fill1(G):
    P(f'v_mov_b32 v{G+2}, s6')
    P(f'v_mov_b32 v{G+3}, s7')

def store_block(sb, ACC, G):
    pack_pair(G, ACC)
    P(f"""
    s_lshl_b32 s60, {sb}, 10
    s_add_u32 s59, s59, s60
    buffer_store_dwordx4 v[{G}:{G+3}], v12, s[44:47], s59 offen sc1
    """)

def store_half(ACC, G):
    T = G + 4
    for j in range(4): P(f'v_mov_b32 v{T+j}, v{ACC+j}')
    for j in range(4): P(f'v_permlane32_swap_b32 v{ACC+j}, v{T+j}')
    for j in range(4): P(f'v_add_f32_dpp v{ACC+j}, v{T+j}, v{ACC+j} row_shl:8 {DPPM}')
    pack_pair(G, ACC)
    P(f"""
    s_add_u32 s59, s59, 4096
    s_mov_b64 s[62:63], exec
    s_mov_b64 exec, 0xffffffff
    buffer_store_dwordx4 v[{G}:{G+3}], v12, s[44:47], s59 offen sc1
    s_mov_b64 exec, s[62:63]
    """)

def down_role():
    W0, MK, XS, ACC, QA, QB, G = 32, 8, 64, 72, 76, 80, 84
    P('L_down:')
    role(8)
    lds_wait(FL_PUB, 1, sleep=1)
    srd(36, 24, 4608*1152)
    P(f"""
    s_mul_i32 s54, s4, 9
    s_add_u32 s54, s54, s5
    s_sub_u32 s54, s54, 7             ; phi
    s_mul_i32 s55, s54, {32*1152}
    s_cmp_eq_u32 s53, 4
    s_cbranch_scc1 L_down_half
    s_lshl_b32 s56, s53, 8
    s_add_u32 s55, s55, s56
    v_mul_u32_u24 v4, 1152, v3
    v_lshl_add_u32 v4, v2, 4, v4
    """)
    for e in range(8):
        P(f'buffer_load_dwordx4 v[{W0+4*e}:{W0+4*e+3}], v4, s[36:39], s55 offen nt')
        if e < 7: P(f's_add_u32 s55, s55, {4*1152}')
    P('v_lshlrev_b32 v5, 2, v3')
    P('s_mov_b32 s57, 16')
    P('s_branch L_down_go')
    P('L_down_half:')
    P(f"""
    s_add_u32 s55, s55, 1024
    v_lshrrev_b32 v6, 3, v2
    v_lshl_add_u32 v6, v6, 2, v3
    v_mul_u32_u24 v4, 1152, v6
    v_and_b32 v7, 7, v2
    v_lshl_add_u32 v4, v7, 4, v4
    v_lshlrev_b32 v5, 2, v6
    """)
    for t in range(4):
        P(f'buffer_load_dwordx4 v[{W0+4*t}:{W0+4*t+3}], v4, s[36:39], s55 offen nt')
        if t < 3: P(f's_add_u32 s55, s55, {8*1152}')
    P('s_mov_b32 s57, 32')
    P('L_down_go:')
    masks(MK)
    store_addr()
    tag_fill1(G)
    for e in range(8):
        P(f'v_mov_b32 v{104+e}, v5')
        if e < 7: P('v_add_u32 v5, s57, v5')
    P(f"""
    s_mul_i32 s59, s54, {PS}
    s_add_u32 s59, s59, {FP}
    v_and_b32 v6, 31, v1
    v_lshlrev_b32 v13, 2, v6
    """)
    P('s_barrier')
    P('s_barrier')
    stamp(7)
    P(f"""
    ds_read_b32 v16, v13 offset:{L_RED3}
    ds_read_b32 v17, v13 offset:{L_RED3+128}
    ds_read_b32 v18, v13 offset:{L_RED3+256}
    ds_read_b32 v19, v13 offset:{L_RED3+384}
    s_waitcnt lgkmcnt(0)
    v_add_f32 v16, v16, v17
    v_add_f32 v18, v18, v19
    """)
    rne_many([16, 18])
    k1 = f32hex(0.044715); k2 = f32hex(-2.0*math.sqrt(2.0/math.pi)*math.log2(math.e))
    P(f"""
    s_mov_b32 s60, {k1:#x}
    s_mov_b32 s61, {k2:#x}
    v_mul_f32 v17, v16, v16
    v_mul_f32 v17, v17, v16
    v_fma_f32 v17, v17, s60, v16
    v_mul_f32 v17, s61, v17
    v_exp_f32 v17, v17
    v_add_f32 v17, 1.0, v17
    v_rcp_f32 v17, v17
    v_mul_f32 v16, v16, v17
    """)
    rne('v16', 'v16')
    P('v_mul_f32 v16, v16, v18')
    P('v_cvt_pk_bf16_f32 v16, v16, v16')
    for e in range(8): P(f'ds_bpermute_b32 v{XS+e}, v{104+e}, v16')
    P('s_waitcnt vmcnt(0) lgkmcnt(0)')
    P(f"""
    s_cmp_eq_u32 s53, 4
    s_cbranch_scc1 L_down_half2
    """)
    diag_mm(ACC, [W0+4*e for e in range(8)], [f'v{XS+e}' for e in range(8)], MK, QA, QB)
    store_block('s53', ACC, G)
    stamp(6)
    end_wave()
    P('L_down_half2:')
    diag_mm(ACC, [W0+4*t for t in range(4)], [f'v{XS+t}' for t in range(4)], MK, QA, QB)
    store_half(ACC, G)
    stamp(6)
    end_wave()

def wo_role(suffix, nkv):
    P(f'L_wo{suffix}:')
    P('s_barrier')
    if cfg.order2 and suffix == 'Q' and cfg.q_order == 'wo_kv': lds_wait(C_G, 1, sleep=2)
    elif cfg.order2: lds_wait(C_KVI, nkv, sleep=2)
    elif suffix == 'M': lds_wait(C_B2, 6, sleep=2)
    elif cfg.q_wo_gate: lds_wait(C_G, 1, sleep=2)
    P('s_branch L_wo_common')

def wo_common():
    W0, MK, XS, G = 32, 8, 112, 16
    A0, A1, QA, QB = 24, 28, 0, 0
    P('L_wo_common:')
    role(4)
    srd(36, 16, 4096*1152)
    P(f"""
    s_sub_u32 s53, s3, 7              ; 0,1,2
    s_mov_b32 s54, s5                 ; a
    s_mul_i32 s55, s54, 9
    s_lshl_b32 s56, s4, 8
    """)
    def rowbase(dst, e):
        P(f"""
        s_add_u32 s57, s55, {e}
        s_bfe_u32 s58, s57, 0x10003
        s_lshl_b32 s58, s58, 7
        s_lshr_b32 s60, s57, 4
        s_lshl_b32 s60, s60, 5
        s_add_u32 s58, s58, s60
        s_and_b32 s60, s57, 7
        s_add_u32 s58, s58, s60
        s_add_u32 s58, s58, s56
        s_mul_i32 {dst}, s58, 1152
        """)
    def common_post():
        lds_add(C_WO)
        masks(MK)
        store_addr()
        tag_ready()
        P(f"""
        s_mul_i32 s59, s4, 7
        s_add_u32 s59, s59, s54
        s_mul_i32 s59, s59, {PS}
        s_add_u32 s59, s59, {XP}
        """)
    P(f"""
    s_cmp_eq_u32 s53, 2
    s_cbranch_scc1 L_wo_half
    s_lshl_b32 s65, s53, 9
    v_mul_u32_u24 v4, {8*1152}, v3
    v_lshl_add_u32 v4, v2, 4, v4
    """)
    for e in range(10):
        if e == 9:
            P(f"""
            s_cmp_lt_u32 s54, 6
            s_cbranch_scc1 L_wo_l9
            """)
        rowbase('s66', e)
        P('s_add_u32 s66, s66, s65')
        P(f'buffer_load_dwordx4 v[{W0+8*e}:{W0+8*e+3}], v4, s[36:39], s66 offen nt')
        P(f'buffer_load_dwordx4 v[{W0+8*e+4}:{W0+8*e+7}], v4, s[36:39], s66 offen offset:256 nt')
    P('L_wo_l9:')
    P('v_lshlrev_b32 v5, 2, v3')
    common_post()
    GA, GB = 16, 20
    tag_fill1(GA); tag_fill1(GB)
    stamp(5)
    P('s_barrier')
    stamp(6)
    XS2 = [112, 113, 114, 115, 116, 117, 118, 119, 13, 14]
    for e in range(10): P(f'ds_read_b32 v{XS2[e]}, v5 offset:{L_XA+16*e}')
    P('s_waitcnt vmcnt(0) lgkmcnt(0)')
    def mm(n):
        qs = ((60+0, ), )
        QAa, QBb = 0, 0
        def prep(e, q):
            for i in range(4): P(f'v_and_b32 v{q+i}, v{XS2[e]}, v{MK+i}')
        Q2 = (4, 4)
        for e in range(n):
            q = 4 if e == 0 else W0 + 8*(e-1)
            prep(e, q)
            c0 = '0' if e == 0 else f'v[{A0}:{A0+3}]'
            c1 = '0' if e == 0 else f'v[{A1}:{A1+3}]'
            P(f'v_mfma_f32_16x16x32_bf16 v[{A0}:{A0+3}], v[{W0+8*e}:{W0+8*e+3}], v[{q}:{q+3}], {c0}')
            P(f'v_mfma_f32_16x16x32_bf16 v[{A1}:{A1+3}], v[{W0+8*e+4}:{W0+8*e+7}], v[{q}:{q+3}], {c1}')
    P(f"""
    s_cmp_lt_u32 s54, 6
    s_cbranch_scc1 L_wo_m9
    """)
    mm(10)
    P('s_branch L_wo_st')
    P('L_wo_m9:')
    mm(9)
    P('L_wo_st:')
    pack_pair(GA, A0)
    pack_pair(GB, A1)
    P(f"""
    s_lshl_b32 s60, s53, 11
    s_add_u32 s59, s59, s60
    buffer_store_dwordx4 v[{GA}:{GA+3}], v12, s[44:47], s59 offen sc1
    buffer_store_dwordx4 v[{GB}:{GB+3}], v12, s[44:47], s59 offen offset:1024 sc1
    """)
    stamp(7)
    end_wave()
    P('L_wo_half:')
    P(f"""
    v_mul_u32_u24 v4, {8*1152}, v3
    v_and_b32 v6, 7, v2
    v_lshl_add_u32 v4, v6, 4, v4
    v_add_u32 v4, 1024, v4
    v_cmp_lt_u32 s[68:69], 7, v2
    """)
    for t in range(5):
        rowbase('s66', 2*t)
        rowbase('s67', 2*t+1)
        if t == 4:
            P(f"""
            s_cmp_lt_u32 s54, 6
            s_cselect_b32 s67, 0x40000000, s67
            """)
        P(f"""
        v_mov_b32 v6, s66
        v_mov_b32 v7, s67
        v_cndmask_b32 v6, v6, v7, s[68:69]
        v_add_u32 v6, v6, v4
        buffer_load_dwordx4 v[{W0+4*t}:{W0+4*t+3}], v6, s[36:39], 0 offen nt
        """)
    P(f"""
    v_lshrrev_b32 v5, 3, v2
    v_lshl_add_u32 v5, v5, 2, v3
    v_lshlrev_b32 v5, 2, v5
    """)
    if cfg.pf2 & 2:
        P('v_mov_b32 v15, v5')
        prefetch_code('3', 100)
        P('v_mov_b32 v5, v15')
    common_post()
    GH = 96
    tag_fill1(GH)
    stamp(5)
    P('s_barrier')
    stamp(6)
    for t in range(5): P(f'ds_read_b32 v{112+t}, v5 offset:{L_XA+32*t}')
    P('s_waitcnt vmcnt(0) lgkmcnt(0)')
    diag_mm(72, [W0+4*t for t in range(5)], [f'v{112+t}' for t in range(5)], MK, 76, 80)
    store_half(72, GH)
    stamp(7)
    end_wave()

def q_fetch(nxt):
    l = P.lbl('Lqf'); l2 = P.lbl('Lqf'); l3 = P.lbl('Lqf')
    P(f"""
    s_cmp_gt_u32 s3, 4
    s_cbranch_scc1 {nxt}
    s_lshl_b32 s38, s4, 10
    s_lshl_b32 s39, s3, 8
    s_add_u32 s38, s38, s39
    s_add_u32 s38, s38, {QF-256}
    s_add_u32 s36, s34, s38
    s_addc_u32 s37, s35, 0
    s_mov_b32 s42, 0x40000
    """)
    if cfg.q_direct:
        P(f"""
        s_branch {l3}
        {l}:
        s_sleep {cfg.q_sleep}
        {l3}:
        s_load_dwordx2 s[40:41], s[36:37], 128 glc
        s_load_dwordx16 s[48:63], s[36:37], 0 glc
        s_load_dwordx16 s[64:79], s[36:37], 64 glc
        s_sub_u32 s42, s42, 1
        s_cbranch_scc1 {ABORT}
        s_waitcnt lgkmcnt(0)
        s_cmp_lg_u32 s41, s7
        s_cbranch_scc1 {l}
        s_add_u32 s43, s48, s7
        """)
        for i in range(49, 80): P(f's_add_u32 s43, s43, s{i}')
        P(f"""
        s_cmp_lg_u32 s43, s40
        s_cbranch_scc1 {l3}
        """)
    else:
        P(f"""
        s_branch {l3}
        {l}:
        s_sleep {cfg.q_sleep}
        {l3}:
        s_load_dwordx2 s[40:41], s[36:37], 128 glc
        s_sub_u32 s42, s42, 1
        s_cbranch_scc1 {ABORT}
        s_waitcnt lgkmcnt(0)
        s_cmp_lg_u32 s41, s7
        s_cbranch_scc1 {l}
        {l2}:
        s_load_dwordx16 s[48:63], s[36:37], 0 glc
        s_load_dwordx16 s[64:79], s[36:37], 64 glc
        s_sub_u32 s42, s42, 1
        s_cbranch_scc1 {ABORT}
        s_waitcnt lgkmcnt(0)
        s_add_u32 s43, s48, s7
        """)
        for i in range(49, 80): P(f's_add_u32 s43, s43, s{i}')
        P(f"""
        s_cmp_lg_u32 s43, s40
        s_cbranch_scc1 {l2}
        """)
    for i in range(32): P(f'v_writelane_b32 v20, s{48+i}, {i}')
    P(f"""
    v_and_b32 v21, 3, v1
    v_lshlrev_b32 v21, 2, v21
    v_bfe_u32 v22, v1, 2, 2
    v_add_u32 v21, v21, v22
    v_and_b32 v22, 16, v1
    v_add_u32 v21, v21, v22
    v_lshlrev_b32 v21, 2, v21
    s_lshl_b32 s38, s3, 7
    v_add_u32 v21, s38, v21
    s_mov_b64 exec, 0xffffffff
    ds_write_b32 v21, v20 offset:{L_Q-128}
    s_mov_b64 exec, -1
    """)
    srd(44, 34, 0x40000000)
    lds_add(FL_Q)

def ln_stats(regs, mean_b, rstd, t1, t2, maskfix=None):
    P(f'v_add_f32 {t1}, v{regs[0]}, v{regs[1]}')
    for r in regs[2:]: P(f'v_add_f32 {t1}, {t1}, v{r}')
    wave_sum(t1, t2)
    P(f's_mov_b32 s60, {f32hex(1.0/576.0):#x}')
    P(f'v_mul_f32 {t1}, s60, {t1}')
    first = True
    for r in regs:
        P(f'v_sub_f32 {t2}, v{r}, {t1}')
        if maskfix and r in maskfix[0]: P(f'v_cndmask_b32 {t2}, 0, {t2}, {maskfix[1]}')
        if first: P(f'v_mul_f32 {rstd}, {t2}, {t2}'); first = False
        else: P(f'v_fmac_f32 {rstd}, {t2}, {t2}')
    wave_sum(rstd, t2)
    P(f'v_mul_f32 {rstd}, s60, {rstd}')
    rne(rstd, rstd)
    P(f'v_add_f32 {rstd}, {f32hex(1e-5):#x}, {rstd}')
    rne(rstd, rstd)
    P(f'v_sqrt_f32 {rstd}, {rstd}')
    rne(rstd, rstd)
    P(f'v_rcp_f32 {rstd}, {rstd}')
    rne(mean_b, t1)

def fold_reduce(base, slot0):
    for i in range(6): P(f'ds_read_b128 v[{base+4*i}:{base+4*i+3}], v16 offset:{L_SLOT+1024*(slot0+i)}')
    P('s_waitcnt lgkmcnt(0)')
    for (x, y) in ((0, 1), (2, 3), (4, 5), (0, 2), (0, 4)):
        for jj in range(4): P(f'v_add_f32 v{base+4*x+jj}, v{base+4*x+jj}, v{base+4*y+jj}')
    T = base + 4
    for jj in range(4): P(f'v_mov_b32 v{T+jj}, v{base+jj}')
    for jj in range(4): P(f'v_permlane32_swap_b32 v{base+jj}, v{T+jj}')
    for jj in range(4): P(f'v_add_f32_dpp v{base+jj}, v{T+jj}, v{base+jj} row_shl:8 {DPPM}')

def silu(regs, tmps):
    P(f's_mov_b32 s60, {f32hex(-1.4426950408889634):#x}')
    for r in regs: P(f'v_lshlrev_b32 v{r}, 16, v{r}')
    for r, t in zip(regs, tmps): P(f'v_mul_f32 v{t}, s60, v{r}')
    for r, t in zip(regs, tmps): P(f'v_exp_f32 v{t}, v{t}')
    for r, t in zip(regs, tmps): P(f'v_add_f32 v{t}, 1.0, v{t}')
    for r, t in zip(regs, tmps): P(f'v_rcp_f32 v{t}, v{t}')
    for r, t in zip(regs, tmps): P(f'v_mul_f32 v{r}, v{r}, v{t}')
    for r, t in zip(regs, tmps): P(f'v_cvt_pk_bf16_f32 v{r}, v{r}, v{r}')

def wq_role():
    WB, MK, XS, ACC, QA, QB, XA = 56, 8, 104, 116, 120, 124, 32
    XSB = L_SLOT + 12*1024
    P('L_wq:')
    role(2)
    srd(36, 14, 576*8192)
    srd(40, 8, 1152)
    P(f"""
    s_sub_u32 s53, s3, 1              ; j
    s_sub_u32 s54, s5, 3              ; qi
    s_mul_i32 s57, s53, 96
    v_lshlrev_b32 v4, 1, v1
    """)
    for n in range(9): P(f'buffer_load_ushort v{XA+n}, v4, s[40:43], 0 offen offset:{128*n}')
    P(f"""
    v_and_b32 v6, 31, v1
    v_lshlrev_b32 v7, 1, v6
    s_lshl_b32 s58, s57, 1
    buffer_load_ushort v{XA+9}, v4, s[40:43], s58 offen
    buffer_load_ushort v{XA+10}, v7, s[40:43], s58 offen offset:128
    v_lshrrev_b32 v13, 3, v2
    v_lshl_add_u32 v13, v13, 2, v3
    v_lshlrev_b32 v5, 13, v13
    v_and_b32 v7, 7, v2
    v_lshl_add_u32 v5, v7, 4, v5
    s_lshl_b32 s58, s57, 13
    s_lshl_b32 s59, s4, 9
    s_add_u32 s58, s58, s59
    s_lshl_b32 s59, s54, 7
    s_add_u32 s58, s58, s59
    """)
    for t in range(12):
        P(f'buffer_load_dwordx4 v[{WB+4*t}:{WB+4*t+3}], v5, s[36:39], s58 offen nt')
        if t < 11: P(f's_add_u32 s58, s58, {8*8192}')
    stamp(1)
    P('s_barrier')
    P(f"""
    v_add_u32 v28, s57, v1
    v_lshlrev_b32 v28, 3, v28
    v_add_u32 v29, s57, v6
    v_lshlrev_b32 v29, 3, v29
    v_add_u32 v29, 512, v29
    v_lshlrev_b32 v31, 2, v13
    s_lshl_b32 s67, s53, 10
    v_add_u32 v31, s67, v31
    v_lshlrev_b32 v30, 2, v1
    v_add_u32 v30, s67, v30
    v_lshlrev_b32 v27, 2, v6
    v_add_u32 v27, s67, v27
    """)
    masks(MK)
    P('s_waitcnt vmcnt(12)')
    tag_ready()
    for n in range(11): P(f'v_lshlrev_b32 v{XA+n}, 16, v{XA+n}')
    ln_stats(list(range(XA, XA+9)), 'v16', 'v17', 'v18', 'v19')
    for n in (9, 10): P(f'v_sub_f32 v{XA+n}, v{XA+n}, v16')
    rne_many([XA+9, XA+10])
    for n in (9, 10): P(f'v_mul_f32 v{XA+n}, v{XA+n}, v17')
    rne_many([XA+9, XA+10])
    P(f"""
    v_mov_b32 v20, v{XA+9}
    v_mov_b32 v21, v{XA+10}
    s_mov_b32 s66, {MODP}
    s_mov_b32 s68, {MODP+9216}
    s_mov_b32 s69, {MODP+4608}
    s_mov_b32 s70, {MODP+9216+4608}
    """)
    G = 32
    sr = ['s66', 's68', 's69', 's70']
    def mloads(G_):
        o = []
        for st_, va in enumerate(('v28', 'v29')):
            for i in range(4):
                r = G_ + 8*st_ + 2*i
                o.append(f'buffer_load_dwordx2 v[{r}:{r+1}], {va}, s[44:47], {sr[i]} offen sc1')
        return o
    if cfg.modp_prog:
        G2 = 104
        ok = P.lbl('Lmp'); useb = P.lbl('Lmp'); slow = P.lbl('Lmp')
        P('s_waitcnt vmcnt(6)')
        for x in mloads(G): P(x)
        P('s_waitcnt vmcnt(11)')
        for x in mloads(G2): P(x)
        P('s_waitcnt vmcnt(8)')
        check_tags32([G+1+2*i for i in range(8)])()
        P(f's_cbranch_vccz {ok}')
        P('s_waitcnt vmcnt(0)')
        check_tags32([G2+1+2*i for i in range(8)])()
        P(f's_cbranch_vccnz {slow}')
        for i in range(8): P(f'v_mov_b32 v{G+2*i}, v{G2+2*i}')
        P(f's_branch {ok}')
        P(f'{slow}:')
        poll(mloads(G), check_tags32([G+1+2*i for i in range(8)]))
        P(f'{ok}:')
        P('s_waitcnt vmcnt(0)')
    else:
        poll(mloads(G), check_tags32([G+1+2*i for i in range(8)]))
    stamp(2)
    for st_ in range(2):
        b = G + 8*st_
        P(f'v_add_f32 v{b}, v{b}, v{b+2}')
        P(f'v_add_f32 v{b+4}, v{b+4}, v{b+6}')
    rne_many([G, G+4, G+8, G+12])
    for st_ in range(2): P(f'v_add_f32 v{G+8*st_+4}, 1.0, v{G+8*st_+4}')
    rne_many([G+4, G+12])
    for st_ in range(2): P(f'v_mul_f32 v{20+st_}, v{20+st_}, v{G+8*st_+4}')
    rne_many([20, 21])
    for st_ in range(2): P(f'v_add_f32 v{20+st_}, v{20+st_}, v{G+8*st_}')
    for st_ in range(2): P(f'v_cvt_pk_bf16_f32 v{20+st_}, v{20+st_}, v{20+st_}')
    P(f"""
    ds_write_b32 v30, v20 offset:{XSB}
    ds_write_b32 v27, v21 offset:{XSB+256}
    """)
    for t in range(12): P(f'ds_read_b32 v{XS+t}, v31 offset:{XSB+32*t}')
    P('s_waitcnt lgkmcnt(0)')
    stamp(3)
    diag_mm(ACC, [WB+4*t for t in range(12)], [f'v{XS+t}' for t in range(12)], MK, QA, QB)
    P(f"""
    s_lshl_b32 s59, s53, 10
    v_lshlrev_b32 v16, 4, v1
    v_add_u32 v19, s59, v16
    ds_write_b128 v19, v[{ACC}:{ACC+3}] offset:{L_SLOT}
    """)
    lds_add_rtn(C_RED, 's60')
    P(f"""
    s_cmp_lg_u32 s60, 5
    s_cbranch_scc1 L_wq_done
    """)
    fold_reduce(WB, 0)
    for r in range(4): P(f'v_mov_b32_dpp v{WB+4+r}, v{WB+r} quad_perm:[1,0,3,2] {DPPM}')
    for r in range(4): P(f'v_cvt_pk_bf16_f32 v{WB+r}, v{WB+r}, v{WB+4+r}')
    P(f"""
    v_add_u32 v{WB+4}, v{WB}, v{WB+1}
    v_add3_u32 v{WB+4}, v{WB+4}, v{WB+2}, v{WB+3}
    s_mov_b32 s60, 0x00550055
    s_mov_b32 s61, 0
    v_cndmask_b32 v{WB+4}, 0, v{WB+4}, s[60:61]
    v_add_u32_dpp v{WB+4}, v{WB+4}, v{WB+4} quad_perm:[2,3,0,1] {DPPM}
    v_add_u32_dpp v{WB+4}, v{WB+4}, v{WB+4} row_shl:4 {DPPM} bound_ctrl:0
    v_lshrrev_b32 v19, 1, v2
    v_lshl_add_u32 v19, v3, 2, v19
    v_lshlrev_b32 v19, 4, v19            ; (gq*4 + c/2)*16
    v_readlane_b32 s60, v{WB+4}, 0
    v_readlane_b32 s61, v{WB+4}, 16
    s_add_u32 s60, s60, s61
    s_add_u32 s60, s60, s7
    s_mov_b32 s61, 128
    v_writelane_b32 v{WB}, s60, 1
    v_writelane_b32 v{WB+1}, s7, 1
    v_writelane_b32 v19, s61, 1
    s_lshl_b32 s59, s4, 10
    s_lshl_b32 s60, s54, 8
    s_add_u32 s59, s59, s60
    s_add_u32 s59, s59, {QF}
    s_mov_b64 exec, 0x00550057
    buffer_store_dwordx4 v[{WB}:{WB+3}], v19, s[44:47], s59 offen sc1
    s_mov_b64 exec, -1
    """)
    lds_add(C_G)
    stamp(4)
    P('L_wq_done:')
    q_fetch('L_exit')
    end_wave()

def mod_role():
    WA, MK, XS, ACC, QA, QB = 32, 8, 104, 116, 120, 124
    XSB = L_SLOT + 12*1024
    P('L_mod:')
    role(3)
    P(f"""
    s_mov_b32 s54, s2
    s_cmp_ge_u32 s54, 36
    s_cbranch_scc1 L_mod_noA
    """)
    srd(36, 28, 576*6912)
    srd(40, 26, 1152)
    P(f"""
    s_sub_u32 s53, s3, 1              ; j
    v_lshlrev_b32 v4, 1, v1
    s_and_b32 s56, s54, 1             ; kh
    s_mul_i32 s57, s56, 288
    s_mul_i32 s58, s53, 48
    s_add_u32 s57, s57, s58
    s_lshl_b32 s58, s57, 1
    buffer_load_ushort v16, v4, s[40:43], s58 offen
    v_lshrrev_b32 v13, 3, v2
    v_lshl_add_u32 v13, v13, 2, v3
    v_mul_u32_u24 v5, 6912, v13
    v_and_b32 v7, 7, v2
    v_lshl_add_u32 v5, v7, 4, v5
    s_lshr_b32 s55, s54, 1            ; cbk
    s_mul_i32 s58, s57, 6912
    s_lshl_b32 s59, s55, 7
    s_add_u32 s58, s58, s59
    """)
    for t in range(6):
        P(f'buffer_load_dwordx4 v[{WA+4*t}:{WA+4*t+3}], v5, s[36:39], s58 offen nt')
        if t < 5: P(f's_add_u32 s58, s58, {8*6912}')
    P('s_barrier')
    P(f"""
    v_lshlrev_b32 v31, 2, v13
    s_lshl_b32 s67, s53, 10
    v_add_u32 v31, s67, v31
    v_lshlrev_b32 v30, 2, v1
    v_add_u32 v30, s67, v30
    s_mul_i32 s65, s56, 9216
    s_lshl_b32 s60, s55, 9
    s_add_u32 s65, s65, s60
    s_add_u32 s65, s65, {MODP}
    v_lshlrev_b32 v29, 5, v3
    v_add_u32 v29, v29, v2
    v_lshlrev_b32 v29, 3, v29
    """)
    masks(MK)
    tag_ready()
    for rr in range(4): P(f'v_mov_b32 v{61+2*rr}, s7')
    P('s_waitcnt vmcnt(6)')
    stamp(1)
    silu([16], [19])
    P(f'ds_write_b32 v30, v16 offset:{XSB}')
    for t in range(6): P(f'ds_read_b32 v{XS+t}, v31 offset:{XSB+32*t}')
    P('s_waitcnt vmcnt(0) lgkmcnt(0)')
    stamp(2)
    lds_add(C_G)
    diag_mm(ACC, [WA+4*t for t in range(6)], [f'v{XS+t}' for t in range(6)], MK, QA, QB)
    P(f"""
    s_lshl_b32 s59, s53, 10
    v_lshlrev_b32 v16, 4, v1
    v_add_u32 v19, s59, v16
    ds_write_b128 v19, v[{ACC}:{ACC+3}] offset:{L_SLOT}
    """)
    lds_add_rtn(C_RED, 's60')
    P(f"""
    s_cmp_lg_u32 s60, 5
    s_cbranch_scc1 L_mod_fin
    """)
    fold_reduce(WA, 0)
    for rr in range(4): P(f'v_mov_b32 v{60+2*rr}, v{WA+rr}')
    P('s_mov_b64 exec, 0x00ff00ff')
    for rr in range(4):
        P(f'buffer_store_dwordx2 v[{60+2*rr}:{61+2*rr}], v29, s[44:47], s65 offen offset:{64*rr} sc1')
    P('s_mov_b64 exec, -1')
    lds_add(C_H)
    stamp(3)
    P('s_branch L_mod_fin')
    P('L_mod_noA:')
    P('s_barrier')
    if cfg.b_on != 'M': lds_add(C_G)
    lds_add(C_H)
    tag_ready()
    P('L_mod_fin:')
    if cfg.b_on == 'M':
        lds_wait(C_H, 1, sleep=0)
        if cfg.order2:
            P(f"""
            s_cmp_lt_u32 s2, 12
            s_cbranch_scc1 L_mod_nob
            s_sub_u32 s53, s3, 1
            s_sub_u32 s65, s2, 36
            s_cmp_ge_u32 s2, 36
            s_cbranch_scc1 L_mod_bgo
            s_mov_b32 s65, s2
            """)
            if cfg.m_order == 'a_b_kv_wo':
                P('s_branch L_mod_bgo')
            P('s_mov_b32 s98, s65' if not cfg.hdbg else 's_mov_b32 s99, s65')
            q_fetch('L_mod_q2')
            P('L_mod_q2:')
            P('s_mov_b32 s65, s98' if not cfg.hdbg else 's_mov_b32 s65, s99')
            P('s_sub_u32 s53, s3, 1')
            P('s_mov_b32 s100, 1')
            lds_wait(C_WO, 3, sleep=2)
            P('s_branch L_mod_bgo2')
            P('L_mod_bgo:')
            P('s_mov_b32 s100, 0')
            P('L_mod_bgo2:')
        else:
            P(f"""
            s_cmp_lt_u32 s2, 12
            s_cbranch_scc1 L_mod_nob
            s_sub_u32 s65, s2, 12
            s_sub_u32 s53, s3, 1
            """)
        modb_body('M')
        if cfg.order2:
            P('s_cmp_lg_u32 s100, 0\ns_cbranch_scc1 L_exit')
        P('s_branch L_mod_q')
        P('L_mod_nob:')
        lds_add(C_B2)
        P('L_mod_q:')
    q_fetch('L_exit')
    end_wave()

def modb_body(cls):
    WB, MK, XS, ACC, QA, QB, G = 56, 8, 104, 116, 120, 124, 32
    done = 'L_exit' if cls == 'Q' else 'L_modb_done'
    srd(36, 28, 576*6912)
    srd(40, 26, 1152)
    P(f"""
    v_lshlrev_b32 v4, 1, v1
    s_mul_i32 s66, s53, 96
    s_lshl_b32 s59, s66, 1
    buffer_load_ushort v17, v4, s[40:43], s59 offen
    buffer_load_ushort v18, v4, s[40:43], s59 offen offset:128
    v_lshrrev_b32 v13, 3, v2
    v_lshl_add_u32 v13, v13, 2, v3
    v_mul_u32_u24 v5, 6912, v13
    v_and_b32 v7, 7, v2
    v_lshl_add_u32 v5, v7, 4, v5
    v_lshlrev_b32 v31, 2, v13
    s_lshl_b32 s67, s53, 9
    v_add_u32 v31, s67, v31
    v_lshlrev_b32 v30, 2, v1
    v_add_u32 v30, s67, v30
    s_mul_i32 s58, s66, 6912
    s_lshl_b32 s59, s65, 7
    s_add_u32 s58, s58, s59
    s_add_u32 s58, s58, 2304
    """)
    def wloads():
        for t in range(12):
            if cls == 'Q' and cfg.b_k and t >= cfg.b_k: P(f's_waitcnt vmcnt({cfg.b_k-1})')
            P(f'buffer_load_dwordx4 v[{WB+4*t}:{WB+4*t+3}], v5, s[36:39], s58 offen nt')
            if t < 11: P(f's_add_u32 s58, s58, {8*6912}')
    if cls == 'M':
        wloads()
        lds_add(C_B2)
        masks(MK)
        P('s_waitcnt vmcnt(12)')
    else:
        masks(MK)
        P('s_waitcnt vmcnt(0)')
        tag_ready()
    tag_fill(G)
    silu([17, 18], [19, 20])
    P(f"""
    ds_write_b32 v30, v17 offset:{L_XS}
    ds_write_b32 v30, v18 offset:{L_XS+256}
    """)
    for t in range(12): P(f'ds_read_b32 v{XS+t}, v31 offset:{L_XS+32*t}')
    if cls == 'Q':
        lds_wait(C_G, 1, sleep=2)
        stamp(1)
        wloads()
    P('s_waitcnt vmcnt(0) lgkmcnt(0)')
    diag_mm(ACC, [WB+4*t for t in range(12)], [f'v{XS+t}' for t in range(12)], MK, QA, QB)
    P(f"""
    s_lshl_b32 s59, s53, 10
    v_lshlrev_b32 v16, 4, v1
    v_add_u32 v19, s59, v16
    ds_write_b128 v19, v[{ACC}:{ACC+3}] offset:{L_SLOT+6*1024}
    """)
    lds_add_rtn(C_B, 's60')
    P(f"""
    s_cmp_lg_u32 s60, 5
    s_cbranch_scc1 {done}
    """)
    fold_reduce(WB, 6)
    rne_many([WB+jj for jj in range(4)])
    make_granules(G, WB)
    P(f"""
    s_lshl_b32 s59, s65, 9
    s_add_u32 s59, s59, {MODF}
    v_lshlrev_b32 v19, 3, v3
    v_add_u32 v19, v19, v2
    v_lshlrev_b32 v19, 5, v19
    s_mov_b64 exec, 0x00ff00ff
    buffer_store_dwordx4 v[{G}:{G+3}], v19, s[44:47], s59 offen sc1
    buffer_store_dwordx4 v[{G+4}:{G+7}], v19, s[44:47], s59 offen offset:16 sc1
    s_mov_b64 exec, -1
    """)
    stamp(4)
    if cls == 'Q': end_wave()
    else: P('L_modb_done:')

def modb_role():
    P('L_modb:')
    P('s_barrier')
    if cfg.b_on != 'Q':
        P('s_branch L_end')
        return
    P(f"""
    s_sub_u32 s65, s2, 48            ; b
    s_cmp_ge_u32 s65, 36
    s_cbranch_scc1 L_exit
    s_sub_u32 s53, s3, 7              ; j
    """)
    modb_body('Q')

def prefetch_code(sfx='', dst=16):
    if not cfg.prefetch_code: return
    P(f"""
    s_getpc_b64 s[52:53]
    L_pc{sfx}:
    s_sub_u32 s52, s52, L_pc{sfx}-{KN}
    s_subb_u32 s53, s53, 0
    v_lshlrev_b32 v4, 7, v1
    """)
    for i in range(CODE_PF):
        P(f'v_cmp_gt_u32 vcc, L_codeend-{KN}, v4')
        P('s_and_saveexec_b64 s[62:63], vcc')
        P(f'global_load_dword v{dst+i}, v4, s[52:53]')
        P('s_mov_b64 exec, s[62:63]')
        P('v_add_u32 v4, 0x2000, v4')

def reduce4(a, b, n_i, base):
    regs = list(range(n_i))
    while len(regs) > 1:
        nxt = []
        for k in range(0, len(regs) - 1, 2):
            x, y = regs[k], regs[k+1]
            for j in range(2): P(f'v_add_f32 v{base+4*x+j}, v{base+4*x+j}, v{base+4*y+j}')
            nxt.append(x)
        if len(regs) % 2: nxt.append(regs[-1])
        regs = nxt
    for d in ('row_ror:4', 'row_ror:8'):
        for j in range(2): P(f'v_add_f32_dpp v{base+j}, v{base+j}, v{base+j} {d} {DPPM}')
    xrow_multi('v_add_f32', [f'v{base+j}' for j in range(2)], [f'v{base+2+j}' for j in range(2)])

def commA_role():
    P('L_commA:')
    role(5)
    P('s_setprio 3')
    P('s_barrier')
    P(f"""
    s_mov_b32 s54, s5                 ; a
    s_mul_i32 s55, s4, 7
    s_add_u32 s55, s55, s54           ; rho
    v_and_b32 v112, 3, v1
    v_lshrrev_b32 v4, 1, v112           ; pi
    s_lshl_b32 s56, s55, 1
    v_add_u32 v4, s56, v4
    v_and_b32 v4, 7, v4
    s_lshr_b32 s56, s55, 2
    s_lshl_b32 s56, s56, 5
    v_add_u32 v4, s56, v4
    v_and_b32 v5, 1, v112               ; gamma
    v_lshl_add_u32 v4, v5, 4, v4
    v_lshlrev_b32 v113, 1, v4
    v_lshlrev_b32 v114, 4, v112
    """)
    srd(40, 8, 1152)
    P(f"""
    buffer_load_ushort v116, v113, s[40:43], 0 offen
    buffer_load_ushort v117, v113, s[40:43], 0 offen offset:16
    s_cmp_eq_u32 s54, 6
    s_cselect_b32 s57, 10, 9            ; E
    s_mul_i32 s56, s54, 9
    v_add_u32 v4, s56, v2               ; l_src = 9a + e
    v_mul_u32_u24 v6, {H3S}, v3
    v_lshl_add_u32 v5, v4, 5, v6
    v_bfe_u32 v4, v4, 3, 1              ; head
    v_lshl_add_u32 v4, v4, 6, v6
    v_add_u32 v4, 2048, v4
    s_mul_i32 s48, s4, {16*H3S}
    s_add_u32 s48, s48, {H3}
    s_add_u32 s49, s48, {4*H3S}
    s_add_u32 s50, s48, {8*H3S}
    s_add_u32 s51, s48, {12*H3S}
    v_lshrrev_b32 v115, 2, v1
    v_mul_u32_u24 v115, {PS}, v115
    v_add_u32 v115, v115, v114
    v_lshrrev_b32 v6, 2, v1
    v_mul_u32_u24 v118, {X2S}, v6
    v_add_u32 v118, v118, v114
    v_lshlrev_b32 v119, 4, v1
    """)
    tag_ready()
    P('v_mov_b32 v122, s6\nv_mov_b32 v123, s7')
    lds_wait(FL_PUB, 1, sleep=1)
    P(f"""
    v_lshlrev_b32 v116, 16, v116
    v_cmp_gt_u32 vcc, s57, v2
    s_mov_b32 s56, {LOG2E:#x}
    s_mov_b64 exec, vcc
    """)
    def h3_loads(B):
        o = []
        for i in range(4):
            b = B + 12*i
            o.append(f'buffer_load_dwordx4 v[{b}:{b+3}], v5, s[44:47], s{48+i} offen sc1')
            o.append(f'buffer_load_dwordx4 v[{b+4}:{b+7}], v5, s[44:47], s{48+i} offen offset:16 sc1')
            o.append(f'buffer_load_dwordx4 v[{b+8}:{b+11}], v4, s[44:47], s{48+i} offen sc1')
        return o
    def h3_check(B):
        bases = [B + 12*i + o for i in range(4) for o in (0, 4, 8)]
        check_g(bases[:6])()
        P('s_mov_b64 s[62:63], vcc')
        check_g(bases[6:])()
        P('s_or_b64 vcc, vcc, s[62:63]')
    def h3_post(B):
        M = [B+12*i+8 for i in range(4)]; L = [m+1 for m in M]; W = [m+2 for m in M]
        P(f"""
        v_max3_f32 v12, v{M[0]}, v{M[1]}, v{M[2]}
        v_max_f32 v12, v12, v{M[3]}
        """)
        xrow_multi('v_max_f32', ['v12'], ['v13'])
        for i in range(4): P(f'v_sub_f32 v{W[i]}, v{M[i]}, v12')
        for i in range(4): P(f'v_mul_f32 v{W[i]}, s56, v{W[i]}')
        for i in range(4): P(f'v_exp_f32 v{W[i]}, v{W[i]}')
        O = lambda i, j: B + 12*i + (j >> 1)*4 + (j & 1)
        P(f'v_mul_f32 v14, v{W[0]}, v{L[0]}')
        for j in range(4): P(f'v_mul_f32 v{8+j}, v{W[0]}, v{O(0,j)}')
        for i in range(1, 4):
            P(f'v_fmac_f32 v14, v{W[i]}, v{L[i]}')
            for j in range(4): P(f'v_fmac_f32 v{8+j}, v{W[i]}, v{O(i,j)}')
        xrow_multi('v_add_f32', ['v14', 'v8', 'v9', 'v10', 'v11'], [f'v{B+2}', f'v{B+3}', f'v{B+6}', f'v{B+7}', f'v{B+11}'])
        P('v_rcp_f32 v14, v14')
        for j in range(4): P(f'v_mul_f32 v{8+j}, v{8+j}, v14')
        for j in range(4): P(f'v_cvt_pk_bf16_f32 v{8+j}, v{8+j}, v{8+j}')
    if cfg.h3_local:
        l = P.lbl('Lhl'); ok = P.lbl('Lhl'); far = P.lbl('Lhl')
        for i in range(4): P(f's_add_u32 s{48+i}, s{48+i}, {H3L - H3}')
        P(f's_mov_b32 s64, {cfg.local_tries}')
        P(f'{l}:')
        for x in h3_loads(16): P(x)
        P('s_waitcnt vmcnt(0)')
        h3_check(16)
        P(f"""
        s_cbranch_vccz {ok}
        s_sub_u32 s64, s64, 1
        s_cbranch_scc0 {l}
        """)
        for i in range(4): P(f's_sub_u32 s{48+i}, s{48+i}, {H3L - H3}')
        poll(h3_loads(16), lambda: h3_check(16))
        P(f'{ok}:')
        if cfg.debug: P(f's_sub_u32 s82, {cfg.local_tries}, s64')
        h3_post(16)
    else:
        poll(h3_loads(16), lambda: h3_check(16))
        if cfg.debug: P('s_sub_u32 s82, 0x8000, s64')
        h3_post(16)
    stamp(4)
    P(f"""
    s_and_b32 exec_lo, exec_lo, 0xffff
    s_mov_b32 exec_hi, 0
    ds_write_b128 v119, v[8:11] offset:{L_XA}
    s_mov_b64 exec, -1
    s_cmp_ge_u32 s55, 72
    s_cselect_b32 s65, 1, 0
    s_lshl_b32 s56, s55, 6              ; rho*64
    s_add_u32 s48, s56, {XP}
    """)
    for i in range(1, 7): P(f's_add_u32 s{48+i}, s{47+i}, {16*PS}')
    P(f"""
    s_lshl_b32 s57, s55, 6
    s_add_u32 s58, s57, {MODF}
    v_lshlrev_b32 v117, 16, v117
    s_waitcnt lgkmcnt(0)
    s_barrier
    """)
    stamp(5)
    P(f"""
    s_cmp_lg_u32 s65, 0
    s_cbranch_scc1 L_exit
    """)
    def red_loads(n):
        def f(B):
            return [f'buffer_load_dwordx4 v[{B+4*n}:{B+4*n+3}], v114, s[44:47], s58 offen sc1'] + \
                   [f'buffer_load_dwordx4 v[{B+4*i}:{B+4*i+3}], v115, s[44:47], s{48+i} offen sc1' for i in range(n)]
        return f
    def red_check(n):
        def f(B):
            bases = [B+4*i for i in range(n+1)]
            if n + 1 <= 8: check_g(bases)()
            else:
                check_g(bases[:5])()
                P('s_mov_b64 s[62:63], vcc')
                check_g(bases[5:])()
                P('s_or_b64 vcc, vcc, s[62:63]')
        return f
    def xp_post(B):
        reduce4(0, 1, 7, B)
        rne_many([B, B+1])
        for j in range(2): P(f'v_mul_f32 v{B+j}, v{B+j}, v{B+28+j}')
        rne_many([B, B+1])
        for j in range(2): P(f'v_add_f32 v{120+j}, v{B+j}, v{116+j}')
        rne_many([120, 121])
    if cfg.pipe: poll2(red_loads(7), red_check(7), xp_post, 16, 48, 8)
    else:
        poll(red_loads(7)(16), lambda: red_check(7)(16))
        if cfg.debug: P('s_sub_u32 s84, 0x8000, s64')
        xp_post(16)
    P(f"""
    s_add_u32 s59, s57, {X2}
    s_mov_b64 exec, 0xffffffff
    buffer_store_dwordx4 v[120:123], v118, s[44:47], s59 offen sc1
    s_mov_b64 exec, -1
    """)
    stamp(6)
    P(f's_add_u32 s48, s56, {FP}')
    for i in range(1, 9): P(f's_add_u32 s{48+i}, s{47+i}, {16*PS}')
    P(f's_add_u32 s58, s57, {MODF+864*16}')
    srd(40, 30, 1152)
    def fp_post(B):
        reduce4(0, 1, 9, B)
        rne_many([B, B+1])
        for j in range(2): P(f'v_mul_f32 v{B+j}, v{B+j}, v{B+36+j}')
        rne_many([B, B+1])
        for j in range(2): P(f'v_add_f32 v{8+j}, v{B+j}, v{120+j}')
        for j in range(2): P(f'v_cvt_pk_bf16_f32 v{8+j}, v{8+j}, v{8+j}')
    if cfg.pipe: poll2(red_loads(9), red_check(9), fp_post, 24, 64, 10)
    else:
        poll(red_loads(9)(24), lambda: red_check(9)(24))
        if cfg.debug: P('s_sub_u32 s86, 0x8000, s64')
        fp_post(24)
    P(f"""
    s_mov_b64 exec, 0xf
    buffer_store_short v8, v113, s[40:43], 0 offen
    buffer_store_short v9, v113, s[40:43], 0 offen offset:16
    s_mov_b64 exec, -1
    """)
    stamp(7)
    P(f"""
    s_mul_i32 s55, s4, 7
    s_add_u32 s55, s55, s5
    s_cmp_lg_u32 s55, 0
    s_cbranch_scc1 L_exit
    v_mov_b32 v4, {EPOCH}
    v_mov_b32 v8, s6
    v_mov_b32 v9, s7
    s_mov_b64 exec, 1
    buffer_store_dwordx2 v[8:9], v4, s[44:47], 0 offen sc1
    s_mov_b64 exec, -1
    """)
    end_wave()

def commF_role():
    P('L_commF:')
    role(6)
    P('s_setprio 3')
    SB, CB, XA = 32, 52, 72
    P(f"""
    v_lshlrev_b32 v4, 4, v1             ; granule l
    v_and_b32 v5, 31, v1
    v_lshlrev_b32 v5, 4, v5
    s_mov_b32 s56, {MODF+288*16}
    s_mov_b32 s57, {MODF+576*16}
    s_add_u32 s58, s56, 4096
    s_add_u32 s59, s57, 4096
    s_and_b32 s52, s2, 7
    s_mul_i32 s52, s52, {X2S}
    s_add_u32 s52, s52, {X2}
    s_add_u32 s53, s52, 4096
    v_cmp_gt_u32 s[54:55], 32, v1
    """)
    lds_wait(FL_PUB, 1, sleep=1)
    def gl(base, sreg, sreg2):
        return [f'buffer_load_dwordx4 v[{base+4*n}:{base+4*n+3}], v4, s[44:47], {sreg} offen offset:{1024*n} sc1' for n in range(4)] + \
               [f'buffer_load_dwordx4 v[{base+16}:{base+19}], v5, s[44:47], {sreg2} offen sc1']
    def chk():
        check_g([SB+4*n for n in range(5)])()
        P('s_mov_b64 s[62:63], vcc')
        check_g([CB+4*n for n in range(5)])()
        P('s_or_b64 vcc, vcc, s[62:63]')
    poll(gl(SB, 's56', 's58') + gl(CB, 's57', 's59'), chk)
    cbv = [CB+4*n+j for n in range(5) for j in range(2)]
    sbv = [SB+4*n+j for n in range(5) for j in range(2)]
    xav = [XA+4*n+j for n in range(5) for j in range(2)]
    for r in cbv: P(f'v_add_f32 v{r}, 1.0, v{r}')
    rne_many(cbv)
    P('v_lshlrev_b32 v6, 2, v1')
    def x2_post(B):
        prs = [B+4*n for n in range(5)]
        xv = [p+j for p in prs for j in range(2)]
        for r in xv[8:]: P(f'v_cndmask_b32 v{r}, 0, v{r}, s[54:55]')
        P(f'v_pk_add_f32 v[112:113], v[{prs[0]}:{prs[0]+1}], v[{prs[1]}:{prs[1]+1}]')
        P(f'v_pk_add_f32 v[114:115], v[{prs[2]}:{prs[2]+1}], v[{prs[3]}:{prs[3]+1}]')
        P(f'v_pk_add_f32 v[112:113], v[112:113], v[{prs[4]}:{prs[4]+1}]')
        P(f'v_pk_add_f32 v[112:113], v[112:113], v[114:115]')
        P('v_add_f32 v112, v112, v113')
        wave_sum('v112', 'v113')
        P(f's_mov_b32 s60, {f32hex(1.0/576.0):#x}')
        P('v_mul_f32 v112, s60, v112')
        P('v_mov_b32 v113, v112')
        for p in prs: P(f'v_pk_add_f32 v[{p+2}:{p+3}], v[{p}:{p+1}], v[112:113] neg_lo:[0,1] neg_hi:[0,1]')
        for j in range(2): P(f'v_cndmask_b32 v{prs[4]+2+j}, 0, v{prs[4]+2+j}, s[54:55]')
        P(f'v_pk_mul_f32 v[114:115], v[{prs[0]+2}:{prs[0]+3}], v[{prs[0]+2}:{prs[0]+3}]')
        for p in prs[1:]: P(f'v_pk_fma_f32 v[114:115], v[{p+2}:{p+3}], v[{p+2}:{p+3}], v[114:115]')
        P('v_add_f32 v114, v114, v115')
        wave_sum('v114', 'v115')
        P('v_mul_f32 v114, s60, v114')
        rne('v114', 'v114')
        P(f'v_add_f32 v114, {f32hex(1e-5):#x}, v114')
        rne('v114', 'v114')
        P('v_sqrt_f32 v114, v114')
        rne('v114', 'v114')
        P('v_rcp_f32 v114, v114')
        rne('v112', 'v112')
        P('v_mov_b32 v113, v112\nv_mov_b32 v115, v114\ns_mov_b32 s61, 0xffff0000')
        def rne2():
            for p in prs: P(f'v_cvt_pk_bf16_f32 v{p+2}, v{p}, v{p+1}')
            for p in prs:
                P(f'v_lshlrev_b32 v{p}, 16, v{p+2}')
                P(f'v_and_b32 v{p+1}, s61, v{p+2}')
        for p in prs: P(f'v_pk_add_f32 v[{p}:{p+1}], v[{p}:{p+1}], v[112:113] neg_lo:[0,1] neg_hi:[0,1]')
        rne2()
        for p in prs: P(f'v_pk_mul_f32 v[{p}:{p+1}], v[{p}:{p+1}], v[114:115]')
        rne2()
        for n, p in enumerate(prs): P(f'v_pk_mul_f32 v[{p}:{p+1}], v[{p}:{p+1}], v[{CB+4*n}:{CB+4*n+1}]')
        rne2()
        for n, p in enumerate(prs): P(f'v_pk_add_f32 v[{p}:{p+1}], v[{p}:{p+1}], v[{SB+4*n}:{SB+4*n+1}]')
        for n in range(5): P(f'v_cvt_pk_bf16_f32 v{B+4*n}, v{B+4*n}, v{B+4*n+1}')
        for n in range(4): P(f'ds_write_b32 v6, v{B+4*n} offset:{L_XS+256*n}')
        P(f"""
        s_mov_b64 exec, 0xffffffff
        ds_write_b32 v6, v{B+16} offset:{L_XS+1024}
        s_mov_b64 exec, -1
        """)
    if cfg.pipe: poll2(lambda B: gl(B, 's52', 's53'), lambda B: check_g([B+4*n for n in range(5)])(), x2_post, 72, 92, 5)
    else:
        poll(gl(72, 's52', 's53'), check_g([72+4*n for n in range(5)])); x2_post(72)
    stamp(7)
    P("""
    s_waitcnt lgkmcnt(0)
    s_barrier
    """)
    end_wave()

def gu_role(nkv):
    RAW = 32
    NA = cfg.gu_early
    P('L_gu:')
    role(7)
    def setup():
        P(f"""
        s_sub_u32 s53, s3, 1              ; i
        s_lshr_b32 s54, s53, 1            ; matrix
        s_and_b32 s55, s53, 1             ; K half
        s_cmp_eq_u32 s54, 0
        s_cselect_b32 s36, s20, s22
        s_cselect_b32 s37, s21, s23
        s_mov_b32 s38, {576*9216}
        s_mov_b32 s39, 0x20000
        s_mul_i32 s56, s4, 9
        s_add_u32 s56, s56, s5
        s_sub_u32 s56, s56, 7             ; phi
        s_lshl_b32 s56, s56, 6
        s_mul_i32 s57, s55, {9*32*9216}
        s_add_u32 s56, s56, s57
        s_mov_b32 s58, 0x05040100
        s_mov_b32 s59, 0x07060302
        """)
    def loads(u, thr=True):
        for j in range(8):
            off = (32*u + 8*(j & 3) + (j >> 2)) * 9216
            P(f's_add_u32 s57, s56, {off}')
            if thr and cfg.gul and 8*(u-NA) + j >= cfg.gul: P(f's_waitcnt vmcnt({cfg.gul-1})')
            P(f'buffer_load_dword v{RAW+8*u+j}, v4, s[36:39], s57 offen nt')
    def perm(u):
        src = RAW + 8*u
        dst = src - 8
        for i in range(4):
            P(f'v_perm_b32 v{dst+i}, v{src+2*i+1}, v{src+2*i}, s58')
            P(f'v_perm_b32 v{dst+4+i}, v{src+2*i+1}, v{src+2*i}, s59')
    if cfg.pf_gu:
        P('s_cmp_lg_u32 s3, 1\ns_cbranch_scc1 L_gu_nopf')
        prefetch_code()
        P('L_gu_nopf:')
    setup()
    P(f"""
    v_mul_u32_u24 v4, {2*9216}, v3
    v_lshl_add_u32 v4, v2, 2, v4
    """)
    for u in range(NA):
        loads(u, thr=False)
        if u == 0: P('s_barrier')
    if NA == 0: P('s_barrier')
    lds_add(C_GA)
    tag_ready()
    q_fetch('L_gu2')
    P('L_gu2:')
    stamp(5)
    if cfg.pf2 & 1:
        P('s_cmp_lg_u32 s3, 2\ns_cbranch_scc1 L_gu_nopf2')
        prefetch_code('2', 16)
        P('s_waitcnt vmcnt(0)')
        P('L_gu_nopf2:')
        P(f'v_mul_u32_u24 v4, {2*9216}, v3\nv_lshl_add_u32 v4, v2, 2, v4')
    setup()
    P('s_waitcnt vmcnt(0)')
    for u in range(NA): perm(u)
    if cfg.gu_gate == 'pub': lds_wait(FL_PUB, 1, sleep=2)
    else: lds_wait(C_KVI, nkv, sleep=2)
    stamp(1)
    DEPTH = cfg.gu_depth
    for u in range(NA, 9):
        if cfg.gu_dyn and u > NA:
            l = P.lbl('Lgd')
            P(f"""
            v_mov_b32 v7, 0
            ds_read_b32 v6, v7 offset:{FL_PUB}
            s_waitcnt lgkmcnt(0)
            v_readfirstlane_b32 s60, v6
            s_cmp_lg_u32 s60, 0
            s_cbranch_scc1 {l}
            s_waitcnt vmcnt({cfg.gu_dyn})
            {l}:
            """)
        loads(u)
        if u - DEPTH >= NA:
            P(f's_waitcnt vmcnt({8*DEPTH})')
            perm(u - DEPTH)
    for u in range(max(NA, 9 - DEPTH), 9):
        P(f's_waitcnt vmcnt({8*(8-u)})')
        perm(u)
    stamp(2)
    P(f"""
    s_mul_i32 s57, s55, {9*64}
    v_lshlrev_b32 v5, 4, v3
    v_add_u32 v5, s57, v5
    s_lshl_b32 s57, s53, 7
    v_lshlrev_b32 v6, 3, v1
    v_add_u32 v6, s57, v6
    s_barrier
    """)
    stamp(3)
    AF = [96+4*u for u in range(8)] + [20]
    for u in range(9): P(f'ds_read_b128 v[{AF[u]}:{AF[u]+3}], v5 offset:{L_XS+64*u}')
    for u in range(9):
        P(f's_waitcnt lgkmcnt({8-u})')
        f0 = RAW - 8 + 8*u
        c0 = '0' if u == 0 else 'v[8:11]'
        c1 = '0' if u == 0 else 'v[12:15]'
        P(f'v_mfma_f32_16x16x32_bf16 v[8:11], v[{AF[u]}:{AF[u]+3}], v[{f0}:{f0+3}], {c0}')
        P(f'v_mfma_f32_16x16x32_bf16 v[12:15], v[{AF[u]}:{AF[u]+3}], v[{f0+4}:{f0+7}], {c1}')
    P(f"""
    v_mov_b32 v16, v8
    v_mov_b32 v17, v12
    s_mov_b64 exec, 0xffff
    ds_write_b64 v6, v[16:17] offset:{L_RED3}
    s_mov_b64 exec, -1
    s_waitcnt lgkmcnt(0)
    s_barrier
    """)
    stamp(4)
    end_wave()

def build():
    global CODE_PF
    CODE_PF = 4
    prologue()
    cF, cQ, cM = cfg.cF, cfg.cQ, cfg.cM
    assert 9*cF + 4*cQ + 3*cM == 256 and cF % 2 == 0 and cQ % 2 == 0 and cM % 2 == 0 and cF//2 >= 6 and cQ <= 12 and cM <= 12
    mod_role()
    wq_role()
    kv_role('L_kvF', cF//2, lambda: P(f's_sub_u32 s52, s5, 7\ns_mul_i32 s52, s52, {cF}\ns_add_u32 s52, s52, {3*cM+4*cQ}'), (C_GA, 4) if cfg.gu_early else None, True, cfg.kF)
    kv_role('L_kvM', cM//2, lambda: P(f's_mul_i32 s52, s5, {cM}'), ((C_B2, 6) if cfg.m_order == 'a_b_kv_wo' else ((C_H, 1) if cfg.order2 else (C_WO, 3))), False, cfg.kM)
    kv_role('L_kvQ', cQ//2, lambda: P(f's_sub_u32 s52, s5, 3\ns_mul_i32 s52, s52, {cQ}\ns_add_u32 s52, s52, {3*cM}'), ((C_WO, 3) if cfg.q_order == 'wo_kv' else (C_G, 1)), False, cfg.kQ)
    wo_role('Q', cQ//2)
    wo_role('M', cM//2)
    wo_common()
    commA_role()
    gu_role(cF//2)
    down_role()
    commF_role()

    P('L_abort:')
    P('s_mov_b64 exec, -1')
    P('L_exit:')
    if cfg.debug:
        P(f"""
        s_waitcnt lgkmcnt(0)
        s_lshl_b32 s60, s2, 4
        s_add_u32 s60, s60, s3
        s_lshl_b32 s60, s60, 6
        s_add_u32 s60, s60, {DBG}
        s_memrealtime s[96:97]
        s_waitcnt lgkmcnt(0)
        v_mov_b32 v8, s96
        """)
        for i in range(8): P(f'v_writelane_b32 v8, s{80+2*i}, {i}')
        P(f"""
        v_and_b32 v1, 63, v0
        v_lshlrev_b32 v7, 2, v1
        s_mov_b64 exec, 0x1ff
        buffer_store_dword v8, v7, s[44:47], s60 offen
        """)
    if cfg.hdbg:
        SL = {(3, 3): 3, (2, 2): 4, (2, 4): 5, (1, 3): 6, (1, 5): 7, (1, 6): 8, (5, 4): 9, (5, 6): 10, (6, 7): 11, (8, 6): 12, (7, 2): 13, (5, 7): 14, (6, 3): 6, (6, 5): 7, (6, 6): 8, (8, 3): 6, (8, 5): 7, (4, 7): 15}
        P("""
        s_waitcnt lgkmcnt(0)
        s_memrealtime s[96:97]
        s_mov_b32 s68, s32
        s_mov_b32 s69, s33
        s_mov_b32 s70, 256
        s_mov_b32 s71, 0x20000
        s_mov_b64 exec, 1
        s_waitcnt lgkmcnt(0)
        v_mov_b32 v8, s96
        v_mov_b32 v9, 4
        buffer_atomic_umax v8, v9, s[68:71], 0 offen sc1
        s_not_b32 s96, s80
        v_mov_b32 v8, s96
        v_mov_b32 v9, 0
        buffer_atomic_umax v8, v9, s[68:71], 0 offen sc1
        v_mov_b32 v8, s80
        v_mov_b32 v9, 8
        buffer_atomic_umax v8, v9, s[68:71], 0 offen sc1
        """)
        for r in range(1, 9):
            l = P.lbl('Lhd')
            P(f's_cmp_lg_u32 s98, {r}')
            P(f's_cbranch_scc1 {l}')
            for (rr, k), slot in SL.items():
                if rr == r:
                    P(f'v_mov_b32 v8, s{80+2*k}')
                    P(f'v_mov_b32 v9, {4*slot}')
                    P('buffer_atomic_umax v8, v9, s[68:71], 0 offen sc1')
            P(f'{l}:')
    P('L_end:')
    P('s_endpgm')
    P('L_codeend:')
    P.finalize()
    body = P.text()
    return (HEADER_COMMENT +
f"""; @launch grid=(256,1,1) block=(1024,1,1) lds={LDS_BYTES}
.amdgcn_target "amdgcn-amd-amdhsa--gfx950"
.text
.globl {KN}
.p2align 8
.type {KN},@function
{KN}:
{body}
.section .rodata,"a"
.p2align 6
.amdhsa_kernel {KN}
  .amdhsa_next_free_vgpr 128
  .amdhsa_next_free_sgpr 102
  .amdhsa_accum_offset 128
  .amdhsa_group_segment_fixed_size 0
  .amdhsa_kernarg_size 112
  .amdhsa_user_sgpr_count 2
  .amdhsa_user_sgpr_kernarg_segment_ptr 1
  .amdhsa_system_sgpr_workgroup_id_x 1
.end_amdhsa_kernel
""")

if __name__ == '__main__':
    import argparse
    ap = argparse.ArgumentParser()
    ap.add_argument('-o', default='k.s')
    ap.add_argument('--debug', action='store_true')
    ap.add_argument('--tiles', default='22,4,14')
    ap.add_argument('--set', nargs='*', default=[])
    a = ap.parse_args()
    cfg.debug = a.debug
    cfg.cF, cfg.cQ, cfg.cM = map(int, a.tiles.split(','))
    for kv in a.set:
        k, v = kv.split('=')
        old = getattr(cfg, k)
        setattr(cfg, k, type(old)(int(v)) if isinstance(old, (bool, int)) else v)
    open(a.o, 'w').write(build())
```

```python
import sys, math, struct
from dsl import Prog
from asmlib import HEADER_COMMENT, KN

class Cfg:
    cF, cQ, cM = 22, 4, 14
    debug = False
    prefetch_code = True
    kF, kQ, kM = '0', '0', '0'
    gu_depth = 4
    gul = 0
    gu_gate = 'pub'
    k_first = True
    pre_barrier = 1
    wo_k = 4
    b_k = 4
    q_sleep = 4
    poll_sleep = 0
    kvonly = False
    pretouch = True
    modp_prog = True
    tlbw = 0
    pf2 = 0
    pf_early = 16
    pf_gu = True
    h3_local = True
    local_tries = 200
    m_order = 'a_kv_wo_b'
    gu_dyn = 0
    q_order = 'kv_wo'
    order2 = True
    wq_first = False
    q_direct = True
    hdbg = False
    q_wo_gate = False
    q_wo_first = True
    stagger = 6
    pipe = True
    gu_early = 3
    b_on = 'M'
    m_gate_pub = False
cfg = Cfg()

EPOCH = 0x0
MODP = 0x1000
QF = 0x8000
MODF = 0x20000
X2 = 0x28000
X2S = 0x1400
H3 = 0x40000
H3S = 2560
XP = 0xE0000
FP = 0x160000
PS = 4608
H3L = 0x210000
GX = 0x2B0000
GXL = 0x2C0000
DBG = 0x300000
FL_Q, C_KVI, C_MAX, C_O, C_RED, C_H, C_G, FL_PUB, C_K, C_B, C_GA, C_B2, C_WO = 0, 4, 8, 12, 16, 20, 24, 28, 32, 36, 40, 44, 48
L_ZERO = 0x100
L_Q = 0x200
L_MX = 0x400
L_LS = 0x480
L_XS = 0x500
L_RED3 = 0xA00
L_XA = 0x1100
L_SLOT = 0x1200
L_OSLOT = 0x1200 + 18*1024
LDS_BYTES = 0x1200 + 30*1024
LOG2E = 0x3FB8AA3B
SCALE = 0x3DB504F3
GOLD0, GOLD1 = 0x7F4A7C15, 0x9E3779B9
def f32hex(x): return struct.unpack('<I', struct.pack('<f', x))[0]

P = Prog()
ABORT = 'L_abort'
DPPM = 'row_mask:0xf bank_mask:0xf'

def stamp(i):
    if cfg.debug or cfg.hdbg: P(f's_memrealtime s[{80+2*i}:{81+2*i}]')

def role(n):
    if cfg.hdbg: P(f's_mov_b32 s98, {n}')

def srd(base, ptr, nbytes):
    P(f"""
    s_mov_b32 s{base}, s{ptr}
    s_mov_b32 s{base+1}, s{ptr+1}
    s_mov_b32 s{base+2}, {nbytes}
    s_mov_b32 s{base+3}, 0x20000
    """)

def tag_ready():
    P(f"""
    s_waitcnt lgkmcnt(0)
    s_add_u32 s6, s6, {GOLD0:#x}
    s_add_u32 s7, s7, {GOLD1:#x}
    """)

def lds_wait(off, target, sleep=1):
    l = P.lbl('Lw'); d = P.lbl('Ld')
    P(f"""
    v_mov_b32 v7, 0
    s_mov_b32 s61, 0x400000
    {l}:
    ds_read_b32 v6, v7 offset:{off}
    s_waitcnt lgkmcnt(0)
    v_readfirstlane_b32 s60, v6
    s_cmp_ge_u32 s60, {target}
    s_cbranch_scc1 {d}
    s_sub_u32 s61, s61, 1
    s_cbranch_scc1 {ABORT}
    """)
    if sleep: P(f's_sleep {sleep}')
    P(f"""
    s_branch {l}
    {d}:
    """)

def lds_add(off):
    P(f"""
    v_mov_b32 v7, 0
    v_mov_b32 v6, 1
    s_mov_b64 s[62:63], exec
    s_mov_b64 exec, 1
    ds_add_u32 v7, v6 offset:{off}
    s_mov_b64 exec, s[62:63]
    """)

def lds_add_rtn(off, sdst):
    P(f"""
    v_mov_b32 v7, 0
    v_mov_b32 v6, 1
    s_mov_b64 s[62:63], exec
    s_mov_b64 exec, 1
    ds_add_rtn_u32 v6, v7, v6 offset:{off}
    s_waitcnt lgkmcnt(0)
    v_readfirstlane_b32 {sdst}, v6
    s_mov_b64 exec, s[62:63]
    """)

def rne(dst, src):
    P(f'v_cvt_pk_bf16_f32 {dst}, {src}, {src}')
    P(f'v_lshlrev_b32 {dst}, 16, {dst}')

def rne_many(regs):
    for r in regs: P(f'v_cvt_pk_bf16_f32 v{r}, v{r}, v{r}')
    for r in regs: P(f'v_lshlrev_b32 v{r}, 16, v{r}')

def xrow_multi(op, vs, ts):
    for sw in ('v_permlane16_swap_b32', 'v_permlane32_swap_b32'):
        for v, t in zip(vs, ts): P(f'v_mov_b32 {t}, {v}')
        for v, t in zip(vs, ts): P(f'{sw} {v}, {t}')
        for v, t in zip(vs, ts): P(f'{op} {v}, {v}, {t}')

def wave_sum(v, t):
    for d in ('quad_perm:[1,0,3,2]', 'quad_perm:[2,3,0,1]', 'row_half_mirror', 'row_mirror'):
        P(f'v_add_f32_dpp {v}, {v}, {v} {d} {DPPM}')
    xrow_multi('v_add_f32', [v], [t])

def masks(base):
    P(f"""
    v_and_b32 v6, 1, v2
    v_lshlrev_b32 v6, 4, v6
    v_mov_b32 v7, 0xffff
    v_lshlrev_b32 v7, v6, v7
    v_bfe_u32 v6, v2, 1, 2
    """)
    for i in range(4):
        P(f'v_cmp_eq_u32 vcc, {i}, v6')
        P(f'v_cndmask_b32 v{base+i}, 0, v7, vcc')

def diag_mm(acc, wregs, xregs, mk, qa, qb):
    n = len(wregs)
    def prep(t):
        q = (qa, qb)[t & 1]
        for i in range(4): P(f'v_and_b32 v{q+i}, {xregs[t]}, v{mk+i}')
    prep(0)
    for t in range(n):
        if t + 1 < n: prep(t + 1)
        q = (qa, qb)[t & 1]
        c = '0' if t == 0 else f'v[{acc}:{acc+3}]'
        P(f'v_mfma_f32_16x16x32_bf16 v[{acc}:{acc+3}], v[{wregs[t]}:{wregs[t]+3}], v[{q}:{q+3}], {c}')

def poll(loads, check):
    l = P.lbl('Lp'); l2 = P.lbl('Lp')
    P('s_mov_b32 s64, 0x8000')
    if cfg.poll_sleep:
        P(f's_branch {l2}')
        P(f'{l}:')
        P(f's_sleep {cfg.poll_sleep}')
        P(f'{l2}:')
    else:
        P(f'{l}:')
    for x in loads: P(x)
    P('s_waitcnt vmcnt(0)')
    check()
    P(f"""
    s_sub_u32 s64, s64, 1
    s_cbranch_scc1 {ABORT}
    s_cbranch_vccnz {l}
    """)


def poll2(mk_loads, mk_check, post, baseA, baseB, nloads):
    la = P.lbl('Lq'); lb = P.lbl('Lq'); ga = P.lbl('Lq'); gb = P.lbl('Lq'); done = P.lbl('Lq')
    P('s_mov_b32 s64, 0x8000')
    for x in mk_loads(baseA): P(x)
    P(f's_sleep {cfg.stagger}')
    P(f'{la}:')
    for x in mk_loads(baseB): P(x)
    P(f's_waitcnt vmcnt({nloads})')
    mk_check(baseA)
    P(f"""
    s_cbranch_vccz {ga}
    s_sub_u32 s64, s64, 1
    s_cbranch_scc1 {ABORT}
    """)
    for x in mk_loads(baseA): P(x)
    P(f's_waitcnt vmcnt({nloads})')
    mk_check(baseB)
    P(f"""
    s_cbranch_vccz {gb}
    s_branch {la}
    """)
    P(f'{gb}:')
    post(baseB)
    P(f's_branch {done}')
    P(f'{ga}:')
    post(baseA)
    P(f'{done}:')

def check_g(bases):
    def f():
        n = len(bases)
        assert n <= 8 + 5
        prs = [66 + 2*i for i in range(7)] + [96, 98]
        assert n <= len(prs) + 1
        for i, b in enumerate(bases):
            dst = 'vcc' if i == n - 1 else f's[{prs[i]}:{prs[i]+1}]'
            P(f'v_cmp_ne_u64 {dst}, s[6:7], v[{b+2}:{b+3}]')
        for i in range(n - 1):
            P(f's_or_b64 vcc, vcc, s[{prs[i]}:{prs[i]+1}]')
    return f

def check_tags32(regs, t='v6', t2='v7'):
    def f():
        rs = list(regs)
        P(f'v_xor_b32 {t}, s7, v{rs[0]}')
        for r in rs[1:]:
            P(f'v_xor_b32 {t2}, s7, v{r}')
            P(f'v_or_b32 {t}, {t}, {t2}')
        P(f'v_cmp_ne_u32 vcc, 0, {t}')
    return f

def end_wave(): P('s_branch L_exit')

def make_granules(G, ACC):
    P(f'v_mov_b32 v{G}, v{ACC}')
    P(f'v_mov_b32 v{G+1}, v{ACC+1}')
    P(f'v_mov_b32 v{G+4}, v{ACC+2}')
    P(f'v_mov_b32 v{G+5}, v{ACC+3}')
def tag_fill(G):
    for o in (2, 6):
        P(f'v_mov_b32 v{G+o}, s6')
        P(f'v_mov_b32 v{G+o+1}, s7')

def prologue():
    P(f"""
    s_cmp_ge_u32 s2, 256
    s_cbranch_scc1 L_end
    s_load_dwordx16 s[8:23], s[0:1], 0
    s_load_dwordx8 s[24:31], s[0:1], 64
    s_load_dwordx4 s[32:35], s[0:1], 96
    """)
    if cfg.prefetch_code and cfg.pf_early:
        P(f"""
        s_cmp_ge_u32 s2, {cfg.pf_early}
        s_cbranch_scc1 L_nopf0
        v_lshrrev_b32 v4, 6, v0
        v_cmp_ne_u32 vcc, 10, v4
        s_cbranch_vccnz L_nopf0
        v_and_b32 v1, 63, v0
        """)
        prefetch_code('0', 124)
        P('L_nopf0:')
    if cfg.hdbg:
        for i in range(1, 8): P(f's_mov_b32 s{80+2*i}, 0')
        P('s_mov_b32 s98, 0')
    stamp(0)
    P(f"""
    v_lshrrev_b32 v4, 6, v0
    v_and_b32 v1, 63, v0
    v_and_b32 v2, 15, v1
    v_readfirstlane_b32 s3, v4
    v_lshrrev_b32 v3, 4, v1
    s_and_b32 s4, s2, 7
    s_lshl_b32 s4, s4, 1
    s_bfe_u32 s5, s2, 0x10003
    s_add_u32 s4, s4, s5
    s_lshr_b32 s5, s2, 4
    s_cmp_lg_u32 s3, 0
    s_cbranch_scc1 L_nozero
    v_lshlrev_b32 v4, 2, v1
    v_mov_b32 v5, 0
    ds_write_b32 v4, v5
    ds_write_b32 v4, v5 offset:256
    ds_write_b32 v4, v5 offset:{L_XA}
    L_nozero:
    s_waitcnt lgkmcnt(0)
    s_load_dwordx2 s[6:7], s[34:35], 0
    """)
    srd(44, 34, 0x40000000)
    nkF, nkQ, nkM = cfg.cF//2, cfg.cQ//2, cfg.cM//2
    if cfg.kvonly:
        P(f"""
        s_cmp_lt_u32 s5, 3
        s_cselect_b32 s60, {16-nkM}, {16-nkQ}
        s_cmp_ge_u32 s5, 7
        s_cselect_b32 s60, {16-nkF}, s60
        s_cmp_ge_u32 s3, s60
        s_cbranch_scc1 L_kvgo
        s_barrier
        s_branch L_end
        L_kvgo:
        """)
    P(f"""
    s_cmp_lt_u32 s5, 3
    s_cbranch_scc1 L_classM
    s_cmp_lt_u32 s5, 7
    s_cbranch_scc1 L_classQ
    s_cmp_eq_u32 s3, 0
    s_cbranch_scc1 L_kvF0
    s_cmp_le_u32 s3, 4
    s_cbranch_scc1 L_gu
    s_cmp_ge_u32 s3, {16-min(nkF, 11)}
    s_cbranch_scc1 L_kvF
    s_branch L_idle
    L_classQ:
    s_cmp_ge_u32 s3, {16-nkQ}
    s_cbranch_scc1 L_kvQ
    s_cmp_eq_u32 s3, 0
    s_cbranch_scc1 L_commA
    s_cmp_le_u32 s3, 6
    s_cbranch_scc1 L_wq
    s_cmp_le_u32 s3, 9
    s_cbranch_scc1 L_woQ
    s_branch L_idle
    L_classM:
    s_cmp_ge_u32 s3, {16-nkM}
    s_cbranch_scc1 L_kvM
    s_cmp_eq_u32 s3, 0
    s_cbranch_scc1 L_commA
    s_cmp_le_u32 s3, 6
    s_cbranch_scc1 L_mod
    s_cmp_le_u32 s3, 9
    s_cbranch_scc1 L_woM
    L_idle:
    """)
    if cfg.tlbw:
        P(f's_cmp_ge_u32 s2, {cfg.tlbw}\ns_cbranch_scc1 L_idle2\ns_cmp_lg_u32 s3, 10\ns_cbranch_scc1 L_idle2')
        tlb_warm()
        P('L_idle2:')
    P("""
    s_barrier
    s_waitcnt vmcnt(0)
    s_branch L_end
    """)

def kv_role(name, nkv, tile_expr, gate, is_f, kinf='0'):
    K0, V0, QF_, SD, TT, ACC, MK = 32, 64, 96, 24, 28, 96, 8
    if is_f:
        P('L_kvF0:')
        if nkv == 12:
            P('s_mov_b32 s53, 11')
            P('s_branch L_kvFgo')
        else:
            P('s_branch L_idle')
        P(f'{name}:')
        P(f's_sub_u32 s53, s3, {16-min(nkv, 11)}')
        P('L_kvFgo:')
    else:
        P(f'{name}:')
        P(f's_sub_u32 s53, s3, {16-nkv}')
    role(1)
    tile_expr()
    P(f"""
    s_lshl_b32 s54, s53, 1
    s_add_u32 s52, s52, s54
    s_lshl_b32 s52, s52, 12
    s_lshl_b32 s54, s4, 24
    s_add_u32 s52, s52, s54
    s_add_u32 s52, s52, {61440*256}
    s_add_u32 s55, s52, 4096
    """)
    srd(36, 10, 0x10000000)
    srd(40, 12, 0x10000000)
    P(f"""
    v_and_b32 v4, 7, v1
    v_lshlrev_b32 v4, 8, v4
    v_lshrrev_b32 v5, 3, v1
    v_lshl_add_u32 v4, v5, 4, v4          ; K: (l&7)*256 + (l>>3)*16
    v_lshlrev_b32 v5, 10, v3
    v_lshl_add_u32 v5, v2, 4, v5          ; V: gq*1024 + m*16
    """)
    if cfg.kvonly: gate = None
    if gate:
        P('s_barrier')
        lds_wait(gate[0], gate[1], sleep=2)
    stamp(1)
    st = {'n': 0}
    lim = lambda i: int(kinf[min(i, len(kinf)-1)], 16)
    def issue(r, vo, srdr, sreg, off):
        n = st['n']
        if not gate and n == cfg.pre_barrier: P('s_barrier')
        k = lim(n)
        if k and n >= k: P(f's_waitcnt vmcnt({k-1})')
        P(f'buffer_load_dwordx4 v[{r}:{r+3}], {vo}, s[{srdr}:{srdr+3}], {sreg} offen offset:{off} nt')
        st['n'] += 1
    for u in range(4):
        for hh in range(2):
            issue(K0 + 4*(2*u+hh), 'v4', 36, 's52' if u < 2 else 's55', (u & 1)*2048 + hh*128)
    if cfg.k_first:
        lds_add(C_K)
        lds_wait(C_K, nkv, sleep=1)
    for t in range(2):
        for r_ in range(4):
            issue(V0 + 16*t + 4*r_, 'v5', 40, 's52' if t == 0 else 's55', 256*r_)
    lds_add(C_KVI)
    stamp(2)
    if cfg.kvonly:
        P('s_waitcnt vmcnt(8)'); stamp(4)
        P('s_waitcnt vmcnt(0)'); stamp(5)
        end_wave(); return
    masks(MK)
    P(f"""
    v_bfe_u32 v12, v2, 2, 1
    v_lshlrev_b32 v22, 2, v12
    v_lshlrev_b32 v12, 8, v12
    v_lshrrev_b32 v13, 3, v2
    v_lshl_add_u32 v13, v3, 1, v13        ; 2g + par
    v_lshl_add_u32 v12, v13, 4, v12
    v_add_u32 v12, {L_Q}, v12
    v_and_b32 v13, 3, v2
    v_mov_b32 v14, {L_ZERO}
    """)
    for u in range(4):
        P(f'v_cmp_eq_u32 vcc, {u}, v13')
        P(f'v_cndmask_b32 v{16+u}, v14, v12, vcc')
    P(f"""
    v_and_b32 v12, 1, v3
    v_lshlrev_b32 v12, 4, v12
    v_lshrrev_b32 v13, 3, v2
    v_lshl_add_u32 v12, v13, 2, v12
    v_lshrrev_b32 v13, 1, v3
    v_add_u32 v12, v12, v13
    v_lshlrev_b32 v20, 2, v12
    v_add_u32 v21, 8, v20
    """)
    tag_ready()
    lds_wait(FL_Q, 4, sleep=2)
    stamp(3)
    P('s_waitcnt vmcnt(16)')
    for u in range(4):
        for hh in range(2):
            r = QF_ + 4*(2*u+hh)
            P(f'ds_read_b128 v[{r}:{r+3}], v{16+u} offset:{128*hh}')
    P('s_waitcnt vmcnt(8)')
    stamp(4)
    for i in range(8):
        P(f's_waitcnt lgkmcnt({7-i})')
        c = '0' if i == 0 else f'v[{SD}:{SD+3}]'
        P(f'v_mfma_f32_16x16x32_bf16 v[{SD}:{SD+3}], v[{K0+4*i}:{K0+4*i+3}], v[{QF_+4*i}:{QF_+4*i+3}], {c}')
    for j in range(4): P(f'v_mov_b32 v{TT+j}, v{SD+j}')
    for j in range(4): P(f'v_permlane32_swap_b32 v{SD+j}, v{TT+j}')
    for j in range(4): P(f'v_add_f32_dpp v{SD+j}, v{TT+j}, v{SD+j} row_shl:8 {DPPM}')
    P(f's_mov_b32 s56, {SCALE:#x}')
    P(f's_mov_b32 s57, 0xffff0000')
    P(f's_mov_b32 s58, {LOG2E:#x}')
    for rep in range(2):
        for p in range(2): P(f'v_cvt_pk_bf16_f32 v{TT+p}, v{SD+2*p}, v{SD+2*p+1}')
        for p in range(2):
            P(f'v_lshlrev_b32 v{SD+2*p}, 16, v{TT+p}')
            P(f'v_and_b32 v{SD+2*p+1}, s57, v{TT+p}')
        if rep == 0:
            for i in range(4): P(f'v_mul_f32 v{SD+i}, s56, v{SD+i}')
    P(f"""
    v_max3_f32 v12, v{SD}, v{SD+1}, v{SD+2}
    v_max_f32 v12, v12, v{SD+3}
    v_max_f32_dpp v12, v12, v12 quad_perm:[1,0,3,2] {DPPM}
    v_max_f32_dpp v12, v12, v12 quad_perm:[2,3,0,1] {DPPM}
    v_mov_b32 v13, v12
    v_permlane16_swap_b32 v12, v13
    v_max_f32 v12, v12, v13
    s_lshl_b32 s59, s53, 3
    v_add_u32 v23, s59, v22
    s_mov_b64 s[62:63], exec
    s_mov_b64 exec, 0x11
    ds_write_b32 v23, v12 offset:{L_MX}
    s_mov_b64 exec, s[62:63]
    """)
    lds_add(C_MAX)
    lds_wait(C_MAX, nkv, sleep=0)
    for i in range(nkv): P(f'ds_read_b32 v{K0+i}, v22 offset:{L_MX+8*i}')
    P('s_waitcnt lgkmcnt(0)')
    MX = 15
    P(f'v_mov_b32 v{MX}, v{K0}')
    i = 1
    while i < nkv:
        if i + 1 < nkv: P(f'v_max3_f32 v{MX}, v{MX}, v{K0+i}, v{K0+i+1}'); i += 2
        else: P(f'v_max_f32 v{MX}, v{MX}, v{K0+i}'); i += 1
    P(f'v_mul_f32 v13, s58, v{MX}')
    for i in range(4): P(f'v_fma_f32 v{SD+i}, v{SD+i}, s58, -v13')
    for i in range(4): P(f'v_exp_f32 v{SD+i}, v{SD+i}')
    P(f"""
    v_add_f32 v12, v{SD}, v{SD+1}
    v_add_f32 v13, v{SD+2}, v{SD+3}
    """)
    for i in range(4): P(f'v_cvt_pk_bf16_f32 v{SD+i}, v{SD+i}, v{SD+i}')
    P('v_add_f32 v12, v12, v13')
    G = 104
    for t in range(2):
        for r_ in range(4): P(f'ds_bpermute_b32 v{G+4*t+r_}, v{20+t}, v{SD+r_}')
    P(f"""
    v_add_f32_dpp v12, v12, v12 quad_perm:[1,0,3,2] {DPPM}
    v_add_f32_dpp v12, v12, v12 quad_perm:[2,3,0,1] {DPPM}
    v_mov_b32 v13, v12
    v_permlane16_swap_b32 v12, v13
    v_add_f32 v12, v12, v13
    s_mov_b64 s[62:63], exec
    s_mov_b64 exec, 0x11
    ds_write_b32 v23, v12 offset:{L_LS}
    s_mov_b64 exec, s[62:63]
    s_waitcnt lgkmcnt(1)
    """)
    for i in range(8):
        for j in range(4): P(f'v_and_b32 v{K0+4*i+j}, v{G+i}, v{MK+j}')
    GR = 112
    tag_fill(GR)
    P(f'v_mov_b32 v122, s6\nv_mov_b32 v123, s7')
    P('s_waitcnt vmcnt(0)')
    stamp(5)
    for i in range(8):
        c = '0' if i == 0 else f'v[{ACC}:{ACC+3}]'
        P(f'v_mfma_f32_16x16x32_bf16 v[{ACC}:{ACC+3}], v[{V0+4*i}:{V0+4*i+3}], v[{K0+4*i}:{K0+4*i+3}], {c}')
    P(f"""
    s_lshl_b32 s59, s53, 10
    v_lshlrev_b32 v16, 4, v1
    v_add_u32 v17, s59, v16
    ds_write_b128 v17, v[{ACC}:{ACC+3}] offset:{L_OSLOT}
    """)
    lds_add_rtn(C_O, 's60')
    ldone = P.lbl('Lkvdone')
    P(f"""
    s_cmp_lg_u32 s60, {nkv-1}
    s_cbranch_scc1 {ldone}
    """)
    P('v_lshlrev_b32 v18, 3, v1')
    for i in range(nkv):
        P(f'ds_read_b64 v[{K0+4*i}:{K0+4*i+1}], v18 offset:{L_OSLOT+1024*i}')
        P(f'ds_read_b64 v[{K0+4*i+2}:{K0+4*i+3}], v18 offset:{L_OSLOT+1024*i+512}')
    LS0 = 100
    for i in range(nkv): P(f'ds_read_b32 v{LS0+i}, v22 offset:{L_LS+8*i}')
    P(f"""
    s_lshl_b32 s59, s4, 4
    s_add_u32 s59, s59, s5
    s_mul_i32 s59, s59, {H3S}
    s_add_u32 s59, s59, {H3}
    s_waitcnt lgkmcnt(0)
    """)
    regs = list(range(nkv))
    while len(regs) > 1:
        nxt = []
        for a in range(0, len(regs) - 1, 2):
            x, y = regs[a], regs[a+1]
            for j in range(4): P(f'v_add_f32 v{K0+4*x+j}, v{K0+4*x+j}, v{K0+4*y+j}')
            P(f'v_add_f32 v{LS0+x}, v{LS0+x}, v{LS0+y}')
            nxt.append(x)
        if len(regs) % 2: nxt.append(regs[-1])
        regs = nxt
    make_granules(GR, K0)
    P(f"""
    v_mov_b32 v120, v{MX}
    v_mov_b32 v121, v{LS0}
    """)
    if cfg.h3_local:
        P(f"""
        s_add_u32 s65, s59, {H3L - H3}
        buffer_store_dwordx4 v[{GR}:{GR+3}], v16, s[44:47], s65 offen
        buffer_store_dwordx4 v[{GR+4}:{GR+7}], v16, s[44:47], s65 offen offset:1024
        s_mov_b64 exec, 0xff
        buffer_store_dwordx4 v[120:123], v16, s[44:47], s65 offen offset:2048
        s_mov_b64 exec, -1
        """)
    P(f"""
    buffer_store_dwordx4 v[{GR}:{GR+3}], v16, s[44:47], s59 offen sc1
    buffer_store_dwordx4 v[{GR+4}:{GR+7}], v16, s[44:47], s59 offen offset:1024 sc1
    s_mov_b64 exec, 0xff
    buffer_store_dwordx4 v[120:123], v16, s[44:47], s59 offen offset:2048 sc1
    s_mov_b64 exec, -1
    """)
    lds_add(FL_PUB)
    stamp(6)
    P(f'{ldone}:')
    if is_f:
        P(f"""
        s_cmp_lt_u32 s53, 5
        s_cbranch_scc1 L_down
        s_cmp_eq_u32 s53, 5
        s_cbranch_scc1 L_commF
        s_branch L_exit
        """)
    else:
        end_wave()

def pack_pair(G, ACC):
    P(f'v_mov_b32 v{G}, v{ACC}')
    P(f'v_mov_b32 v{G+1}, v{ACC+1}')
    P(f'v_mov_b32_dpp v{G}, v{ACC+2} row_shr:8 row_mask:0xf bank_mask:0xc')
    P(f'v_mov_b32_dpp v{G+1}, v{ACC+3} row_shr:8 row_mask:0xf bank_mask:0xc')

def store_addr():
    P(f"""
    v_and_b32 v12, 7, v2
    v_lshl_add_u32 v12, v3, 3, v12
    v_lshlrev_b32 v12, 5, v12
    v_lshrrev_b32 v6, 3, v2
    v_lshl_add_u32 v12, v6, 4, v12
    """)

def tag_fill1(G):
    P(f'v_mov_b32 v{G+2}, s6')
    P(f'v_mov_b32 v{G+3}, s7')

def store_block(sb, ACC, G):
    pack_pair(G, ACC)
    P(f"""
    s_lshl_b32 s60, {sb}, 10
    s_add_u32 s59, s59, s60
    buffer_store_dwordx4 v[{G}:{G+3}], v12, s[44:47], s59 offen sc1
    """)

def store_half(ACC, G):
    T = G + 4
    for j in range(4): P(f'v_mov_b32 v{T+j}, v{ACC+j}')
    for j in range(4): P(f'v_permlane32_swap_b32 v{ACC+j}, v{T+j}')
    for j in range(4): P(f'v_add_f32_dpp v{ACC+j}, v{T+j}, v{ACC+j} row_shl:8 {DPPM}')
    pack_pair(G, ACC)
    P(f"""
    s_add_u32 s59, s59, 4096
    s_mov_b64 s[62:63], exec
    s_mov_b64 exec, 0xffffffff
    buffer_store_dwordx4 v[{G}:{G+3}], v12, s[44:47], s59 offen sc1
    s_mov_b64 exec, s[62:63]
    """)

def down_role():
    W0, MK, XS, ACC, QA, QB, G = 32, 8, 64, 72, 76, 80, 84
    P('L_down:')
    role(8)
    lds_wait(FL_PUB, 1, sleep=1)
    srd(36, 24, 4608*1152)
    P(f"""
    s_mul_i32 s54, s4, 9
    s_add_u32 s54, s54, s5
    s_sub_u32 s54, s54, 7             ; phi
    s_and_b32 s55, s2, 7
    s_mul_i32 s55, s55, 9
    s_add_u32 s55, s55, s5
    s_sub_u32 s55, s55, 7             ; j
    s_lshl_b32 s55, s55, 1
    s_bfe_u32 s66, s2, 0x10003        ; type
    s_add_u32 s55, s55, s66           ; 2j + type
    s_mul_i32 s55, s55, {32*1152}
    s_cmp_eq_u32 s53, 4
    s_cbranch_scc1 L_down_half
    s_lshl_b32 s56, s53, 8
    s_add_u32 s55, s55, s56
    v_mul_u32_u24 v4, 1152, v3
    v_lshl_add_u32 v4, v2, 4, v4
    """)
    for e in range(8):
        P(f'buffer_load_dwordx4 v[{W0+4*e}:{W0+4*e+3}], v4, s[36:39], s55 offen nt')
        if e < 7: P(f's_add_u32 s55, s55, {4*1152}')
    P('v_lshlrev_b32 v5, 2, v3')
    P('s_mov_b32 s57, 16')
    P('s_branch L_down_go')
    P('L_down_half:')
    P(f"""
    s_add_u32 s55, s55, 1024
    v_lshrrev_b32 v6, 3, v2
    v_lshl_add_u32 v6, v6, 2, v3
    v_mul_u32_u24 v4, 1152, v6
    v_and_b32 v7, 7, v2
    v_lshl_add_u32 v4, v7, 4, v4
    v_lshlrev_b32 v5, 2, v6
    """)
    for t in range(4):
        P(f'buffer_load_dwordx4 v[{W0+4*t}:{W0+4*t+3}], v4, s[36:39], s55 offen nt')
        if t < 3: P(f's_add_u32 s55, s55, {8*1152}')
    P('s_mov_b32 s57, 32')
    P('L_down_go:')
    masks(MK)
    store_addr()
    tag_fill1(G)
    for e in range(8):
        P(f'v_mov_b32 v{104+e}, v5')
        if e < 7: P('v_add_u32 v5, s57, v5')
    P(f"""
    s_mul_i32 s59, s54, {PS}
    s_add_u32 s59, s59, {FP}
    v_and_b32 v6, 31, v1
    v_lshlrev_b32 v13, 2, v6
    s_lshl_b32 s67, s66, 7
    v_add_u32 v13, s67, v13
    v_lshrrev_b32 v14, 1, v6
    v_lshlrev_b32 v14, 4, v14
    v_and_b32 v15, 1, v1
    v_cmp_eq_u32 s[70:71], 1, v15
    s_xor_b32 s67, s4, 1
    s_mul_i32 s67, s67, 9
    s_add_u32 s67, s67, s5
    s_sub_u32 s67, s67, 7
    s_lshl_b32 s67, s67, 8
    s_add_u32 s68, s67, {GX}
    s_add_u32 s67, s67, {GXL}
    """)
    if cfg.pretouch: P('buffer_load_dwordx4 v[96:99], v14, s[44:47], s67 offen')
    P('s_barrier')
    P('s_barrier')
    stamp(7)
    lp = P.lbl('Lx'); lok = P.lbl('Lx'); lg = P.lbl('Lx')
    P(f"""
    buffer_load_dwordx4 v[96:99], v14, s[44:47], s67 offen sc1
    ds_read_b32 v16, v13 offset:{L_RED3}
    ds_read_b32 v17, v13 offset:{L_RED3+256}
    ds_read_b32 v18, v13 offset:{L_RED3+512}
    ds_read_b32 v19, v13 offset:{L_RED3+768}
    s_mov_b32 s64, {cfg.local_tries}
    s_waitcnt lgkmcnt(0)
    v_add_f32 v16, v16, v17
    v_add_f32 v18, v18, v19
    v_add_f32 v16, v16, v18
    """)
    rne('v16', 'v16')
    P(f"""
    {lp}:
    s_waitcnt vmcnt(0)
    v_cmp_ne_u64 vcc, s[6:7], v[98:99]
    s_cbranch_vccz {lok}
    s_sub_u32 s64, s64, 1
    s_cbranch_scc1 {lg}
    buffer_load_dwordx4 v[96:99], v14, s[44:47], s67 offen sc1
    s_branch {lp}
    {lg}:
    s_mov_b32 s64, 0x8000
    {lg}b:
    buffer_load_dwordx4 v[96:99], v14, s[44:47], s68 offen sc1
    s_waitcnt vmcnt(0)
    v_cmp_ne_u64 vcc, s[6:7], v[98:99]
    s_cbranch_vccz {lok}
    s_sub_u32 s64, s64, 1
    s_cbranch_scc1 {ABORT}
    s_branch {lg}b
    {lok}:
    v_cndmask_b32 v18, v96, v97, s[70:71]
    s_cmp_eq_u32 s66, 0
    s_cbranch_scc1 {lok}g
    v_mov_b32 v17, v16
    v_mov_b32 v16, v18
    v_mov_b32 v18, v17
    {lok}g:
    """)
    k1 = f32hex(0.044715); k2 = f32hex(-2.0*math.sqrt(2.0/math.pi)*math.log2(math.e))
    P(f"""
    s_mov_b32 s60, {k1:#x}
    s_mov_b32 s61, {k2:#x}
    v_mul_f32 v17, v16, v16
    v_mul_f32 v17, v17, v16
    v_fma_f32 v17, v17, s60, v16
    v_mul_f32 v17, s61, v17
    v_exp_f32 v17, v17
    v_add_f32 v17, 1.0, v17
    v_rcp_f32 v17, v17
    v_mul_f32 v16, v16, v17
    """)
    rne('v16', 'v16')
    P('v_mul_f32 v16, v16, v18')
    P('v_cvt_pk_bf16_f32 v16, v16, v16')
    for e in range(8): P(f'ds_bpermute_b32 v{XS+e}, v{104+e}, v16')
    P('s_waitcnt vmcnt(0) lgkmcnt(0)')
    P(f"""
    s_cmp_eq_u32 s53, 4
    s_cbranch_scc1 L_down_half2
    """)
    diag_mm(ACC, [W0+4*e for e in range(8)], [f'v{XS+e}' for e in range(8)], MK, QA, QB)
    store_block('s53', ACC, G)
    stamp(6)
    end_wave()
    P('L_down_half2:')
    diag_mm(ACC, [W0+4*t for t in range(4)], [f'v{XS+t}' for t in range(4)], MK, QA, QB)
    store_half(ACC, G)
    stamp(6)
    end_wave()

def wo_role(suffix, nkv):
    P(f'L_wo{suffix}:')
    P('s_barrier')
    if suffix == 'M' and cfg.m_order == 'a_wo_b_kv': lds_wait(C_H, 1, sleep=1)
    elif cfg.order2 and suffix == 'Q' and cfg.q_order == 'wo_kv': lds_wait(C_G, 1, sleep=2)
    elif cfg.order2: lds_wait(C_KVI, nkv, sleep=2)
    elif suffix == 'M': lds_wait(C_B2, 6, sleep=2)
    elif cfg.q_wo_gate: lds_wait(C_G, 1, sleep=2)
    P('s_branch L_wo_common')

def wo_common():
    W0, MK, XS, G = 32, 8, 112, 16
    A0, A1, QA, QB = 24, 28, 0, 0
    P('L_wo_common:')
    role(4)
    srd(36, 16, 4096*1152)
    P(f"""
    s_sub_u32 s53, s3, 7              ; 0,1,2
    s_mov_b32 s54, s5                 ; a
    s_mul_i32 s55, s54, 9
    s_lshl_b32 s56, s4, 8
    """)
    def rowbase(dst, e):
        P(f"""
        s_add_u32 s57, s55, {e}
        s_bfe_u32 s58, s57, 0x10003
        s_lshl_b32 s58, s58, 7
        s_lshr_b32 s60, s57, 4
        s_lshl_b32 s60, s60, 5
        s_add_u32 s58, s58, s60
        s_and_b32 s60, s57, 7
        s_add_u32 s58, s58, s60
        s_add_u32 s58, s58, s56
        s_mul_i32 {dst}, s58, 1152
        """)
    def common_post():
        lds_add(C_WO)
        masks(MK)
        store_addr()
        tag_ready()
        P(f"""
        s_mul_i32 s59, s4, 7
        s_add_u32 s59, s59, s54
        s_mul_i32 s59, s59, {PS}
        s_add_u32 s59, s59, {XP}
        """)
    P(f"""
    s_cmp_eq_u32 s53, 2
    s_cbranch_scc1 L_wo_half
    s_lshl_b32 s65, s53, 9
    v_mul_u32_u24 v4, {8*1152}, v3
    v_lshl_add_u32 v4, v2, 4, v4
    """)
    for e in range(10):
        if e == 9:
            P(f"""
            s_cmp_lt_u32 s54, 6
            s_cbranch_scc1 L_wo_l9
            """)
        rowbase('s66', e)
        P('s_add_u32 s66, s66, s65')
        P(f'buffer_load_dwordx4 v[{W0+8*e}:{W0+8*e+3}], v4, s[36:39], s66 offen nt')
        P(f'buffer_load_dwordx4 v[{W0+8*e+4}:{W0+8*e+7}], v4, s[36:39], s66 offen offset:256 nt')
    P('L_wo_l9:')
    P('v_lshlrev_b32 v5, 2, v3')
    common_post()
    GA, GB = 16, 20
    tag_fill1(GA); tag_fill1(GB)
    stamp(5)
    P('s_barrier')
    stamp(6)
    XS2 = [112, 113, 114, 115, 116, 117, 118, 119, 13, 14]
    for e in range(10): P(f'ds_read_b32 v{XS2[e]}, v5 offset:{L_XA+16*e}')
    P('s_waitcnt vmcnt(0) lgkmcnt(0)')
    def mm(n):
        qs = ((60+0, ), )
        QAa, QBb = 0, 0
        def prep(e, q):
            for i in range(4): P(f'v_and_b32 v{q+i}, v{XS2[e]}, v{MK+i}')
        Q2 = (4, 4)
        for e in range(n):
            q = 4 if e == 0 else W0 + 8*(e-1)
            prep(e, q)
            c0 = '0' if e == 0 else f'v[{A0}:{A0+3}]'
            c1 = '0' if e == 0 else f'v[{A1}:{A1+3}]'
            P(f'v_mfma_f32_16x16x32_bf16 v[{A0}:{A0+3}], v[{W0+8*e}:{W0+8*e+3}], v[{q}:{q+3}], {c0}')
            P(f'v_mfma_f32_16x16x32_bf16 v[{A1}:{A1+3}], v[{W0+8*e+4}:{W0+8*e+7}], v[{q}:{q+3}], {c1}')
    P(f"""
    s_cmp_lt_u32 s54, 6
    s_cbranch_scc1 L_wo_m9
    """)
    mm(10)
    P('s_branch L_wo_st')
    P('L_wo_m9:')
    mm(9)
    P('L_wo_st:')
    pack_pair(GA, A0)
    pack_pair(GB, A1)
    P(f"""
    s_lshl_b32 s60, s53, 11
    s_add_u32 s59, s59, s60
    buffer_store_dwordx4 v[{GA}:{GA+3}], v12, s[44:47], s59 offen sc1
    buffer_store_dwordx4 v[{GB}:{GB+3}], v12, s[44:47], s59 offen offset:1024 sc1
    """)
    stamp(7)
    end_wave()
    P('L_wo_half:')
    P(f"""
    v_mul_u32_u24 v4, {8*1152}, v3
    v_and_b32 v6, 7, v2
    v_lshl_add_u32 v4, v6, 4, v4
    v_add_u32 v4, 1024, v4
    v_cmp_lt_u32 s[68:69], 7, v2
    """)
    for t in range(5):
        rowbase('s66', 2*t)
        rowbase('s67', 2*t+1)
        if t == 4:
            P(f"""
            s_cmp_lt_u32 s54, 6
            s_cselect_b32 s67, 0x40000000, s67
            """)
        P(f"""
        v_mov_b32 v6, s66
        v_mov_b32 v7, s67
        v_cndmask_b32 v6, v6, v7, s[68:69]
        v_add_u32 v6, v6, v4
        buffer_load_dwordx4 v[{W0+4*t}:{W0+4*t+3}], v6, s[36:39], 0 offen nt
        """)
    P(f"""
    v_lshrrev_b32 v5, 3, v2
    v_lshl_add_u32 v5, v5, 2, v3
    v_lshlrev_b32 v5, 2, v5
    """)
    if cfg.pf2 & 2:
        P('v_mov_b32 v15, v5')
        prefetch_code('3', 100)
        P('v_mov_b32 v5, v15')
    common_post()
    GH = 96
    tag_fill1(GH)
    stamp(5)
    P('s_barrier')
    stamp(6)
    for t in range(5): P(f'ds_read_b32 v{112+t}, v5 offset:{L_XA+32*t}')
    P('s_waitcnt vmcnt(0) lgkmcnt(0)')
    diag_mm(72, [W0+4*t for t in range(5)], [f'v{112+t}' for t in range(5)], MK, 76, 80)
    store_half(72, GH)
    stamp(7)
    end_wave()

def q_fetch(nxt):
    l = P.lbl('Lqf'); l2 = P.lbl('Lqf'); l3 = P.lbl('Lqf')
    P(f"""
    s_cmp_gt_u32 s3, 4
    s_cbranch_scc1 {nxt}
    s_lshl_b32 s38, s4, 10
    s_lshl_b32 s39, s3, 8
    s_add_u32 s38, s38, s39
    s_add_u32 s38, s38, {QF-256}
    s_add_u32 s36, s34, s38
    s_addc_u32 s37, s35, 0
    s_mov_b32 s42, 0x40000
    """)
    if cfg.q_direct:
        P(f"""
        s_branch {l3}
        {l}:
        s_sleep {cfg.q_sleep}
        {l3}:
        s_load_dwordx2 s[40:41], s[36:37], 128 glc
        s_load_dwordx16 s[48:63], s[36:37], 0 glc
        s_load_dwordx16 s[64:79], s[36:37], 64 glc
        s_sub_u32 s42, s42, 1
        s_cbranch_scc1 {ABORT}
        s_waitcnt lgkmcnt(0)
        s_cmp_lg_u32 s41, s7
        s_cbranch_scc1 {l}
        s_add_u32 s43, s48, s7
        """)
        for i in range(49, 80): P(f's_add_u32 s43, s43, s{i}')
        P(f"""
        s_cmp_lg_u32 s43, s40
        s_cbranch_scc1 {l3}
        """)
    else:
        P(f"""
        s_branch {l3}
        {l}:
        s_sleep {cfg.q_sleep}
        {l3}:
        s_load_dwordx2 s[40:41], s[36:37], 128 glc
        s_sub_u32 s42, s42, 1
        s_cbranch_scc1 {ABORT}
        s_waitcnt lgkmcnt(0)
        s_cmp_lg_u32 s41, s7
        s_cbranch_scc1 {l}
        {l2}:
        s_load_dwordx16 s[48:63], s[36:37], 0 glc
        s_load_dwordx16 s[64:79], s[36:37], 64 glc
        s_sub_u32 s42, s42, 1
        s_cbranch_scc1 {ABORT}
        s_waitcnt lgkmcnt(0)
        s_add_u32 s43, s48, s7
        """)
        for i in range(49, 80): P(f's_add_u32 s43, s43, s{i}')
        P(f"""
        s_cmp_lg_u32 s43, s40
        s_cbranch_scc1 {l2}
        """)
    for i in range(32): P(f'v_writelane_b32 v20, s{48+i}, {i}')
    P(f"""
    v_and_b32 v21, 3, v1
    v_lshlrev_b32 v21, 2, v21
    v_bfe_u32 v22, v1, 2, 2
    v_add_u32 v21, v21, v22
    v_and_b32 v22, 16, v1
    v_add_u32 v21, v21, v22
    v_lshlrev_b32 v21, 2, v21
    s_lshl_b32 s38, s3, 7
    v_add_u32 v21, s38, v21
    s_mov_b64 exec, 0xffffffff
    ds_write_b32 v21, v20 offset:{L_Q-128}
    s_mov_b64 exec, -1
    """)
    srd(44, 34, 0x40000000)
    lds_add(FL_Q)

def ln_stats(regs, mean_b, rstd, t1, t2, maskfix=None):
    P(f'v_add_f32 {t1}, v{regs[0]}, v{regs[1]}')
    for r in regs[2:]: P(f'v_add_f32 {t1}, {t1}, v{r}')
    wave_sum(t1, t2)
    P(f's_mov_b32 s60, {f32hex(1.0/576.0):#x}')
    P(f'v_mul_f32 {t1}, s60, {t1}')
    first = True
    for r in regs:
        P(f'v_sub_f32 {t2}, v{r}, {t1}')
        if maskfix and r in maskfix[0]: P(f'v_cndmask_b32 {t2}, 0, {t2}, {maskfix[1]}')
        if first: P(f'v_mul_f32 {rstd}, {t2}, {t2}'); first = False
        else: P(f'v_fmac_f32 {rstd}, {t2}, {t2}')
    wave_sum(rstd, t2)
    P(f'v_mul_f32 {rstd}, s60, {rstd}')
    rne(rstd, rstd)
    P(f'v_add_f32 {rstd}, {f32hex(1e-5):#x}, {rstd}')
    rne(rstd, rstd)
    P(f'v_sqrt_f32 {rstd}, {rstd}')
    rne(rstd, rstd)
    P(f'v_rcp_f32 {rstd}, {rstd}')
    rne(mean_b, t1)

def fold_reduce(base, slot0):
    for i in range(6): P(f'ds_read_b128 v[{base+4*i}:{base+4*i+3}], v16 offset:{L_SLOT+1024*(slot0+i)}')
    P('s_waitcnt lgkmcnt(0)')
    for (x, y) in ((0, 1), (2, 3), (4, 5), (0, 2), (0, 4)):
        for jj in range(4): P(f'v_add_f32 v{base+4*x+jj}, v{base+4*x+jj}, v{base+4*y+jj}')
    T = base + 4
    for jj in range(4): P(f'v_mov_b32 v{T+jj}, v{base+jj}')
    for jj in range(4): P(f'v_permlane32_swap_b32 v{base+jj}, v{T+jj}')
    for jj in range(4): P(f'v_add_f32_dpp v{base+jj}, v{T+jj}, v{base+jj} row_shl:8 {DPPM}')

def silu(regs, tmps):
    P(f's_mov_b32 s60, {f32hex(-1.4426950408889634):#x}')
    for r in regs: P(f'v_lshlrev_b32 v{r}, 16, v{r}')
    for r, t in zip(regs, tmps): P(f'v_mul_f32 v{t}, s60, v{r}')
    for r, t in zip(regs, tmps): P(f'v_exp_f32 v{t}, v{t}')
    for r, t in zip(regs, tmps): P(f'v_add_f32 v{t}, 1.0, v{t}')
    for r, t in zip(regs, tmps): P(f'v_rcp_f32 v{t}, v{t}')
    for r, t in zip(regs, tmps): P(f'v_mul_f32 v{r}, v{r}, v{t}')
    for r, t in zip(regs, tmps): P(f'v_cvt_pk_bf16_f32 v{r}, v{r}, v{r}')

def wq_role():
    WB, MK, XS, ACC, QA, QB, XA = 56, 8, 104, 116, 120, 124, 32
    XSB = L_SLOT + 12*1024
    P('L_wq:')
    role(2)
    srd(36, 14, 576*8192)
    srd(40, 8, 1152)
    P(f"""
    s_sub_u32 s53, s3, 1              ; j
    s_sub_u32 s54, s5, 3              ; qi
    s_mul_i32 s57, s53, 96
    v_lshlrev_b32 v4, 1, v1
    """)
    for n in range(9): P(f'buffer_load_ushort v{XA+n}, v4, s[40:43], 0 offen offset:{128*n}')
    P(f"""
    v_and_b32 v6, 31, v1
    v_lshlrev_b32 v7, 1, v6
    s_lshl_b32 s58, s57, 1
    buffer_load_ushort v{XA+9}, v4, s[40:43], s58 offen
    buffer_load_ushort v{XA+10}, v7, s[40:43], s58 offen offset:128
    v_lshrrev_b32 v13, 3, v2
    v_lshl_add_u32 v13, v13, 2, v3
    v_lshlrev_b32 v5, 13, v13
    v_and_b32 v7, 7, v2
    v_lshl_add_u32 v5, v7, 4, v5
    s_lshl_b32 s58, s57, 13
    s_lshl_b32 s59, s4, 9
    s_add_u32 s58, s58, s59
    s_lshl_b32 s59, s54, 7
    s_add_u32 s58, s58, s59
    """)
    for t in range(12):
        P(f'buffer_load_dwordx4 v[{WB+4*t}:{WB+4*t+3}], v5, s[36:39], s58 offen nt')
        if t < 11: P(f's_add_u32 s58, s58, {8*8192}')
    stamp(1)
    P('s_barrier')
    P(f"""
    v_add_u32 v28, s57, v1
    v_lshlrev_b32 v28, 3, v28
    v_add_u32 v29, s57, v6
    v_lshlrev_b32 v29, 3, v29
    v_add_u32 v29, 512, v29
    v_lshlrev_b32 v31, 2, v13
    s_lshl_b32 s67, s53, 10
    v_add_u32 v31, s67, v31
    v_lshlrev_b32 v30, 2, v1
    v_add_u32 v30, s67, v30
    v_lshlrev_b32 v27, 2, v6
    v_add_u32 v27, s67, v27
    """)
    masks(MK)
    P('s_waitcnt vmcnt(12)')
    tag_ready()
    for n in range(11): P(f'v_lshlrev_b32 v{XA+n}, 16, v{XA+n}')
    ln_stats(list(range(XA, XA+9)), 'v16', 'v17', 'v18', 'v19')
    for n in (9, 10): P(f'v_sub_f32 v{XA+n}, v{XA+n}, v16')
    rne_many([XA+9, XA+10])
    for n in (9, 10): P(f'v_mul_f32 v{XA+n}, v{XA+n}, v17')
    rne_many([XA+9, XA+10])
    P(f"""
    v_mov_b32 v20, v{XA+9}
    v_mov_b32 v21, v{XA+10}
    s_mov_b32 s66, {MODP}
    s_mov_b32 s68, {MODP+9216}
    s_mov_b32 s69, {MODP+4608}
    s_mov_b32 s70, {MODP+9216+4608}
    """)
    G = 32
    sr = ['s66', 's68', 's69', 's70']
    def mloads(G_):
        o = []
        for st_, va in enumerate(('v28', 'v29')):
            for i in range(4):
                r = G_ + 8*st_ + 2*i
                o.append(f'buffer_load_dwordx2 v[{r}:{r+1}], {va}, s[44:47], {sr[i]} offen sc1')
        return o
    if cfg.modp_prog:
        G2 = 104
        ok = P.lbl('Lmp'); useb = P.lbl('Lmp'); slow = P.lbl('Lmp')
        P('s_waitcnt vmcnt(6)')
        for x in mloads(G): P(x)
        P('s_waitcnt vmcnt(11)')
        for x in mloads(G2): P(x)
        P('s_waitcnt vmcnt(8)')
        check_tags32([G+1+2*i for i in range(8)])()
        P(f's_cbranch_vccz {ok}')
        P('s_waitcnt vmcnt(0)')
        check_tags32([G2+1+2*i for i in range(8)])()
        P(f's_cbranch_vccnz {slow}')
        for i in range(8): P(f'v_mov_b32 v{G+2*i}, v{G2+2*i}')
        P(f's_branch {ok}')
        P(f'{slow}:')
        poll(mloads(G), check_tags32([G+1+2*i for i in range(8)]))
        P(f'{ok}:')
        P('s_waitcnt vmcnt(0)')
    else:
        poll(mloads(G), check_tags32([G+1+2*i for i in range(8)]))
    stamp(2)
    for st_ in range(2):
        b = G + 8*st_
        P(f'v_add_f32 v{b}, v{b}, v{b+2}')
        P(f'v_add_f32 v{b+4}, v{b+4}, v{b+6}')
    rne_many([G, G+4, G+8, G+12])
    for st_ in range(2): P(f'v_add_f32 v{G+8*st_+4}, 1.0, v{G+8*st_+4}')
    rne_many([G+4, G+12])
    for st_ in range(2): P(f'v_mul_f32 v{20+st_}, v{20+st_}, v{G+8*st_+4}')
    rne_many([20, 21])
    for st_ in range(2): P(f'v_add_f32 v{20+st_}, v{20+st_}, v{G+8*st_}')
    for st_ in range(2): P(f'v_cvt_pk_bf16_f32 v{20+st_}, v{20+st_}, v{20+st_}')
    P(f"""
    ds_write_b32 v30, v20 offset:{XSB}
    ds_write_b32 v27, v21 offset:{XSB+256}
    """)
    for t in range(12): P(f'ds_read_b32 v{XS+t}, v31 offset:{XSB+32*t}')
    P('s_waitcnt lgkmcnt(0)')
    stamp(3)
    diag_mm(ACC, [WB+4*t for t in range(12)], [f'v{XS+t}' for t in range(12)], MK, QA, QB)
    P(f"""
    s_lshl_b32 s59, s53, 10
    v_lshlrev_b32 v16, 4, v1
    v_add_u32 v19, s59, v16
    ds_write_b128 v19, v[{ACC}:{ACC+3}] offset:{L_SLOT}
    """)
    lds_add_rtn(C_RED, 's60')
    P(f"""
    s_cmp_lg_u32 s60, 5
    s_cbranch_scc1 L_wq_done
    """)
    fold_reduce(WB, 0)
    for r in range(4): P(f'v_mov_b32_dpp v{WB+4+r}, v{WB+r} quad_perm:[1,0,3,2] {DPPM}')
    for r in range(4): P(f'v_cvt_pk_bf16_f32 v{WB+r}, v{WB+r}, v{WB+4+r}')
    P(f"""
    v_add_u32 v{WB+4}, v{WB}, v{WB+1}
    v_add3_u32 v{WB+4}, v{WB+4}, v{WB+2}, v{WB+3}
    s_mov_b32 s60, 0x00550055
    s_mov_b32 s61, 0
    v_cndmask_b32 v{WB+4}, 0, v{WB+4}, s[60:61]
    v_add_u32_dpp v{WB+4}, v{WB+4}, v{WB+4} quad_perm:[2,3,0,1] {DPPM}
    v_add_u32_dpp v{WB+4}, v{WB+4}, v{WB+4} row_shl:4 {DPPM} bound_ctrl:0
    v_lshrrev_b32 v19, 1, v2
    v_lshl_add_u32 v19, v3, 2, v19
    v_lshlrev_b32 v19, 4, v19            ; (gq*4 + c/2)*16
    v_readlane_b32 s60, v{WB+4}, 0
    v_readlane_b32 s61, v{WB+4}, 16
    s_add_u32 s60, s60, s61
    s_add_u32 s60, s60, s7
    s_mov_b32 s61, 128
    v_writelane_b32 v{WB}, s60, 1
    v_writelane_b32 v{WB+1}, s7, 1
    v_writelane_b32 v19, s61, 1
    s_lshl_b32 s59, s4, 10
    s_lshl_b32 s60, s54, 8
    s_add_u32 s59, s59, s60
    s_add_u32 s59, s59, {QF}
    s_mov_b64 exec, 0x00550057
    buffer_store_dwordx4 v[{WB}:{WB+3}], v19, s[44:47], s59 offen sc1
    s_mov_b64 exec, -1
    """)
    lds_add(C_G)
    stamp(4)
    P('L_wq_done:')
    q_fetch('L_exit')
    end_wave()

def mod_role():
    WA, MK, XS, ACC, QA, QB = 32, 8, 104, 116, 120, 124
    XSB = L_SLOT + 12*1024
    P('L_mod:')
    role(3)
    P(f"""
    s_mov_b32 s54, s2
    s_cmp_ge_u32 s54, 36
    s_cbranch_scc1 L_mod_noA
    """)
    srd(36, 28, 576*6912)
    srd(40, 26, 1152)
    P(f"""
    s_sub_u32 s53, s3, 1              ; j
    v_lshlrev_b32 v4, 1, v1
    s_and_b32 s56, s54, 1             ; kh
    s_mul_i32 s57, s56, 288
    s_mul_i32 s58, s53, 48
    s_add_u32 s57, s57, s58
    s_lshl_b32 s58, s57, 1
    buffer_load_ushort v16, v4, s[40:43], s58 offen
    v_lshrrev_b32 v13, 3, v2
    v_lshl_add_u32 v13, v13, 2, v3
    v_mul_u32_u24 v5, 6912, v13
    v_and_b32 v7, 7, v2
    v_lshl_add_u32 v5, v7, 4, v5
    s_lshr_b32 s55, s54, 1            ; cbk
    s_mul_i32 s58, s57, 6912
    s_lshl_b32 s59, s55, 7
    s_add_u32 s58, s58, s59
    """)
    for t in range(6):
        P(f'buffer_load_dwordx4 v[{WA+4*t}:{WA+4*t+3}], v5, s[36:39], s58 offen nt')
        if t < 5: P(f's_add_u32 s58, s58, {8*6912}')
    P('s_barrier')
    P(f"""
    v_lshlrev_b32 v31, 2, v13
    s_lshl_b32 s67, s53, 10
    v_add_u32 v31, s67, v31
    v_lshlrev_b32 v30, 2, v1
    v_add_u32 v30, s67, v30
    s_mul_i32 s65, s56, 9216
    s_lshl_b32 s60, s55, 9
    s_add_u32 s65, s65, s60
    s_add_u32 s65, s65, {MODP}
    v_lshlrev_b32 v29, 5, v3
    v_add_u32 v29, v29, v2
    v_lshlrev_b32 v29, 3, v29
    """)
    masks(MK)
    tag_ready()
    for rr in range(4): P(f'v_mov_b32 v{61+2*rr}, s7')
    P('s_waitcnt vmcnt(6)')
    stamp(1)
    silu([16], [19])
    P(f'ds_write_b32 v30, v16 offset:{XSB}')
    for t in range(6): P(f'ds_read_b32 v{XS+t}, v31 offset:{XSB+32*t}')
    P('s_waitcnt vmcnt(0) lgkmcnt(0)')
    stamp(2)
    lds_add(C_G)
    diag_mm(ACC, [WA+4*t for t in range(6)], [f'v{XS+t}' for t in range(6)], MK, QA, QB)
    P(f"""
    s_lshl_b32 s59, s53, 10
    v_lshlrev_b32 v16, 4, v1
    v_add_u32 v19, s59, v16
    ds_write_b128 v19, v[{ACC}:{ACC+3}] offset:{L_SLOT}
    """)
    lds_add_rtn(C_RED, 's60')
    P(f"""
    s_cmp_lg_u32 s60, 5
    s_cbranch_scc1 L_mod_fin
    """)
    fold_reduce(WA, 0)
    for rr in range(4): P(f'v_mov_b32 v{60+2*rr}, v{WA+rr}')
    P('s_mov_b64 exec, 0x00ff00ff')
    for rr in range(4):
        P(f'buffer_store_dwordx2 v[{60+2*rr}:{61+2*rr}], v29, s[44:47], s65 offen offset:{64*rr} sc1')
    P('s_mov_b64 exec, -1')
    lds_add(C_H)
    stamp(3)
    P('s_branch L_mod_fin')
    P('L_mod_noA:')
    P('s_barrier')
    if cfg.b_on != 'M': lds_add(C_G)
    lds_add(C_H)
    tag_ready()
    P('L_mod_fin:')
    if cfg.b_on == 'M':
        lds_wait(C_H, 1, sleep=0)
        if cfg.order2:
            P(f"""
            s_cmp_lt_u32 s2, 12
            s_cbranch_scc1 L_mod_nob
            s_sub_u32 s53, s3, 1
            s_sub_u32 s65, s2, 36
            s_cmp_ge_u32 s2, 36
            s_cbranch_scc1 L_mod_bgo
            s_mov_b32 s65, s2
            """)
            if cfg.m_order == 'a_wo_b_kv':
                lds_wait(C_WO, 3, sleep=1)
                P('s_branch L_mod_bgo')
            if cfg.m_order == 'a_b_kv_wo':
                P('s_branch L_mod_bgo')
            P('s_mov_b32 s98, s65' if not cfg.hdbg else 's_mov_b32 s99, s65')
            q_fetch('L_mod_q2')
            P('L_mod_q2:')
            P('s_mov_b32 s65, s98' if not cfg.hdbg else 's_mov_b32 s65, s99')
            P('s_sub_u32 s53, s3, 1')
            P('s_mov_b32 s100, 1')
            lds_wait(C_WO, 3, sleep=2)
            P('s_branch L_mod_bgo2')
            P('L_mod_bgo:')
            P('s_mov_b32 s100, 0')
            P('L_mod_bgo2:')
        else:
            P(f"""
            s_cmp_lt_u32 s2, 12
            s_cbranch_scc1 L_mod_nob
            s_sub_u32 s65, s2, 12
            s_sub_u32 s53, s3, 1
            """)
        modb_body('M')
        if cfg.order2:
            P('s_cmp_lg_u32 s100, 0\ns_cbranch_scc1 L_exit')
        P('s_branch L_mod_q')
        P('L_mod_nob:')
        lds_add(C_B2)
        P('L_mod_q:')
    q_fetch('L_exit')
    end_wave()

def modb_body(cls):
    WB, MK, XS, ACC, QA, QB, G = 56, 8, 104, 116, 120, 124, 32
    done = 'L_exit' if cls == 'Q' else 'L_modb_done'
    srd(36, 28, 576*6912)
    srd(40, 26, 1152)
    P(f"""
    v_lshlrev_b32 v4, 1, v1
    s_mul_i32 s66, s53, 96
    s_lshl_b32 s59, s66, 1
    buffer_load_ushort v17, v4, s[40:43], s59 offen
    buffer_load_ushort v18, v4, s[40:43], s59 offen offset:128
    v_lshrrev_b32 v13, 3, v2
    v_lshl_add_u32 v13, v13, 2, v3
    v_mul_u32_u24 v5, 6912, v13
    v_and_b32 v7, 7, v2
    v_lshl_add_u32 v5, v7, 4, v5
    v_lshlrev_b32 v31, 2, v13
    s_lshl_b32 s67, s53, 9
    v_add_u32 v31, s67, v31
    v_lshlrev_b32 v30, 2, v1
    v_add_u32 v30, s67, v30
    s_mul_i32 s58, s66, 6912
    s_lshl_b32 s59, s65, 7
    s_add_u32 s58, s58, s59
    s_add_u32 s58, s58, 2304
    """)
    def wloads():
        for t in range(12):
            if cls == 'Q' and cfg.b_k and t >= cfg.b_k: P(f's_waitcnt vmcnt({cfg.b_k-1})')
            P(f'buffer_load_dwordx4 v[{WB+4*t}:{WB+4*t+3}], v5, s[36:39], s58 offen nt')
            if t < 11: P(f's_add_u32 s58, s58, {8*6912}')
    if cls == 'M':
        wloads()
        lds_add(C_B2)
        masks(MK)
        P('s_waitcnt vmcnt(12)')
    else:
        masks(MK)
        P('s_waitcnt vmcnt(0)')
        tag_ready()
    tag_fill(G)
    silu([17, 18], [19, 20])
    P(f"""
    ds_write_b32 v30, v17 offset:{L_XS}
    ds_write_b32 v30, v18 offset:{L_XS+256}
    """)
    for t in range(12): P(f'ds_read_b32 v{XS+t}, v31 offset:{L_XS+32*t}')
    if cls == 'Q':
        lds_wait(C_G, 1, sleep=2)
        stamp(1)
        wloads()
    P('s_waitcnt vmcnt(0) lgkmcnt(0)')
    diag_mm(ACC, [WB+4*t for t in range(12)], [f'v{XS+t}' for t in range(12)], MK, QA, QB)
    P(f"""
    s_lshl_b32 s59, s53, 10
    v_lshlrev_b32 v16, 4, v1
    v_add_u32 v19, s59, v16
    ds_write_b128 v19, v[{ACC}:{ACC+3}] offset:{L_SLOT+6*1024}
    """)
    lds_add_rtn(C_B, 's60')
    P(f"""
    s_cmp_lg_u32 s60, 5
    s_cbranch_scc1 {done}
    """)
    fold_reduce(WB, 6)
    rne_many([WB+jj for jj in range(4)])
    make_granules(G, WB)
    P(f"""
    s_lshl_b32 s59, s65, 9
    s_add_u32 s59, s59, {MODF}
    v_lshlrev_b32 v19, 3, v3
    v_add_u32 v19, v19, v2
    v_lshlrev_b32 v19, 5, v19
    s_mov_b64 exec, 0x00ff00ff
    buffer_store_dwordx4 v[{G}:{G+3}], v19, s[44:47], s59 offen sc1
    buffer_store_dwordx4 v[{G+4}:{G+7}], v19, s[44:47], s59 offen offset:16 sc1
    s_mov_b64 exec, -1
    """)
    stamp(4)
    if cls == 'Q': end_wave()
    else: P('L_modb_done:')

def modb_role():
    P('L_modb:')
    P('s_barrier')
    if cfg.b_on != 'Q':
        P('s_branch L_end')
        return
    P(f"""
    s_sub_u32 s65, s2, 48            ; b
    s_cmp_ge_u32 s65, 36
    s_cbranch_scc1 L_exit
    s_sub_u32 s53, s3, 7              ; j
    """)
    modb_body('Q')

def prefetch_code(sfx='', dst=16):
    if not cfg.prefetch_code: return
    P(f"""
    s_getpc_b64 s[52:53]
    L_pc{sfx}:
    s_sub_u32 s52, s52, L_pc{sfx}-{KN}
    s_subb_u32 s53, s53, 0
    v_lshlrev_b32 v4, 7, v1
    """)
    for i in range(CODE_PF):
        P(f'v_cmp_gt_u32 vcc, L_codeend-{KN}, v4')
        P('s_and_saveexec_b64 s[62:63], vcc')
        P(f'global_load_dword v{dst+i}, v4, s[52:53]')
        P('s_mov_b64 exec, s[62:63]')
        P('v_add_u32 v4, 0x2000, v4')


def tlb_warm(dst=100):
    pages = []
    for ptr, size in ((16, 4096*1152), (24, 4608*1152), (20, 576*9216), (22, 576*9216)):
        for off in range(0, size + (2 << 20) - 1, 2 << 20):
            pages.append((ptr, min(off, size - 4)))
    pages += [(34, 0), (34, 0x200000), (34, 0x2C0000), (30, 0), (28, 0), (28, 576*6912-4), (14, 0), (14, 2<<20), (14, 576*8192-4)]
    a, b = dst, dst + 1
    P(f'v_mov_b32 v{a}, s34\nv_mov_b32 v{b}, s35')
    for i, (ptr, off) in enumerate(pages):
        P(f's_add_u32 s52, s{ptr}, {off}')
        P(f's_addc_u32 s53, s{ptr+1}, 0')
        P(f'v_writelane_b32 v{a}, s52, {i}')
        P(f'v_writelane_b32 v{b}, s53, {i}')
    P(f'global_load_dword v{dst+2}, v[{a}:{b}], off')

def reduce4(a, b, n_i, base):
    regs = list(range(n_i))
    while len(regs) > 1:
        nxt = []
        for k in range(0, len(regs) - 1, 2):
            x, y = regs[k], regs[k+1]
            for j in range(2): P(f'v_add_f32 v{base+4*x+j}, v{base+4*x+j}, v{base+4*y+j}')
            nxt.append(x)
        if len(regs) % 2: nxt.append(regs[-1])
        regs = nxt
    for d in ('row_ror:4', 'row_ror:8'):
        for j in range(2): P(f'v_add_f32_dpp v{base+j}, v{base+j}, v{base+j} {d} {DPPM}')
    xrow_multi('v_add_f32', [f'v{base+j}' for j in range(2)], [f'v{base+2+j}' for j in range(2)])

def commA_role():
    P('L_commA:')
    role(5)
    P('s_setprio 3')
    P('s_barrier')
    P(f"""
    s_mov_b32 s54, s5                 ; a
    s_mul_i32 s55, s4, 7
    s_add_u32 s55, s55, s54           ; rho
    v_and_b32 v112, 3, v1
    v_lshrrev_b32 v4, 1, v112           ; pi
    s_lshl_b32 s56, s55, 1
    v_add_u32 v4, s56, v4
    v_and_b32 v4, 7, v4
    s_lshr_b32 s56, s55, 2
    s_lshl_b32 s56, s56, 5
    v_add_u32 v4, s56, v4
    v_and_b32 v5, 1, v112               ; gamma
    v_lshl_add_u32 v4, v5, 4, v4
    v_lshlrev_b32 v113, 1, v4
    v_lshlrev_b32 v114, 4, v112
    """)
    srd(40, 8, 1152)
    P(f"""
    buffer_load_ushort v116, v113, s[40:43], 0 offen
    buffer_load_ushort v117, v113, s[40:43], 0 offen offset:16
    s_cmp_eq_u32 s54, 6
    s_cselect_b32 s57, 10, 9            ; E
    s_mul_i32 s56, s54, 9
    v_add_u32 v4, s56, v2               ; l_src = 9a + e
    v_mul_u32_u24 v6, {H3S}, v3
    v_lshl_add_u32 v5, v4, 5, v6
    v_bfe_u32 v4, v4, 3, 1              ; head
    v_lshl_add_u32 v4, v4, 6, v6
    v_add_u32 v4, 2048, v4
    s_mul_i32 s48, s4, {16*H3S}
    s_add_u32 s48, s48, {H3}
    s_add_u32 s49, s48, {4*H3S}
    s_add_u32 s50, s48, {8*H3S}
    s_add_u32 s51, s48, {12*H3S}
    v_lshrrev_b32 v115, 2, v1
    v_mul_u32_u24 v115, {PS}, v115
    v_add_u32 v115, v115, v114
    v_lshrrev_b32 v6, 2, v1
    v_mul_u32_u24 v118, {X2S}, v6
    v_add_u32 v118, v118, v114
    v_lshlrev_b32 v119, 4, v1
    """)
    tag_ready()
    P('v_mov_b32 v122, s6\nv_mov_b32 v123, s7')
    if cfg.h3_local and cfg.pretouch:
        for i in range(4):
            P(f's_add_u32 s62, s{48+i}, {H3L - H3}')
            P(f'buffer_load_dwordx4 v[16:19], v5, s[44:47], s62 offen')
            P(f'buffer_load_dwordx4 v[20:23], v4, s[44:47], s62 offen')
        P('s_waitcnt vmcnt(0)')
    lds_wait(FL_PUB, 1, sleep=1)
    P(f"""
    v_lshlrev_b32 v116, 16, v116
    v_cmp_gt_u32 vcc, s57, v2
    s_mov_b32 s56, {LOG2E:#x}
    s_mov_b64 exec, vcc
    """)
    def h3_loads(B):
        o = []
        for i in range(4):
            b = B + 12*i
            o.append(f'buffer_load_dwordx4 v[{b}:{b+3}], v5, s[44:47], s{48+i} offen sc1')
            o.append(f'buffer_load_dwordx4 v[{b+4}:{b+7}], v5, s[44:47], s{48+i} offen offset:16 sc1')
            o.append(f'buffer_load_dwordx4 v[{b+8}:{b+11}], v4, s[44:47], s{48+i} offen sc1')
        return o
    def h3_check(B):
        bases = [B + 12*i + o for i in range(4) for o in (0, 4, 8)]
        check_g(bases[:6])()
        P('s_mov_b64 s[62:63], vcc')
        check_g(bases[6:])()
        P('s_or_b64 vcc, vcc, s[62:63]')
    def h3_post(B):
        M = [B+12*i+8 for i in range(4)]; L = [m+1 for m in M]; W = [m+2 for m in M]
        P(f"""
        v_max3_f32 v12, v{M[0]}, v{M[1]}, v{M[2]}
        v_max_f32 v12, v12, v{M[3]}
        """)
        xrow_multi('v_max_f32', ['v12'], ['v13'])
        for i in range(4): P(f'v_sub_f32 v{W[i]}, v{M[i]}, v12')
        for i in range(4): P(f'v_mul_f32 v{W[i]}, s56, v{W[i]}')
        for i in range(4): P(f'v_exp_f32 v{W[i]}, v{W[i]}')
        O = lambda i, j: B + 12*i + (j >> 1)*4 + (j & 1)
        P(f'v_mul_f32 v14, v{W[0]}, v{L[0]}')
        for j in range(4): P(f'v_mul_f32 v{8+j}, v{W[0]}, v{O(0,j)}')
        for i in range(1, 4):
            P(f'v_fmac_f32 v14, v{W[i]}, v{L[i]}')
            for j in range(4): P(f'v_fmac_f32 v{8+j}, v{W[i]}, v{O(i,j)}')
        xrow_multi('v_add_f32', ['v14', 'v8', 'v9', 'v10', 'v11'], [f'v{B+2}', f'v{B+3}', f'v{B+6}', f'v{B+7}', f'v{B+11}'])
        P('v_rcp_f32 v14, v14')
        for j in range(4): P(f'v_mul_f32 v{8+j}, v{8+j}, v14')
        for j in range(4): P(f'v_cvt_pk_bf16_f32 v{8+j}, v{8+j}, v{8+j}')
    if cfg.h3_local:
        l = P.lbl('Lhl'); ok = P.lbl('Lhl'); far = P.lbl('Lhl')
        for i in range(4): P(f's_add_u32 s{48+i}, s{48+i}, {H3L - H3}')
        P(f's_mov_b32 s64, {cfg.local_tries}')
        P(f'{l}:')
        for x in h3_loads(16): P(x)
        P('s_waitcnt vmcnt(0)')
        h3_check(16)
        P(f"""
        s_cbranch_vccz {ok}
        s_sub_u32 s64, s64, 1
        s_cbranch_scc0 {l}
        """)
        for i in range(4): P(f's_sub_u32 s{48+i}, s{48+i}, {H3L - H3}')
        poll(h3_loads(16), lambda: h3_check(16))
        P(f'{ok}:')
        if cfg.debug: P(f's_sub_u32 s82, {cfg.local_tries}, s64')
        h3_post(16)
    else:
        poll(h3_loads(16), lambda: h3_check(16))
        if cfg.debug: P('s_sub_u32 s82, 0x8000, s64')
        h3_post(16)
    stamp(4)
    P(f"""
    s_and_b32 exec_lo, exec_lo, 0xffff
    s_mov_b32 exec_hi, 0
    ds_write_b128 v119, v[8:11] offset:{L_XA}
    s_mov_b64 exec, -1
    s_cmp_ge_u32 s55, 72
    s_cselect_b32 s65, 1, 0
    s_lshl_b32 s56, s55, 6              ; rho*64
    s_add_u32 s48, s56, {XP}
    """)
    for i in range(1, 7): P(f's_add_u32 s{48+i}, s{47+i}, {16*PS}')
    P(f"""
    s_lshl_b32 s57, s55, 6
    s_add_u32 s58, s57, {MODF}
    v_lshlrev_b32 v117, 16, v117
    s_waitcnt lgkmcnt(0)
    s_barrier
    """)
    stamp(5)
    P(f"""
    s_cmp_lg_u32 s65, 0
    s_cbranch_scc1 L_exit
    """)
    def red_loads(n):
        def f(B):
            return [f'buffer_load_dwordx4 v[{B+4*n}:{B+4*n+3}], v114, s[44:47], s58 offen sc1'] + \
                   [f'buffer_load_dwordx4 v[{B+4*i}:{B+4*i+3}], v115, s[44:47], s{48+i} offen sc1' for i in range(n)]
        return f
    def red_check(n):
        def f(B):
            bases = [B+4*i for i in range(n+1)]
            if n + 1 <= 8: check_g(bases)()
            else:
                check_g(bases[:5])()
                P('s_mov_b64 s[62:63], vcc')
                check_g(bases[5:])()
                P('s_or_b64 vcc, vcc, s[62:63]')
        return f
    def xp_post(B):
        reduce4(0, 1, 7, B)
        rne_many([B, B+1])
        for j in range(2): P(f'v_mul_f32 v{B+j}, v{B+j}, v{B+28+j}')
        rne_many([B, B+1])
        for j in range(2): P(f'v_add_f32 v{120+j}, v{B+j}, v{116+j}')
        rne_many([120, 121])
    if cfg.pipe: poll2(red_loads(7), red_check(7), xp_post, 16, 48, 8)
    else:
        poll(red_loads(7)(16), lambda: red_check(7)(16))
        if cfg.debug: P('s_sub_u32 s84, 0x8000, s64')
        xp_post(16)
    P(f"""
    s_add_u32 s59, s57, {X2}
    s_mov_b64 exec, 0xffffffff
    buffer_store_dwordx4 v[120:123], v118, s[44:47], s59 offen sc1
    s_mov_b64 exec, -1
    """)
    stamp(6)
    P(f's_add_u32 s48, s56, {FP}')
    for i in range(1, 9): P(f's_add_u32 s{48+i}, s{47+i}, {16*PS}')
    P(f's_add_u32 s58, s57, {MODF+864*16}')
    srd(40, 30, 1152)
    def fp_post(B):
        reduce4(0, 1, 9, B)
        rne_many([B, B+1])
        for j in range(2): P(f'v_mul_f32 v{B+j}, v{B+j}, v{B+36+j}')
        rne_many([B, B+1])
        for j in range(2): P(f'v_add_f32 v{8+j}, v{B+j}, v{120+j}')
        for j in range(2): P(f'v_cvt_pk_bf16_f32 v{8+j}, v{8+j}, v{8+j}')
    if cfg.pipe: poll2(red_loads(9), red_check(9), fp_post, 24, 64, 10)
    else:
        poll(red_loads(9)(24), lambda: red_check(9)(24))
        if cfg.debug: P('s_sub_u32 s86, 0x8000, s64')
        fp_post(24)
    P(f"""
    s_mov_b64 exec, 0xf
    buffer_store_short v8, v113, s[40:43], 0 offen
    buffer_store_short v9, v113, s[40:43], 0 offen offset:16
    s_mov_b64 exec, -1
    """)
    stamp(7)
    P(f"""
    s_mul_i32 s55, s4, 7
    s_add_u32 s55, s55, s5
    s_cmp_lg_u32 s55, 0
    s_cbranch_scc1 L_exit
    v_mov_b32 v4, {EPOCH}
    v_mov_b32 v8, s6
    v_mov_b32 v9, s7
    s_mov_b64 exec, 1
    buffer_store_dwordx2 v[8:9], v4, s[44:47], 0 offen sc1
    s_mov_b64 exec, -1
    """)
    end_wave()

def commF_role():
    P('L_commF:')
    role(6)
    P('s_setprio 3')
    SB, CB, XA = 32, 52, 72
    P(f"""
    v_lshlrev_b32 v4, 4, v1             ; granule l
    v_and_b32 v5, 31, v1
    v_lshlrev_b32 v5, 4, v5
    s_mov_b32 s56, {MODF+288*16}
    s_mov_b32 s57, {MODF+576*16}
    s_add_u32 s58, s56, 4096
    s_add_u32 s59, s57, 4096
    s_and_b32 s52, s2, 7
    s_mul_i32 s52, s52, {X2S}
    s_add_u32 s52, s52, {X2}
    s_add_u32 s53, s52, 4096
    v_cmp_gt_u32 s[54:55], 32, v1
    """)
    lds_wait(FL_PUB, 1, sleep=1)
    def gl(base, sreg, sreg2):
        return [f'buffer_load_dwordx4 v[{base+4*n}:{base+4*n+3}], v4, s[44:47], {sreg} offen offset:{1024*n} sc1' for n in range(4)] + \
               [f'buffer_load_dwordx4 v[{base+16}:{base+19}], v5, s[44:47], {sreg2} offen sc1']
    def chk():
        check_g([SB+4*n for n in range(5)])()
        P('s_mov_b64 s[62:63], vcc')
        check_g([CB+4*n for n in range(5)])()
        P('s_or_b64 vcc, vcc, s[62:63]')
    poll(gl(SB, 's56', 's58') + gl(CB, 's57', 's59'), chk)
    cbv = [CB+4*n+j for n in range(5) for j in range(2)]
    sbv = [SB+4*n+j for n in range(5) for j in range(2)]
    xav = [XA+4*n+j for n in range(5) for j in range(2)]
    for r in cbv: P(f'v_add_f32 v{r}, 1.0, v{r}')
    rne_many(cbv)
    P('v_lshlrev_b32 v6, 2, v1')
    def x2_post(B):
        prs = [B+4*n for n in range(5)]
        xv = [p+j for p in prs for j in range(2)]
        for r in xv[8:]: P(f'v_cndmask_b32 v{r}, 0, v{r}, s[54:55]')
        P(f'v_pk_add_f32 v[112:113], v[{prs[0]}:{prs[0]+1}], v[{prs[1]}:{prs[1]+1}]')
        P(f'v_pk_add_f32 v[114:115], v[{prs[2]}:{prs[2]+1}], v[{prs[3]}:{prs[3]+1}]')
        P(f'v_pk_add_f32 v[112:113], v[112:113], v[{prs[4]}:{prs[4]+1}]')
        P(f'v_pk_add_f32 v[112:113], v[112:113], v[114:115]')
        P('v_add_f32 v112, v112, v113')
        wave_sum('v112', 'v113')
        P(f's_mov_b32 s60, {f32hex(1.0/576.0):#x}')
        P('v_mul_f32 v112, s60, v112')
        P('v_mov_b32 v113, v112')
        for p in prs: P(f'v_pk_add_f32 v[{p+2}:{p+3}], v[{p}:{p+1}], v[112:113] neg_lo:[0,1] neg_hi:[0,1]')
        for j in range(2): P(f'v_cndmask_b32 v{prs[4]+2+j}, 0, v{prs[4]+2+j}, s[54:55]')
        P(f'v_pk_mul_f32 v[114:115], v[{prs[0]+2}:{prs[0]+3}], v[{prs[0]+2}:{prs[0]+3}]')
        for p in prs[1:]: P(f'v_pk_fma_f32 v[114:115], v[{p+2}:{p+3}], v[{p+2}:{p+3}], v[114:115]')
        P('v_add_f32 v114, v114, v115')
        wave_sum('v114', 'v115')
        P('v_mul_f32 v114, s60, v114')
        rne('v114', 'v114')
        P(f'v_add_f32 v114, {f32hex(1e-5):#x}, v114')
        rne('v114', 'v114')
        P('v_sqrt_f32 v114, v114')
        rne('v114', 'v114')
        P('v_rcp_f32 v114, v114')
        rne('v112', 'v112')
        P('v_mov_b32 v113, v112\nv_mov_b32 v115, v114\ns_mov_b32 s61, 0xffff0000')
        def rne2():
            for p in prs: P(f'v_cvt_pk_bf16_f32 v{p+2}, v{p}, v{p+1}')
            for p in prs:
                P(f'v_lshlrev_b32 v{p}, 16, v{p+2}')
                P(f'v_and_b32 v{p+1}, s61, v{p+2}')
        for p in prs: P(f'v_pk_add_f32 v[{p}:{p+1}], v[{p}:{p+1}], v[112:113] neg_lo:[0,1] neg_hi:[0,1]')
        rne2()
        for p in prs: P(f'v_pk_mul_f32 v[{p}:{p+1}], v[{p}:{p+1}], v[114:115]')
        rne2()
        for n, p in enumerate(prs): P(f'v_pk_mul_f32 v[{p}:{p+1}], v[{p}:{p+1}], v[{CB+4*n}:{CB+4*n+1}]')
        rne2()
        for n, p in enumerate(prs): P(f'v_pk_add_f32 v[{p}:{p+1}], v[{p}:{p+1}], v[{SB+4*n}:{SB+4*n+1}]')
        for n in range(5): P(f'v_cvt_pk_bf16_f32 v{B+4*n}, v{B+4*n}, v{B+4*n+1}')
        for n in range(4): P(f'ds_write_b32 v6, v{B+4*n} offset:{L_XS+256*n}')
        P(f"""
        s_mov_b64 exec, 0xffffffff
        ds_write_b32 v6, v{B+16} offset:{L_XS+1024}
        s_mov_b64 exec, -1
        """)
    if cfg.pipe: poll2(lambda B: gl(B, 's52', 's53'), lambda B: check_g([B+4*n for n in range(5)])(), x2_post, 72, 92, 5)
    else:
        poll(gl(72, 's52', 's53'), check_g([72+4*n for n in range(5)])); x2_post(72)
    stamp(7)
    P(f"""
    s_bfe_u32 s54, s2, 0x10003
    s_xor_b32 s55, s54, 1
    s_lshl_b32 s55, s55, 7
    v_and_b32 v8, 31, v1
    v_lshlrev_b32 v8, 2, v8
    v_add_u32 v8, s55, v8
    s_mul_i32 s56, s4, 9
    s_add_u32 s56, s56, s5
    s_sub_u32 s56, s56, 7             ; phi
    s_lshl_b32 s56, s56, 8
    s_add_u32 s57, s56, {GXL}
    s_add_u32 s56, s56, {GX}
    v_lshrrev_b32 v9, 1, v1
    v_lshlrev_b32 v9, 4, v9
    v_mov_b32 v18, s6
    v_mov_b32 v19, s7
    s_waitcnt lgkmcnt(0)
    s_barrier
    s_barrier
    ds_read_b32 v16, v8 offset:{L_RED3}
    ds_read_b32 v17, v8 offset:{L_RED3+256}
    ds_read_b32 v20, v8 offset:{L_RED3+512}
    ds_read_b32 v21, v8 offset:{L_RED3+768}
    s_waitcnt lgkmcnt(0)
    v_add_f32 v16, v16, v17
    v_add_f32 v20, v20, v21
    v_add_f32 v16, v16, v20
    """)
    rne('v16', 'v16')
    P(f"""
    v_mov_b32_dpp v17, v16 quad_perm:[1,0,3,2] {DPPM}
    s_mov_b64 exec, 0x55555555
    buffer_store_dwordx4 v[16:19], v9, s[44:47], s57 offen
    buffer_store_dwordx4 v[16:19], v9, s[44:47], s56 offen sc1
    s_mov_b64 exec, -1
    """)
    end_wave()

def gu_role(nkv):
    RAW = 32
    P('L_gu:')
    role(7)
    if cfg.pf_gu:
        P('s_cmp_lg_u32 s3, 1\ns_cbranch_scc1 L_gu_nopf')
        prefetch_code()
        P('L_gu_nopf:')
    P('s_barrier')
    tag_ready()
    q_fetch('L_gu2')
    P('L_gu2:')
    stamp(5)
    P(f"""
    s_sub_u32 s53, s3, 1              ; i
    s_bfe_u32 s54, s2, 0x10003        ; type
    s_cmp_eq_u32 s54, 0
    s_cselect_b32 s36, s20, s22
    s_cselect_b32 s37, s21, s23
    s_mov_b32 s38, {576*9216}
    s_mov_b32 s39, 0x20000
    s_and_b32 s56, s2, 7
    s_mul_i32 s56, s56, 9
    s_add_u32 s56, s56, s5
    s_sub_u32 s56, s56, 7             ; j
    s_lshl_b32 s56, s56, 7
    s_mul_i32 s55, s53, 5
    s_lshl_b32 s57, s53, 2
    s_add_u32 s57, s57, 2
    s_cmp_lt_u32 s53, 2
    s_cselect_b32 s55, s55, s57       ; t0
    s_mul_i32 s57, s55, {32*9216}
    s_add_u32 s56, s56, s57
    v_mul_u32_u24 v4, {2*9216}, v3
    v_lshl_add_u32 v4, v2, 3, v4
    s_mov_b32 s58, 0x05040100
    s_mov_b32 s59, 0x07060302
    s_lshl_b32 s57, s55, 6
    v_lshlrev_b32 v5, 4, v3
    v_add_u32 v5, s57, v5
    s_lshl_b32 s57, s53, 8
    v_lshlrev_b32 v13, 4, v2
    v_add_u32 v13, s57, v13
    """)
    if cfg.gu_gate == 'pub': lds_wait(FL_PUB, 1, sleep=2)
    else: lds_wait(C_KVI, nkv, sleep=2)
    stamp(1)
    def loads(u):
        for j in range(8):
            off = (32*u + 8*(j & 3) + (j >> 2)) * 9216
            P(f's_add_u32 s57, s56, {off}')
            r = RAW + 16*u + 2*j
            P(f'buffer_load_dwordx2 v[{r}:{r+1}], v4, s[36:39], s57 offen nt')
    def perm(u):
        src = RAW + 16*u
        dst = src - 16
        for i in range(4):
            a0, a1 = src + 4*i, src + 4*i + 2
            P(f'v_perm_b32 v{dst+i}, v{a1}, v{a0}, s58')
            P(f'v_perm_b32 v{dst+4+i}, v{a1}, v{a0}, s59')
            P(f'v_perm_b32 v{dst+8+i}, v{a1+1}, v{a0+1}, s58')
            P(f'v_perm_b32 v{dst+12+i}, v{a1+1}, v{a0+1}, s59')
    def body(n, sfx):
        for u in range(n):
            if cfg.gu_dyn and u > 0:
                l = P.lbl('Lgd')
                P(f"""
                v_mov_b32 v7, 0
                ds_read_b32 v6, v7 offset:{FL_PUB}
                s_waitcnt lgkmcnt(0)
                v_readfirstlane_b32 s60, v6
                s_cmp_lg_u32 s60, 0
                s_cbranch_scc1 {l}
                s_waitcnt vmcnt({cfg.gu_dyn})
                {l}:
                """)
            loads(u)
        for u in range(n):
            P(f's_waitcnt vmcnt({8*(n-1-u)})')
            perm(u)
        stamp(2)
        P('s_barrier')
        stamp(3)
        AF = [96 + 4*u for u in range(n)]
        D = [116, 120, 124, 8]
        for u in range(n): P(f'ds_read_b128 v[{AF[u]}:{AF[u]+3}], v5 offset:{L_XS+64*u}')
        for u in range(n):
            P(f's_waitcnt lgkmcnt({n-1-u})')
            f0 = RAW - 16 + 16*u
            for q in range(4):
                c = '0' if u == 0 else f'v[{D[q]}:{D[q]+3}]'
                P(f'v_mfma_f32_16x16x32_bf16 v[{D[q]}:{D[q]+3}], v[{AF[u]}:{AF[u]+3}], v[{f0+4*q}:{f0+4*q+3}], {c}')
        P(f"""
        v_mov_b32 v16, v{D[0]}
        v_mov_b32 v17, v{D[1]}
        v_mov_b32 v18, v{D[2]}
        v_mov_b32 v19, v{D[3]}
        s_mov_b64 exec, 0xffff
        ds_write_b128 v13, v[16:19] offset:{L_RED3}
        s_mov_b64 exec, -1
        s_waitcnt lgkmcnt(0)
        s_barrier
        """)
        stamp(4)
        end_wave()
    P('s_cmp_ge_u32 s53, 2\ns_cbranch_scc1 L_gu_n4')
    body(5, 'a')
    P('L_gu_n4:')
    body(4, 'b')

def build():
    global CODE_PF
    CODE_PF = 4
    prologue()
    cF, cQ, cM = cfg.cF, cfg.cQ, cfg.cM
    assert 9*cF + 4*cQ + 3*cM == 256 and cF % 2 == 0 and cQ % 2 == 0 and cM % 2 == 0 and cF//2 >= 6 and cQ <= 12 and cM <= 12
    mod_role()
    wq_role()
    kv_role('L_kvF', cF//2, lambda: P(f's_sub_u32 s52, s5, 7\ns_mul_i32 s52, s52, {cF}\ns_add_u32 s52, s52, {3*cM+4*cQ}'), (C_GA, 4) if 0 else None, True, cfg.kF)
    kv_role('L_kvM', cM//2, lambda: P(f's_mul_i32 s52, s5, {cM}'), ((C_B2, 6) if cfg.m_order in ('a_b_kv_wo', 'a_wo_b_kv') else ((C_H, 1) if cfg.order2 else (C_WO, 3))), False, cfg.kM)
    kv_role('L_kvQ', cQ//2, lambda: P(f's_sub_u32 s52, s5, 3\ns_mul_i32 s52, s52, {cQ}\ns_add_u32 s52, s52, {3*cM}'), ((C_WO, 3) if cfg.q_order == 'wo_kv' else (C_G, 1)), False, cfg.kQ)
    wo_role('Q', cQ//2)
    wo_role('M', cM//2)
    wo_common()
    commA_role()
    gu_role(cF//2)
    down_role()
    commF_role()

    P('L_abort:')
    P('s_mov_b64 exec, -1')
    P('L_exit:')
    if cfg.debug:
        P(f"""
        s_waitcnt lgkmcnt(0)
        s_lshl_b32 s60, s2, 4
        s_add_u32 s60, s60, s3
        s_lshl_b32 s60, s60, 6
        s_add_u32 s60, s60, {DBG}
        s_memrealtime s[96:97]
        s_waitcnt lgkmcnt(0)
        v_mov_b32 v8, s96
        """)
        for i in range(8): P(f'v_writelane_b32 v8, s{80+2*i}, {i}')
        P(f"""
        v_and_b32 v1, 63, v0
        v_lshlrev_b32 v7, 2, v1
        s_mov_b64 exec, 0x1ff
        buffer_store_dword v8, v7, s[44:47], s60 offen
        """)
    if cfg.hdbg:
        SL = {(3, 3): 3, (2, 2): 4, (2, 4): 5, (1, 3): 6, (1, 5): 7, (1, 6): 8, (5, 4): 9, (5, 6): 10, (6, 7): 11, (8, 6): 12, (7, 2): 13, (5, 7): 14, (6, 3): 6, (6, 5): 7, (6, 6): 8, (8, 3): 6, (8, 5): 7, (4, 7): 15}
        P("""
        s_waitcnt lgkmcnt(0)
        s_memrealtime s[96:97]
        s_mov_b32 s68, s32
        s_mov_b32 s69, s33
        s_mov_b32 s70, 256
        s_mov_b32 s71, 0x20000
        s_mov_b64 exec, 1
        s_waitcnt lgkmcnt(0)
        v_mov_b32 v8, s96
        v_mov_b32 v9, 4
        buffer_atomic_umax v8, v9, s[68:71], 0 offen sc1
        s_not_b32 s96, s80
        v_mov_b32 v8, s96
        v_mov_b32 v9, 0
        buffer_atomic_umax v8, v9, s[68:71], 0 offen sc1
        v_mov_b32 v8, s80
        v_mov_b32 v9, 8
        buffer_atomic_umax v8, v9, s[68:71], 0 offen sc1
        """)
        for r in range(1, 9):
            l = P.lbl('Lhd')
            P(f's_cmp_lg_u32 s98, {r}')
            P(f's_cbranch_scc1 {l}')
            for (rr, k), slot in SL.items():
                if rr == r:
                    P(f'v_mov_b32 v8, s{80+2*k}')
                    P(f'v_mov_b32 v9, {4*slot}')
                    P('buffer_atomic_umax v8, v9, s[68:71], 0 offen sc1')
            P(f'{l}:')
    P('L_end:')
    P('s_endpgm')
    P('L_codeend:')
    P.finalize()
    body = P.text()
    return (HEADER_COMMENT +
f"""; @launch grid=(256,1,1) block=(1024,1,1) lds={LDS_BYTES}
.amdgcn_target "amdgcn-amd-amdhsa--gfx950"
.text
.globl {KN}
.p2align 8
.type {KN},@function
{KN}:
{body}
.section .rodata,"a"
.p2align 6
.amdhsa_kernel {KN}
  .amdhsa_next_free_vgpr 128
  .amdhsa_next_free_sgpr 102
  .amdhsa_accum_offset 128
  .amdhsa_group_segment_fixed_size 0
  .amdhsa_kernarg_size 112
  .amdhsa_user_sgpr_count 2
  .amdhsa_user_sgpr_kernarg_segment_ptr 1
  .amdhsa_system_sgpr_workgroup_id_x 1
.end_amdhsa_kernel
""")

if __name__ == '__main__':
    import argparse
    ap = argparse.ArgumentParser()
    ap.add_argument('-o', default='k.s')
    ap.add_argument('--debug', action='store_true')
    ap.add_argument('--tiles', default='22,4,14')
    ap.add_argument('--set', nargs='*', default=[])
    a = ap.parse_args()
    cfg.debug = a.debug
    cfg.cF, cfg.cQ, cfg.cM = map(int, a.tiles.split(','))
    for kv in a.set:
        k, v = kv.split('=')
        old = getattr(cfg, k)
        setattr(cfg, k, type(old)(int(v)) if isinstance(old, (bool, int)) else v)
    open(a.o, 'w').write(build())
```

```python
import sys, math, struct
from dsl import Prog
from asmlib import HEADER_COMMENT, KN

class Cfg:
    cF, cQ, cM = 22, 4, 14
    debug = False
    prefetch_code = True
    kF, kQ, kM = '0', '0', '0'
    gu_depth = 4
    gul = 0
    gu_gate = 'pub'
    k_first = True
    pre_barrier = 1
    wo_k = 4
    b_k = 4
    q_sleep = 4
    poll_sleep = 0
    kvonly = False
    wave_max = True
    pretouch = True
    modp_prog = True
    pf2 = 0
    pf_early = 16
    pf_gu = True
    h3_local = True
    local_tries = 200
    m_order = 'a_kv_wo_b'
    gu_dyn = 0
    q_order = 'kv_wo'
    order2 = True
    wq_first = False
    q_direct = True
    hdbg = False
    q_wo_gate = False
    q_wo_first = True
    stagger = 6
    pipe = True
    gu_early = 3
    b_on = 'M'
    m_gate_pub = False
cfg = Cfg()

EPOCH = 0x0
MODP = 0x1000
QF = 0x8000
MODF = 0x20000
X2 = 0x28000
X2S = 0x1400
H3 = 0x40000
H3S = 2560
XP = 0xE0000
FP = 0x160000
PS = 4608
H3L = 0x210000
DBG = 0x300000
FL_Q, C_KVI, C_MAX, C_O, C_RED, C_H, C_G, FL_PUB, C_K, C_B, C_GA, C_B2, C_WO = 0, 4, 8, 12, 16, 20, 24, 28, 32, 36, 40, 44, 48
L_ZERO = 0x100
L_Q = 0x200
L_MX = 0x400
L_LS = 0x480
L_XS = 0x500
L_RED3 = 0xA00
L_XA = 0x1100
L_SLOT = 0x1200
L_OSLOT = 0x1200 + 18*1024
LDS_BYTES = 0x1200 + 30*1024
LOG2E = 0x3FB8AA3B
SCALE = 0x3DB504F3
GOLD0, GOLD1 = 0x7F4A7C15, 0x9E3779B9
def f32hex(x): return struct.unpack('<I', struct.pack('<f', x))[0]

P = Prog()
ABORT = 'L_abort'
DPPM = 'row_mask:0xf bank_mask:0xf'

def stamp(i):
    if cfg.debug or cfg.hdbg: P(f's_memrealtime s[{80+2*i}:{81+2*i}]')

def role(n):
    if cfg.hdbg: P(f's_mov_b32 s98, {n}')

def srd(base, ptr, nbytes):
    P(f"""
    s_mov_b32 s{base}, s{ptr}
    s_mov_b32 s{base+1}, s{ptr+1}
    s_mov_b32 s{base+2}, {nbytes}
    s_mov_b32 s{base+3}, 0x20000
    """)

def tag_ready():
    P(f"""
    s_waitcnt lgkmcnt(0)
    s_add_u32 s6, s6, {GOLD0:#x}
    s_add_u32 s7, s7, {GOLD1:#x}
    """)

def lds_wait(off, target, sleep=1):
    l = P.lbl('Lw'); d = P.lbl('Ld')
    P(f"""
    v_mov_b32 v7, 0
    s_mov_b32 s61, 0x400000
    {l}:
    ds_read_b32 v6, v7 offset:{off}
    s_waitcnt lgkmcnt(0)
    v_readfirstlane_b32 s60, v6
    s_cmp_ge_u32 s60, {target}
    s_cbranch_scc1 {d}
    s_sub_u32 s61, s61, 1
    s_cbranch_scc1 {ABORT}
    """)
    if sleep: P(f's_sleep {sleep}')
    P(f"""
    s_branch {l}
    {d}:
    """)

def lds_add(off):
    P(f"""
    v_mov_b32 v7, 0
    v_mov_b32 v6, 1
    s_mov_b64 s[62:63], exec
    s_mov_b64 exec, 1
    ds_add_u32 v7, v6 offset:{off}
    s_mov_b64 exec, s[62:63]
    """)

def lds_add_rtn(off, sdst):
    P(f"""
    v_mov_b32 v7, 0
    v_mov_b32 v6, 1
    s_mov_b64 s[62:63], exec
    s_mov_b64 exec, 1
    ds_add_rtn_u32 v6, v7, v6 offset:{off}
    s_waitcnt lgkmcnt(0)
    v_readfirstlane_b32 {sdst}, v6
    s_mov_b64 exec, s[62:63]
    """)

def rne(dst, src):
    P(f'v_cvt_pk_bf16_f32 {dst}, {src}, {src}')
    P(f'v_lshlrev_b32 {dst}, 16, {dst}')

def rne_many(regs):
    for r in regs: P(f'v_cvt_pk_bf16_f32 v{r}, v{r}, v{r}')
    for r in regs: P(f'v_lshlrev_b32 v{r}, 16, v{r}')

def xrow_multi(op, vs, ts):
    for sw in ('v_permlane16_swap_b32', 'v_permlane32_swap_b32'):
        for v, t in zip(vs, ts): P(f'v_mov_b32 {t}, {v}')
        for v, t in zip(vs, ts): P(f'{sw} {v}, {t}')
        for v, t in zip(vs, ts): P(f'{op} {v}, {v}, {t}')

def wave_sum(v, t):
    for d in ('quad_perm:[1,0,3,2]', 'quad_perm:[2,3,0,1]', 'row_half_mirror', 'row_mirror'):
        P(f'v_add_f32_dpp {v}, {v}, {v} {d} {DPPM}')
    xrow_multi('v_add_f32', [v], [t])

def masks(base):
    P(f"""
    v_and_b32 v6, 1, v2
    v_lshlrev_b32 v6, 4, v6
    v_mov_b32 v7, 0xffff
    v_lshlrev_b32 v7, v6, v7
    v_bfe_u32 v6, v2, 1, 2
    """)
    for i in range(4):
        P(f'v_cmp_eq_u32 vcc, {i}, v6')
        P(f'v_cndmask_b32 v{base+i}, 0, v7, vcc')

def diag_mm(acc, wregs, xregs, mk, qa, qb):
    n = len(wregs)
    def prep(t):
        q = (qa, qb)[t & 1]
        for i in range(4): P(f'v_and_b32 v{q+i}, {xregs[t]}, v{mk+i}')
    prep(0)
    for t in range(n):
        if t + 1 < n: prep(t + 1)
        q = (qa, qb)[t & 1]
        c = '0' if t == 0 else f'v[{acc}:{acc+3}]'
        P(f'v_mfma_f32_16x16x32_bf16 v[{acc}:{acc+3}], v[{wregs[t]}:{wregs[t]+3}], v[{q}:{q+3}], {c}')

def poll(loads, check):
    l = P.lbl('Lp'); l2 = P.lbl('Lp')
    P('s_mov_b32 s64, 0x8000')
    if cfg.poll_sleep:
        P(f's_branch {l2}')
        P(f'{l}:')
        P(f's_sleep {cfg.poll_sleep}')
        P(f'{l2}:')
    else:
        P(f'{l}:')
    for x in loads: P(x)
    P('s_waitcnt vmcnt(0)')
    check()
    P(f"""
    s_sub_u32 s64, s64, 1
    s_cbranch_scc1 {ABORT}
    s_cbranch_vccnz {l}
    """)


def poll2(mk_loads, mk_check, post, baseA, baseB, nloads):
    la = P.lbl('Lq'); lb = P.lbl('Lq'); ga = P.lbl('Lq'); gb = P.lbl('Lq'); done = P.lbl('Lq')
    P('s_mov_b32 s64, 0x8000')
    for x in mk_loads(baseA): P(x)
    P(f's_sleep {cfg.stagger}')
    P(f'{la}:')
    for x in mk_loads(baseB): P(x)
    P(f's_waitcnt vmcnt({nloads})')
    mk_check(baseA)
    P(f"""
    s_cbranch_vccz {ga}
    s_sub_u32 s64, s64, 1
    s_cbranch_scc1 {ABORT}
    """)
    for x in mk_loads(baseA): P(x)
    P(f's_waitcnt vmcnt({nloads})')
    mk_check(baseB)
    P(f"""
    s_cbranch_vccz {gb}
    s_branch {la}
    """)
    P(f'{gb}:')
    post(baseB)
    P(f's_branch {done}')
    P(f'{ga}:')
    post(baseA)
    P(f'{done}:')

def check_g(bases):
    def f():
        n = len(bases)
        assert n <= 8 + 5
        prs = [66 + 2*i for i in range(7)] + [96, 98]
        assert n <= len(prs) + 1
        for i, b in enumerate(bases):
            dst = 'vcc' if i == n - 1 else f's[{prs[i]}:{prs[i]+1}]'
            P(f'v_cmp_ne_u64 {dst}, s[6:7], v[{b+2}:{b+3}]')
        for i in range(n - 1):
            P(f's_or_b64 vcc, vcc, s[{prs[i]}:{prs[i]+1}]')
    return f

def check_tags32(regs, t='v6', t2='v7'):
    def f():
        rs = list(regs)
        P(f'v_xor_b32 {t}, s7, v{rs[0]}')
        for r in rs[1:]:
            P(f'v_xor_b32 {t2}, s7, v{r}')
            P(f'v_or_b32 {t}, {t}, {t2}')
        P(f'v_cmp_ne_u32 vcc, 0, {t}')
    return f

def end_wave(): P('s_branch L_exit')

def make_granules(G, ACC):
    P(f'v_mov_b32 v{G}, v{ACC}')
    P(f'v_mov_b32 v{G+1}, v{ACC+1}')
    P(f'v_mov_b32 v{G+4}, v{ACC+2}')
    P(f'v_mov_b32 v{G+5}, v{ACC+3}')
def tag_fill(G):
    for o in (2, 6):
        P(f'v_mov_b32 v{G+o}, s6')
        P(f'v_mov_b32 v{G+o+1}, s7')

def prologue():
    P(f"""
    s_cmp_ge_u32 s2, 256
    s_cbranch_scc1 L_end
    s_load_dwordx16 s[8:23], s[0:1], 0
    s_load_dwordx8 s[24:31], s[0:1], 64
    s_load_dwordx4 s[32:35], s[0:1], 96
    """)
    if cfg.prefetch_code and cfg.pf_early:
        P(f"""
        s_cmp_ge_u32 s2, {cfg.pf_early}
        s_cbranch_scc1 L_nopf0
        v_lshrrev_b32 v4, 6, v0
        v_cmp_ne_u32 vcc, 10, v4
        s_cbranch_vccnz L_nopf0
        v_and_b32 v1, 63, v0
        """)
        prefetch_code('0', 124)
        P('L_nopf0:')
    if cfg.hdbg:
        for i in range(1, 8): P(f's_mov_b32 s{80+2*i}, 0')
        P('s_mov_b32 s98, 0')
    stamp(0)
    P(f"""
    v_lshrrev_b32 v4, 6, v0
    v_and_b32 v1, 63, v0
    v_and_b32 v2, 15, v1
    v_readfirstlane_b32 s3, v4
    v_lshrrev_b32 v3, 4, v1
    s_and_b32 s4, s2, 7
    s_lshl_b32 s4, s4, 1
    s_bfe_u32 s5, s2, 0x10003
    s_add_u32 s4, s4, s5
    s_lshr_b32 s5, s2, 4
    s_cmp_lg_u32 s3, 0
    s_cbranch_scc1 L_nozero
    v_lshlrev_b32 v4, 2, v1
    v_mov_b32 v5, 0
    ds_write_b32 v4, v5
    ds_write_b32 v4, v5 offset:256
    ds_write_b32 v4, v5 offset:{L_XA}
    L_nozero:
    s_waitcnt lgkmcnt(0)
    s_load_dwordx2 s[6:7], s[34:35], 0
    """)
    srd(44, 34, 0x40000000)
    nkF, nkQ, nkM = cfg.cF//2, cfg.cQ//2, cfg.cM//2
    if cfg.kvonly:
        P(f"""
        s_cmp_lt_u32 s5, 3
        s_cselect_b32 s60, {16-nkM}, {16-nkQ}
        s_cmp_ge_u32 s5, 7
        s_cselect_b32 s60, {16-nkF}, s60
        s_cmp_ge_u32 s3, s60
        s_cbranch_scc1 L_kvgo
        s_barrier
        s_branch L_end
        L_kvgo:
        """)
    P(f"""
    s_cmp_lt_u32 s5, 3
    s_cbranch_scc1 L_classM
    s_cmp_lt_u32 s5, 7
    s_cbranch_scc1 L_classQ
    s_cmp_eq_u32 s3, 0
    s_cbranch_scc1 L_kvF0
    s_cmp_le_u32 s3, 4
    s_cbranch_scc1 L_gu
    s_cmp_ge_u32 s3, {16-min(nkF, 11)}
    s_cbranch_scc1 L_kvF
    s_branch L_idle
    L_classQ:
    s_cmp_ge_u32 s3, {16-nkQ}
    s_cbranch_scc1 L_kvQ
    s_cmp_eq_u32 s3, 0
    s_cbranch_scc1 L_commA
    s_cmp_le_u32 s3, 6
    s_cbranch_scc1 L_wq
    s_cmp_le_u32 s3, 9
    s_cbranch_scc1 L_woQ
    s_branch L_idle
    L_classM:
    s_cmp_ge_u32 s3, {16-nkM}
    s_cbranch_scc1 L_kvM
    s_cmp_eq_u32 s3, 0
    s_cbranch_scc1 L_commA
    s_cmp_le_u32 s3, 6
    s_cbranch_scc1 L_mod
    s_cmp_le_u32 s3, 9
    s_cbranch_scc1 L_woM
    L_idle:
    s_barrier
    s_waitcnt vmcnt(0)
    s_branch L_end
    """)

def kv_role(name, nkv, tile_expr, gate, is_f, kinf='0'):
    K0, V0, QF_, SD, TT, ACC, MK = 32, 64, 96, 24, 28, 96, 8
    if is_f:
        P('L_kvF0:')
        if nkv == 12:
            P('s_mov_b32 s53, 11')
            P('s_branch L_kvFgo')
        else:
            P('s_branch L_idle')
        P(f'{name}:')
        P(f's_sub_u32 s53, s3, {16-min(nkv, 11)}')
        P('L_kvFgo:')
    else:
        P(f'{name}:')
        P(f's_sub_u32 s53, s3, {16-nkv}')
    role(1)
    tile_expr()
    P(f"""
    s_lshl_b32 s54, s53, 1
    s_add_u32 s52, s52, s54
    s_lshl_b32 s52, s52, 12
    s_lshl_b32 s54, s4, 24
    s_add_u32 s52, s52, s54
    s_add_u32 s52, s52, {61440*256}
    s_add_u32 s55, s52, 4096
    """)
    srd(36, 10, 0x10000000)
    srd(40, 12, 0x10000000)
    P(f"""
    v_and_b32 v4, 7, v1
    v_lshlrev_b32 v4, 8, v4
    v_lshrrev_b32 v5, 3, v1
    v_lshl_add_u32 v4, v5, 4, v4          ; K: (l&7)*256 + (l>>3)*16
    v_lshlrev_b32 v5, 10, v3
    v_lshl_add_u32 v5, v2, 4, v5          ; V: gq*1024 + m*16
    """)
    if cfg.kvonly: gate = None
    if gate:
        P('s_barrier')
        lds_wait(gate[0], gate[1], sleep=2)
    stamp(1)
    st = {'n': 0}
    lim = lambda i: int(kinf[min(i, len(kinf)-1)], 16)
    def issue(r, vo, srdr, sreg, off):
        n = st['n']
        if not gate and n == cfg.pre_barrier: P('s_barrier')
        k = lim(n)
        if k and n >= k: P(f's_waitcnt vmcnt({k-1})')
        P(f'buffer_load_dwordx4 v[{r}:{r+3}], {vo}, s[{srdr}:{srdr+3}], {sreg} offen offset:{off} nt')
        st['n'] += 1
    for u in range(4):
        for hh in range(2):
            issue(K0 + 4*(2*u+hh), 'v4', 36, 's52' if u < 2 else 's55', (u & 1)*2048 + hh*128)
    if cfg.k_first:
        lds_add(C_K)
        lds_wait(C_K, nkv, sleep=1)
    for t in range(2):
        for r_ in range(4):
            issue(V0 + 16*t + 4*r_, 'v5', 40, 's52' if t == 0 else 's55', 256*r_)
    lds_add(C_KVI)
    stamp(2)
    if cfg.kvonly:
        P('s_waitcnt vmcnt(8)'); stamp(4)
        P('s_waitcnt vmcnt(0)'); stamp(5)
        end_wave(); return
    masks(MK)
    P(f"""
    v_bfe_u32 v12, v2, 2, 1
    v_lshlrev_b32 v22, 2, v12
    v_lshlrev_b32 v12, 8, v12
    v_lshrrev_b32 v13, 3, v2
    v_lshl_add_u32 v13, v3, 1, v13        ; 2g + par
    v_lshl_add_u32 v12, v13, 4, v12
    v_add_u32 v12, {L_Q}, v12
    v_and_b32 v13, 3, v2
    v_mov_b32 v14, {L_ZERO}
    """)
    for u in range(4):
        P(f'v_cmp_eq_u32 vcc, {u}, v13')
        P(f'v_cndmask_b32 v{16+u}, v14, v12, vcc')
    P(f"""
    v_and_b32 v12, 1, v3
    v_lshlrev_b32 v12, 4, v12
    v_lshrrev_b32 v13, 3, v2
    v_lshl_add_u32 v12, v13, 2, v12
    v_lshrrev_b32 v13, 1, v3
    v_add_u32 v12, v12, v13
    v_lshlrev_b32 v20, 2, v12
    v_add_u32 v21, 8, v20
    """)
    tag_ready()
    lds_wait(FL_Q, 4, sleep=2)
    stamp(3)
    P('s_waitcnt vmcnt(16)')
    for u in range(4):
        for hh in range(2):
            r = QF_ + 4*(2*u+hh)
            P(f'ds_read_b128 v[{r}:{r+3}], v{16+u} offset:{128*hh}')
    P('s_waitcnt vmcnt(8)')
    stamp(4)
    for i in range(8):
        P(f's_waitcnt lgkmcnt({7-i})')
        c = '0' if i == 0 else f'v[{SD}:{SD+3}]'
        P(f'v_mfma_f32_16x16x32_bf16 v[{SD}:{SD+3}], v[{K0+4*i}:{K0+4*i+3}], v[{QF_+4*i}:{QF_+4*i+3}], {c}')
    for j in range(4): P(f'v_mov_b32 v{TT+j}, v{SD+j}')
    for j in range(4): P(f'v_permlane32_swap_b32 v{SD+j}, v{TT+j}')
    for j in range(4): P(f'v_add_f32_dpp v{SD+j}, v{TT+j}, v{SD+j} row_shl:8 {DPPM}')
    P(f's_mov_b32 s56, {SCALE:#x}')
    P(f's_mov_b32 s57, 0xffff0000')
    P(f's_mov_b32 s58, {LOG2E:#x}')
    for rep in range(2):
        for p in range(2): P(f'v_cvt_pk_bf16_f32 v{TT+p}, v{SD+2*p}, v{SD+2*p+1}')
        for p in range(2):
            P(f'v_lshlrev_b32 v{SD+2*p}, 16, v{TT+p}')
            P(f'v_and_b32 v{SD+2*p+1}, s57, v{TT+p}')
        if rep == 0:
            for i in range(4): P(f'v_mul_f32 v{SD+i}, s56, v{SD+i}')
    P(f"""
    v_max3_f32 v12, v{SD}, v{SD+1}, v{SD+2}
    v_max_f32 v12, v12, v{SD+3}
    v_max_f32_dpp v12, v12, v12 quad_perm:[1,0,3,2] {DPPM}
    v_max_f32_dpp v12, v12, v12 quad_perm:[2,3,0,1] {DPPM}
    v_mov_b32 v13, v12
    v_permlane16_swap_b32 v12, v13
    v_max_f32 v12, v12, v13
    s_lshl_b32 s59, s53, 3
    v_add_u32 v23, s59, v22
    s_mov_b64 s[62:63], exec
    s_mov_b64 exec, 0x11
    ds_write_b32 v23, v12 offset:{L_MX}
    s_mov_b64 exec, s[62:63]
    """)
    MX = 15
    if cfg.wave_max:
        P(f'v_mov_b32 v{MX}, v12')
    else:
        lds_add(C_MAX)
        lds_wait(C_MAX, nkv, sleep=0)
        for i in range(nkv): P(f'ds_read_b32 v{K0+i}, v22 offset:{L_MX+8*i}')
        P('s_waitcnt lgkmcnt(0)')
        P(f'v_mov_b32 v{MX}, v{K0}')
        i = 1
        while i < nkv:
            if i + 1 < nkv: P(f'v_max3_f32 v{MX}, v{MX}, v{K0+i}, v{K0+i+1}'); i += 2
            else: P(f'v_max_f32 v{MX}, v{MX}, v{K0+i}'); i += 1
    P(f'v_mul_f32 v13, s58, v{MX}')
    for i in range(4): P(f'v_fma_f32 v{SD+i}, v{SD+i}, s58, -v13')
    for i in range(4): P(f'v_exp_f32 v{SD+i}, v{SD+i}')
    P(f"""
    v_add_f32 v12, v{SD}, v{SD+1}
    v_add_f32 v13, v{SD+2}, v{SD+3}
    """)
    for i in range(4): P(f'v_cvt_pk_bf16_f32 v{SD+i}, v{SD+i}, v{SD+i}')
    P('v_add_f32 v12, v12, v13')
    G = 104
    for t in range(2):
        for r_ in range(4): P(f'ds_bpermute_b32 v{G+4*t+r_}, v{20+t}, v{SD+r_}')
    P(f"""
    v_add_f32_dpp v12, v12, v12 quad_perm:[1,0,3,2] {DPPM}
    v_add_f32_dpp v12, v12, v12 quad_perm:[2,3,0,1] {DPPM}
    v_mov_b32 v13, v12
    v_permlane16_swap_b32 v12, v13
    v_add_f32 v12, v12, v13
    s_mov_b64 s[62:63], exec
    s_mov_b64 exec, 0x11
    ds_write_b32 v23, v12 offset:{L_LS}
    s_mov_b64 exec, s[62:63]
    s_waitcnt lgkmcnt(1)
    """)
    for i in range(8):
        for j in range(4): P(f'v_and_b32 v{K0+4*i+j}, v{G+i}, v{MK+j}')
    GR = 112
    tag_fill(GR)
    P(f'v_mov_b32 v122, s6\nv_mov_b32 v123, s7')
    P('s_waitcnt vmcnt(0)')
    stamp(5)
    for i in range(8):
        c = '0' if i == 0 else f'v[{ACC}:{ACC+3}]'
        P(f'v_mfma_f32_16x16x32_bf16 v[{ACC}:{ACC+3}], v[{V0+4*i}:{V0+4*i+3}], v[{K0+4*i}:{K0+4*i+3}], {c}')
    P(f"""
    s_lshl_b32 s59, s53, 10
    v_lshlrev_b32 v16, 4, v1
    v_add_u32 v17, s59, v16
    ds_write_b128 v17, v[{ACC}:{ACC+3}] offset:{L_OSLOT}
    """)
    lds_add_rtn(C_O, 's60')
    ldone = P.lbl('Lkvdone')
    P(f"""
    s_cmp_lg_u32 s60, {nkv-1}
    s_cbranch_scc1 {ldone}
    """)
    P('v_lshlrev_b32 v18, 3, v1')
    for i in range(nkv):
        P(f'ds_read_b64 v[{K0+4*i}:{K0+4*i+1}], v18 offset:{L_OSLOT+1024*i}')
        P(f'ds_read_b64 v[{K0+4*i+2}:{K0+4*i+3}], v18 offset:{L_OSLOT+1024*i+512}')
    LS0 = 100
    MW0 = 84
    if cfg.wave_max:
        P("""
        v_bfe_u32 v19, v1, 4, 1
        v_lshlrev_b32 v21, 2, v19
        v_lshlrev_b32 v17, 6, v19
        v_and_b32 v19, 3, v1
        v_lshl_add_u32 v17, v19, 4, v17
        """)
        for i in range(nkv): P(f'ds_read_b32 v{MW0+i}, v21 offset:{L_MX+8*i}')
        for i in range(nkv): P(f'ds_read_b32 v{LS0+i}, v21 offset:{L_LS+8*i}')
    else:
        for i in range(nkv): P(f'ds_read_b32 v{LS0+i}, v22 offset:{L_LS+8*i}')
    P(f"""
    s_lshl_b32 s59, s4, 4
    s_add_u32 s59, s59, s5
    s_mul_i32 s59, s59, {H3S}
    s_add_u32 s59, s59, {H3}
    s_waitcnt lgkmcnt(0)
    """)
    if cfg.wave_max:
        P(f'v_mov_b32 v{MX}, v{MW0}')
        i = 1
        while i < nkv:
            if i + 1 < nkv: P(f'v_max3_f32 v{MX}, v{MX}, v{MW0+i}, v{MW0+i+1}'); i += 2
            else: P(f'v_max_f32 v{MX}, v{MX}, v{MW0+i}'); i += 1
        P(f'v_mul_f32 v13, s58, v{MX}')
        for i in range(nkv): P(f'v_fma_f32 v{MW0+i}, v{MW0+i}, s58, -v13')
        for i in range(nkv): P(f'v_exp_f32 v{MW0+i}, v{MW0+i}')
        for j in range(4): P(f'v_mul_f32 v{K0+j}, v{K0+j}, v{MW0}')
        P(f'v_mul_f32 v{LS0}, v{LS0}, v{MW0}')
        if nkv > 1:
            for j in range(4): P(f'v_mul_f32 v{K0+4+j}, v{K0+4+j}, v{MW0+1}')
            P(f'v_mul_f32 v{LS0+1}, v{LS0+1}, v{MW0+1}')
        for i in range(2, nkv):
            d = i & 1
            for j in range(4): P(f'v_fmac_f32 v{K0+4*d+j}, v{K0+4*i+j}, v{MW0+i}')
            P(f'v_fmac_f32 v{LS0+d}, v{LS0+i}, v{MW0+i}')
        if nkv > 1:
            for j in range(4): P(f'v_add_f32 v{K0+j}, v{K0+j}, v{K0+4+j}')
            P(f'v_add_f32 v{LS0}, v{LS0}, v{LS0+1}')
    else:
        regs = list(range(nkv))
        while len(regs) > 1:
            nxt = []
            for a in range(0, len(regs) - 1, 2):
                x, y = regs[a], regs[a+1]
                for j in range(4): P(f'v_add_f32 v{K0+4*x+j}, v{K0+4*x+j}, v{K0+4*y+j}')
                P(f'v_add_f32 v{LS0+x}, v{LS0+x}, v{LS0+y}')
                nxt.append(x)
            if len(regs) % 2: nxt.append(regs[-1])
            regs = nxt
    make_granules(GR, K0)
    P(f"""
    v_mov_b32 v120, v{MX}
    v_mov_b32 v121, v{LS0}
    """)
    if cfg.h3_local:
        P(f"""
        s_add_u32 s65, s59, {H3L - H3}
        buffer_store_dwordx4 v[{GR}:{GR+3}], v16, s[44:47], s65 offen
        buffer_store_dwordx4 v[{GR+4}:{GR+7}], v16, s[44:47], s65 offen offset:1024
        s_mov_b64 exec, {'0x000f000f' if cfg.wave_max else '0xff'}
        buffer_store_dwordx4 v[120:123], {'v17' if cfg.wave_max else 'v16'}, s[44:47], s65 offen offset:2048
        s_mov_b64 exec, -1
        """)
    P(f"""
    buffer_store_dwordx4 v[{GR}:{GR+3}], v16, s[44:47], s59 offen sc1
    buffer_store_dwordx4 v[{GR+4}:{GR+7}], v16, s[44:47], s59 offen offset:1024 sc1
    s_mov_b64 exec, {'0x000f000f' if cfg.wave_max else '0xff'}
    buffer_store_dwordx4 v[120:123], {'v17' if cfg.wave_max else 'v16'}, s[44:47], s59 offen offset:2048 sc1
    s_mov_b64 exec, -1
    """)
    lds_add(FL_PUB)
    stamp(6)
    P(f'{ldone}:')
    if is_f:
        P(f"""
        s_cmp_lt_u32 s53, 5
        s_cbranch_scc1 L_down
        s_cmp_eq_u32 s53, 5
        s_cbranch_scc1 L_commF
        s_branch L_exit
        """)
    else:
        end_wave()

def pack_pair(G, ACC):
    P(f'v_mov_b32 v{G}, v{ACC}')
    P(f'v_mov_b32 v{G+1}, v{ACC+1}')
    P(f'v_mov_b32_dpp v{G}, v{ACC+2} row_shr:8 row_mask:0xf bank_mask:0xc')
    P(f'v_mov_b32_dpp v{G+1}, v{ACC+3} row_shr:8 row_mask:0xf bank_mask:0xc')

def store_addr():
    P(f"""
    v_and_b32 v12, 7, v2
    v_lshl_add_u32 v12, v3, 3, v12
    v_lshlrev_b32 v12, 5, v12
    v_lshrrev_b32 v6, 3, v2
    v_lshl_add_u32 v12, v6, 4, v12
    """)

def tag_fill1(G):
    P(f'v_mov_b32 v{G+2}, s6')
    P(f'v_mov_b32 v{G+3}, s7')

def store_block(sb, ACC, G):
    pack_pair(G, ACC)
    P(f"""
    s_lshl_b32 s60, {sb}, 10
    s_add_u32 s59, s59, s60
    buffer_store_dwordx4 v[{G}:{G+3}], v12, s[44:47], s59 offen sc1
    """)

def store_half(ACC, G):
    T = G + 4
    for j in range(4): P(f'v_mov_b32 v{T+j}, v{ACC+j}')
    for j in range(4): P(f'v_permlane32_swap_b32 v{ACC+j}, v{T+j}')
    for j in range(4): P(f'v_add_f32_dpp v{ACC+j}, v{T+j}, v{ACC+j} row_shl:8 {DPPM}')
    pack_pair(G, ACC)
    P(f"""
    s_add_u32 s59, s59, 4096
    s_mov_b64 s[62:63], exec
    s_mov_b64 exec, 0xffffffff
    buffer_store_dwordx4 v[{G}:{G+3}], v12, s[44:47], s59 offen sc1
    s_mov_b64 exec, s[62:63]
    """)

def down_role():
    W0, MK, XS, ACC, QA, QB, G = 32, 8, 64, 72, 76, 80, 84
    P('L_down:')
    role(8)
    lds_wait(FL_PUB, 1, sleep=1)
    srd(36, 24, 4608*1152)
    P(f"""
    s_mul_i32 s54, s4, 9
    s_add_u32 s54, s54, s5
    s_sub_u32 s54, s54, 7             ; phi
    s_mul_i32 s55, s54, {32*1152}
    s_cmp_eq_u32 s53, 4
    s_cbranch_scc1 L_down_half
    s_lshl_b32 s56, s53, 8
    s_add_u32 s55, s55, s56
    v_mul_u32_u24 v4, 1152, v3
    v_lshl_add_u32 v4, v2, 4, v4
    """)
    for e in range(8):
        P(f'buffer_load_dwordx4 v[{W0+4*e}:{W0+4*e+3}], v4, s[36:39], s55 offen nt')
        if e < 7: P(f's_add_u32 s55, s55, {4*1152}')
    P('v_lshlrev_b32 v5, 2, v3')
    P('s_mov_b32 s57, 16')
    P('s_branch L_down_go')
    P('L_down_half:')
    P(f"""
    s_add_u32 s55, s55, 1024
    v_lshrrev_b32 v6, 3, v2
    v_lshl_add_u32 v6, v6, 2, v3
    v_mul_u32_u24 v4, 1152, v6
    v_and_b32 v7, 7, v2
    v_lshl_add_u32 v4, v7, 4, v4
    v_lshlrev_b32 v5, 2, v6
    """)
    for t in range(4):
        P(f'buffer_load_dwordx4 v[{W0+4*t}:{W0+4*t+3}], v4, s[36:39], s55 offen nt')
        if t < 3: P(f's_add_u32 s55, s55, {8*1152}')
    P('s_mov_b32 s57, 32')
    P('L_down_go:')
    masks(MK)
    store_addr()
    tag_fill1(G)
    for e in range(8):
        P(f'v_mov_b32 v{104+e}, v5')
        if e < 7: P('v_add_u32 v5, s57, v5')
    P(f"""
    s_mul_i32 s59, s54, {PS}
    s_add_u32 s59, s59, {FP}
    v_and_b32 v6, 31, v1
    v_lshlrev_b32 v13, 2, v6
    """)
    P('s_barrier')
    P('s_barrier')
    stamp(7)
    P(f"""
    ds_read_b32 v16, v13 offset:{L_RED3}
    ds_read_b32 v17, v13 offset:{L_RED3+128}
    ds_read_b32 v18, v13 offset:{L_RED3+256}
    ds_read_b32 v19, v13 offset:{L_RED3+384}
    s_waitcnt lgkmcnt(0)
    v_add_f32 v16, v16, v17
    v_add_f32 v18, v18, v19
    """)
    rne_many([16, 18])
    k1 = f32hex(0.044715); k2 = f32hex(-2.0*math.sqrt(2.0/math.pi)*math.log2(math.e))
    P(f"""
    s_mov_b32 s60, {k1:#x}
    s_mov_b32 s61, {k2:#x}
    v_mul_f32 v17, v16, v16
    v_mul_f32 v17, v17, v16
    v_fma_f32 v17, v17, s60, v16
    v_mul_f32 v17, s61, v17
    v_exp_f32 v17, v17
    v_add_f32 v17, 1.0, v17
    v_rcp_f32 v17, v17
    v_mul_f32 v16, v16, v17
    """)
    rne('v16', 'v16')
    P('v_mul_f32 v16, v16, v18')
    P('v_cvt_pk_bf16_f32 v16, v16, v16')
    for e in range(8): P(f'ds_bpermute_b32 v{XS+e}, v{104+e}, v16')
    P('s_waitcnt vmcnt(0) lgkmcnt(0)')
    P(f"""
    s_cmp_eq_u32 s53, 4
    s_cbranch_scc1 L_down_half2
    """)
    diag_mm(ACC, [W0+4*e for e in range(8)], [f'v{XS+e}' for e in range(8)], MK, QA, QB)
    store_block('s53', ACC, G)
    stamp(6)
    end_wave()
    P('L_down_half2:')
    diag_mm(ACC, [W0+4*t for t in range(4)], [f'v{XS+t}' for t in range(4)], MK, QA, QB)
    store_half(ACC, G)
    stamp(6)
    end_wave()

def wo_role(suffix, nkv):
    P(f'L_wo{suffix}:')
    P('s_barrier')
    if cfg.order2 and suffix == 'Q' and cfg.q_order == 'wo_kv': lds_wait(C_G, 1, sleep=2)
    elif cfg.order2: lds_wait(C_KVI, nkv, sleep=2)
    elif suffix == 'M': lds_wait(C_B2, 6, sleep=2)
    elif cfg.q_wo_gate: lds_wait(C_G, 1, sleep=2)
    P('s_branch L_wo_common')

def wo_common():
    W0, MK, XS, G = 32, 8, 112, 16
    A0, A1, QA, QB = 24, 28, 0, 0
    P('L_wo_common:')
    role(4)
    srd(36, 16, 4096*1152)
    P(f"""
    s_sub_u32 s53, s3, 7              ; 0,1,2
    s_mov_b32 s54, s5                 ; a
    s_mul_i32 s55, s54, 9
    s_lshl_b32 s56, s4, 8
    """)
    def rowbase(dst, e):
        P(f"""
        s_add_u32 s57, s55, {e}
        s_bfe_u32 s58, s57, 0x10003
        s_lshl_b32 s58, s58, 7
        s_lshr_b32 s60, s57, 4
        s_lshl_b32 s60, s60, 5
        s_add_u32 s58, s58, s60
        s_and_b32 s60, s57, 7
        s_add_u32 s58, s58, s60
        s_add_u32 s58, s58, s56
        s_mul_i32 {dst}, s58, 1152
        """)
    def common_post():
        lds_add(C_WO)
        masks(MK)
        store_addr()
        tag_ready()
        P(f"""
        s_mul_i32 s59, s4, 7
        s_add_u32 s59, s59, s54
        s_mul_i32 s59, s59, {PS}
        s_add_u32 s59, s59, {XP}
        """)
    P(f"""
    s_cmp_eq_u32 s53, 2
    s_cbranch_scc1 L_wo_half
    s_lshl_b32 s65, s53, 9
    v_mul_u32_u24 v4, {8*1152}, v3
    v_lshl_add_u32 v4, v2, 4, v4
    """)
    for e in range(10):
        if e == 9:
            P(f"""
            s_cmp_lt_u32 s54, 6
            s_cbranch_scc1 L_wo_l9
            """)
        rowbase('s66', e)
        P('s_add_u32 s66, s66, s65')
        P(f'buffer_load_dwordx4 v[{W0+8*e}:{W0+8*e+3}], v4, s[36:39], s66 offen nt')
        P(f'buffer_load_dwordx4 v[{W0+8*e+4}:{W0+8*e+7}], v4, s[36:39], s66 offen offset:256 nt')
    P('L_wo_l9:')
    P('v_lshlrev_b32 v5, 2, v3')
    common_post()
    GA, GB = 16, 20
    tag_fill1(GA); tag_fill1(GB)
    stamp(5)
    P('s_barrier')
    stamp(6)
    XS2 = [112, 113, 114, 115, 116, 117, 118, 119, 13, 14]
    for e in range(10): P(f'ds_read_b32 v{XS2[e]}, v5 offset:{L_XA+16*e}')
    P('s_waitcnt vmcnt(0) lgkmcnt(0)')
    def mm(n):
        qs = ((60+0, ), )
        QAa, QBb = 0, 0
        def prep(e, q):
            for i in range(4): P(f'v_and_b32 v{q+i}, v{XS2[e]}, v{MK+i}')
        Q2 = (4, 4)
        for e in range(n):
            q = 4 if e == 0 else W0 + 8*(e-1)
            prep(e, q)
            c0 = '0' if e == 0 else f'v[{A0}:{A0+3}]'
            c1 = '0' if e == 0 else f'v[{A1}:{A1+3}]'
            P(f'v_mfma_f32_16x16x32_bf16 v[{A0}:{A0+3}], v[{W0+8*e}:{W0+8*e+3}], v[{q}:{q+3}], {c0}')
            P(f'v_mfma_f32_16x16x32_bf16 v[{A1}:{A1+3}], v[{W0+8*e+4}:{W0+8*e+7}], v[{q}:{q+3}], {c1}')
    P(f"""
    s_cmp_lt_u32 s54, 6
    s_cbranch_scc1 L_wo_m9
    """)
    mm(10)
    P('s_branch L_wo_st')
    P('L_wo_m9:')
    mm(9)
    P('L_wo_st:')
    pack_pair(GA, A0)
    pack_pair(GB, A1)
    P(f"""
    s_lshl_b32 s60, s53, 11
    s_add_u32 s59, s59, s60
    buffer_store_dwordx4 v[{GA}:{GA+3}], v12, s[44:47], s59 offen sc1
    buffer_store_dwordx4 v[{GB}:{GB+3}], v12, s[44:47], s59 offen offset:1024 sc1
    """)
    stamp(7)
    end_wave()
    P('L_wo_half:')
    P(f"""
    v_mul_u32_u24 v4, {8*1152}, v3
    v_and_b32 v6, 7, v2
    v_lshl_add_u32 v4, v6, 4, v4
    v_add_u32 v4, 1024, v4
    v_cmp_lt_u32 s[68:69], 7, v2
    """)
    for t in range(5):
        rowbase('s66', 2*t)
        rowbase('s67', 2*t+1)
        if t == 4:
            P(f"""
            s_cmp_lt_u32 s54, 6
            s_cselect_b32 s67, 0x40000000, s67
            """)
        P(f"""
        v_mov_b32 v6, s66
        v_mov_b32 v7, s67
        v_cndmask_b32 v6, v6, v7, s[68:69]
        v_add_u32 v6, v6, v4
        buffer_load_dwordx4 v[{W0+4*t}:{W0+4*t+3}], v6, s[36:39], 0 offen nt
        """)
    P(f"""
    v_lshrrev_b32 v5, 3, v2
    v_lshl_add_u32 v5, v5, 2, v3
    v_lshlrev_b32 v5, 2, v5
    """)
    if cfg.pf2 & 2:
        P('v_mov_b32 v15, v5')
        prefetch_code('3', 100)
        P('v_mov_b32 v5, v15')
    common_post()
    GH = 96
    tag_fill1(GH)
    stamp(5)
    P('s_barrier')
    stamp(6)
    for t in range(5): P(f'ds_read_b32 v{112+t}, v5 offset:{L_XA+32*t}')
    P('s_waitcnt vmcnt(0) lgkmcnt(0)')
    diag_mm(72, [W0+4*t for t in range(5)], [f'v{112+t}' for t in range(5)], MK, 76, 80)
    store_half(72, GH)
    stamp(7)
    end_wave()

def q_fetch(nxt):
    l = P.lbl('Lqf'); l2 = P.lbl('Lqf'); l3 = P.lbl('Lqf')
    P(f"""
    s_cmp_gt_u32 s3, 4
    s_cbranch_scc1 {nxt}
    s_lshl_b32 s38, s4, 10
    s_lshl_b32 s39, s3, 8
    s_add_u32 s38, s38, s39
    s_add_u32 s38, s38, {QF-256}
    s_add_u32 s36, s34, s38
    s_addc_u32 s37, s35, 0
    s_mov_b32 s42, 0x40000
    """)
    if cfg.q_direct:
        P(f"""
        s_branch {l3}
        {l}:
        s_sleep {cfg.q_sleep}
        {l3}:
        s_load_dwordx2 s[40:41], s[36:37], 128 glc
        s_load_dwordx16 s[48:63], s[36:37], 0 glc
        s_load_dwordx16 s[64:79], s[36:37], 64 glc
        s_sub_u32 s42, s42, 1
        s_cbranch_scc1 {ABORT}
        s_waitcnt lgkmcnt(0)
        s_cmp_lg_u32 s41, s7
        s_cbranch_scc1 {l}
        s_add_u32 s43, s48, s7
        """)
        for i in range(49, 80): P(f's_add_u32 s43, s43, s{i}')
        P(f"""
        s_cmp_lg_u32 s43, s40
        s_cbranch_scc1 {l3}
        """)
    else:
        P(f"""
        s_branch {l3}
        {l}:
        s_sleep {cfg.q_sleep}
        {l3}:
        s_load_dwordx2 s[40:41], s[36:37], 128 glc
        s_sub_u32 s42, s42, 1
        s_cbranch_scc1 {ABORT}
        s_waitcnt lgkmcnt(0)
        s_cmp_lg_u32 s41, s7
        s_cbranch_scc1 {l}
        {l2}:
        s_load_dwordx16 s[48:63], s[36:37], 0 glc
        s_load_dwordx16 s[64:79], s[36:37], 64 glc
        s_sub_u32 s42, s42, 1
        s_cbranch_scc1 {ABORT}
        s_waitcnt lgkmcnt(0)
        s_add_u32 s43, s48, s7
        """)
        for i in range(49, 80): P(f's_add_u32 s43, s43, s{i}')
        P(f"""
        s_cmp_lg_u32 s43, s40
        s_cbranch_scc1 {l2}
        """)
    for i in range(32): P(f'v_writelane_b32 v20, s{48+i}, {i}')
    P(f"""
    v_and_b32 v21, 3, v1
    v_lshlrev_b32 v21, 2, v21
    v_bfe_u32 v22, v1, 2, 2
    v_add_u32 v21, v21, v22
    v_and_b32 v22, 16, v1
    v_add_u32 v21, v21, v22
    v_lshlrev_b32 v21, 2, v21
    s_lshl_b32 s38, s3, 7
    v_add_u32 v21, s38, v21
    s_mov_b64 exec, 0xffffffff
    ds_write_b32 v21, v20 offset:{L_Q-128}
    s_mov_b64 exec, -1
    """)
    srd(44, 34, 0x40000000)
    lds_add(FL_Q)

def ln_stats(regs, mean_b, rstd, t1, t2, maskfix=None):
    P(f'v_add_f32 {t1}, v{regs[0]}, v{regs[1]}')
    for r in regs[2:]: P(f'v_add_f32 {t1}, {t1}, v{r}')
    wave_sum(t1, t2)
    P(f's_mov_b32 s60, {f32hex(1.0/576.0):#x}')
    P(f'v_mul_f32 {t1}, s60, {t1}')
    first = True
    for r in regs:
        P(f'v_sub_f32 {t2}, v{r}, {t1}')
        if maskfix and r in maskfix[0]: P(f'v_cndmask_b32 {t2}, 0, {t2}, {maskfix[1]}')
        if first: P(f'v_mul_f32 {rstd}, {t2}, {t2}'); first = False
        else: P(f'v_fmac_f32 {rstd}, {t2}, {t2}')
    wave_sum(rstd, t2)
    P(f'v_mul_f32 {rstd}, s60, {rstd}')
    rne(rstd, rstd)
    P(f'v_add_f32 {rstd}, {f32hex(1e-5):#x}, {rstd}')
    rne(rstd, rstd)
    P(f'v_sqrt_f32 {rstd}, {rstd}')
    rne(rstd, rstd)
    P(f'v_rcp_f32 {rstd}, {rstd}')
    rne(mean_b, t1)

def fold_reduce(base, slot0):
    for i in range(6): P(f'ds_read_b128 v[{base+4*i}:{base+4*i+3}], v16 offset:{L_SLOT+1024*(slot0+i)}')
    P('s_waitcnt lgkmcnt(0)')
    for (x, y) in ((0, 1), (2, 3), (4, 5), (0, 2), (0, 4)):
        for jj in range(4): P(f'v_add_f32 v{base+4*x+jj}, v{base+4*x+jj}, v{base+4*y+jj}')
    T = base + 4
    for jj in range(4): P(f'v_mov_b32 v{T+jj}, v{base+jj}')
    for jj in range(4): P(f'v_permlane32_swap_b32 v{base+jj}, v{T+jj}')
    for jj in range(4): P(f'v_add_f32_dpp v{base+jj}, v{T+jj}, v{base+jj} row_shl:8 {DPPM}')

def silu(regs, tmps):
    P(f's_mov_b32 s60, {f32hex(-1.4426950408889634):#x}')
    for r in regs: P(f'v_lshlrev_b32 v{r}, 16, v{r}')
    for r, t in zip(regs, tmps): P(f'v_mul_f32 v{t}, s60, v{r}')
    for r, t in zip(regs, tmps): P(f'v_exp_f32 v{t}, v{t}')
    for r, t in zip(regs, tmps): P(f'v_add_f32 v{t}, 1.0, v{t}')
    for r, t in zip(regs, tmps): P(f'v_rcp_f32 v{t}, v{t}')
    for r, t in zip(regs, tmps): P(f'v_mul_f32 v{r}, v{r}, v{t}')
    for r, t in zip(regs, tmps): P(f'v_cvt_pk_bf16_f32 v{r}, v{r}, v{r}')

def wq_role():
    WB, MK, XS, ACC, QA, QB, XA = 56, 8, 104, 116, 120, 124, 32
    XSB = L_SLOT + 12*1024
    P('L_wq:')
    role(2)
    srd(36, 14, 576*8192)
    srd(40, 8, 1152)
    P(f"""
    s_sub_u32 s53, s3, 1              ; j
    s_sub_u32 s54, s5, 3              ; qi
    s_mul_i32 s57, s53, 96
    v_lshlrev_b32 v4, 1, v1
    """)
    for n in range(9): P(f'buffer_load_ushort v{XA+n}, v4, s[40:43], 0 offen offset:{128*n}')
    P(f"""
    v_and_b32 v6, 31, v1
    v_lshlrev_b32 v7, 1, v6
    s_lshl_b32 s58, s57, 1
    buffer_load_ushort v{XA+9}, v4, s[40:43], s58 offen
    buffer_load_ushort v{XA+10}, v7, s[40:43], s58 offen offset:128
    v_lshrrev_b32 v13, 3, v2
    v_lshl_add_u32 v13, v13, 2, v3
    v_lshlrev_b32 v5, 13, v13
    v_and_b32 v7, 7, v2
    v_lshl_add_u32 v5, v7, 4, v5
    s_lshl_b32 s58, s57, 13
    s_lshl_b32 s59, s4, 9
    s_add_u32 s58, s58, s59
    s_lshl_b32 s59, s54, 7
    s_add_u32 s58, s58, s59
    """)
    for t in range(12):
        P(f'buffer_load_dwordx4 v[{WB+4*t}:{WB+4*t+3}], v5, s[36:39], s58 offen nt')
        if t < 11: P(f's_add_u32 s58, s58, {8*8192}')
    stamp(1)
    P('s_barrier')
    P(f"""
    v_add_u32 v28, s57, v1
    v_lshlrev_b32 v28, 3, v28
    v_add_u32 v29, s57, v6
    v_lshlrev_b32 v29, 3, v29
    v_add_u32 v29, 512, v29
    v_lshlrev_b32 v31, 2, v13
    s_lshl_b32 s67, s53, 10
    v_add_u32 v31, s67, v31
    v_lshlrev_b32 v30, 2, v1
    v_add_u32 v30, s67, v30
    v_lshlrev_b32 v27, 2, v6
    v_add_u32 v27, s67, v27
    """)
    masks(MK)
    P('s_waitcnt vmcnt(12)')
    tag_ready()
    for n in range(11): P(f'v_lshlrev_b32 v{XA+n}, 16, v{XA+n}')
    ln_stats(list(range(XA, XA+9)), 'v16', 'v17', 'v18', 'v19')
    for n in (9, 10): P(f'v_sub_f32 v{XA+n}, v{XA+n}, v16')
    rne_many([XA+9, XA+10])
    for n in (9, 10): P(f'v_mul_f32 v{XA+n}, v{XA+n}, v17')
    rne_many([XA+9, XA+10])
    P(f"""
    v_mov_b32 v20, v{XA+9}
    v_mov_b32 v21, v{XA+10}
    s_mov_b32 s66, {MODP}
    s_mov_b32 s68, {MODP+9216}
    s_mov_b32 s69, {MODP+4608}
    s_mov_b32 s70, {MODP+9216+4608}
    """)
    G = 32
    sr = ['s66', 's68', 's69', 's70']
    def mloads(G_):
        o = []
        for st_, va in enumerate(('v28', 'v29')):
            for i in range(4):
                r = G_ + 8*st_ + 2*i
                o.append(f'buffer_load_dwordx2 v[{r}:{r+1}], {va}, s[44:47], {sr[i]} offen sc1')
        return o
    if cfg.modp_prog:
        G2 = 104
        ok = P.lbl('Lmp'); useb = P.lbl('Lmp'); slow = P.lbl('Lmp')
        P('s_waitcnt vmcnt(6)')
        for x in mloads(G): P(x)
        P('s_waitcnt vmcnt(11)')
        for x in mloads(G2): P(x)
        P('s_waitcnt vmcnt(8)')
        check_tags32([G+1+2*i for i in range(8)])()
        P(f's_cbranch_vccz {ok}')
        P('s_waitcnt vmcnt(0)')
        check_tags32([G2+1+2*i for i in range(8)])()
        P(f's_cbranch_vccnz {slow}')
        for i in range(8): P(f'v_mov_b32 v{G+2*i}, v{G2+2*i}')
        P(f's_branch {ok}')
        P(f'{slow}:')
        poll(mloads(G), check_tags32([G+1+2*i for i in range(8)]))
        P(f'{ok}:')
        P('s_waitcnt vmcnt(0)')
    else:
        poll(mloads(G), check_tags32([G+1+2*i for i in range(8)]))
    stamp(2)
    for st_ in range(2):
        b = G + 8*st_
        P(f'v_add_f32 v{b}, v{b}, v{b+2}')
        P(f'v_add_f32 v{b+4}, v{b+4}, v{b+6}')
    rne_many([G, G+4, G+8, G+12])
    for st_ in range(2): P(f'v_add_f32 v{G+8*st_+4}, 1.0, v{G+8*st_+4}')
    rne_many([G+4, G+12])
    for st_ in range(2): P(f'v_mul_f32 v{20+st_}, v{20+st_}, v{G+8*st_+4}')
    rne_many([20, 21])
    for st_ in range(2): P(f'v_add_f32 v{20+st_}, v{20+st_}, v{G+8*st_}')
    for st_ in range(2): P(f'v_cvt_pk_bf16_f32 v{20+st_}, v{20+st_}, v{20+st_}')
    P(f"""
    ds_write_b32 v30, v20 offset:{XSB}
    ds_write_b32 v27, v21 offset:{XSB+256}
    """)
    for t in range(12): P(f'ds_read_b32 v{XS+t}, v31 offset:{XSB+32*t}')
    P('s_waitcnt lgkmcnt(0)')
    stamp(3)
    diag_mm(ACC, [WB+4*t for t in range(12)], [f'v{XS+t}' for t in range(12)], MK, QA, QB)
    P(f"""
    s_lshl_b32 s59, s53, 10
    v_lshlrev_b32 v16, 4, v1
    v_add_u32 v19, s59, v16
    ds_write_b128 v19, v[{ACC}:{ACC+3}] offset:{L_SLOT}
    """)
    lds_add_rtn(C_RED, 's60')
    P(f"""
    s_cmp_lg_u32 s60, 5
    s_cbranch_scc1 L_wq_done
    """)
    fold_reduce(WB, 0)
    for r in range(4): P(f'v_mov_b32_dpp v{WB+4+r}, v{WB+r} quad_perm:[1,0,3,2] {DPPM}')
    for r in range(4): P(f'v_cvt_pk_bf16_f32 v{WB+r}, v{WB+r}, v{WB+4+r}')
    P(f"""
    v_add_u32 v{WB+4}, v{WB}, v{WB+1}
    v_add3_u32 v{WB+4}, v{WB+4}, v{WB+2}, v{WB+3}
    s_mov_b32 s60, 0x00550055
    s_mov_b32 s61, 0
    v_cndmask_b32 v{WB+4}, 0, v{WB+4}, s[60:61]
    v_add_u32_dpp v{WB+4}, v{WB+4}, v{WB+4} quad_perm:[2,3,0,1] {DPPM}
    v_add_u32_dpp v{WB+4}, v{WB+4}, v{WB+4} row_shl:4 {DPPM} bound_ctrl:0
    v_lshrrev_b32 v19, 1, v2
    v_lshl_add_u32 v19, v3, 2, v19
    v_lshlrev_b32 v19, 4, v19            ; (gq*4 + c/2)*16
    v_readlane_b32 s60, v{WB+4}, 0
    v_readlane_b32 s61, v{WB+4}, 16
    s_add_u32 s60, s60, s61
    s_add_u32 s60, s60, s7
    s_mov_b32 s61, 128
    v_writelane_b32 v{WB}, s60, 1
    v_writelane_b32 v{WB+1}, s7, 1
    v_writelane_b32 v19, s61, 1
    s_lshl_b32 s59, s4, 10
    s_lshl_b32 s60, s54, 8
    s_add_u32 s59, s59, s60
    s_add_u32 s59, s59, {QF}
    s_mov_b64 exec, 0x00550057
    buffer_store_dwordx4 v[{WB}:{WB+3}], v19, s[44:47], s59 offen sc1
    s_mov_b64 exec, -1
    """)
    lds_add(C_G)
    stamp(4)
    P('L_wq_done:')
    q_fetch('L_exit')
    end_wave()

def mod_role():
    WA, MK, XS, ACC, QA, QB = 32, 8, 104, 116, 120, 124
    XSB = L_SLOT + 12*1024
    P('L_mod:')
    role(3)
    P(f"""
    s_mov_b32 s54, s2
    s_cmp_ge_u32 s54, 36
    s_cbranch_scc1 L_mod_noA
    """)
    srd(36, 28, 576*6912)
    srd(40, 26, 1152)
    P(f"""
    s_sub_u32 s53, s3, 1              ; j
    v_lshlrev_b32 v4, 1, v1
    s_and_b32 s56, s54, 1             ; kh
    s_mul_i32 s57, s56, 288
    s_mul_i32 s58, s53, 48
    s_add_u32 s57, s57, s58
    s_lshl_b32 s58, s57, 1
    buffer_load_ushort v16, v4, s[40:43], s58 offen
    v_lshrrev_b32 v13, 3, v2
    v_lshl_add_u32 v13, v13, 2, v3
    v_mul_u32_u24 v5, 6912, v13
    v_and_b32 v7, 7, v2
    v_lshl_add_u32 v5, v7, 4, v5
    s_lshr_b32 s55, s54, 1            ; cbk
    s_mul_i32 s58, s57, 6912
    s_lshl_b32 s59, s55, 7
    s_add_u32 s58, s58, s59
    """)
    for t in range(6):
        P(f'buffer_load_dwordx4 v[{WA+4*t}:{WA+4*t+3}], v5, s[36:39], s58 offen nt')
        if t < 5: P(f's_add_u32 s58, s58, {8*6912}')
    P('s_barrier')
    P(f"""
    v_lshlrev_b32 v31, 2, v13
    s_lshl_b32 s67, s53, 10
    v_add_u32 v31, s67, v31
    v_lshlrev_b32 v30, 2, v1
    v_add_u32 v30, s67, v30
    s_mul_i32 s65, s56, 9216
    s_lshl_b32 s60, s55, 9
    s_add_u32 s65, s65, s60
    s_add_u32 s65, s65, {MODP}
    v_lshlrev_b32 v29, 5, v3
    v_add_u32 v29, v29, v2
    v_lshlrev_b32 v29, 3, v29
    """)
    masks(MK)
    tag_ready()
    for rr in range(4): P(f'v_mov_b32 v{61+2*rr}, s7')
    P('s_waitcnt vmcnt(6)')
    stamp(1)
    silu([16], [19])
    P(f'ds_write_b32 v30, v16 offset:{XSB}')
    for t in range(6): P(f'ds_read_b32 v{XS+t}, v31 offset:{XSB+32*t}')
    P('s_waitcnt vmcnt(0) lgkmcnt(0)')
    stamp(2)
    lds_add(C_G)
    diag_mm(ACC, [WA+4*t for t in range(6)], [f'v{XS+t}' for t in range(6)], MK, QA, QB)
    P(f"""
    s_lshl_b32 s59, s53, 10
    v_lshlrev_b32 v16, 4, v1
    v_add_u32 v19, s59, v16
    ds_write_b128 v19, v[{ACC}:{ACC+3}] offset:{L_SLOT}
    """)
    lds_add_rtn(C_RED, 's60')
    P(f"""
    s_cmp_lg_u32 s60, 5
    s_cbranch_scc1 L_mod_fin
    """)
    fold_reduce(WA, 0)
    for rr in range(4): P(f'v_mov_b32 v{60+2*rr}, v{WA+rr}')
    P('s_mov_b64 exec, 0x00ff00ff')
    for rr in range(4):
        P(f'buffer_store_dwordx2 v[{60+2*rr}:{61+2*rr}], v29, s[44:47], s65 offen offset:{64*rr} sc1')
    P('s_mov_b64 exec, -1')
    lds_add(C_H)
    stamp(3)
    P('s_branch L_mod_fin')
    P('L_mod_noA:')
    P('s_barrier')
    if cfg.b_on != 'M': lds_add(C_G)
    lds_add(C_H)
    tag_ready()
    P('L_mod_fin:')
    if cfg.b_on == 'M':
        lds_wait(C_H, 1, sleep=0)
        if cfg.order2:
            P(f"""
            s_cmp_lt_u32 s2, 12
            s_cbranch_scc1 L_mod_nob
            s_sub_u32 s53, s3, 1
            s_sub_u32 s65, s2, 36
            s_cmp_ge_u32 s2, 36
            s_cbranch_scc1 L_mod_bgo
            s_mov_b32 s65, s2
            """)
            if cfg.m_order == 'a_b_kv_wo':
                P('s_branch L_mod_bgo')
            P('s_mov_b32 s98, s65' if not cfg.hdbg else 's_mov_b32 s99, s65')
            q_fetch('L_mod_q2')
            P('L_mod_q2:')
            P('s_mov_b32 s65, s98' if not cfg.hdbg else 's_mov_b32 s65, s99')
            P('s_sub_u32 s53, s3, 1')
            P('s_mov_b32 s100, 1')
            lds_wait(C_WO, 3, sleep=2)
            P('s_branch L_mod_bgo2')
            P('L_mod_bgo:')
            P('s_mov_b32 s100, 0')
            P('L_mod_bgo2:')
        else:
            P(f"""
            s_cmp_lt_u32 s2, 12
            s_cbranch_scc1 L_mod_nob
            s_sub_u32 s65, s2, 12
            s_sub_u32 s53, s3, 1
            """)
        modb_body('M')
        if cfg.order2:
            P('s_cmp_lg_u32 s100, 0\ns_cbranch_scc1 L_exit')
        P('s_branch L_mod_q')
        P('L_mod_nob:')
        lds_add(C_B2)
        P('L_mod_q:')
    q_fetch('L_exit')
    end_wave()

def modb_body(cls):
    WB, MK, XS, ACC, QA, QB, G = 56, 8, 104, 116, 120, 124, 32
    done = 'L_exit' if cls == 'Q' else 'L_modb_done'
    srd(36, 28, 576*6912)
    srd(40, 26, 1152)
    P(f"""
    v_lshlrev_b32 v4, 1, v1
    s_mul_i32 s66, s53, 96
    s_lshl_b32 s59, s66, 1
    buffer_load_ushort v17, v4, s[40:43], s59 offen
    buffer_load_ushort v18, v4, s[40:43], s59 offen offset:128
    v_lshrrev_b32 v13, 3, v2
    v_lshl_add_u32 v13, v13, 2, v3
    v_mul_u32_u24 v5, 6912, v13
    v_and_b32 v7, 7, v2
    v_lshl_add_u32 v5, v7, 4, v5
    v_lshlrev_b32 v31, 2, v13
    s_lshl_b32 s67, s53, 9
    v_add_u32 v31, s67, v31
    v_lshlrev_b32 v30, 2, v1
    v_add_u32 v30, s67, v30
    s_mul_i32 s58, s66, 6912
    s_lshl_b32 s59, s65, 7
    s_add_u32 s58, s58, s59
    s_add_u32 s58, s58, 2304
    """)
    def wloads():
        for t in range(12):
            if cls == 'Q' and cfg.b_k and t >= cfg.b_k: P(f's_waitcnt vmcnt({cfg.b_k-1})')
            P(f'buffer_load_dwordx4 v[{WB+4*t}:{WB+4*t+3}], v5, s[36:39], s58 offen nt')
            if t < 11: P(f's_add_u32 s58, s58, {8*6912}')
    if cls == 'M':
        wloads()
        lds_add(C_B2)
        masks(MK)
        P('s_waitcnt vmcnt(12)')
    else:
        masks(MK)
        P('s_waitcnt vmcnt(0)')
        tag_ready()
    tag_fill(G)
    silu([17, 18], [19, 20])
    P(f"""
    ds_write_b32 v30, v17 offset:{L_XS}
    ds_write_b32 v30, v18 offset:{L_XS+256}
    """)
    for t in range(12): P(f'ds_read_b32 v{XS+t}, v31 offset:{L_XS+32*t}')
    if cls == 'Q':
        lds_wait(C_G, 1, sleep=2)
        stamp(1)
        wloads()
    P('s_waitcnt vmcnt(0) lgkmcnt(0)')
    diag_mm(ACC, [WB+4*t for t in range(12)], [f'v{XS+t}' for t in range(12)], MK, QA, QB)
    P(f"""
    s_lshl_b32 s59, s53, 10
    v_lshlrev_b32 v16, 4, v1
    v_add_u32 v19, s59, v16
    ds_write_b128 v19, v[{ACC}:{ACC+3}] offset:{L_SLOT+6*1024}
    """)
    lds_add_rtn(C_B, 's60')
    P(f"""
    s_cmp_lg_u32 s60, 5
    s_cbranch_scc1 {done}
    """)
    fold_reduce(WB, 6)
    rne_many([WB+jj for jj in range(4)])
    make_granules(G, WB)
    P(f"""
    s_lshl_b32 s59, s65, 9
    s_add_u32 s59, s59, {MODF}
    v_lshlrev_b32 v19, 3, v3
    v_add_u32 v19, v19, v2
    v_lshlrev_b32 v19, 5, v19
    s_mov_b64 exec, 0x00ff00ff
    buffer_store_dwordx4 v[{G}:{G+3}], v19, s[44:47], s59 offen sc1
    buffer_store_dwordx4 v[{G+4}:{G+7}], v19, s[44:47], s59 offen offset:16 sc1
    s_mov_b64 exec, -1
    """)
    stamp(4)
    if cls == 'Q': end_wave()
    else: P('L_modb_done:')

def modb_role():
    P('L_modb:')
    P('s_barrier')
    if cfg.b_on != 'Q':
        P('s_branch L_end')
        return
    P(f"""
    s_sub_u32 s65, s2, 48            ; b
    s_cmp_ge_u32 s65, 36
    s_cbranch_scc1 L_exit
    s_sub_u32 s53, s3, 7              ; j
    """)
    modb_body('Q')

def prefetch_code(sfx='', dst=16):
    if not cfg.prefetch_code: return
    P(f"""
    s_getpc_b64 s[52:53]
    L_pc{sfx}:
    s_sub_u32 s52, s52, L_pc{sfx}-{KN}
    s_subb_u32 s53, s53, 0
    v_lshlrev_b32 v4, 7, v1
    """)
    for i in range(CODE_PF):
        P(f'v_cmp_gt_u32 vcc, L_codeend-{KN}, v4')
        P('s_and_saveexec_b64 s[62:63], vcc')
        P(f'global_load_dword v{dst+i}, v4, s[52:53]')
        P('s_mov_b64 exec, s[62:63]')
        P('v_add_u32 v4, 0x2000, v4')

def reduce4(a, b, n_i, base):
    regs = list(range(n_i))
    while len(regs) > 1:
        nxt = []
        for k in range(0, len(regs) - 1, 2):
            x, y = regs[k], regs[k+1]
            for j in range(2): P(f'v_add_f32 v{base+4*x+j}, v{base+4*x+j}, v{base+4*y+j}')
            nxt.append(x)
        if len(regs) % 2: nxt.append(regs[-1])
        regs = nxt
    for d in ('row_ror:4', 'row_ror:8'):
        for j in range(2): P(f'v_add_f32_dpp v{base+j}, v{base+j}, v{base+j} {d} {DPPM}')
    xrow_multi('v_add_f32', [f'v{base+j}' for j in range(2)], [f'v{base+2+j}' for j in range(2)])

def commA_role():
    P('L_commA:')
    role(5)
    P('s_setprio 3')
    P('s_barrier')
    P(f"""
    s_mov_b32 s54, s5                 ; a
    s_mul_i32 s55, s4, 7
    s_add_u32 s55, s55, s54           ; rho
    v_and_b32 v112, 3, v1
    v_lshrrev_b32 v4, 1, v112           ; pi
    s_lshl_b32 s56, s55, 1
    v_add_u32 v4, s56, v4
    v_and_b32 v4, 7, v4
    s_lshr_b32 s56, s55, 2
    s_lshl_b32 s56, s56, 5
    v_add_u32 v4, s56, v4
    v_and_b32 v5, 1, v112               ; gamma
    v_lshl_add_u32 v4, v5, 4, v4
    v_lshlrev_b32 v113, 1, v4
    v_lshlrev_b32 v114, 4, v112
    """)
    srd(40, 8, 1152)
    P(f"""
    buffer_load_ushort v116, v113, s[40:43], 0 offen
    buffer_load_ushort v117, v113, s[40:43], 0 offen offset:16
    s_cmp_eq_u32 s54, 6
    s_cselect_b32 s57, 10, 9            ; E
    s_mul_i32 s56, s54, 9
    v_add_u32 v4, s56, v2               ; l_src = 9a + e
    v_mul_u32_u24 v6, {H3S}, v3
    v_lshl_add_u32 v5, v4, 5, v6
    v_bfe_u32 v4, v4, 3, 1              ; head
    v_lshl_add_u32 v4, v4, 6, v6
    v_add_u32 v4, 2048, v4
    s_mul_i32 s48, s4, {16*H3S}
    s_add_u32 s48, s48, {H3}
    s_add_u32 s49, s48, {4*H3S}
    s_add_u32 s50, s48, {8*H3S}
    s_add_u32 s51, s48, {12*H3S}
    v_lshrrev_b32 v115, 2, v1
    v_mul_u32_u24 v115, {PS}, v115
    v_add_u32 v115, v115, v114
    v_lshrrev_b32 v6, 2, v1
    v_mul_u32_u24 v118, {X2S}, v6
    v_add_u32 v118, v118, v114
    v_lshlrev_b32 v119, 4, v1
    """)
    tag_ready()
    P('v_mov_b32 v122, s6\nv_mov_b32 v123, s7')
    if cfg.h3_local and cfg.pretouch:
        for i in range(4):
            P(f's_add_u32 s62, s{48+i}, {H3L - H3}')
            P(f'buffer_load_dwordx4 v[16:19], v5, s[44:47], s62 offen')
            P(f'buffer_load_dwordx4 v[20:23], v4, s[44:47], s62 offen')
        P('s_waitcnt vmcnt(0)')
    lds_wait(FL_PUB, 1, sleep=1)
    P(f"""
    v_lshlrev_b32 v116, 16, v116
    v_cmp_gt_u32 vcc, s57, v2
    s_mov_b32 s56, {LOG2E:#x}
    s_mov_b64 exec, vcc
    """)
    def h3_loads(B):
        o = []
        for i in range(4):
            b = B + 12*i
            o.append(f'buffer_load_dwordx4 v[{b}:{b+3}], v5, s[44:47], s{48+i} offen sc1')
            o.append(f'buffer_load_dwordx4 v[{b+4}:{b+7}], v5, s[44:47], s{48+i} offen offset:16 sc1')
            o.append(f'buffer_load_dwordx4 v[{b+8}:{b+11}], v4, s[44:47], s{48+i} offen sc1')
        return o
    def h3_check(B):
        bases = [B + 12*i + o for i in range(4) for o in (0, 4, 8)]
        check_g(bases[:6])()
        P('s_mov_b64 s[62:63], vcc')
        check_g(bases[6:])()
        P('s_or_b64 vcc, vcc, s[62:63]')
    def h3_post(B):
        M = [B+12*i+8 for i in range(4)]; L = [m+1 for m in M]; W = [m+2 for m in M]
        P(f"""
        v_max3_f32 v12, v{M[0]}, v{M[1]}, v{M[2]}
        v_max_f32 v12, v12, v{M[3]}
        """)
        xrow_multi('v_max_f32', ['v12'], ['v13'])
        for i in range(4): P(f'v_sub_f32 v{W[i]}, v{M[i]}, v12')
        for i in range(4): P(f'v_mul_f32 v{W[i]}, s56, v{W[i]}')
        for i in range(4): P(f'v_exp_f32 v{W[i]}, v{W[i]}')
        O = lambda i, j: B + 12*i + (j >> 1)*4 + (j & 1)
        P(f'v_mul_f32 v14, v{W[0]}, v{L[0]}')
        for j in range(4): P(f'v_mul_f32 v{8+j}, v{W[0]}, v{O(0,j)}')
        for i in range(1, 4):
            P(f'v_fmac_f32 v14, v{W[i]}, v{L[i]}')
            for j in range(4): P(f'v_fmac_f32 v{8+j}, v{W[i]}, v{O(i,j)}')
        xrow_multi('v_add_f32', ['v14', 'v8', 'v9', 'v10', 'v11'], [f'v{B+2}', f'v{B+3}', f'v{B+6}', f'v{B+7}', f'v{B+11}'])
        P('v_rcp_f32 v14, v14')
        for j in range(4): P(f'v_mul_f32 v{8+j}, v{8+j}, v14')
        for j in range(4): P(f'v_cvt_pk_bf16_f32 v{8+j}, v{8+j}, v{8+j}')
    if cfg.h3_local:
        l = P.lbl('Lhl'); ok = P.lbl('Lhl'); far = P.lbl('Lhl')
        for i in range(4): P(f's_add_u32 s{48+i}, s{48+i}, {H3L - H3}')
        P(f's_mov_b32 s64, {cfg.local_tries}')
        P(f'{l}:')
        for x in h3_loads(16): P(x)
        P('s_waitcnt vmcnt(0)')
        h3_check(16)
        P(f"""
        s_cbranch_vccz {ok}
        s_sub_u32 s64, s64, 1
        s_cbranch_scc0 {l}
        """)
        for i in range(4): P(f's_sub_u32 s{48+i}, s{48+i}, {H3L - H3}')
        poll(h3_loads(16), lambda: h3_check(16))
        P(f'{ok}:')
        if cfg.debug: P(f's_sub_u32 s82, {cfg.local_tries}, s64')
        h3_post(16)
    else:
        poll(h3_loads(16), lambda: h3_check(16))
        if cfg.debug: P('s_sub_u32 s82, 0x8000, s64')
        h3_post(16)
    stamp(4)
    P(f"""
    s_and_b32 exec_lo, exec_lo, 0xffff
    s_mov_b32 exec_hi, 0
    ds_write_b128 v119, v[8:11] offset:{L_XA}
    s_mov_b64 exec, -1
    s_cmp_ge_u32 s55, 72
    s_cselect_b32 s65, 1, 0
    s_lshl_b32 s56, s55, 6              ; rho*64
    s_add_u32 s48, s56, {XP}
    """)
    for i in range(1, 7): P(f's_add_u32 s{48+i}, s{47+i}, {16*PS}')
    P(f"""
    s_lshl_b32 s57, s55, 6
    s_add_u32 s58, s57, {MODF}
    v_lshlrev_b32 v117, 16, v117
    s_waitcnt lgkmcnt(0)
    s_barrier
    """)
    stamp(5)
    P(f"""
    s_cmp_lg_u32 s65, 0
    s_cbranch_scc1 L_exit
    """)
    def red_loads(n):
        def f(B):
            return [f'buffer_load_dwordx4 v[{B+4*n}:{B+4*n+3}], v114, s[44:47], s58 offen sc1'] + \
                   [f'buffer_load_dwordx4 v[{B+4*i}:{B+4*i+3}], v115, s[44:47], s{48+i} offen sc1' for i in range(n)]
        return f
    def red_check(n):
        def f(B):
            bases = [B+4*i for i in range(n+1)]
            if n + 1 <= 8: check_g(bases)()
            else:
                check_g(bases[:5])()
                P('s_mov_b64 s[62:63], vcc')
                check_g(bases[5:])()
                P('s_or_b64 vcc, vcc, s[62:63]')
        return f
    def xp_post(B):
        reduce4(0, 1, 7, B)
        rne_many([B, B+1])
        for j in range(2): P(f'v_mul_f32 v{B+j}, v{B+j}, v{B+28+j}')
        rne_many([B, B+1])
        for j in range(2): P(f'v_add_f32 v{120+j}, v{B+j}, v{116+j}')
        rne_many([120, 121])
    if cfg.pipe: poll2(red_loads(7), red_check(7), xp_post, 16, 48, 8)
    else:
        poll(red_loads(7)(16), lambda: red_check(7)(16))
        if cfg.debug: P('s_sub_u32 s84, 0x8000, s64')
        xp_post(16)
    P(f"""
    s_add_u32 s59, s57, {X2}
    s_mov_b64 exec, 0xffffffff
    buffer_store_dwordx4 v[120:123], v118, s[44:47], s59 offen sc1
    s_mov_b64 exec, -1
    """)
    stamp(6)
    P(f's_add_u32 s48, s56, {FP}')
    for i in range(1, 9): P(f's_add_u32 s{48+i}, s{47+i}, {16*PS}')
    P(f's_add_u32 s58, s57, {MODF+864*16}')
    srd(40, 30, 1152)
    def fp_post(B):
        reduce4(0, 1, 9, B)
        rne_many([B, B+1])
        for j in range(2): P(f'v_mul_f32 v{B+j}, v{B+j}, v{B+36+j}')
        rne_many([B, B+1])
        for j in range(2): P(f'v_add_f32 v{8+j}, v{B+j}, v{120+j}')
        for j in range(2): P(f'v_cvt_pk_bf16_f32 v{8+j}, v{8+j}, v{8+j}')
    if cfg.pipe: poll2(red_loads(9), red_check(9), fp_post, 24, 64, 10)
    else:
        poll(red_loads(9)(24), lambda: red_check(9)(24))
        if cfg.debug: P('s_sub_u32 s86, 0x8000, s64')
        fp_post(24)
    P(f"""
    s_mov_b64 exec, 0xf
    buffer_store_short v8, v113, s[40:43], 0 offen
    buffer_store_short v9, v113, s[40:43], 0 offen offset:16
    s_mov_b64 exec, -1
    """)
    stamp(7)
    P(f"""
    s_mul_i32 s55, s4, 7
    s_add_u32 s55, s55, s5
    s_cmp_lg_u32 s55, 0
    s_cbranch_scc1 L_exit
    v_mov_b32 v4, {EPOCH}
    v_mov_b32 v8, s6
    v_mov_b32 v9, s7
    s_mov_b64 exec, 1
    buffer_store_dwordx2 v[8:9], v4, s[44:47], 0 offen sc1
    s_mov_b64 exec, -1
    """)
    end_wave()

def commF_role():
    P('L_commF:')
    role(6)
    P('s_setprio 3')
    SB, CB, XA = 32, 52, 72
    P(f"""
    v_lshlrev_b32 v4, 4, v1             ; granule l
    v_and_b32 v5, 31, v1
    v_lshlrev_b32 v5, 4, v5
    s_mov_b32 s56, {MODF+288*16}
    s_mov_b32 s57, {MODF+576*16}
    s_add_u32 s58, s56, 4096
    s_add_u32 s59, s57, 4096
    s_and_b32 s52, s2, 7
    s_mul_i32 s52, s52, {X2S}
    s_add_u32 s52, s52, {X2}
    s_add_u32 s53, s52, 4096
    v_cmp_gt_u32 s[54:55], 32, v1
    """)
    lds_wait(FL_PUB, 1, sleep=1)
    def gl(base, sreg, sreg2):
        return [f'buffer_load_dwordx4 v[{base+4*n}:{base+4*n+3}], v4, s[44:47], {sreg} offen offset:{1024*n} sc1' for n in range(4)] + \
               [f'buffer_load_dwordx4 v[{base+16}:{base+19}], v5, s[44:47], {sreg2} offen sc1']
    def chk():
        check_g([SB+4*n for n in range(5)])()
        P('s_mov_b64 s[62:63], vcc')
        check_g([CB+4*n for n in range(5)])()
        P('s_or_b64 vcc, vcc, s[62:63]')
    poll(gl(SB, 's56', 's58') + gl(CB, 's57', 's59'), chk)
    cbv = [CB+4*n+j for n in range(5) for j in range(2)]
    sbv = [SB+4*n+j for n in range(5) for j in range(2)]
    xav = [XA+4*n+j for n in range(5) for j in range(2)]
    for r in cbv: P(f'v_add_f32 v{r}, 1.0, v{r}')
    rne_many(cbv)
    P('v_lshlrev_b32 v6, 2, v1')
    def x2_post(B):
        prs = [B+4*n for n in range(5)]
        xv = [p+j for p in prs for j in range(2)]
        for r in xv[8:]: P(f'v_cndmask_b32 v{r}, 0, v{r}, s[54:55]')
        P(f'v_pk_add_f32 v[112:113], v[{prs[0]}:{prs[0]+1}], v[{prs[1]}:{prs[1]+1}]')
        P(f'v_pk_add_f32 v[114:115], v[{prs[2]}:{prs[2]+1}], v[{prs[3]}:{prs[3]+1}]')
        P(f'v_pk_add_f32 v[112:113], v[112:113], v[{prs[4]}:{prs[4]+1}]')
        P(f'v_pk_add_f32 v[112:113], v[112:113], v[114:115]')
        P('v_add_f32 v112, v112, v113')
        wave_sum('v112', 'v113')
        P(f's_mov_b32 s60, {f32hex(1.0/576.0):#x}')
        P('v_mul_f32 v112, s60, v112')
        P('v_mov_b32 v113, v112')
        for p in prs: P(f'v_pk_add_f32 v[{p+2}:{p+3}], v[{p}:{p+1}], v[112:113] neg_lo:[0,1] neg_hi:[0,1]')
        for j in range(2): P(f'v_cndmask_b32 v{prs[4]+2+j}, 0, v{prs[4]+2+j}, s[54:55]')
        P(f'v_pk_mul_f32 v[114:115], v[{prs[0]+2}:{prs[0]+3}], v[{prs[0]+2}:{prs[0]+3}]')
        for p in prs[1:]: P(f'v_pk_fma_f32 v[114:115], v[{p+2}:{p+3}], v[{p+2}:{p+3}], v[114:115]')
        P('v_add_f32 v114, v114, v115')
        wave_sum('v114', 'v115')
        P('v_mul_f32 v114, s60, v114')
        rne('v114', 'v114')
        P(f'v_add_f32 v114, {f32hex(1e-5):#x}, v114')
        rne('v114', 'v114')
        P('v_sqrt_f32 v114, v114')
        rne('v114', 'v114')
        P('v_rcp_f32 v114, v114')
        rne('v112', 'v112')
        P('v_mov_b32 v113, v112\nv_mov_b32 v115, v114\ns_mov_b32 s61, 0xffff0000')
        def rne2():
            for p in prs: P(f'v_cvt_pk_bf16_f32 v{p+2}, v{p}, v{p+1}')
            for p in prs:
                P(f'v_lshlrev_b32 v{p}, 16, v{p+2}')
                P(f'v_and_b32 v{p+1}, s61, v{p+2}')
        for p in prs: P(f'v_pk_add_f32 v[{p}:{p+1}], v[{p}:{p+1}], v[112:113] neg_lo:[0,1] neg_hi:[0,1]')
        rne2()
        for p in prs: P(f'v_pk_mul_f32 v[{p}:{p+1}], v[{p}:{p+1}], v[114:115]')
        rne2()
        for n, p in enumerate(prs): P(f'v_pk_mul_f32 v[{p}:{p+1}], v[{p}:{p+1}], v[{CB+4*n}:{CB+4*n+1}]')
        rne2()
        for n, p in enumerate(prs): P(f'v_pk_add_f32 v[{p}:{p+1}], v[{p}:{p+1}], v[{SB+4*n}:{SB+4*n+1}]')
        for n in range(5): P(f'v_cvt_pk_bf16_f32 v{B+4*n}, v{B+4*n}, v{B+4*n+1}')
        for n in range(4): P(f'ds_write_b32 v6, v{B+4*n} offset:{L_XS+256*n}')
        P(f"""
        s_mov_b64 exec, 0xffffffff
        ds_write_b32 v6, v{B+16} offset:{L_XS+1024}
        s_mov_b64 exec, -1
        """)
    if cfg.pipe: poll2(lambda B: gl(B, 's52', 's53'), lambda B: check_g([B+4*n for n in range(5)])(), x2_post, 72, 92, 5)
    else:
        poll(gl(72, 's52', 's53'), check_g([72+4*n for n in range(5)])); x2_post(72)
    stamp(7)
    P("""
    s_waitcnt lgkmcnt(0)
    s_barrier
    """)
    end_wave()

def gu_role(nkv):
    RAW = 32
    NA = cfg.gu_early
    P('L_gu:')
    role(7)
    def setup():
        P(f"""
        s_sub_u32 s53, s3, 1              ; i
        s_lshr_b32 s54, s53, 1            ; matrix
        s_and_b32 s55, s53, 1             ; K half
        s_cmp_eq_u32 s54, 0
        s_cselect_b32 s36, s20, s22
        s_cselect_b32 s37, s21, s23
        s_mov_b32 s38, {576*9216}
        s_mov_b32 s39, 0x20000
        s_mul_i32 s56, s4, 9
        s_add_u32 s56, s56, s5
        s_sub_u32 s56, s56, 7             ; phi
        s_lshl_b32 s56, s56, 6
        s_mul_i32 s57, s55, {9*32*9216}
        s_add_u32 s56, s56, s57
        s_mov_b32 s58, 0x05040100
        s_mov_b32 s59, 0x07060302
        """)
    def loads(u, thr=True):
        for j in range(8):
            off = (32*u + 8*(j & 3) + (j >> 2)) * 9216
            P(f's_add_u32 s57, s56, {off}')
            if thr and cfg.gul and 8*(u-NA) + j >= cfg.gul: P(f's_waitcnt vmcnt({cfg.gul-1})')
            P(f'buffer_load_dword v{RAW+8*u+j}, v4, s[36:39], s57 offen nt')
    def perm(u):
        src = RAW + 8*u
        dst = src - 8
        for i in range(4):
            P(f'v_perm_b32 v{dst+i}, v{src+2*i+1}, v{src+2*i}, s58')
            P(f'v_perm_b32 v{dst+4+i}, v{src+2*i+1}, v{src+2*i}, s59')
    if cfg.pf_gu:
        P('s_cmp_lg_u32 s3, 1\ns_cbranch_scc1 L_gu_nopf')
        prefetch_code()
        P('L_gu_nopf:')
    setup()
    P(f"""
    v_mul_u32_u24 v4, {2*9216}, v3
    v_lshl_add_u32 v4, v2, 2, v4
    """)
    for u in range(NA):
        loads(u, thr=False)
        if u == 0: P('s_barrier')
    if NA == 0: P('s_barrier')
    lds_add(C_GA)
    tag_ready()
    q_fetch('L_gu2')
    P('L_gu2:')
    stamp(5)
    if cfg.pf2 & 1:
        P('s_cmp_lg_u32 s3, 2\ns_cbranch_scc1 L_gu_nopf2')
        prefetch_code('2', 16)
        P('s_waitcnt vmcnt(0)')
        P('L_gu_nopf2:')
        P(f'v_mul_u32_u24 v4, {2*9216}, v3\nv_lshl_add_u32 v4, v2, 2, v4')
    setup()
    P('s_waitcnt vmcnt(0)')
    for u in range(NA): perm(u)
    if cfg.gu_gate == 'pub': lds_wait(FL_PUB, 1, sleep=2)
    else: lds_wait(C_KVI, nkv, sleep=2)
    stamp(1)
    DEPTH = cfg.gu_depth
    for u in range(NA, 9):
        if cfg.gu_dyn and u > NA:
            l = P.lbl('Lgd')
            P(f"""
            v_mov_b32 v7, 0
            ds_read_b32 v6, v7 offset:{FL_PUB}
            s_waitcnt lgkmcnt(0)
            v_readfirstlane_b32 s60, v6
            s_cmp_lg_u32 s60, 0
            s_cbranch_scc1 {l}
            s_waitcnt vmcnt({cfg.gu_dyn})
            {l}:
            """)
        loads(u)
        if u - DEPTH >= NA:
            P(f's_waitcnt vmcnt({8*DEPTH})')
            perm(u - DEPTH)
    for u in range(max(NA, 9 - DEPTH), 9):
        P(f's_waitcnt vmcnt({8*(8-u)})')
        perm(u)
    stamp(2)
    P(f"""
    s_mul_i32 s57, s55, {9*64}
    v_lshlrev_b32 v5, 4, v3
    v_add_u32 v5, s57, v5
    s_lshl_b32 s57, s53, 7
    v_lshlrev_b32 v6, 3, v1
    v_add_u32 v6, s57, v6
    s_barrier
    """)
    stamp(3)
    AF = [96+4*u for u in range(8)] + [20]
    for u in range(9): P(f'ds_read_b128 v[{AF[u]}:{AF[u]+3}], v5 offset:{L_XS+64*u}')
    for u in range(9):
        P(f's_waitcnt lgkmcnt({8-u})')
        f0 = RAW - 8 + 8*u
        c0 = '0' if u == 0 else 'v[8:11]'
        c1 = '0' if u == 0 else 'v[12:15]'
        P(f'v_mfma_f32_16x16x32_bf16 v[8:11], v[{AF[u]}:{AF[u]+3}], v[{f0}:{f0+3}], {c0}')
        P(f'v_mfma_f32_16x16x32_bf16 v[12:15], v[{AF[u]}:{AF[u]+3}], v[{f0+4}:{f0+7}], {c1}')
    P(f"""
    v_mov_b32 v16, v8
    v_mov_b32 v17, v12
    s_mov_b64 exec, 0xffff
    ds_write_b64 v6, v[16:17] offset:{L_RED3}
    s_mov_b64 exec, -1
    s_waitcnt lgkmcnt(0)
    s_barrier
    """)
    stamp(4)
    end_wave()

def build():
    global CODE_PF
    CODE_PF = 4
    prologue()
    cF, cQ, cM = cfg.cF, cfg.cQ, cfg.cM
    assert 9*cF + 4*cQ + 3*cM == 256 and cF % 2 == 0 and cQ % 2 == 0 and cM % 2 == 0 and cF//2 >= 6 and cQ <= 12 and cM <= 12
    mod_role()
    wq_role()
    kv_role('L_kvF', cF//2, lambda: P(f's_sub_u32 s52, s5, 7\ns_mul_i32 s52, s52, {cF}\ns_add_u32 s52, s52, {3*cM+4*cQ}'), (C_GA, 4) if cfg.gu_early else None, True, cfg.kF)
    kv_role('L_kvM', cM//2, lambda: P(f's_mul_i32 s52, s5, {cM}'), ((C_B2, 6) if cfg.m_order == 'a_b_kv_wo' else ((C_H, 1) if cfg.order2 else (C_WO, 3))), False, cfg.kM)
    kv_role('L_kvQ', cQ//2, lambda: P(f's_sub_u32 s52, s5, 3\ns_mul_i32 s52, s52, {cQ}\ns_add_u32 s52, s52, {3*cM}'), ((C_WO, 3) if cfg.q_order == 'wo_kv' else (C_G, 1)), False, cfg.kQ)
    wo_role('Q', cQ//2)
    wo_role('M', cM//2)
    wo_common()
    commA_role()
    gu_role(cF//2)
    down_role()
    commF_role()

    P('L_abort:')
    P('s_mov_b64 exec, -1')
    P('L_exit:')
    if cfg.debug:
        P(f"""
        s_waitcnt lgkmcnt(0)
        s_lshl_b32 s60, s2, 4
        s_add_u32 s60, s60, s3
        s_lshl_b32 s60, s60, 6
        s_add_u32 s60, s60, {DBG}
        s_memrealtime s[96:97]
        s_waitcnt lgkmcnt(0)
        v_mov_b32 v8, s96
        """)
        for i in range(8): P(f'v_writelane_b32 v8, s{80+2*i}, {i}')
        P(f"""
        v_and_b32 v1, 63, v0
        v_lshlrev_b32 v7, 2, v1
        s_mov_b64 exec, 0x1ff
        buffer_store_dword v8, v7, s[44:47], s60 offen
        """)
    if cfg.hdbg:
        SL = {(3, 3): 3, (2, 2): 4, (2, 4): 5, (1, 3): 6, (1, 5): 7, (1, 6): 8, (5, 4): 9, (5, 6): 10, (6, 7): 11, (8, 6): 12, (7, 2): 13, (5, 7): 14, (6, 3): 6, (6, 5): 7, (6, 6): 8, (8, 3): 6, (8, 5): 7, (4, 7): 15}
        P("""
        s_waitcnt lgkmcnt(0)
        s_memrealtime s[96:97]
        s_mov_b32 s68, s32
        s_mov_b32 s69, s33
        s_mov_b32 s70, 256
        s_mov_b32 s71, 0x20000
        s_mov_b64 exec, 1
        s_waitcnt lgkmcnt(0)
        v_mov_b32 v8, s96
        v_mov_b32 v9, 4
        buffer_atomic_umax v8, v9, s[68:71], 0 offen sc1
        s_not_b32 s96, s80
        v_mov_b32 v8, s96
        v_mov_b32 v9, 0
        buffer_atomic_umax v8, v9, s[68:71], 0 offen sc1
        v_mov_b32 v8, s80
        v_mov_b32 v9, 8
        buffer_atomic_umax v8, v9, s[68:71], 0 offen sc1
        """)
        for r in range(1, 9):
            l = P.lbl('Lhd')
            P(f's_cmp_lg_u32 s98, {r}')
            P(f's_cbranch_scc1 {l}')
            for (rr, k), slot in SL.items():
                if rr == r:
                    P(f'v_mov_b32 v8, s{80+2*k}')
                    P(f'v_mov_b32 v9, {4*slot}')
                    P('buffer_atomic_umax v8, v9, s[68:71], 0 offen sc1')
            P(f'{l}:')
    P('L_end:')
    P('s_endpgm')
    P('L_codeend:')
    P.finalize()
    body = P.text()
    return (HEADER_COMMENT +
f"""; @launch grid=(256,1,1) block=(1024,1,1) lds={LDS_BYTES}
.amdgcn_target "amdgcn-amd-amdhsa--gfx950"
.text
.globl {KN}
.p2align 8
.type {KN},@function
{KN}:
{body}
.section .rodata,"a"
.p2align 6
.amdhsa_kernel {KN}
  .amdhsa_next_free_vgpr 128
  .amdhsa_next_free_sgpr 102
  .amdhsa_accum_offset 128
  .amdhsa_group_segment_fixed_size 0
  .amdhsa_kernarg_size 112
  .amdhsa_user_sgpr_count 2
  .amdhsa_user_sgpr_kernarg_segment_ptr 1
  .amdhsa_system_sgpr_workgroup_id_x 1
.end_amdhsa_kernel
""")

if __name__ == '__main__':
    import argparse
    ap = argparse.ArgumentParser()
    ap.add_argument('-o', default='k.s')
    ap.add_argument('--debug', action='store_true')
    ap.add_argument('--tiles', default='22,4,14')
    ap.add_argument('--set', nargs='*', default=[])
    a = ap.parse_args()
    cfg.debug = a.debug
    cfg.cF, cfg.cQ, cfg.cM = map(int, a.tiles.split(','))
    for kv in a.set:
        k, v = kv.split('=')
        old = getattr(cfg, k)
        setattr(cfg, k, type(old)(int(v)) if isinstance(old, (bool, int)) else v)
    open(a.o, 'w').write(build())
```
